```python
import torch

def _softmax(x, axis=-1):
    return torch.softmax(x, dim=axis)
def _gelu(x):
    return torch.nn.functional.gelu(x, approximate="tanh")
def _silu(x):
    return torch.nn.functional.silu(x)
def _sigmoid(x):
    return torch.sigmoid(x)
def _layernorm(x, axis=-1, eps=1e-5):
    m = x.mean(dim=axis, keepdim=True)
    v = x.var(dim=axis, keepdim=True, unbiased=False)
    return (x - m) / torch.sqrt(v + eps)
def _scatter_add(tgt, idx, src, axis=0):
    return tgt.clone().index_add_(axis, idx, src)
def _segment_sum(src, seg, n):
    out = torch.zeros((n,) + src.shape[1:], dtype=src.dtype)
    return out.index_add_(0, seg, src)
def _pad(x, pw):
    flat = tuple(v for pair in reversed(pw) for v in pair)
    return torch.nn.functional.pad(x, flat)

kernel_name = 'concat_heads__gqa_block_cached__mha_block_cached__near_ridge'

def setup_inputs():

    _w = (lambda a: (lambda t: t.to(torch.bfloat16) if t.is_floating_point() else t)(torch.as_tensor(a)))
    def _A_setup():
        B, Sq, D = 8, 64, 448
        Hq, Hkv, Sk, Dh = 16, 8, 512, 256
        assert Hq % Hkv == 0, (Hq, Hkv)
        return {
            "x": _w((lambda *s: torch.randn(*s, dtype=torch.bfloat16) * 0.8)(B, Sq, D)),
            "k_cache": _w((lambda *s: torch.randn(*s, dtype=torch.bfloat16) * 0.8)(B, Hkv, Sk, Dh)),
            "v_cache": _w((lambda *s: torch.randn(*s, dtype=torch.bfloat16) * 0.05)(B, Hkv, Sk, Dh)),
            "wq": _w((lambda *s: torch.randn(*s, dtype=torch.bfloat16) * 0.8)(D, Hq * Dh) * (D ** -0.5)),
            "wo": _w((lambda *s: torch.randn(*s, dtype=torch.bfloat16) * 0.05)(Hq * Dh, D) * ((Hq * Dh) ** -0.5)),
        }
    _A_in = _A_setup()

    def _B_setup():
        B, Sq, D = 8, 64, 448
        H, Sk, Dh = 16, 512, 256
        return {
            "x": _w((lambda *s: torch.randn(*s, dtype=torch.bfloat16) * 0.8)(B, Sq, D)),
            "k_cache": _w((lambda *s: torch.randn(*s, dtype=torch.bfloat16) * 0.8)(B, H, Sk, Dh)),
            "v_cache": _w((lambda *s: torch.randn(*s, dtype=torch.bfloat16) * 0.05)(B, H, Sk, Dh)),
            "wq": _w((lambda *s: torch.randn(*s, dtype=torch.bfloat16) * 0.8)(D, H * Dh) * (D ** -0.5)),
            "wo": _w((lambda *s: torch.randn(*s, dtype=torch.bfloat16) * 0.05)(H * Dh, D) * ((H * Dh) ** -0.5)),
        }
    _B_in = _B_setup()

    return {
        "A_x": _A_in["x"],
        "A_k_cache": _A_in["k_cache"],
        "A_v_cache": _A_in["v_cache"],
        "A_wq": _A_in["wq"],
        "A_wo": _A_in["wo"],
        "B_x": _B_in["x"],
        "B_k_cache": _B_in["k_cache"],
        "B_v_cache": _B_in["v_cache"],
        "B_wq": _B_in["wq"],
        "B_wo": _B_in["wo"],
    }

def reference(A_x, A_k_cache, A_v_cache, A_wq, A_wo, B_x, B_k_cache, B_v_cache, B_wq, B_wo):
    def _A_ref(x, k_cache, v_cache, wq, wo):
        B, Sq, D = x.shape
        Hq, Dh = 16, 256
        Hkv = k_cache.shape[1]
        rep = Hq // Hkv
        q = (lambda x, *d: x.permute(*d))((x @ wq).reshape(B, Sq, Hq, Dh), 0, 2, 1, 3)
        k = (lambda x, n, axis: torch.repeat_interleave(x, n, dim=axis))(k_cache, rep, axis=1)
        v = (lambda x, n, axis: torch.repeat_interleave(x, n, dim=axis))(v_cache, rep, axis=1)
        scores = torch.einsum("bhqd,bhkd->bhqk", q, k) * (Dh ** -0.5)
        p = _softmax(scores, axis=-1)
        o = torch.einsum("bhqk,bhkd->bhqd", p, v)
        return (lambda x, *d: x.permute(*d))(o, 0, 2, 1, 3).reshape(B, Sq, Hq * Dh) @ wo

    def _B_ref(x, k_cache, v_cache, wq, wo):
        B, Sq, D = x.shape
        H, Dh = 16, 256
        q = (lambda x, *d: x.permute(*d))((x @ wq).reshape(B, Sq, H, Dh), 0, 2, 1, 3)
        scores = torch.einsum("bhqd,bhkd->bhqk", q, k_cache) * (Dh ** -0.5)
        p = _softmax(scores, axis=-1)
        o = torch.einsum("bhqk,bhkd->bhqd", p, v_cache)
        return (lambda x, *d: x.permute(*d))(o, 0, 2, 1, 3).reshape(B, Sq, H * Dh) @ wo

    a = _A_ref(A_x, A_k_cache, A_v_cache, A_wq, A_wo)
    b = _B_ref(B_x, B_k_cache, B_v_cache, B_wq, B_wo)
    return torch.concatenate([a, b], axis=-1)
```

```python
import re

REG = re.compile(r"\b([vas])(\d+)\b|\b([vas])\[(\d+):(\d+)\]|\b(vcc|exec|m0|scc)\b")
TRANS = ("v_exp_f32", "v_log_f32", "v_rcp_f32", "v_rsq_f32", "v_sqrt_f32")


def regs_of(tok):
    out = []
    for m in REG.finditer(tok):
        if m.group(1):
            out.append(m.group(1) + m.group(2))
        elif m.group(3):
            out += [m.group(3) + str(i) for i in range(int(m.group(4)), int(m.group(5)) + 1)]
        else:
            out.append(m.group(6))
    return out


def split_ops(s):
    ops, depth, cur = [], 0, ""
    for ch in s:
        if ch == "[":
            depth += 1
        if ch == "]":
            depth -= 1
        if ch == "," and depth == 0:
            ops.append(cur.strip())
            cur = ""
        else:
            cur += ch
    if cur.strip():
        ops.append(cur.strip())
    return ops


class Ins:
    def __init__(self, text, after=(), raw=False):
        self.text = text
        self.after = list(after)
        self.rd, self.wr = set(), set()
        self.kind = "other"
        self.srcC = set()
        self.srcAB = set()
        self.passes = 0
        self.store_data = set()
        if raw or text.endswith(":") or text.startswith(";") or text.startswith("."):
            self.kind = "label" if text.endswith(":") else "meta"
            return
        mn, _, rest = text.partition(" ")
        self.mn = mn
        ops = split_ops(rest)
        R = [regs_of(o) for o in ops]
        flat = lambda xs: {r for x in xs for r in x}
        if mn.startswith("v_mfma"):
            self.kind = "mfma"
            self.passes = 8 if "32x32x16" in mn else 4
            self.wr = set(R[0])
            self.srcAB = set(R[1]) | set(R[2])
            self.srcC = set(R[3])
            self.rd = self.srcAB | self.srcC
        elif mn.startswith("ds_read"):
            self.kind = "ds_read"
            self.wr, self.rd = set(R[0]), flat(R[1:])
        elif mn.startswith("ds_write"):
            self.kind = "ds_write"
            self.rd = flat(R)
        elif mn.startswith("buffer_load") and text.rstrip().endswith("lds"):
            self.kind = "dma"
            self.rd = flat(R) | {"m0"}
        elif mn.startswith("buffer_load"):
            self.kind = "vload"
            self.wr, self.rd = set(R[0]), flat(R[1:])
        elif mn.startswith("buffer_store") or mn.startswith("buffer_atomic"):
            self.kind = "vstore"
            self.rd = flat(R)
            if mn.endswith("x4") or mn.endswith("x3"):
                self.store_data = set(R[0])
        elif mn.startswith("s_load") or mn in ("s_memtime", "s_memrealtime"):
            self.kind = "smem"
            self.wr, self.rd = set(R[0]), flat(R[1:])
        elif mn in ("s_waitcnt", "s_barrier", "s_nop", "s_endpgm", "s_setprio", "s_sleep") or \
                mn.startswith("s_cbranch") or mn == "s_branch":
            self.kind = "ctl"
            if "vcc" in mn:
                self.rd = {"vcc"}
        elif mn.startswith("s_cmp"):
            self.kind = "salu"
            self.rd, self.wr = flat(R), {"scc"}
        elif mn.startswith("s_"):
            self.kind = "salu"
            self.wr, self.rd = set(R[0]), flat(R[1:])
        elif mn.startswith("v_permlane"):
            self.kind = "valu"
            self.wr = self.rd = flat(R)
        elif mn.startswith("v_"):
            self.kind = "trans" if mn.startswith(TRANS) else "valu"
            self.wr, self.rd = set(R[0]), flat(R[1:])
            if mn.startswith("v_fmac") or mn.startswith("v_dot2c"):
                self.rd |= self.wr
        else:
            raise ValueError(text)

    @property
    def states(self):
        if self.kind in ("label", "meta"):
            return 0
        if self.text.startswith("s_nop"):
            return int(self.text.split()[1]) + 1
        return 1


VM = ("dma", "vload", "vstore")
LG = ("ds_read", "ds_write")


def need_states(p, c):
    n = 0
    valu_p = p.kind in ("valu", "trans")
    valu_c = c.kind in ("valu", "trans")
    vwr = {r for r in p.wr if r[0] in "va" and r != "vcc"}
    swr = {r for r in p.wr if r[0] == "s" or r == "vcc"}
    if valu_p:
        if c.kind == "mfma" and vwr & c.rd:
            n = max(n, 2)
        if valu_c and c.mn.startswith("v_permlane") and vwr & c.rd:
            n = max(n, 2)
        if valu_c and c.mn.startswith(("v_readfirstlane", "v_readlane")) and vwr & c.rd:
            n = max(n, 1)
        if valu_c and "dpp" in c.text and vwr & c.rd:
            n = max(n, 2)
        if p.kind == "trans" and c.kind == "valu" and vwr & c.rd:
            n = max(n, 1)
        if c.kind in VM and swr & c.rd:
            n = max(n, 5)
        if valu_c and swr & c.rd:
            n = max(n, 2)
        if c.kind in ("salu", "ctl", "smem") and swr & c.rd:
            n = max(n, 4)
        if "op_sel" in p.text and valu_c and vwr & (c.rd | c.wr):
            n = max(n, 1)
    if p.kind == "salu" and "m0" in p.wr and c.kind == "dma":
        n = max(n, 1)
    if p.kind == "salu" and "exec" in p.wr and c.kind in VM + LG + ("valu", "trans", "mfma"):
        n = max(n, 1)
    if p.kind == "mfma":
        big = {8: 12, 4: 8}[p.passes]
        if c.kind == "mfma":
            if p.wr & c.srcAB:
                n = max(n, big)
            if p.wr & c.srcC and (p.wr != c.srcC or p.passes != c.passes):
                n = max(n, big - 2)
            if p.wr & c.wr and not (p.wr & c.srcC):
                n = max(n, big)
        elif valu_c or c.kind in VM + LG:
            if p.wr & (c.rd | c.wr):
                n = max(n, big)
        if (valu_c or c.kind in ("ds_read", "vload")) and p.srcC & c.wr:
            n = max(n, {8: 7, 4: 3}[p.passes])
    if p.store_data and p.store_data & c.wr:
        n = max(n, 2)
    return n


class Prog:
    def __init__(self):
        self.ins = []

    def __call__(self, text, after=()):
        i = Ins(text.strip(), after)
        self.ins.append(i)
        return i

    def finalize(self):
        out = []
        vm, lg = [], []
        smem = []
        for i in self.ins:
            if i.kind == "label":
                assert not smem
            if i.text.startswith("s_waitcnt"):
                m = re.search(r"vmcnt\((\d+)\)", i.text)
                if m:
                    k = int(m.group(1))
                    vm = vm[len(vm) - k:] if k else []
                m = re.search(r"lgkmcnt\((\d+)\)", i.text)
                if m:
                    k = int(m.group(1))
                    if k == 0:
                        smem = []
                    lg = lg[len(lg) - k:] if k else []
                out.append(i)
                continue
            touched = i.rd | i.wr
            nv = nl = None
            for q, name in ((vm, "vm"), (lg, "lg")):
                last = -1
                for idx, o in enumerate(q):
                    dep = o in i.after or (o.wr & touched)
                    if o.kind == "ds_write" and (o.rd & i.wr) and i.kind != "salu":
                        dep = dep or False
                    if dep:
                        last = idx
                if last >= 0:
                    if name == "vm":
                        nv = len(q) - 1 - last
                    else:
                        nl = len(q) - 1 - last
            if any(o.wr & touched for o in smem):
                nl = 0
            if nl is not None and smem:
                nl = 0
            if nv is not None or nl is not None:
                parts = []
                if nv is not None:
                    nv = min(nv, 63)
                    parts.append(f"vmcnt({nv})")
                    vm = vm[len(vm) - nv:] if nv else []
                if nl is not None:
                    nl = min(nl, 15)
                    parts.append(f"lgkmcnt({nl})")
                    lg = lg[len(lg) - nl:] if nl else []
                    if nl == 0:
                        smem = []
                out.append(Ins("s_waitcnt " + " ".join(parts)))
            if i.kind in VM:
                vm.append(i)
            elif i.kind in LG:
                lg.append(i)
            elif i.kind == "smem":
                smem.append(i)
            out.append(i)
        final = []
        for i in out:
            if i.kind not in ("label", "meta"):
                need, dist = 0, 0
                for p in reversed(final):
                    if dist >= 20:
                        break
                    if p.kind not in ("label", "meta"):
                        need = max(need, need_states(p, i) - dist)
                    dist += p.states
                while need > 0:
                    k = min(need, 16)
                    final.append(Ins(f"s_nop {k-1}"))
                    need -= k
            final.append(i)
        self.final = final
        return "\n".join(("" if i.kind == "label" else "    ") + i.text for i in final) + "\n"
```

```python
import math, struct, sys
from asmlib import Prog

NAME = "concat_heads__gqa_block_cached__mha_block_cached__near_ridge"
SH, RING, RSZ, NSLOT = 0, 65536, 24576, 6
PBASE = 0x100000
FBASE = 0x10000
GRP = 917504

sX, sK, sV, sQ, sO, sWS, sOUT, sDBG = 8, 12, 16, 20, 24, 28, 32, 36
sW, sBR, sH, sB, sRING, sSO, sC, sGRP, sT0, sT1, sT2 = 40, 41, 42, 43, 44, 45, 46, 47, 48, 49, 50
sPT = 52
sST = 64
vL = 1
vDX, vDQ, vDK, vDV, vDO = 8, 9, 13, 17, 21
vRX, vRQ, vRK, vRV, vRO = 25, 29, 31, 35, 37
vLIN, vWR, vOA, vOW, vIW, vIR = 41, 42, 43, 47, 6, 8
vMC, vLS = 48, 56
vCNT = 7
ACC = 128


def f32(x):
    return "0x%08x" % struct.unpack("<I", struct.pack("<f", x))[0]


def vr(a, n):
    return f"v[{a}:{a+n-1}]" if n > 1 else f"v{a}"


def ar(a, n):
    return f"a[{a}:{a+n-1}]" if n > 1 else f"a{a}"


def srd(b):
    return f"s[{b}:{b+3}]"


DEFAULT = dict(
    nt_kv="", nt_w="", nt_x="", fused=True, stamps=False, st_fl="sc0 sc1", ld_fl="sc0 sc1",
    issue="Q0 Q1 K0 Q2 Q3 K1 Q4 Q5 K2 Q6 K3 Q7 Q8 K4 Q9 Q10 K5 Q11 K6 Q12 Q13 K7 "
          "K8 W0 K9 W1 K10 W2 K11 W3 K12 W4 K13 W5 K14 W6 K15 W7 "
          "V0 W8 V1 W9 V2 W10 V3 W11 V4 W12 V5 W13 V6 W14 V7 W15 V8 V9 V10 V11 V12 V13 V14 V15",
    ph1="Q0|Q1|K0 Q2|Q3|K1 Q4|Q5|K2 Q6|K3 Q7|Q8|K4 Q9|Q10|K5 Q11|K6 Q12|Q13",
    mid1="K7",
    ph2="K8|T0|T1|W0 K9|T2|T3|W1 K10|T4|T5|W2 K11|T6|T7|W3 K12|W4 K13|W5 K14|W6 K15",
    mid2="W7 W8 W9",
    ph3="V0|V1|V2|W10 V3|W11 V4|W12 V5|W13 V6|W14 V7|W15 V8|V9|V10|V11|V12|V13|V14|V15",
)


class Gen:
    def __init__(self, **kw):
        self.o = dict(DEFAULT)
        self.o.update(kw)
        self.p = Prog()
        self.issue_q = self.o["issue"].split()
        self.free = [(s, []) for s in range(NSLOT)]
        self.unit = {}
        self.nstamp = 0
        self.buf = 0

    def stamp(self):
        if self.o["stamps"]:
            self.p(f"s_memrealtime s[{sST + 2*self.nstamp}:{sST + 2*self.nstamp + 1}]")
            self.p("s_waitcnt lgkmcnt(0)")
            self.nstamp += 1

    def ids(self, exit_label, limit):
        p = self.p
        p(f"s_cmp_ge_u32 s2, {limit}")
        p(f"s_cbranch_scc1 {exit_label}")

    def dma_items(self):
        if not self.issue_q or not self.free:
            return []
        name = self.issue_q.pop(0)
        slot, reads = self.free.pop(0)
        kind, u = name[0], int(name[1:])
        r, v, so, nt = {
            "Q": (sQ, vDQ, u * 32 * 8192, self.o["nt_w"]),
            "K": (sK, vDK, (u // 4) * 65536 + (u % 4) * 128, self.o["nt_kv"]),
            "V": (sV, vDV, u * 16384, self.o["nt_kv"]),
            "W": (sO, vDO, u * 16 * 896, self.o["nt_w"]),
        }[kind]
        dm = []
        self.unit[name] = (slot, dm)
        p = self.p

        def head():
            p(f"s_add_u32 m0, s{sRING}, {slot*4096}")
            p(f"s_mov_b32 s{sSO}, {so}")

        def piece(j):
            def f():
                if j == 0:
                    head()
                off = f" offset:{1024*j}" if j else ""
                fl = f" {nt}" if nt else ""
                dm.append(p(f"buffer_load_dwordx4 v{v+j}, {srd(r)}, s{sSO} offen{off}{fl} lds",
                            after=reads if j == 0 else ()))
            return f
        return [piece(j) for j in range(4)]

    def unit_reads(self, name, base):
        kind, u = name[0], int(name[1:])
        p = self.p
        items, done = [], []
        if kind == "T":
            return items, done
        slot, dm = self.unit[name]
        so = slot * 4096

        def ring(text, pieces):
            items.append(lambda: done.append(p(text, after=[dm[j] for j in pieces])))

        def side(text):
            items.append(lambda: p(text))
        if kind in "QV":
            for ks in range(2):
                for mt in range(2):
                    for part in range(2):
                        d = base + (ks * 2 + mt) * 4 + part * 2
                        if kind == "Q":
                            ring(f"ds_read_b64_tr_b16 {vr(d,2)}, v{vRQ+mt} offset:{so + ks*2048 + part*512}",
                                 (2 * ks, 2 * ks + 1))
                        else:
                            ring(f"ds_read_b64_tr_b16 {vr(d,2)}, v{vRV+mt} offset:{so + ks*2048 + part*1024}",
                                 (2 * ks + part,))
                    qt = mt
                    d = base + 16 + (ks * 2 + qt) * 4
                    if kind == "Q":
                        s = 2 * u + ks
                        side(f"ds_read_b128 {vr(d,4)}, v{vRX + s % 4} offset:{(s // 4)*8192 + qt*4096}")
                    else:
                        side(f"ds_read_b128 {vr(d,4)}, v{vLIN} "
                             f"offset:{(u % 4)*16384 + (((u // 4)*2 + ks)*2 + qt)*1024}")
        elif kind == "K":
            for j in range(4):
                d = ar(128 + 16 * u + 4 * j, 4) if u < 8 else vr(base + 4 * j, 4)
                ring(f"ds_read_b128 {d}, v{vRK+j} offset:{so}", range(4))
        elif kind == "W":
            b = 128 + 16 * u if u < 8 else 16 * (u - 8)
            for part in range(2):
                for t in range(4):
                    ring(f"ds_read_b64_tr_b16 {ar(b + t*4 + part*2, 2)}, v{vRO+t} offset:{so + part*1024}",
                         (part, 2 + part))
        return items, done

    def unit_mfmas(self, name, base):
        kind, u = name[0], int(name[1:])
        out = []
        M = "v_mfma_f32_32x32x16_bf16"
        if kind in "QV":
            for ks in range(2):
                for mt, qt in ((0, 0), (1, 0), (0, 1), (1, 1)):
                    acc = vr(ACC + (mt * 2 + qt) * 16, 16)
                    c = "0" if (u == 0 and ks == 0) else acc
                    out.append(f"{M} {acc}, {vr(base + (ks*2+mt)*4, 4)}, {vr(base + 16 + (ks*2+qt)*4, 4)}, {c}")
        elif kind == "T" or (kind == "K" and u >= 8):
            t, cb = u // 4, u % 4
            for j in range(4):
                s = 4 * cb + j
                a = ar(128 + 16 * u + 4 * j, 4) if kind == "T" else vr(base + 4 * j, 4)
                for qt in range(2):
                    acc = vr(ACC + (t * 2 + qt) * 16, 16)
                    c = "0" if s == 0 else acc
                    out.append(f"{M} {acc}, {a}, {ar((s*2+qt)*4, 4)}, {c}")
        return out

    def window(self, mfmas, early, late, fill):
        p = self.p
        n = len(mfmas)
        if n == 0:
            for f in early + fill + late:
                f()
            return
        gaps = [[] for _ in range(n)]
        lo = min(1, n - 1)
        mid = n // 2
        for k, f in enumerate(early):
            gaps[lo + k * max(mid - lo, 1) // max(len(early), 1)].append(f)
        for k, f in enumerate(fill):
            gaps[k * n // len(fill)].append(f)
        span = max(n - 1 - mid + 1, 1)
        for k, f in enumerate(late):
            gaps[mid - 1 + k * span // len(late)].append(f)
        for m, g in zip(mfmas, gaps):
            p(m)
            for f in g:
                f()

    def release(self, names, dones):
        for nme, d in zip(names, dones):
            if nme[0] != "T":
                self.free.append((self.unit[nme][0], d))

    def all_dma(self):
        out = []
        while self.issue_q and self.free:
            out += self.dma_items()
        return out

    def run_phase(self, spec, fillers=None):
        groups = [g.split() for g in spec.split("|")]
        bufs = (64, 96)
        pend = []
        fillq = []
        for gi, g in enumerate(groups):
            base = bufs[self.buf]
            if g[-1][0] != "T":
                self.buf ^= 1
            early = self.all_dma()
            late, dones = [], []
            for nme in g:
                it, d = self.unit_reads(nme, base)
                late += it
                dones.append(d)
            take = fillq[:self.o.get("fill_per", 40)] if pend else []
            fillq = fillq[len(take):]
            self.window(pend, early, late, take)
            if fillers and gi > 0:
                fillq += fillers(groups[gi - 1][-1])
            self.release(g, dones)
            pend = self.unit_mfmas(g[-1], base)
        self.window(pend, self.all_dma(), [], fillq)
        return fillers(groups[-1][-1]) if fillers else []

    def mid_units(self, spec):
        st = []
        for nme in spec.split():
            def stage(nme=nme):
                for f in self.all_dma():
                    f()
                it, d = self.unit_reads(nme, 0)
                for f in it:
                    f()
                self.release([nme], [d])
            st.append(stage)
        return st

    def prologue(self):
        p, o = self.p, self.o
        self.ids("L_end", 256)
        self.stamp()
        p("s_lshr_b32 s4, s2, 3")
        p(f"s_lshr_b32 s{sBR}, s4, 4")
        p(f"s_mul_i32 s5, s{sBR}, 40")
        p("s_add_u32 s6, s0, s5")
        p("s_addc_u32 s7, s1, 0")
        p("s_load_dwordx8 s[84:91], s[6:7], 0")
        p("s_load_dwordx2 s[92:93], s[6:7], 32")
        p("s_load_dwordx4 s[96:99], s[0:1], 80")
        p("s_load_dwordx2 s[94:95], s[0:1], 96")
        p("s_and_b32 s3, s2, 7")
        p("s_and_b32 s5, s4, 1")
        p("s_lshl_b32 s3, s3, 1")
        p(f"s_add_u32 s{sH}, s3, s5")
        p(f"s_bfe_u32 s{sB}, s4, 0x30001")
        p(f"v_lshrrev_b32 v7, 6, v0")
        p(f"v_and_b32 v{vL}, 63, v0")
        p(f"v_readfirstlane_b32 s{sW}, v7")
        p(f"v_lshrrev_b32 v2, 3, v{vL}")
        p(f"v_and_b32 v3, 7, v{vL}")
        p(f"v_lshrrev_b32 v4, 4, v{vL}")
        p(f"s_mul_i32 s{sRING}, s{sW}, {RSZ}")
        p(f"s_add_u32 s{sRING}, s{sRING}, {RING}")
        p(f"s_and_b32 s{sT2}, s{sW}, 1")
        p(f"s_lshl_b32 s{sT0}, s{sT2}, 2")
        p(f"v_add_u32 v5, s{sT0}, v4")
        p("v_xor_b32 v5, v5, v3")
        p(f"s_lshl_b32 s{sT0}, s{sW}, 3")
        p(f"v_add_u32 v6, s{sT0}, v2")
        p("v_mul_u32_u24 v6, 896, v6")
        p(f"v_lshl_add_u32 v{vDX}, v5, 4, v6")
        p("v_and_b32 v5, 1, v4")
        p("v_lshlrev_b32 v5, 2, v5")
        p("v_xor_b32 v5, v5, v3")
        p(f"s_lshl_b32 s{sT0}, s{sW}, 7")
        p(f"v_lshl_add_u32 v5, v5, 4, s{sT0}")
        p(f"v_lshl_add_u32 v{vDQ}, v2, 13, v5")
        p(f"v_lshl_add_u32 v{vDV}, v2, 9, v5")
        for j in range(1, 4):
            p(f"v_add_u32 v{vDQ+j}, {j*(65536-1024)}, v{vDQ}")
        p("v_xor_b32 v5, v3, v4")
        p(f"s_lshl_b32 s{sT0}, s{sW}, 14")
        p(f"v_lshl_add_u32 v5, v5, 4, s{sT0}")
        p(f"v_lshl_add_u32 v{vDK}, v2, 9, v5")
        p(f"v_xor_b32 v5, 64, v{vDK}")
        p(f"v_add_u32 v{vDK+1}, 3072, v5")
        p(f"v_add_u32 v{vDK+2}, 6144, v{vDK}")
        p(f"v_add_u32 v{vDK+3}, 9216, v5")
        p(f"s_mul_i32 s{sT0}, s{sB}, 57344")
        p(f"s_add_u32 s{sX}, s84, s{sT0}")
        p(f"s_addc_u32 s{sX+1}, s85, 0")
        p(f"s_mov_b32 s{sX+2}, 57344")
        p(f"s_mov_b32 s{sX+3}, 0x20000")
        self.xd = []
        fl = f" {o['nt_x']}" if o["nt_x"] else ""
        p(f"s_lshl_b32 s{sT1}, s{sW}, 10")
        for cb in range(7):
            for hi in range(2):
                p(f"s_add_u32 m0, s{sT1}, {SH + cb*8192 + hi*4096}")
                p(f"s_mov_b32 s{sSO}, {cb*128 + hi*32*896}")
                self.xd.append(p(f"buffer_load_dwordx4 v{vDX}, {srd(sX)}, s{sSO} offen{fl} lds"))
        p(f"s_lshl_b32 s{sT0}, s{sH}, 9")
        p(f"s_add_u32 s{sQ}, s90, s{sT0}")
        p(f"s_addc_u32 s{sQ+1}, s91, 0")
        p(f"s_sub_u32 s{sQ+2}, 3670016, s{sT0}")
        p(f"s_mov_b32 s{sQ+3}, 0x20000")
        p(f"s_lshl_b32 s{sT0}, s{sB}, 4")
        p(f"s_add_u32 s{sT0}, s{sT0}, s{sH}")
        p(f"s_xor_b32 s{sT1}, s{sBR}, 1")
        p(f"s_lshr_b32 s{sT0}, s{sT0}, s{sT1}")
        p(f"s_lshl_b32 s{sT0}, s{sT0}, 18")
        for r, src in ((sK, 86), (sV, 88)):
            p(f"s_add_u32 s{r}, s{src}, s{sT0}")
            p(f"s_addc_u32 s{r+1}, s{src+1}, 0")
            p(f"s_mov_b32 s{r+2}, 262144")
            p(f"s_mov_b32 s{r+3}, 0x20000")
        p(f"s_mul_i32 s{sT0}, s{sH}, 229376")
        p(f"s_add_u32 s{sO}, s92, s{sT0}")
        p(f"s_addc_u32 s{sO+1}, s93, 0")
        p(f"s_mov_b32 s{sO+2}, 229376")
        p(f"s_mov_b32 s{sO+3}, 0x20000")
        for j in range(1, 4):
            p(f"v_add_u32 v{vDV+j}, {j*3072}, v{vDV}")
        p(f"v_bfe_u32 v5, v{vL}, 2, 2")
        p("v_xor_b32 v5, v5, v4")
        p(f"v_add_u32 v5, s{sT2}, v5")
        p("v_and_b32 v5, 3, v5")
        p(f"v_and_b32 v6, 3, v{vL}")
        p("v_lshlrev_b32 v6, 4, v6")
        p("v_lshl_add_u32 v5, v5, 6, v6")
        p("v_mul_u32_u24 v6, 896, v4")
        p(f"s_mul_i32 s{sT0}, s{sW}, 224")
        p(f"s_lshl_b32 s{sT1}, s{sT2}, 5")
        p(f"s_sub_u32 s{sT0}, s{sT0}, s{sT1}")
        p(f"v_add3_u32 v{vDO}, v5, v6, s{sT0}")
        for j in range(1, 4):
            p(f"v_add_u32 v{vDO+j}, {j*(3584-1024)}, v{vDO}")
        for f in self.all_dma():
            f()
        for r, src, n in ((sWS, 94, PBASE + 16 * GRP), (sOUT, 96, 917504), (sDBG, 98, 256)):
            p(f"s_mov_b32 s{r}, s{src}")
            p(f"s_mov_b32 s{r+1}, s{src+1}")
            p(f"s_mov_b32 s{r+2}, {n}")
            p(f"s_mov_b32 s{r+3}, 0x20000")
        p(f"s_lshl_b32 s{sGRP}, s{sBR}, 3")
        p(f"s_add_u32 s{sGRP}, s{sGRP}, s{sB}")
        p(f"s_mov_b32 s{sC}, {f32(math.log2(math.e) / 16)}")
        p(f"v_lshlrev_b32 v{vLIN}, 4, v{vL}")
        p(f"v_lshrrev_b32 v2, 5, v{vL}")
        p(f"v_bfe_u32 v3, v{vL}, 1, 3")
        p("v_xor_b32 v3, v3, v2")
        p(f"v_and_b32 v5, 31, v{vL}")
        p("v_lshlrev_b32 v5, 7, v5")
        p(f"v_lshl_add_u32 v{vRX}, v3, 4, v5")
        for j in range(1, 4):
            p(f"v_xor_b32 v{vRX+j}, {j*32}, v{vRX}")
        for j in range(4):
            p(f"v_add_u32 v{vRK+j}, s{sRING}, v{vRX+j}")
        p(f"v_and_b32 v3, 1, v{vL}")
        p("v_lshlrev_b32 v3, 4, v3")
        p(f"v_bfe_u32 v5, v{vL}, 1, 1")
        p("v_lshl_add_u32 v3, v5, 3, v3")
        p("v_and_b32 v5, 1, v4")
        p("v_lshl_add_u32 v3, v5, 5, v3")
        p(f"v_add_u32 v3, s{sRING}, v3")
        p(f"v_bfe_u32 v5, v{vL}, 2, 2")
        p(f"v_bfe_u32 v6, v{vL}, 3, 1")
        p("v_lshl_add_u32 v6, v6, 6, v3")
        p("v_lshl_add_u32 v6, v5, 7, v6")
        p(f"v_lshl_add_u32 v{vRQ}, v2, 10, v6")
        p(f"v_lshl_add_u32 v{vRV}, v2, 9, v6")
        p(f"v_xor_b32 v{vRQ+1}, 64, v{vRQ}")
        p(f"v_xor_b32 v{vRV+1}, 64, v{vRV}")
        p("v_mul_u32_u24 v6, 320, v5")
        p("v_add_u32 v6, v6, v3")
        p(f"v_lshl_add_u32 v{vRO}, v2, 11, v6")
        for t in range(1, 4):
            p(f"v_xor_b32 v{vRO+t}, {t*64}, v{vRO}")
        p(f"s_lshl_b32 s{sT0}, s{sW}, 14")
        p(f"v_add_u32 v{vWR}, s{sT0}, v{vLIN}")
        p(f"v_add_u32 v{vOW}, s{sRING}, v{vLIN}")
        p(f"s_lshl_b32 s{sT1}, s{sT2}, 10")
        p(f"s_add_u32 s{sT1}, s{sT1}, {RING}")
        p(f"v_add_u32 v{vOA}, s{sT1}, v{vLIN}")
        p(f"v_xor_b32 v{vOA+1}, 0x400, v{vOA}")
        p(f"v_add_u32 v{vOA+2}, {2*RSZ}, v{vOA}")
        p(f"v_add_u32 v{vOA+3}, {2*RSZ}, v{vOA+1}")
        p(f"s_add_u32 s{sT0}, s{sT0}, 8192")
        p(f"v_lshl_add_u32 v{vIR}, v{vL}, 3, s{sT0}")
        p(f"s_lshl_b32 s{sT0}, s{sW}, 9")
        p(f"s_add_u32 s{sT0}, s{sT0}, 8192")
        p(f"v_lshl_add_u32 v{vIW}, v{vL}, 3, s{sT0}")
        p(f"s_mul_i32 s3, s{sGRP}, {GRP}")
        p(f"s_lshl_b32 s4, s{sH}, 11")
        p("s_add_u32 s3, s3, s4")
        p(f"s_add_u32 s3, s3, {PBASE}")
        p(f"s_lshr_b32 s4, s{sW}, 1")
        p("s_mul_i32 s4, s4, 7")
        p(f"s_mul_i32 s5, s{sT2}, 3")
        p("s_add_u32 s4, s4, s5")
        for t in range(4):
            p(f"s_add_u32 s5, s{sT2}, {t}")
            p("s_and_b32 s5, s5, 3")
            p("s_add_u32 s5, s5, s4")
            p("s_lshr_b32 s6, s5, 1")
            p("s_lshl_b32 s6, s6, 2")
            p("s_and_b32 s5, s5, 1")
            p("s_add_u32 s5, s5, s6")
            p(f"s_lshl_b32 s6, s{sT2}, 1")
            p("s_add_u32 s5, s5, s6")
            p("s_lshl_b32 s6, s5, 15")
            p(f"s_add_u32 s{sPT + 2*t}, s6, s3")
            if t < 3:
                p("s_xor_b32 s6, s6, 0x10000")
                p(f"s_add_u32 s{sPT + 2*t + 1}, s6, s3")
        if o["fused"]:
            p(f"s_lshl_b32 s3, s{sGRP}, 4")
            p(f"s_add_u32 s3, s3, s{sH}")
            p("s_lshl_b32 s3, s3, 2")
            p(f"s_add_u32 s3, s3, s{sW}")
            p("s_lshl_b32 s3, s3, 7")
            p(f"s_add_u32 s60, s3, {FBASE}")
            p(f"v_and_b32 v2, 15, v{vL}")
            p("v_lshlrev_b32 v2, 2, v2")
            p("v_mov_b32 v3, 0")
            self.clr = p(f"buffer_store_dword v3, v2, {srd(sWS)}, s60 offen sc0 sc1")
        p("s_barrier", after=self.xd)
        self.stamp()

    def pack_and_write(self, addr):
        p = self.p
        tmp = 64
        for mt in range(2):
            for qt in range(2):
                for ks in range(2):
                    src = ACC + (mt * 2 + qt) * 16 + ks * 8
                    d = tmp + ((mt * 2 + qt) * 2 + ks) * 4
                    for k in range(4):
                        p(f"v_cvt_pk_bf16_f32 v{d+k}, v{src+2*k}, v{src+2*k+1}")
        w = []

        def writes():
            for mt in range(2):
                for qt in range(2):
                    for ks in range(2):
                        d = tmp + ((mt * 2 + qt) * 2 + ks) * 4
                        w.append(p(f"ds_write_b128 v{addr}, {vr(d,4)} offset:{((2*mt+ks)*2+qt)*1024}"))
            return w
        return writes

    def softmax_tile(self, t):
        p = self.p
        out = []
        for qt in range(2):
            s = ACC + (t * 2 + qt) * 16
            m, l = vMC + t * 2 + qt, vLS + t * 2 + qt
            seq = [f"v_max3_f32 v{m}, v{s}, v{s+1}, v{s+2}"]
            for k in range(3, 15, 2):
                seq.append(f"v_max3_f32 v{m}, v{m}, v{s+k}, v{s+k+1}")
            seq.append(f"v_max_f32 v{m}, v{m}, v{s+15}")
            seq.append(f"v_mul_f32 v{m}, s{sC}, v{m}")
            for k in range(16):
                seq.append(f"v_fma_f32 v{s+k}, v{s+k}, s{sC}, -v{m}")
            for k in range(16):
                seq.append(f"v_exp_f32 v{s+k}, v{s+k}")
                if k == 2:
                    seq.append(f"v_add_f32 v{l}, v{s}, v{s+1}")
                elif k > 2:
                    seq.append(f"v_add_f32 v{l}, v{l}, v{s+k-1}")
            seq.append(f"v_add_f32 v{l}, v{l}, v{s+15}")
            out += [(lambda x=x: p(x)) for x in seq]
        return out

    def softmax_finish(self, stages):
        p = self.p
        T = 64
        stages = list(stages)

        def stage():
            if stages:
                stages.pop(0)()
        for qt in range(2):
            m = [vMC + t * 2 + qt for t in range(4)]
            l = [vLS + t * 2 + qt for t in range(4)]
            M, L = T + qt, T + 2 + qt
            p(f"v_max3_f32 v{M}, v{m[0]}, v{m[1]}, v{m[2]}")
            p(f"v_max_f32 v{M}, v{M}, v{m[3]}")
            for t in range(4):
                p(f"v_sub_f32 v{T+4+t}, v{m[t]}, v{M}")
            for t in range(4):
                p(f"v_exp_f32 v{T+4+t}, v{T+4+t}")
            p(f"v_mul_f32 v{L}, v{l[0]}, v{T+4}")
            for t in range(1, 4):
                p(f"v_fmac_f32 v{L}, v{l[t]}, v{T+4+t}")
        p(f"v_permlane32_swap_b32 v{T}, v{T+1}")
        p(f"v_permlane32_swap_b32 v{T+2}, v{T+3}")
        p(f"v_max_f32 v{T+8}, v{T}, v{T+1}")
        p(f"v_sub_f32 v{T+4}, v{T}, v{T+8}")
        p(f"v_sub_f32 v{T+5}, v{T+1}, v{T+8}")
        p(f"v_exp_f32 v{T+4}, v{T+4}")
        p(f"v_exp_f32 v{T+5}, v{T+5}")
        p(f"v_mul_f32 v{T+9}, v{T+2}, v{T+4}")
        p(f"v_fmac_f32 v{T+9}, v{T+3}, v{T+5}")
        w = [p(f"ds_write_b64 v{vIW}, {vr(T+8,2)} offset:{r*16384}") for r in range(4)]
        stage()
        p("s_barrier", after=w)
        for r in range(4):
            p(f"ds_read_b64 {vr(T+10+2*r,2)}, v{vIR} offset:{r*512}")
        p(f"v_max3_f32 v{T}, v{T+10}, v{T+12}, v{T+14}")
        p(f"v_max_f32 v{T}, v{T}, v{T+16}")
        for r in range(4):
            p(f"v_sub_f32 v{T+4+r}, v{T+10+2*r}, v{T}")
        for r in range(4):
            p(f"v_exp_f32 v{T+4+r}, v{T+4+r}")
        p(f"v_mul_f32 v{T+1}, v{T+11}, v{T+4}")
        for r in range(1, 4):
            p(f"v_fmac_f32 v{T+1}, v{T+11+2*r}, v{T+4+r}")
        p(f"v_log_f32 v{T+1}, v{T+1}")
        p(f"v_add_f32 v{T}, v{T}, v{T+1}")
        p(f"v_mov_b32 v{T+1}, v{T}")
        p(f"v_permlane32_swap_b32 v{T}, v{T+1}")
        F = T + 20
        for t in range(4):
            for qt in range(2):
                p(f"v_sub_f32 v{F + 2*(t*2+qt)}, v{vMC + t*2 + qt}, v{T+qt}")
        for k in range(8):
            p(f"v_exp_f32 v{F+2*k}, v{F+2*k}")
        w = []
        P = 104
        n = 0
        for t in range(4):
            for qt in range(2):
                s = ACC + (t * 2 + qt) * 16
                f = F + 2 * (t * 2 + qt)
                for k in range(8):
                    p(f"v_pk_mul_f32 {vr(s+2*k,2)}, {vr(s+2*k,2)}, {vr(f,2)} op_sel_hi:[1,0]")
                for ks in range(2):
                    d = P + (n % 4) * 4
                    n += 1
                    for k in range(4):
                        p(f"v_cvt_pk_bf16_f32 v{d+k}, v{s+ks*8+2*k}, v{s+ks*8+2*k+1}")
                    w.append(p(f"ds_write_b128 v{vWR}, {vr(d,4)} offset:{((t*2+ks)*2+qt)*1024}"))
            if t in (0, 2):
                stage()
        while stages:
            stage()
        for f in self.all_dma():
            f()
        p("s_barrier", after=w)

    def out_proj(self):
        p, o = self.p, self.o
        M = "v_mfma_f32_32x32x16_bf16"
        for qi in range(2):
            for s in range(16):
                a = vOA + qi + 2 * (s // 8)
                p(f"ds_read_b128 {vr(ACC + (s*2+qi)*4, 4)}, v{a} offset:{((s // 4) % 2)*RSZ + (s % 4)*2048}")
        units = [(0, 0), (0, 1), (1, 0), (1, 1), (2, 0), (2, 1), (3, 0)]
        fl = f" {o['st_fl']}" if (o["fused"] and o["st_fl"]) else ""
        prev = []
        stores = []
        for k, (t, qi) in enumerate(units):
            acc = 64 + (k % 2) * 16
            mf = []
            for s in range(16):
                b = 128 + 16 * s if s < 8 else 16 * (s - 8)
                c = "0" if s == 0 else vr(acc, 16)
                mf.append(f"{M} {vr(acc,16)}, {ar(b + t*4, 4)}, {vr(ACC + (s*2+qi)*4, 4)}, {c}")
            for i, m in enumerate(mf):
                p(m)
                if i >= 2 and prev:
                    for _ in range(2):
                        if prev:
                            prev.pop(0)()
            d = 96 + (k % 2) * 8
            prev = []
            for half in range(2):
                for j in range(4):
                    prev.append(lambda j=j, half=half, acc=acc, d=d: p(
                        f"v_cvt_pk_bf16_f32 v{d+half*4+j}, v{acc+half*8+2*j}, v{acc+half*8+2*j+1}"))
                off = " offset:1024" if half else ""
                prev.append(lambda half=half, d=d, k=k, off=off: stores.append(p(
                    f"buffer_store_dwordx4 {vr(d+half*4,4)}, v{vLIN}, {srd(sWS)}, s{sPT+k} offen{off}{fl}")))
        for f in prev:
            f()
        return stores

    def reduce(self, fl):
        p = self.p
        fl = f" {fl}" if fl else ""
        p(f"s_mul_i32 s3, s{sGRP}, {GRP}")
        p(f"s_lshl_b32 s4, s{sH}, 1")
        p(f"s_lshr_b32 s5, s{sW}, 1")
        p("s_add_u32 s4, s4, s5")
        p("s_lshl_b32 s4, s4, 15")
        p("s_add_u32 s3, s3, s4")
        p(f"s_and_b32 s4, s{sW}, 1")
        p("s_lshl_b32 s4, s4, 10")
        p("s_add_u32 s3, s3, s4")
        p(f"s_add_u32 s3, s3, {PBASE}")
        D = 64
        for i in range(16):
            off = " offset:2048" if i % 2 else ""
            p(f"buffer_load_dwordx4 {vr(D+4*i,4)}, v{vLIN}, {srd(sWS)}, s3 offen{off}{fl}")
            if i % 2 and i < 15:
                p("s_add_u32 s3, s3, 4096")
        p(f"s_lshl_b32 s3, s{sB}, 1")
        p(f"s_and_b32 s4, s{sH}, 1")
        p("s_add_u32 s3, s3, s4")
        p(f"s_mul_i32 s3, s3, {32*1792}")
        p(f"s_mul_i32 s4, s{sBR}, 896")
        p("s_add_u32 s3, s3, s4")
        p(f"s_lshr_b32 s4, s{sH}, 1")
        p("s_lshl_b32 s4, s4, 7")
        p("s_add_u32 s3, s3, s4")
        p(f"s_lshl_b32 s4, s{sW}, 5")
        p("s_add_u32 s3, s3, s4")
        p(f"v_and_b32 v2, 31, v{vL}")
        p("v_mul_u32_u24 v2, 1792, v2")
        p(f"v_lshrrev_b32 v3, 5, v{vL}")
        p("v_lshl_add_u32 v2, v3, 4, v2")
        A, T = 48, 56
        for i in range(16):
            for j in range(4):
                dst = A + 2 * j if i == 0 else T + 2 * j
                p(f"v_lshlrev_b32 v{dst}, 16, v{D+4*i+j}")
                p(f"v_and_b32 v{dst+1}, 0xffff0000, v{D+4*i+j}")
            if i:
                for j in range(4):
                    p(f"v_pk_add_f32 {vr(A+2*j,2)}, {vr(A+2*j,2)}, {vr(T+2*j,2)}")
        for j in range(4):
            p(f"v_cvt_pk_bf16_f32 v{T+j}, v{A+2*j}, v{A+2*j+1}")
        p(f"buffer_store_dwordx4 {vr(T,4)}, v2, {srd(sOUT)}, s3 offen")

    def dump_stamps(self):
        p = self.p
        if not self.o["stamps"]:
            return
        self.stamp()
        p(f"s_lshl_b32 s3, s2, 2")
        p(f"s_add_u32 s3, s3, s{sW}")
        p("s_lshl_b32 s3, s3, 6")
        p("v_mov_b32 v2, 0")
        p("s_mov_b64 exec, 1")
        for k in range(self.nstamp):
            p(f"v_mov_b32 v3, s{sST + 2*k}")
            p(f"buffer_store_dword v3, v2, {srd(sWS)}, s3 offen offset:{4*k}")
        p("s_mov_b64 exec, -1")

    def main(self):
        p, o = self.p, self.o
        self.prologue()
        if o["fused"]:
            p(f"s_lshl_b32 s61, s{sGRP}, 4")
            p("v_mov_b32 v2, 0")
            p("v_mov_b32 v3, 1")
        self.run_phase(o["ph1"])
        if o["fused"]:
            p("s_mov_b64 exec, 1")
            p(f"buffer_atomic_add v3, v2, {srd(sDBG)}, s61 offen sc1", after=[self.clr])
            p("s_mov_b64 exec, -1")
        self.stamp()
        st = self.mid_units(o["mid1"])
        writes = self.pack_and_write(vWR)
        p("s_barrier")
        w = writes()
        for f in st:
            f()
        p("s_barrier", after=w)
        for s in range(16):
            for qt in range(2):
                p(f"ds_read_b128 {ar((s*2+qt)*4, 4)}, v{vLIN} offset:{SH + (s // 4)*16384 + ((s % 4)*2 + qt)*1024}")
        self.stamp()
        last = {"T3": 0, "T7": 1, "K11": 2, "K15": 3}
        rest = self.run_phase(o["ph2"], lambda nme: self.softmax_tile(last[nme]) if nme in last else [])
        self.stamp()
        st = self.mid_units(o["mid2"])
        for k, f in enumerate(rest):
            f()
            if k == len(rest) // 2 and st:
                st.pop(0)()
        self.softmax_finish(st)
        self.stamp()
        if o["fused"]:
            p("v_mov_b32 v2, 0")
            p(f"buffer_load_dword v{vCNT}, v2, {srd(sDBG)}, s61 offen sc0 sc1")
        self.run_phase(o["ph3"])
        assert not self.issue_q
        self.stamp()
        writes = self.pack_and_write(vOW)
        w = writes()
        p("s_barrier", after=w)
        stores = self.out_proj()
        self.stamp()
        if o["fused"]:
            self.handoff(stores)
            p(f"s_cmp_ge_u32 s{sH}, 14")
            p("s_cbranch_scc1 L_fin")
            self.poll()
            self.reduce(o["ld_fl"])
            p("L_fin:")
        self.dump_stamps()
        p("L_end:")
        return p.finalize()

    def handoff(self, stores):
        p = self.p
        p(f"s_mul_i32 s3, s{sGRP}, {GRP}")
        p(f"s_add_u32 s3, s3, {PBASE}")
        p("v_mov_b32 v4, 0")
        for k in range(7):
            p(f"s_sub_u32 s4, s{sPT+k}, s3")
            p("s_lshr_b32 s4, s4, 15")
            p("s_lshl_b32 s4, s4, 8")
            p(f"v_writelane_b32 v4, s4, {2*k}")
            p("s_add_u32 s4, s4, 128")
            p(f"v_writelane_b32 v4, s4, {2*k+1}")
        p(f"s_lshl_b32 s3, s{sGRP}, 13")
        p(f"s_lshl_b32 s4, s{sH}, 2")
        p("s_add_u32 s3, s3, s4")
        p(f"s_add_u32 s3, s3, {FBASE}")
        p("v_mov_b32 v5, 1")
        p("v_mov_b32 v2, 0")
        p("s_mov_b32 s5, 100000")
        p("s_waitcnt vmcnt(0)")
        p("L_ready:")
        p("v_cmp_eq_u32 vcc, 64, v7")
        p("s_cbranch_vccnz L_go")
        p(f"buffer_load_dword v7, v2, {srd(sDBG)}, s61 offen sc0 sc1")
        p("s_sub_u32 s5, s5, 1")
        p("s_cmp_lg_u32 s5, 0")
        p("s_waitcnt vmcnt(0)")
        p("s_cbranch_scc1 L_ready")
        p("L_go:")
        p("s_mov_b64 exec, 0x3fff")
        p(f"buffer_store_dword v5, v4, {srd(sWS)}, s3 offen sc0 sc1")
        p("s_mov_b64 exec, -1")

    def poll(self):
        p = self.p
        p(f"v_and_b32 v2, 15, v{vL}")
        p("v_lshlrev_b32 v2, 2, v2")
        p("s_mov_b32 s5, 100000")
        p("L_poll:")
        p(f"buffer_load_dword v3, v2, {srd(sWS)}, s60 offen sc0 sc1")
        p("s_sub_u32 s5, s5, 1")
        p("s_cmp_eq_u32 s5, 0")
        p("s_waitcnt vmcnt(0)")
        p("s_cbranch_scc1 L_polled")
        p("v_cmp_ne_u32 vcc, 1, v3")
        p("s_cbranch_vccnz L_poll")
        p("L_polled:")

    def second(self):
        p = self.p
        self.ids("L_end2", 224)
        p("s_load_dwordx2 s[96:97], s[0:1], 80")
        p("s_load_dwordx2 s[94:95], s[0:1], 96")
        p(f"s_and_b32 s{sGRP}, s2, 15")
        p(f"s_lshr_b32 s{sH}, s2, 4")
        p(f"s_lshr_b32 s{sBR}, s{sGRP}, 3")
        p(f"s_and_b32 s{sB}, s{sGRP}, 7")
        p("v_lshrrev_b32 v7, 6, v0")
        p(f"v_and_b32 v{vL}, 63, v0")
        p(f"v_readfirstlane_b32 s{sW}, v7")
        p(f"v_lshlrev_b32 v{vLIN}, 4, v{vL}")
        for r, src, n in ((sWS, 94, PBASE + 16 * GRP), (sOUT, 96, 917504)):
            p(f"s_mov_b32 s{r}, s{src}")
            p(f"s_mov_b32 s{r+1}, s{src+1}")
            p(f"s_mov_b32 s{r+2}, {n}")
            p(f"s_mov_b32 s{r+3}, 0x20000")
        self.reduce("")
        p("L_end2:")
        return p.finalize()


def kernel_text(label, body):
    return f".globl {label}\n.p2align 8\n.type {label},@function\n{label}:\n{body}    s_endpgm\n"


def descriptor(label, vgpr, acc):
    return f""".p2align 6
.amdhsa_kernel {label}
  .amdhsa_next_free_vgpr {vgpr}
  .amdhsa_next_free_sgpr 102
  .amdhsa_accum_offset {acc}
  .amdhsa_group_segment_fixed_size 0
  .amdhsa_kernarg_size 104
  .amdhsa_user_sgpr_count 2
  .amdhsa_user_sgpr_kernarg_segment_ptr 1
  .amdhsa_system_sgpr_workgroup_id_x 1
.end_amdhsa_kernel
"""


def build(**kw):
    ref = open(f"cdna_kernels/{NAME}.s.ref").read().splitlines() if kw.pop("header", True) else []
    head = [l for l in ref if l.startswith(";") and "@launch" not in l and "Override" not in l
            and "grid=ceil" not in l]
    g = Gen(**kw)
    k1 = NAME + "_kernel"
    body = g.main()
    if g.o["fused"]:
        head.append("; @launch grid=(256,1,1) block=(256,1,1) lds=163840")
    else:
        head.append(f"; @launch kernel={k1} grid=(256,1,1) block=(256,1,1) lds=163840")
        head.append("; @launch kernel=head_sum_kernel grid=(224,1,1) block=(256,1,1) lds=0")
    s = "\n".join(head) + '\n.amdgcn_target "amdgcn-amd-amdhsa--gfx950"\n.text\n' + kernel_text(k1, body)
    if not g.o["fused"]:
        s += kernel_text("head_sum_kernel", Gen(**kw).second())
    s += '.section .rodata,"a"\n' + descriptor(k1, 512, 256)
    if not g.o["fused"]:
        s += descriptor("head_sum_kernel", 128, 128)
    return s


if __name__ == "__main__":
    kw = {}
    out = sys.argv[1]
    for a in sys.argv[2:]:
        k, v = a.split("=", 1)
        kw[k] = {"True": True, "False": False}.get(v, int(v) if v.lstrip("-").isdigit() else v)
    open(out, "w").write(build(**kw))
```

```python
import math, struct, sys
from asmlib import Prog

NAME = "concat_heads__gqa_block_cached__mha_block_cached__near_ridge"
SH, RING, RSZ, NSLOT = 0, 65536, 24576, 6
PBASE = 0x100000
FBASE = 0x10000
GRP = 917504

sX, sK, sV, sQ, sO, sWS, sOUT, sDBG = 8, 12, 16, 20, 24, 28, 32, 36
sW, sBR, sH, sB, sRING, sSO, sC, sGRP, sT0, sT1, sT2 = 40, 41, 42, 43, 44, 45, 46, 47, 48, 49, 50
sPT = 52
sST = 64
vL = 1
vDX, vDQ, vDK, vDV, vDO = 8, 9, 13, 17, 21
vRX, vRQ, vRK, vRV, vRO = 25, 29, 31, 35, 37
vLIN, vWR, vOA, vOW, vIW, vIR = 41, 42, 43, 47, 6, 8
vMC, vLS = 48, 56
vCNT = 7
ACC = 128


def f32(x):
    return "0x%08x" % struct.unpack("<I", struct.pack("<f", x))[0]


def vr(a, n):
    return f"v[{a}:{a+n-1}]" if n > 1 else f"v{a}"


def ar(a, n):
    return f"a[{a}:{a+n-1}]" if n > 1 else f"a{a}"


def srd(b):
    return f"s[{b}:{b+3}]"


DEFAULT = dict(
    nt_kv="", nt_w="", nt_x="", fused=True, stamps=False, st_fl="sc0 sc1", ld_fl="sc0 sc1",
    issue="Q0 Q1 K0 Q2 Q3 K1 Q4 Q5 K2 Q6 K3 Q7 Q8 K4 Q9 Q10 K5 Q11 K6 Q12 Q13 K7 "
          "K8 W0 K9 W1 K10 W2 K11 W3 K12 W4 K13 W5 K14 W6 K15 W7 "
          "V0 W8 V1 W9 V2 W10 V3 W11 V4 W12 V5 W13 V6 W14 V7 W15 V8 V9 V10 V11 V12 V13 V14 V15",
    ph1="Q0|Q1|K0 Q2|Q3|K1 Q4|Q5|K2 Q6|K3 Q7|Q8|K4 Q9|Q10|K5 Q11|K6 Q12|Q13",
    mid1="K7",
    ph2="K8|T0|T1|W0 K9|T2|T3|W1 K10|T4|T5|W2 K11|T6|T7|W3 K12|W4 K13|W5 K14|W6 K15",
    mid2="W7 W8 W9",
    ph3="V0|V1|V2|W10 V3|W11 V4|W12 V5|W13 V6|W14 V7|W15 V8|V9|V10|V11|V12|V13|V14|V15",
)


class Gen:
    def __init__(self, **kw):
        self.o = dict(DEFAULT)
        self.o.update(kw)
        self.p = Prog()
        self.issue_q = self.o["issue"].split()
        self.free = [(s, []) for s in range(NSLOT)]
        self.unit = {}
        self.nstamp = 0
        self.buf = 0

    def stamp(self):
        if self.o["stamps"]:
            self.p(f"s_memrealtime s[{sST + 2*self.nstamp}:{sST + 2*self.nstamp + 1}]")
            self.p("s_waitcnt lgkmcnt(0)")
            self.nstamp += 1

    def ids(self, exit_label, limit):
        p = self.p
        p(f"s_cmp_ge_u32 s2, {limit}")
        p(f"s_cbranch_scc1 {exit_label}")

    def dma_items(self):
        if not self.issue_q or not self.free:
            return []
        name = self.issue_q.pop(0)
        slot, reads = self.free.pop(0)
        kind, u = name[0], int(name[1:])
        r, v, so, nt = {
            "Q": (sQ, vDQ, u * 32 * 8192, self.o["nt_w"]),
            "K": (sK, vDK, (u // 4) * 65536 + (u % 4) * 128, self.o["nt_kv"]),
            "V": (sV, vDV, u * 16384, self.o["nt_kv"]),
            "W": (sO, vDO, u * 16 * 896, self.o["nt_w"]),
        }[kind]
        dm = []
        self.unit[name] = (slot, dm)
        p = self.p

        def head():
            p(f"s_add_u32 m0, s{sRING}, {slot*4096}")
            p(f"s_mov_b32 s{sSO}, {so}")

        def piece(j):
            def f():
                if j == 0:
                    head()
                off = f" offset:{1024*j}" if j else ""
                fl = f" {nt}" if nt else ""
                dm.append(p(f"buffer_load_dwordx4 v{v+j}, {srd(r)}, s{sSO} offen{off}{fl} lds",
                            after=reads if j == 0 else ()))
            return f
        return [piece(j) for j in range(4)]

    def unit_reads(self, name, base):
        kind, u = name[0], int(name[1:])
        p = self.p
        items, done = [], []
        if kind == "T":
            return items, done
        slot, dm = self.unit[name]
        so = slot * 4096

        def ring(text, pieces):
            items.append(lambda: done.append(p(text, after=[dm[j] for j in pieces])))

        def side(text):
            items.append(lambda: p(text))
        if kind in "QV":
            for ks in range(2):
                for mt in range(2):
                    for part in range(2):
                        d = base + (ks * 2 + mt) * 4 + part * 2
                        if kind == "Q":
                            ring(f"ds_read_b64_tr_b16 {vr(d,2)}, v{vRQ+mt} offset:{so + ks*2048 + part*512}",
                                 (2 * ks, 2 * ks + 1))
                        else:
                            ring(f"ds_read_b64_tr_b16 {vr(d,2)}, v{vRV+mt} offset:{so + ks*2048 + part*1024}",
                                 (2 * ks + part,))
                    qt = mt
                    d = base + 16 + (ks * 2 + qt) * 4
                    if kind == "Q":
                        s = 2 * u + ks
                        side(f"ds_read_b128 {vr(d,4)}, v{vRX + s % 4} offset:{(s // 4)*8192 + qt*4096}")
                    else:
                        side(f"ds_read_b128 {vr(d,4)}, v{vLIN} "
                             f"offset:{(u % 4)*16384 + (((u // 4)*2 + ks)*2 + qt)*1024}")
        elif kind == "K":
            for j in range(4):
                d = ar(128 + 16 * u + 4 * j, 4) if u < 8 else vr(base + 4 * j, 4)
                ring(f"ds_read_b128 {d}, v{vRK+j} offset:{so}", range(4))
        elif kind == "W":
            b = 128 + 16 * u if u < 8 else 16 * (u - 8)
            for part in range(2):
                for t in range(4):
                    ring(f"ds_read_b64_tr_b16 {ar(b + t*4 + part*2, 2)}, v{vRO+t} offset:{so + part*1024}",
                         (part, 2 + part))
        return items, done

    def unit_mfmas(self, name, base):
        kind, u = name[0], int(name[1:])
        out = []
        M = "v_mfma_f32_32x32x16_bf16"
        if kind in "QV":
            for ks in range(2):
                for mt, qt in ((0, 0), (1, 0), (0, 1), (1, 1)):
                    acc = vr(ACC + (mt * 2 + qt) * 16, 16)
                    c = "0" if (u == 0 and ks == 0) else acc
                    out.append(f"{M} {acc}, {vr(base + (ks*2+mt)*4, 4)}, {vr(base + 16 + (ks*2+qt)*4, 4)}, {c}")
        elif kind == "T" or (kind == "K" and u >= 8):
            t, cb = u // 4, u % 4
            for j in range(4):
                s = 4 * cb + j
                a = ar(128 + 16 * u + 4 * j, 4) if kind == "T" else vr(base + 4 * j, 4)
                for qt in range(2):
                    acc = vr(ACC + (t * 2 + qt) * 16, 16)
                    c = "0" if s == 0 else acc
                    out.append(f"{M} {acc}, {a}, {ar((s*2+qt)*4, 4)}, {c}")
        return out

    def window(self, mfmas, early, late, fill):
        p = self.p
        n = len(mfmas)
        if n == 0:
            for f in early + fill + late:
                f()
            return
        gaps = [[] for _ in range(n)]
        lo = min(1, n - 1)
        mid = n // 2
        for k, f in enumerate(early):
            gaps[lo + k * max(mid - lo, 1) // max(len(early), 1)].append(f)
        for k, f in enumerate(fill):
            gaps[k * n // len(fill)].append(f)
        span = max(n - 1 - mid + 1, 1)
        for k, f in enumerate(late):
            gaps[mid - 1 + k * span // len(late)].append(f)
        for m, g in zip(mfmas, gaps):
            p(m)
            for f in g:
                f()

    def release(self, names, dones):
        for nme, d in zip(names, dones):
            if nme[0] != "T":
                self.free.append((self.unit[nme][0], d))

    def all_dma(self):
        out = []
        while self.issue_q and self.free:
            out += self.dma_items()
        return out

    def run_phase(self, spec, fillers=None):
        groups = [g.split() for g in spec.split("|")]
        bufs = (64, 96)
        pend = []
        fillq = []
        for gi, g in enumerate(groups):
            base = bufs[self.buf]
            if g[-1][0] != "T":
                self.buf ^= 1
            early = self.all_dma()
            late, dones = [], []
            for nme in g:
                it, d = self.unit_reads(nme, base)
                late += it
                dones.append(d)
            take = fillq[:self.o.get("fill_per", 40)] if pend else []
            fillq = fillq[len(take):]
            self.window(pend, early, late, take)
            if fillers and gi > 0:
                fillq += fillers(groups[gi - 1][-1])
            self.release(g, dones)
            pend = self.unit_mfmas(g[-1], base)
        self.window(pend, self.all_dma(), [], fillq)
        return fillers(groups[-1][-1]) if fillers else []

    def mid_units(self, spec):
        st = []
        for nme in spec.split():
            def stage(nme=nme):
                for f in self.all_dma():
                    f()
                it, d = self.unit_reads(nme, 0)
                for f in it:
                    f()
                self.release([nme], [d])
            st.append(stage)
        return st

    def prologue(self):
        p, o = self.p, self.o
        self.ids("L_end", 256)
        self.stamp()
        p("s_lshr_b32 s4, s2, 3")
        p(f"s_lshr_b32 s{sBR}, s4, 4")
        p(f"s_mul_i32 s5, s{sBR}, 40")
        p("s_add_u32 s6, s0, s5")
        p("s_addc_u32 s7, s1, 0")
        p("s_load_dwordx8 s[84:91], s[6:7], 0")
        p("s_load_dwordx2 s[92:93], s[6:7], 32")
        p("s_load_dwordx4 s[96:99], s[0:1], 80")
        p("s_load_dwordx2 s[94:95], s[0:1], 96")
        p("s_and_b32 s3, s2, 7")
        p("s_and_b32 s5, s4, 1")
        p("s_lshl_b32 s3, s3, 1")
        p(f"s_add_u32 s{sH}, s3, s5")
        p(f"s_bfe_u32 s{sB}, s4, 0x30001")
        p(f"v_lshrrev_b32 v7, 6, v0")
        p(f"v_and_b32 v{vL}, 63, v0")
        p(f"v_readfirstlane_b32 s{sW}, v7")
        p(f"v_lshrrev_b32 v2, 3, v{vL}")
        p(f"v_and_b32 v3, 7, v{vL}")
        p(f"v_lshrrev_b32 v4, 4, v{vL}")
        p(f"s_mul_i32 s{sRING}, s{sW}, {RSZ}")
        p(f"s_add_u32 s{sRING}, s{sRING}, {RING}")
        p(f"s_and_b32 s{sT2}, s{sW}, 1")
        p(f"s_lshl_b32 s{sT0}, s{sT2}, 2")
        p(f"v_add_u32 v5, s{sT0}, v4")
        p("v_xor_b32 v5, v5, v3")
        p(f"s_lshl_b32 s{sT0}, s{sW}, 3")
        p(f"v_add_u32 v6, s{sT0}, v2")
        p("v_mul_u32_u24 v6, 896, v6")
        p(f"v_lshl_add_u32 v{vDX}, v5, 4, v6")
        p("v_and_b32 v5, 1, v4")
        p("v_lshlrev_b32 v5, 2, v5")
        p("v_xor_b32 v5, v5, v3")
        p(f"s_lshl_b32 s{sT0}, s{sW}, 7")
        p(f"v_lshl_add_u32 v5, v5, 4, s{sT0}")
        p(f"v_lshl_add_u32 v{vDQ}, v2, 13, v5")
        p(f"v_lshl_add_u32 v{vDV}, v2, 9, v5")
        for j in range(1, 4):
            p(f"v_add_u32 v{vDQ+j}, {j*(65536-1024)}, v{vDQ}")
        p("v_xor_b32 v5, v3, v4")
        p(f"s_lshl_b32 s{sT0}, s{sW}, 14")
        p(f"v_lshl_add_u32 v5, v5, 4, s{sT0}")
        p(f"v_lshl_add_u32 v{vDK}, v2, 9, v5")
        p(f"v_xor_b32 v5, 64, v{vDK}")
        p(f"v_add_u32 v{vDK+1}, 3072, v5")
        p(f"v_add_u32 v{vDK+2}, 6144, v{vDK}")
        p(f"v_add_u32 v{vDK+3}, 9216, v5")
        p(f"s_mul_i32 s{sT0}, s{sB}, 57344")
        p(f"s_add_u32 s{sX}, s84, s{sT0}")
        p(f"s_addc_u32 s{sX+1}, s85, 0")
        p(f"s_mov_b32 s{sX+2}, 57344")
        p(f"s_mov_b32 s{sX+3}, 0x20000")
        self.xd = []
        fl = f" {o['nt_x']}" if o["nt_x"] else ""
        p(f"s_lshl_b32 s{sT1}, s{sW}, 10")
        for cb in range(7):
            for hi in range(2):
                p(f"s_add_u32 m0, s{sT1}, {SH + cb*8192 + hi*4096}")
                p(f"s_mov_b32 s{sSO}, {cb*128 + hi*32*896}")
                self.xd.append(p(f"buffer_load_dwordx4 v{vDX}, {srd(sX)}, s{sSO} offen{fl} lds"))
        p(f"s_lshl_b32 s{sT0}, s{sH}, 9")
        p(f"s_add_u32 s{sQ}, s90, s{sT0}")
        p(f"s_addc_u32 s{sQ+1}, s91, 0")
        p(f"s_sub_u32 s{sQ+2}, 3670016, s{sT0}")
        p(f"s_mov_b32 s{sQ+3}, 0x20000")
        p(f"s_lshl_b32 s{sT0}, s{sB}, 4")
        p(f"s_add_u32 s{sT0}, s{sT0}, s{sH}")
        p(f"s_xor_b32 s{sT1}, s{sBR}, 1")
        p(f"s_lshr_b32 s{sT0}, s{sT0}, s{sT1}")
        p(f"s_lshl_b32 s{sT0}, s{sT0}, 18")
        for r, src in ((sK, 86), (sV, 88)):
            p(f"s_add_u32 s{r}, s{src}, s{sT0}")
            p(f"s_addc_u32 s{r+1}, s{src+1}, 0")
            p(f"s_mov_b32 s{r+2}, 262144")
            p(f"s_mov_b32 s{r+3}, 0x20000")
        p(f"s_mul_i32 s{sT0}, s{sH}, 229376")
        p(f"s_add_u32 s{sO}, s92, s{sT0}")
        p(f"s_addc_u32 s{sO+1}, s93, 0")
        p(f"s_mov_b32 s{sO+2}, 229376")
        p(f"s_mov_b32 s{sO+3}, 0x20000")
        for j in range(1, 4):
            p(f"v_add_u32 v{vDV+j}, {j*3072}, v{vDV}")
        p(f"v_bfe_u32 v5, v{vL}, 2, 2")
        p("v_xor_b32 v5, v5, v4")
        p(f"v_add_u32 v5, s{sT2}, v5")
        p("v_and_b32 v5, 3, v5")
        p(f"v_and_b32 v6, 3, v{vL}")
        p("v_lshlrev_b32 v6, 4, v6")
        p("v_lshl_add_u32 v5, v5, 6, v6")
        p("v_mul_u32_u24 v6, 896, v4")
        p(f"s_mul_i32 s{sT0}, s{sW}, 224")
        p(f"s_lshl_b32 s{sT1}, s{sT2}, 5")
        p(f"s_sub_u32 s{sT0}, s{sT0}, s{sT1}")
        p(f"v_add3_u32 v{vDO}, v5, v6, s{sT0}")
        for j in range(1, 4):
            p(f"v_add_u32 v{vDO+j}, {j*(3584-1024)}, v{vDO}")
        for f in self.all_dma():
            f()
        for r, src, n in ((sWS, 94, PBASE + 16 * GRP), (sOUT, 96, 917504), (sDBG, 98, 256)):
            p(f"s_mov_b32 s{r}, s{src}")
            p(f"s_mov_b32 s{r+1}, s{src+1}")
            p(f"s_mov_b32 s{r+2}, {n}")
            p(f"s_mov_b32 s{r+3}, 0x20000")
        p(f"s_lshl_b32 s{sGRP}, s{sBR}, 3")
        p(f"s_add_u32 s{sGRP}, s{sGRP}, s{sB}")
        p(f"s_mov_b32 s{sC}, {f32(math.log2(math.e) / 16)}")
        p(f"v_lshlrev_b32 v{vLIN}, 4, v{vL}")
        p(f"v_lshrrev_b32 v2, 5, v{vL}")
        p(f"v_bfe_u32 v3, v{vL}, 1, 3")
        p("v_xor_b32 v3, v3, v2")
        p(f"v_and_b32 v5, 31, v{vL}")
        p("v_lshlrev_b32 v5, 7, v5")
        p(f"v_lshl_add_u32 v{vRX}, v3, 4, v5")
        for j in range(1, 4):
            p(f"v_xor_b32 v{vRX+j}, {j*32}, v{vRX}")
        for j in range(4):
            p(f"v_add_u32 v{vRK+j}, s{sRING}, v{vRX+j}")
        p(f"v_and_b32 v3, 1, v{vL}")
        p("v_lshlrev_b32 v3, 4, v3")
        p(f"v_bfe_u32 v5, v{vL}, 1, 1")
        p("v_lshl_add_u32 v3, v5, 3, v3")
        p("v_and_b32 v5, 1, v4")
        p("v_lshl_add_u32 v3, v5, 5, v3")
        p(f"v_add_u32 v3, s{sRING}, v3")
        p(f"v_bfe_u32 v5, v{vL}, 2, 2")
        p(f"v_bfe_u32 v6, v{vL}, 3, 1")
        p("v_lshl_add_u32 v6, v6, 6, v3")
        p("v_lshl_add_u32 v6, v5, 7, v6")
        p(f"v_lshl_add_u32 v{vRQ}, v2, 10, v6")
        p(f"v_lshl_add_u32 v{vRV}, v2, 9, v6")
        p(f"v_xor_b32 v{vRQ+1}, 64, v{vRQ}")
        p(f"v_xor_b32 v{vRV+1}, 64, v{vRV}")
        p("v_mul_u32_u24 v6, 320, v5")
        p("v_add_u32 v6, v6, v3")
        p(f"v_lshl_add_u32 v{vRO}, v2, 11, v6")
        for t in range(1, 4):
            p(f"v_xor_b32 v{vRO+t}, {t*64}, v{vRO}")
        p(f"s_lshl_b32 s{sT0}, s{sW}, 14")
        p(f"v_add_u32 v{vWR}, s{sT0}, v{vLIN}")
        p(f"v_add_u32 v{vOW}, s{sRING}, v{vLIN}")
        p(f"s_lshl_b32 s{sT1}, s{sT2}, 10")
        p(f"s_add_u32 s{sT1}, s{sT1}, {RING}")
        p(f"v_add_u32 v{vOA}, s{sT1}, v{vLIN}")
        p(f"v_xor_b32 v{vOA+1}, 0x400, v{vOA}")
        p(f"v_add_u32 v{vOA+2}, {2*RSZ}, v{vOA}")
        p(f"v_add_u32 v{vOA+3}, {2*RSZ}, v{vOA+1}")
        p(f"s_add_u32 s{sT0}, s{sT0}, 8192")
        p(f"v_lshl_add_u32 v{vIR}, v{vL}, 3, s{sT0}")
        p(f"s_lshl_b32 s{sT0}, s{sW}, 9")
        p(f"s_add_u32 s{sT0}, s{sT0}, 8192")
        p(f"v_lshl_add_u32 v{vIW}, v{vL}, 3, s{sT0}")
        p(f"s_mul_i32 s3, s{sGRP}, {GRP}")
        p(f"s_lshl_b32 s4, s{sH}, 11")
        p("s_add_u32 s3, s3, s4")
        p(f"s_add_u32 s3, s3, {PBASE}")
        p(f"s_lshr_b32 s4, s{sW}, 1")
        p("s_mul_i32 s4, s4, 7")
        p(f"s_mul_i32 s5, s{sT2}, 3")
        p("s_add_u32 s4, s4, s5")
        for t in range(4):
            p(f"s_add_u32 s5, s{sT2}, {t}")
            p("s_and_b32 s5, s5, 3")
            p("s_add_u32 s5, s5, s4")
            p("s_lshr_b32 s6, s5, 1")
            p("s_lshl_b32 s6, s6, 2")
            p("s_and_b32 s5, s5, 1")
            p("s_add_u32 s5, s5, s6")
            p(f"s_lshl_b32 s6, s{sT2}, 1")
            p("s_add_u32 s5, s5, s6")
            p("s_lshl_b32 s6, s5, 15")
            p(f"s_add_u32 s{sPT + 2*t}, s6, s3")
            if t < 3:
                p("s_xor_b32 s6, s6, 0x10000")
                p(f"s_add_u32 s{sPT + 2*t + 1}, s6, s3")
        if o["fused"]:
            p(f"s_lshl_b32 s3, s{sGRP}, 4")
            p(f"s_add_u32 s3, s3, s{sH}")
            p("s_lshl_b32 s3, s3, 2")
            p(f"s_add_u32 s3, s3, s{sW}")
            p("s_lshl_b32 s3, s3, 7")
            p(f"s_add_u32 s60, s3, {FBASE}")
            p(f"v_and_b32 v2, 15, v{vL}")
            p("v_lshlrev_b32 v2, 2, v2")
            p("v_mov_b32 v3, 0")
            self.clr = p(f"buffer_store_dword v3, v2, {srd(sWS)}, s60 offen sc0 sc1")
        p("s_barrier", after=self.xd)
        self.stamp()

    def pack_and_write(self, addr):
        p = self.p
        tmp = 64
        for mt in range(2):
            for qt in range(2):
                for ks in range(2):
                    src = ACC + (mt * 2 + qt) * 16 + ks * 8
                    d = tmp + ((mt * 2 + qt) * 2 + ks) * 4
                    for k in range(4):
                        p(f"v_cvt_pk_bf16_f32 v{d+k}, v{src+2*k}, v{src+2*k+1}")
        w = []

        def writes():
            for mt in range(2):
                for qt in range(2):
                    for ks in range(2):
                        d = tmp + ((mt * 2 + qt) * 2 + ks) * 4
                        w.append(p(f"ds_write_b128 v{addr}, {vr(d,4)} offset:{((2*mt+ks)*2+qt)*1024}"))
            return w
        return writes

    def softmax_tile(self, t):
        p = self.p
        out = []
        for qt in range(2):
            s = ACC + (t * 2 + qt) * 16
            m, l = vMC + t * 2 + qt, vLS + t * 2 + qt
            seq = [f"v_max3_f32 v{m}, v{s}, v{s+1}, v{s+2}"]
            for k in range(3, 15, 2):
                seq.append(f"v_max3_f32 v{m}, v{m}, v{s+k}, v{s+k+1}")
            seq.append(f"v_max_f32 v{m}, v{m}, v{s+15}")
            seq.append(f"v_mul_f32 v{m}, s{sC}, v{m}")
            for k in range(16):
                seq.append(f"v_fma_f32 v{s+k}, v{s+k}, s{sC}, -v{m}")
            for k in range(16):
                seq.append(f"v_exp_f32 v{s+k}, v{s+k}")
                if k == 2:
                    seq.append(f"v_add_f32 v{l}, v{s}, v{s+1}")
                elif k > 2:
                    seq.append(f"v_add_f32 v{l}, v{l}, v{s+k-1}")
            seq.append(f"v_add_f32 v{l}, v{l}, v{s+15}")
            out += [(lambda x=x: p(x)) for x in seq]
        return out

    def softmax_finish(self, stages):
        p = self.p
        T = 64
        stages = list(stages)

        def stage():
            if stages:
                stages.pop(0)()
        for qt in range(2):
            m = [vMC + t * 2 + qt for t in range(4)]
            l = [vLS + t * 2 + qt for t in range(4)]
            M, L = T + qt, T + 2 + qt
            p(f"v_max3_f32 v{M}, v{m[0]}, v{m[1]}, v{m[2]}")
            p(f"v_max_f32 v{M}, v{M}, v{m[3]}")
            for t in range(4):
                p(f"v_sub_f32 v{T+4+t}, v{m[t]}, v{M}")
            for t in range(4):
                p(f"v_exp_f32 v{T+4+t}, v{T+4+t}")
            p(f"v_mul_f32 v{L}, v{l[0]}, v{T+4}")
            for t in range(1, 4):
                p(f"v_fmac_f32 v{L}, v{l[t]}, v{T+4+t}")
        p(f"v_permlane32_swap_b32 v{T}, v{T+1}")
        p(f"v_permlane32_swap_b32 v{T+2}, v{T+3}")
        p(f"v_max_f32 v{T+8}, v{T}, v{T+1}")
        p(f"v_sub_f32 v{T+4}, v{T}, v{T+8}")
        p(f"v_sub_f32 v{T+5}, v{T+1}, v{T+8}")
        p(f"v_exp_f32 v{T+4}, v{T+4}")
        p(f"v_exp_f32 v{T+5}, v{T+5}")
        p(f"v_mul_f32 v{T+9}, v{T+2}, v{T+4}")
        p(f"v_fmac_f32 v{T+9}, v{T+3}, v{T+5}")
        w = [p(f"ds_write_b64 v{vIW}, {vr(T+8,2)} offset:{r*16384}") for r in range(4)]
        stage()
        p("s_barrier", after=w)
        for r in range(4):
            p(f"ds_read_b64 {vr(T+10+2*r,2)}, v{vIR} offset:{r*512}")
        p(f"v_max3_f32 v{T}, v{T+10}, v{T+12}, v{T+14}")
        p(f"v_max_f32 v{T}, v{T}, v{T+16}")
        for r in range(4):
            p(f"v_sub_f32 v{T+4+r}, v{T+10+2*r}, v{T}")
        for r in range(4):
            p(f"v_exp_f32 v{T+4+r}, v{T+4+r}")
        p(f"v_mul_f32 v{T+1}, v{T+11}, v{T+4}")
        for r in range(1, 4):
            p(f"v_fmac_f32 v{T+1}, v{T+11+2*r}, v{T+4+r}")
        p(f"v_log_f32 v{T+1}, v{T+1}")
        p(f"v_add_f32 v{T}, v{T}, v{T+1}")
        p(f"v_mov_b32 v{T+1}, v{T}")
        p(f"v_permlane32_swap_b32 v{T}, v{T+1}")
        F = T + 20
        for t in range(4):
            for qt in range(2):
                p(f"v_sub_f32 v{F + 2*(t*2+qt)}, v{vMC + t*2 + qt}, v{T+qt}")
        for k in range(8):
            p(f"v_exp_f32 v{F+2*k}, v{F+2*k}")
        w = []
        P = 104
        n = 0
        for t in range(4):
            for qt in range(2):
                s = ACC + (t * 2 + qt) * 16
                f = F + 2 * (t * 2 + qt)
                for k in range(8):
                    p(f"v_pk_mul_f32 {vr(s+2*k,2)}, {vr(s+2*k,2)}, {vr(f,2)} op_sel_hi:[1,0]")
                for ks in range(2):
                    d = P + (n % 4) * 4
                    n += 1
                    for k in range(4):
                        p(f"v_cvt_pk_bf16_f32 v{d+k}, v{s+ks*8+2*k}, v{s+ks*8+2*k+1}")
                    w.append(p(f"ds_write_b128 v{vWR}, {vr(d,4)} offset:{((t*2+ks)*2+qt)*1024}"))
            if t in (0, 2):
                stage()
        while stages:
            stage()
        for f in self.all_dma():
            f()
        p("s_barrier", after=w)

    def out_proj(self):
        p, o = self.p, self.o
        M = "v_mfma_f32_32x32x16_bf16"
        for qi in range(2):
            for s in range(16):
                a = vOA + qi + 2 * (s // 8)
                p(f"ds_read_b128 {vr(ACC + (s*2+qi)*4, 4)}, v{a} offset:{((s // 4) % 2)*RSZ + (s % 4)*2048}")
        units = [(0, 0), (0, 1), (1, 0), (1, 1), (2, 0), (2, 1), (3, 0)]
        fl = f" {o['st_fl']}" if (o["fused"] and o["st_fl"]) else ""
        prev = []
        stores = []
        for k, (t, qi) in enumerate(units):
            acc = 64 + (k % 2) * 16
            mf = []
            for s in range(16):
                b = 128 + 16 * s if s < 8 else 16 * (s - 8)
                c = "0" if s == 0 else vr(acc, 16)
                mf.append(f"{M} {vr(acc,16)}, {ar(b + t*4, 4)}, {vr(ACC + (s*2+qi)*4, 4)}, {c}")
            for i, m in enumerate(mf):
                p(m)
                if i >= 2 and prev:
                    for _ in range(2):
                        if prev:
                            prev.pop(0)()
            d = 96 + (k % 2) * 8
            prev = []
            for half in range(2):
                for j in range(4):
                    prev.append(lambda j=j, half=half, acc=acc, d=d: p(
                        f"v_cvt_pk_bf16_f32 v{d+half*4+j}, v{acc+half*8+2*j}, v{acc+half*8+2*j+1}"))
                off = " offset:1024" if half else ""
                prev.append(lambda half=half, d=d, k=k, off=off: stores.append(p(
                    f"buffer_store_dwordx4 {vr(d+half*4,4)}, v{vLIN}, {srd(sWS)}, s{sPT+k} offen{off}{fl}")))
        for f in prev:
            f()
        return stores

    def reduce(self, fl):
        p = self.p
        fl = f" {fl}" if fl else ""
        p(f"s_mul_i32 s3, s{sGRP}, {GRP}")
        p(f"s_lshl_b32 s4, s{sH}, 1")
        p(f"s_lshr_b32 s5, s{sW}, 1")
        p("s_add_u32 s4, s4, s5")
        p("s_lshl_b32 s4, s4, 15")
        p("s_add_u32 s3, s3, s4")
        p(f"s_and_b32 s4, s{sW}, 1")
        p("s_lshl_b32 s4, s4, 10")
        p("s_add_u32 s3, s3, s4")
        p(f"s_add_u32 s3, s3, {PBASE}")
        D = 64
        for i in range(16):
            off = " offset:2048" if i % 2 else ""
            p(f"buffer_load_dwordx4 {vr(D+4*i,4)}, v{vLIN}, {srd(sWS)}, s3 offen{off}{fl}")
            if i % 2 and i < 15:
                p("s_add_u32 s3, s3, 4096")
        p(f"s_lshl_b32 s3, s{sB}, 1")
        p(f"s_and_b32 s4, s{sH}, 1")
        p("s_add_u32 s3, s3, s4")
        p(f"s_mul_i32 s3, s3, {32*1792}")
        p(f"s_mul_i32 s4, s{sBR}, 896")
        p("s_add_u32 s3, s3, s4")
        p(f"s_lshr_b32 s4, s{sH}, 1")
        p("s_lshl_b32 s4, s4, 7")
        p("s_add_u32 s3, s3, s4")
        p(f"s_lshl_b32 s4, s{sW}, 5")
        p("s_add_u32 s3, s3, s4")
        p(f"v_and_b32 v2, 31, v{vL}")
        p("v_mul_u32_u24 v2, 1792, v2")
        p(f"v_lshrrev_b32 v3, 5, v{vL}")
        p("v_lshl_add_u32 v2, v3, 4, v2")
        A, T = 48, 56
        for i in range(16):
            for j in range(4):
                dst = A + 2 * j if i == 0 else T + 2 * j
                p(f"v_lshlrev_b32 v{dst}, 16, v{D+4*i+j}")
                p(f"v_and_b32 v{dst+1}, 0xffff0000, v{D+4*i+j}")
            if i:
                for j in range(4):
                    p(f"v_pk_add_f32 {vr(A+2*j,2)}, {vr(A+2*j,2)}, {vr(T+2*j,2)}")
        for j in range(4):
            p(f"v_cvt_pk_bf16_f32 v{T+j}, v{A+2*j}, v{A+2*j+1}")
        p(f"buffer_store_dwordx4 {vr(T,4)}, v2, {srd(sOUT)}, s3 offen")

    def dump_stamps(self):
        p = self.p
        if not self.o["stamps"]:
            return
        self.stamp()
        p(f"s_lshl_b32 s3, s2, 2")
        p(f"s_add_u32 s3, s3, s{sW}")
        p("s_lshl_b32 s3, s3, 6")
        p("v_mov_b32 v2, 0")
        p("s_mov_b64 exec, 1")
        for k in range(self.nstamp):
            p(f"v_mov_b32 v3, s{sST + 2*k}")
            p(f"buffer_store_dword v3, v2, {srd(sWS)}, s3 offen offset:{4*k}")
        p("s_mov_b64 exec, -1")

    def main(self):
        p, o = self.p, self.o
        self.prologue()
        if o["fused"]:
            p(f"s_lshl_b32 s61, s{sGRP}, 4")
            p("v_mov_b32 v2, 0")
            p("v_mov_b32 v3, 1")
        self.run_phase(o["ph1"])
        if o["fused"]:
            p("s_mov_b64 exec, 1")
            p(f"buffer_atomic_add v3, v2, {srd(sDBG)}, s61 offen sc1", after=[self.clr])
            p("s_mov_b64 exec, -1")
        self.stamp()
        st = self.mid_units(o["mid1"])
        writes = self.pack_and_write(vWR)
        p("s_barrier")
        w = writes()
        for f in st:
            f()
        p("s_barrier", after=w)
        for s in range(16):
            for qt in range(2):
                p(f"ds_read_b128 {ar((s*2+qt)*4, 4)}, v{vLIN} offset:{SH + (s // 4)*16384 + ((s % 4)*2 + qt)*1024}")
        self.stamp()
        last = {"T3": 0, "T7": 1, "K11": 2, "K15": 3}
        rest = self.run_phase(o["ph2"], lambda nme: self.softmax_tile(last[nme]) if nme in last else [])
        self.stamp()
        st = self.mid_units(o["mid2"])
        for k, f in enumerate(rest):
            f()
            if k == len(rest) // 2 and st:
                st.pop(0)()
        self.softmax_finish(st)
        self.stamp()
        if o["fused"]:
            p("v_mov_b32 v2, 0")
            p(f"buffer_load_dword v{vCNT}, v2, {srd(sDBG)}, s61 offen sc0 sc1")
        self.run_phase(o["ph3"])
        assert not self.issue_q
        self.stamp()
        writes = self.pack_and_write(vOW)
        w = writes()
        p("s_barrier", after=w)
        stores = self.out_proj()
        self.stamp()
        if o["fused"]:
            self.handoff(stores)
            p(f"s_cmp_ge_u32 s{sH}, 14")
            p("s_cbranch_scc1 L_fin")
            self.poll()
            self.reduce(o["ld_fl"])
            p("L_fin:")
        self.dump_stamps()
        p("L_end:")
        return p.finalize()

    def handoff(self, stores):
        p = self.p
        p(f"s_mul_i32 s3, s{sGRP}, {GRP}")
        p(f"s_add_u32 s3, s3, {PBASE}")
        p("v_mov_b32 v4, 0")
        for k in range(7):
            p(f"s_sub_u32 s4, s{sPT+k}, s3")
            p("s_lshr_b32 s4, s4, 15")
            p("s_lshl_b32 s4, s4, 8")
            p(f"v_writelane_b32 v4, s4, {2*k}")
            p("s_add_u32 s4, s4, 128")
            p(f"v_writelane_b32 v4, s4, {2*k+1}")
        p(f"s_lshl_b32 s3, s{sGRP}, 13")
        p(f"s_lshl_b32 s4, s{sH}, 2")
        p("s_add_u32 s3, s3, s4")
        p(f"s_add_u32 s3, s3, {FBASE}")
        p("v_mov_b32 v5, 1")
        p("v_mov_b32 v2, 0")
        p("s_mov_b32 s5, 100000")
        p("s_waitcnt vmcnt(0)")
        p("L_ready:")
        p("v_cmp_le_u32 vcc, 64, v7")
        p("s_cbranch_vccnz L_go")
        p(f"buffer_load_dword v7, v2, {srd(sDBG)}, s61 offen sc0 sc1")
        p("s_sub_u32 s5, s5, 1")
        p("s_cmp_lg_u32 s5, 0")
        p("s_waitcnt vmcnt(0)")
        p("s_cbranch_scc1 L_ready")
        p("L_go:")
        p("s_mov_b64 exec, 0x3fff")
        p(f"buffer_store_dword v5, v4, {srd(sWS)}, s3 offen sc0 sc1")
        p("s_mov_b64 exec, -1")

    def poll(self):
        p = self.p
        p(f"v_and_b32 v2, 15, v{vL}")
        p("v_lshlrev_b32 v2, 2, v2")
        p("s_mov_b32 s5, 100000")
        p("L_poll:")
        p(f"buffer_load_dword v3, v2, {srd(sWS)}, s60 offen sc0 sc1")
        p("s_sub_u32 s5, s5, 1")
        p("s_cmp_eq_u32 s5, 0")
        p("s_waitcnt vmcnt(0)")
        p("s_cbranch_scc1 L_polled")
        p("v_cmp_ne_u32 vcc, 1, v3")
        p("s_cbranch_vccnz L_poll")
        p("L_polled:")

    def second(self):
        p = self.p
        self.ids("L_end2", 224)
        p("s_load_dwordx2 s[96:97], s[0:1], 80")
        p("s_load_dwordx2 s[94:95], s[0:1], 96")
        p(f"s_and_b32 s{sGRP}, s2, 15")
        p(f"s_lshr_b32 s{sH}, s2, 4")
        p(f"s_lshr_b32 s{sBR}, s{sGRP}, 3")
        p(f"s_and_b32 s{sB}, s{sGRP}, 7")
        p("v_lshrrev_b32 v7, 6, v0")
        p(f"v_and_b32 v{vL}, 63, v0")
        p(f"v_readfirstlane_b32 s{sW}, v7")
        p(f"v_lshlrev_b32 v{vLIN}, 4, v{vL}")
        for r, src, n in ((sWS, 94, PBASE + 16 * GRP), (sOUT, 96, 917504)):
            p(f"s_mov_b32 s{r}, s{src}")
            p(f"s_mov_b32 s{r+1}, s{src+1}")
            p(f"s_mov_b32 s{r+2}, {n}")
            p(f"s_mov_b32 s{r+3}, 0x20000")
        self.reduce("")
        p("L_end2:")
        return p.finalize()


def kernel_text(label, body):
    return f".globl {label}\n.p2align 8\n.type {label},@function\n{label}:\n{body}    s_endpgm\n"


def descriptor(label, vgpr, acc):
    return f""".p2align 6
.amdhsa_kernel {label}
  .amdhsa_next_free_vgpr {vgpr}
  .amdhsa_next_free_sgpr 102
  .amdhsa_accum_offset {acc}
  .amdhsa_group_segment_fixed_size 0
  .amdhsa_kernarg_size 104
  .amdhsa_user_sgpr_count 2
  .amdhsa_user_sgpr_kernarg_segment_ptr 1
  .amdhsa_system_sgpr_workgroup_id_x 1
.end_amdhsa_kernel
"""


def build(**kw):
    ref = open(f"cdna_kernels/{NAME}.s.ref").read().splitlines() if kw.pop("header", True) else []
    head = [l for l in ref if l.startswith(";") and "@launch" not in l and "Override" not in l
            and "grid=ceil" not in l]
    g = Gen(**kw)
    k1 = NAME + "_kernel"
    body = g.main()
    if g.o["fused"] and g.o.get("aslist"):
        head.append(f"; @launch kernel={k1} grid=(256,1,1) block=(256,1,1) lds=163840")
    elif g.o["fused"]:
        head.append("; @launch grid=(256,1,1) block=(256,1,1) lds=163840")
    else:
        head.append(f"; @launch kernel={k1} grid=(256,1,1) block=(256,1,1) lds=163840")
        head.append("; @launch kernel=head_sum_kernel grid=(224,1,1) block=(256,1,1) lds=0")
    s = "\n".join(head) + '\n.amdgcn_target "amdgcn-amd-amdhsa--gfx950"\n.text\n' + kernel_text(k1, body)
    if not g.o["fused"]:
        s += kernel_text("head_sum_kernel", Gen(**kw).second())
    s += '.section .rodata,"a"\n' + descriptor(k1, 512, 256)
    if not g.o["fused"]:
        s += descriptor("head_sum_kernel", 128, 128)
    return s


if __name__ == "__main__":
    kw = {}
    out = sys.argv[1]
    for a in sys.argv[2:]:
        k, v = a.split("=", 1)
        kw[k] = {"True": True, "False": False}.get(v, int(v) if v.lstrip("-").isdigit() else v)
    open(out, "w").write(build(**kw))
```

```python
import math, struct, sys
from asmlib import Prog

NAME = "concat_heads__gqa_block_cached__mha_block_cached__near_ridge"
SH, RING, RSZ, NSLOT = 0, 65536, 24576, 6
PBASE = 0x100000
FBASE = 0x10000
GRP = 917504

sX, sK, sV, sQ, sO, sWS, sOUT, sDBG = 8, 12, 16, 20, 24, 28, 32, 36
sW, sBR, sH, sB, sRING, sSO, sC, sGRP, sT0, sT1, sT2 = 40, 41, 42, 43, 44, 45, 46, 47, 48, 49, 50
sPT = 52
sST = 64
vL = 1
vDX, vDQ, vDK, vDV, vDO = 8, 9, 13, 17, 21
vRX, vRQ, vRK, vRV, vRO = 25, 29, 31, 35, 37
vLIN, vWR, vOA, vOW, vIW, vIR = 41, 42, 43, 47, 6, 8
vMC, vLS = 48, 56
vCNT = 7
ACC = 128


def f32(x):
    return "0x%08x" % struct.unpack("<I", struct.pack("<f", x))[0]


def vr(a, n):
    return f"v[{a}:{a+n-1}]" if n > 1 else f"v{a}"


def ar(a, n):
    return f"a[{a}:{a+n-1}]" if n > 1 else f"a{a}"


def srd(b):
    return f"s[{b}:{b+3}]"


DEFAULT = dict(
    nt_kv="", nt_w="", nt_x="", fused=True, stamps=False, st_fl="sc0 sc1", ld_fl="sc0 sc1",
    issue="Q0 Q1 K0 Q2 Q3 K1 Q4 Q5 K2 Q6 K3 Q7 Q8 K4 Q9 Q10 K5 Q11 K6 Q12 Q13 K7 "
          "K8 W0 K9 W1 K10 W2 K11 W3 K12 W4 K13 W5 K14 W6 K15 W7 "
          "V0 W8 V1 W9 V2 W10 V3 W11 V4 W12 V5 W13 V6 W14 V7 W15 V8 V9 V10 V11 V12 V13 V14 V15",
    ph1="Q0|Q1|K0 Q2|Q3|K1 Q4|Q5|K2 Q6|K3 Q7|Q8|K4 Q9|Q10|K5 Q11|K6 Q12|Q13",
    mid1="K7",
    ph2="K8|T0|T1|W0 K9|T2|T3|W1 K10|T4|T5|W2 K11|T6|T7|W3 K12|W4 K13|W5 K14|W6 K15",
    mid2="W7 W8 W9",
    ph3="V0|V1|V2|W10 V3|W11 V4|W12 V5|W13 V6|W14 V7|W15 V8|V9|V10|V11|V12|V13|V14|V15",
)


class Gen:
    def __init__(self, **kw):
        self.o = dict(DEFAULT)
        self.o.update(kw)
        self.p = Prog()
        self.issue_q = self.o["issue"].split()
        self.free = [(s, []) for s in range(NSLOT)]
        self.unit = {}
        self.nstamp = 0
        self.buf = 0

    def stamp(self):
        if self.o["stamps"]:
            self.p(f"s_memrealtime s[{sST + 2*self.nstamp}:{sST + 2*self.nstamp + 1}]")
            self.p("s_waitcnt lgkmcnt(0)")
            self.nstamp += 1

    def ids(self, exit_label, limit):
        p = self.p
        p(f"s_cmp_ge_u32 s2, {limit}")
        p(f"s_cbranch_scc1 {exit_label}")

    def dma_items(self):
        if not self.issue_q or not self.free:
            return []
        name = self.issue_q.pop(0)
        slot, reads = self.free.pop(0)
        kind, u = name[0], int(name[1:])
        r, v, so, nt = {
            "Q": (sQ, vDQ, u * 32 * 8192, self.o["nt_w"]),
            "K": (sK, vDK, (u // 4) * 65536 + (u % 4) * 128, self.o["nt_kv"]),
            "V": (sV, vDV, u * 16384, self.o["nt_kv"]),
            "W": (sO, vDO, u * 16 * 896, self.o["nt_w"]),
        }[kind]
        dm = []
        self.unit[name] = (slot, dm)
        p = self.p

        def head():
            p(f"s_add_u32 m0, s{sRING}, {slot*4096}")
            p(f"s_mov_b32 s{sSO}, {so}")

        def piece(j):
            def f():
                if j == 0:
                    head()
                off = f" offset:{1024*j}" if j else ""
                fl = f" {nt}" if nt else ""
                dm.append(p(f"buffer_load_dwordx4 v{v+j}, {srd(r)}, s{sSO} offen{off}{fl} lds",
                            after=reads if j == 0 else ()))
            return f
        return [piece(j) for j in range(4)]

    def unit_reads(self, name, base):
        kind, u = name[0], int(name[1:])
        p = self.p
        items, done = [], []
        if kind == "T":
            return items, done
        slot, dm = self.unit[name]
        so = slot * 4096

        def ring(text, pieces):
            items.append(lambda: done.append(p(text, after=[dm[j] for j in pieces])))

        def side(text):
            items.append(lambda: p(text))
        if kind in "QV":
            for ks in range(2):
                for mt in range(2):
                    for part in range(2):
                        d = base + (ks * 2 + mt) * 4 + part * 2
                        if kind == "Q":
                            ring(f"ds_read_b64_tr_b16 {vr(d,2)}, v{vRQ+mt} offset:{so + ks*2048 + part*512}",
                                 (2 * ks, 2 * ks + 1))
                        else:
                            ring(f"ds_read_b64_tr_b16 {vr(d,2)}, v{vRV+mt} offset:{so + ks*2048 + part*1024}",
                                 (2 * ks + part,))
                    qt = mt
                    d = base + 16 + (ks * 2 + qt) * 4
                    if kind == "Q":
                        s = 2 * u + ks
                        side(f"ds_read_b128 {vr(d,4)}, v{vRX + s % 4} offset:{(s // 4)*8192 + qt*4096}")
                    else:
                        side(f"ds_read_b128 {vr(d,4)}, v{vLIN} "
                             f"offset:{(u % 4)*16384 + (((u // 4)*2 + ks)*2 + qt)*1024}")
        elif kind == "K":
            for j in range(4):
                d = ar(128 + 16 * u + 4 * j, 4) if u < 8 else vr(base + 4 * j, 4)
                ring(f"ds_read_b128 {d}, v{vRK+j} offset:{so}", range(4))
        elif kind == "W":
            b = 128 + 16 * u if u < 8 else 16 * (u - 8)
            for part in range(2):
                for t in range(4):
                    ring(f"ds_read_b64_tr_b16 {ar(b + t*4 + part*2, 2)}, v{vRO+t} offset:{so + part*1024}",
                         (part, 2 + part))
        return items, done

    def unit_mfmas(self, name, base):
        kind, u = name[0], int(name[1:])
        out = []
        M = "v_mfma_f32_32x32x16_bf16"
        if kind in "QV":
            for ks in range(2):
                for mt, qt in ((0, 0), (1, 0), (0, 1), (1, 1)):
                    acc = vr(ACC + (mt * 2 + qt) * 16, 16)
                    c = "0" if (u == 0 and ks == 0) else acc
                    out.append(f"{M} {acc}, {vr(base + (ks*2+mt)*4, 4)}, {vr(base + 16 + (ks*2+qt)*4, 4)}, {c}")
        elif kind == "T" or (kind == "K" and u >= 8):
            t, cb = u // 4, u % 4
            for j in range(4):
                s = 4 * cb + j
                a = ar(128 + 16 * u + 4 * j, 4) if kind == "T" else vr(base + 4 * j, 4)
                for qt in range(2):
                    acc = vr(ACC + (t * 2 + qt) * 16, 16)
                    c = "0" if s == 0 else acc
                    out.append(f"{M} {acc}, {a}, {ar((s*2+qt)*4, 4)}, {c}")
        return out

    def window(self, mfmas, early, late, fill):
        p = self.p
        n = len(mfmas)
        if n == 0:
            for f in early + fill + late:
                f()
            return
        gaps = [[] for _ in range(n)]
        lo = min(1, n - 1)
        mid = n // 2
        for k, f in enumerate(early):
            gaps[lo + k * max(mid - lo, 1) // max(len(early), 1)].append(f)
        for k, f in enumerate(fill):
            gaps[k * n // len(fill)].append(f)
        span = max(n - 1 - mid + 1, 1)
        for k, f in enumerate(late):
            gaps[mid - 1 + k * span // len(late)].append(f)
        for m, g in zip(mfmas, gaps):
            p(m)
            for f in g:
                f()

    def release(self, names, dones):
        for nme, d in zip(names, dones):
            if nme[0] != "T":
                self.free.append((self.unit[nme][0], d))

    def all_dma(self):
        out = []
        while self.issue_q and self.free:
            out += self.dma_items()
        return out

    def run_phase(self, spec, fillers=None):
        groups = [g.split() for g in spec.split("|")]
        bufs = (64, 96)
        pend = []
        fillq = []
        for gi, g in enumerate(groups):
            base = bufs[self.buf]
            if g[-1][0] != "T":
                self.buf ^= 1
            early = self.all_dma()
            late, dones = [], []
            for nme in g:
                it, d = self.unit_reads(nme, base)
                late += it
                dones.append(d)
            take = fillq[:self.o.get("fill_per", 40)] if pend else []
            fillq = fillq[len(take):]
            self.window(pend, early, late, take)
            if fillers and gi > 0:
                fillq += fillers(groups[gi - 1][-1])
            self.release(g, dones)
            pend = self.unit_mfmas(g[-1], base)
        self.window(pend, self.all_dma(), [], fillq)
        return fillers(groups[-1][-1]) if fillers else []

    def mid_units(self, spec):
        st = []
        for nme in spec.split():
            def stage(nme=nme):
                for f in self.all_dma():
                    f()
                it, d = self.unit_reads(nme, 0)
                for f in it:
                    f()
                self.release([nme], [d])
            st.append(stage)
        return st

    def prologue(self):
        p, o = self.p, self.o
        self.ids("L_end", 256)
        self.stamp()
        p("s_lshr_b32 s4, s2, 3")
        p(f"s_lshr_b32 s{sBR}, s4, 4")
        p(f"s_mul_i32 s5, s{sBR}, 40")
        p("s_add_u32 s6, s0, s5")
        p("s_addc_u32 s7, s1, 0")
        p("s_load_dwordx8 s[84:91], s[6:7], 0")
        p("s_load_dwordx2 s[92:93], s[6:7], 32")
        p("s_load_dwordx4 s[96:99], s[0:1], 80")
        p("s_load_dwordx2 s[94:95], s[0:1], 96")
        p("s_and_b32 s3, s2, 7")
        p("s_and_b32 s5, s4, 1")
        p("s_lshl_b32 s3, s3, 1")
        p(f"s_add_u32 s{sH}, s3, s5")
        p(f"s_bfe_u32 s{sB}, s4, 0x30001")
        p(f"v_lshrrev_b32 v7, 6, v0")
        p(f"v_and_b32 v{vL}, 63, v0")
        p(f"v_readfirstlane_b32 s{sW}, v7")
        p(f"v_lshrrev_b32 v2, 3, v{vL}")
        p(f"v_and_b32 v3, 7, v{vL}")
        p(f"v_lshrrev_b32 v4, 4, v{vL}")
        p(f"s_mul_i32 s{sRING}, s{sW}, {RSZ}")
        p(f"s_add_u32 s{sRING}, s{sRING}, {RING}")
        p(f"s_and_b32 s{sT2}, s{sW}, 1")
        p(f"s_lshl_b32 s{sT0}, s{sT2}, 2")
        p(f"v_add_u32 v5, s{sT0}, v4")
        p("v_xor_b32 v5, v5, v3")
        p(f"s_lshl_b32 s{sT0}, s{sW}, 3")
        p(f"v_add_u32 v6, s{sT0}, v2")
        p("v_mul_u32_u24 v6, 896, v6")
        p(f"v_lshl_add_u32 v{vDX}, v5, 4, v6")
        p("v_and_b32 v5, 1, v4")
        p("v_lshlrev_b32 v5, 2, v5")
        p("v_xor_b32 v5, v5, v3")
        p(f"s_lshl_b32 s{sT0}, s{sW}, 7")
        p(f"v_lshl_add_u32 v5, v5, 4, s{sT0}")
        p(f"v_lshl_add_u32 v{vDQ}, v2, 13, v5")
        p(f"v_lshl_add_u32 v{vDV}, v2, 9, v5")
        for j in range(1, 4):
            p(f"v_add_u32 v{vDQ+j}, {j*(65536-1024)}, v{vDQ}")
        p("v_xor_b32 v5, v3, v4")
        p(f"s_lshl_b32 s{sT0}, s{sW}, 14")
        p(f"v_lshl_add_u32 v5, v5, 4, s{sT0}")
        p(f"v_lshl_add_u32 v{vDK}, v2, 9, v5")
        p(f"v_xor_b32 v5, 64, v{vDK}")
        p(f"v_add_u32 v{vDK+1}, 3072, v5")
        p(f"v_add_u32 v{vDK+2}, 6144, v{vDK}")
        p(f"v_add_u32 v{vDK+3}, 9216, v5")
        p(f"s_mul_i32 s{sT0}, s{sB}, 57344")
        p(f"s_add_u32 s{sX}, s84, s{sT0}")
        p(f"s_addc_u32 s{sX+1}, s85, 0")
        p(f"s_mov_b32 s{sX+2}, 57344")
        p(f"s_mov_b32 s{sX+3}, 0x20000")
        self.xd = []
        fl = f" {o['nt_x']}" if o["nt_x"] else ""
        p(f"s_lshl_b32 s{sT1}, s{sW}, 10")
        for cb in range(7):
            for hi in range(2):
                p(f"s_add_u32 m0, s{sT1}, {SH + cb*8192 + hi*4096}")
                p(f"s_mov_b32 s{sSO}, {cb*128 + hi*32*896}")
                self.xd.append(p(f"buffer_load_dwordx4 v{vDX}, {srd(sX)}, s{sSO} offen{fl} lds"))
        p(f"s_lshl_b32 s{sT0}, s{sH}, 9")
        p(f"s_add_u32 s{sQ}, s90, s{sT0}")
        p(f"s_addc_u32 s{sQ+1}, s91, 0")
        p(f"s_sub_u32 s{sQ+2}, 3670016, s{sT0}")
        p(f"s_mov_b32 s{sQ+3}, 0x20000")
        p(f"s_lshl_b32 s{sT0}, s{sB}, 4")
        p(f"s_add_u32 s{sT0}, s{sT0}, s{sH}")
        p(f"s_xor_b32 s{sT1}, s{sBR}, 1")
        p(f"s_lshr_b32 s{sT0}, s{sT0}, s{sT1}")
        p(f"s_lshl_b32 s{sT0}, s{sT0}, 18")
        for r, src in ((sK, 86), (sV, 88)):
            p(f"s_add_u32 s{r}, s{src}, s{sT0}")
            p(f"s_addc_u32 s{r+1}, s{src+1}, 0")
            p(f"s_mov_b32 s{r+2}, 262144")
            p(f"s_mov_b32 s{r+3}, 0x20000")
        p(f"s_mul_i32 s{sT0}, s{sH}, 229376")
        p(f"s_add_u32 s{sO}, s92, s{sT0}")
        p(f"s_addc_u32 s{sO+1}, s93, 0")
        p(f"s_mov_b32 s{sO+2}, 229376")
        p(f"s_mov_b32 s{sO+3}, 0x20000")
        for j in range(1, 4):
            p(f"v_add_u32 v{vDV+j}, {j*3072}, v{vDV}")
        p(f"v_bfe_u32 v5, v{vL}, 2, 2")
        p("v_xor_b32 v5, v5, v4")
        p(f"v_add_u32 v5, s{sT2}, v5")
        p("v_and_b32 v5, 3, v5")
        p(f"v_and_b32 v6, 3, v{vL}")
        p("v_lshlrev_b32 v6, 4, v6")
        p("v_lshl_add_u32 v5, v5, 6, v6")
        p("v_mul_u32_u24 v6, 896, v4")
        p(f"s_mul_i32 s{sT0}, s{sW}, 224")
        p(f"s_lshl_b32 s{sT1}, s{sT2}, 5")
        p(f"s_sub_u32 s{sT0}, s{sT0}, s{sT1}")
        p(f"v_add3_u32 v{vDO}, v5, v6, s{sT0}")
        for j in range(1, 4):
            p(f"v_add_u32 v{vDO+j}, {j*(3584-1024)}, v{vDO}")
        for f in self.all_dma():
            f()
        for r, src, n in ((sWS, 94, PBASE + 16 * GRP), (sOUT, 96, 917504), (sDBG, 98, 256)):
            p(f"s_mov_b32 s{r}, s{src}")
            p(f"s_mov_b32 s{r+1}, s{src+1}")
            p(f"s_mov_b32 s{r+2}, {n}")
            p(f"s_mov_b32 s{r+3}, 0x20000")
        p(f"s_lshl_b32 s{sGRP}, s{sBR}, 3")
        p(f"s_add_u32 s{sGRP}, s{sGRP}, s{sB}")
        p(f"s_mov_b32 s{sC}, {f32(math.log2(math.e) / 16)}")
        p(f"v_lshlrev_b32 v{vLIN}, 4, v{vL}")
        p(f"v_lshrrev_b32 v2, 5, v{vL}")
        p(f"v_bfe_u32 v3, v{vL}, 1, 3")
        p("v_xor_b32 v3, v3, v2")
        p(f"v_and_b32 v5, 31, v{vL}")
        p("v_lshlrev_b32 v5, 7, v5")
        p(f"v_lshl_add_u32 v{vRX}, v3, 4, v5")
        for j in range(1, 4):
            p(f"v_xor_b32 v{vRX+j}, {j*32}, v{vRX}")
        for j in range(4):
            p(f"v_add_u32 v{vRK+j}, s{sRING}, v{vRX+j}")
        p(f"v_and_b32 v3, 1, v{vL}")
        p("v_lshlrev_b32 v3, 4, v3")
        p(f"v_bfe_u32 v5, v{vL}, 1, 1")
        p("v_lshl_add_u32 v3, v5, 3, v3")
        p("v_and_b32 v5, 1, v4")
        p("v_lshl_add_u32 v3, v5, 5, v3")
        p(f"v_add_u32 v3, s{sRING}, v3")
        p(f"v_bfe_u32 v5, v{vL}, 2, 2")
        p(f"v_bfe_u32 v6, v{vL}, 3, 1")
        p("v_lshl_add_u32 v6, v6, 6, v3")
        p("v_lshl_add_u32 v6, v5, 7, v6")
        p(f"v_lshl_add_u32 v{vRQ}, v2, 10, v6")
        p(f"v_lshl_add_u32 v{vRV}, v2, 9, v6")
        p(f"v_xor_b32 v{vRQ+1}, 64, v{vRQ}")
        p(f"v_xor_b32 v{vRV+1}, 64, v{vRV}")
        p("v_mul_u32_u24 v6, 320, v5")
        p("v_add_u32 v6, v6, v3")
        p(f"v_lshl_add_u32 v{vRO}, v2, 11, v6")
        for t in range(1, 4):
            p(f"v_xor_b32 v{vRO+t}, {t*64}, v{vRO}")
        p(f"s_lshl_b32 s{sT0}, s{sW}, 14")
        p(f"v_add_u32 v{vWR}, s{sT0}, v{vLIN}")
        p(f"v_add_u32 v{vOW}, s{sRING}, v{vLIN}")
        p(f"s_lshl_b32 s{sT1}, s{sT2}, 10")
        p(f"s_add_u32 s{sT1}, s{sT1}, {RING}")
        p(f"v_add_u32 v{vOA}, s{sT1}, v{vLIN}")
        p(f"v_xor_b32 v{vOA+1}, 0x400, v{vOA}")
        p(f"v_add_u32 v{vOA+2}, {2*RSZ}, v{vOA}")
        p(f"v_add_u32 v{vOA+3}, {2*RSZ}, v{vOA+1}")
        p(f"s_add_u32 s{sT0}, s{sT0}, 8192")
        p(f"v_lshl_add_u32 v{vIR}, v{vL}, 3, s{sT0}")
        p(f"s_lshl_b32 s{sT0}, s{sW}, 9")
        p(f"s_add_u32 s{sT0}, s{sT0}, 8192")
        p(f"v_lshl_add_u32 v{vIW}, v{vL}, 3, s{sT0}")
        p(f"s_mul_i32 s3, s{sGRP}, {GRP}")
        p(f"s_lshl_b32 s4, s{sH}, 11")
        p("s_add_u32 s3, s3, s4")
        p(f"s_add_u32 s3, s3, {PBASE}")
        p(f"s_lshr_b32 s4, s{sW}, 1")
        p("s_mul_i32 s4, s4, 7")
        p(f"s_mul_i32 s5, s{sT2}, 3")
        p("s_add_u32 s4, s4, s5")
        for t in range(4):
            p(f"s_add_u32 s5, s{sT2}, {t}")
            p("s_and_b32 s5, s5, 3")
            p("s_add_u32 s5, s5, s4")
            p("s_lshr_b32 s6, s5, 1")
            p("s_lshl_b32 s6, s6, 2")
            p("s_and_b32 s5, s5, 1")
            p("s_add_u32 s5, s5, s6")
            p(f"s_lshl_b32 s6, s{sT2}, 1")
            p("s_add_u32 s5, s5, s6")
            p("s_lshl_b32 s6, s5, 15")
            p(f"s_add_u32 s{sPT + 2*t}, s6, s3")
            if t < 3:
                p("s_xor_b32 s6, s6, 0x10000")
                p(f"s_add_u32 s{sPT + 2*t + 1}, s6, s3")
        if o["fused"]:
            p(f"s_lshl_b32 s3, s{sGRP}, 4")
            p(f"s_add_u32 s3, s3, s{sH}")
            p("s_lshl_b32 s3, s3, 2")
            p(f"s_add_u32 s3, s3, s{sW}")
            p("s_lshl_b32 s3, s3, 7")
            p(f"s_add_u32 s60, s3, {FBASE}")
            p(f"v_and_b32 v2, 15, v{vL}")
            p("v_lshlrev_b32 v2, 2, v2")
            p("v_mov_b32 v3, 0")
            self.clr = p(f"buffer_store_dword v3, v2, {srd(sWS)}, s60 offen sc0 sc1")
        p("s_barrier", after=self.xd)
        self.stamp()

    def pack_and_write(self, addr):
        p = self.p
        tmp = 64
        for mt in range(2):
            for qt in range(2):
                for ks in range(2):
                    src = ACC + (mt * 2 + qt) * 16 + ks * 8
                    d = tmp + ((mt * 2 + qt) * 2 + ks) * 4
                    for k in range(4):
                        p(f"v_cvt_pk_bf16_f32 v{d+k}, v{src+2*k}, v{src+2*k+1}")
        w = []

        def writes():
            for mt in range(2):
                for qt in range(2):
                    for ks in range(2):
                        d = tmp + ((mt * 2 + qt) * 2 + ks) * 4
                        w.append(p(f"ds_write_b128 v{addr}, {vr(d,4)} offset:{((2*mt+ks)*2+qt)*1024}"))
            return w
        return writes

    def softmax_tile(self, t):
        p = self.p
        out = []
        for qt in range(2):
            s = ACC + (t * 2 + qt) * 16
            m, l = vMC + t * 2 + qt, vLS + t * 2 + qt
            seq = [f"v_max3_f32 v{m}, v{s}, v{s+1}, v{s+2}"]
            for k in range(3, 15, 2):
                seq.append(f"v_max3_f32 v{m}, v{m}, v{s+k}, v{s+k+1}")
            seq.append(f"v_max_f32 v{m}, v{m}, v{s+15}")
            seq.append(f"v_mul_f32 v{m}, s{sC}, v{m}")
            for k in range(16):
                seq.append(f"v_fma_f32 v{s+k}, v{s+k}, s{sC}, -v{m}")
            for k in range(16):
                seq.append(f"v_exp_f32 v{s+k}, v{s+k}")
                if k == 2:
                    seq.append(f"v_add_f32 v{l}, v{s}, v{s+1}")
                elif k > 2:
                    seq.append(f"v_add_f32 v{l}, v{l}, v{s+k-1}")
            seq.append(f"v_add_f32 v{l}, v{l}, v{s+15}")
            out += [(lambda x=x: p(x)) for x in seq]
        return out

    def softmax_finish(self, stages):
        p = self.p
        T = 64
        stages = list(stages)

        def stage():
            if stages:
                stages.pop(0)()
        for qt in range(2):
            m = [vMC + t * 2 + qt for t in range(4)]
            l = [vLS + t * 2 + qt for t in range(4)]
            M, L = T + qt, T + 2 + qt
            p(f"v_max3_f32 v{M}, v{m[0]}, v{m[1]}, v{m[2]}")
            p(f"v_max_f32 v{M}, v{M}, v{m[3]}")
            for t in range(4):
                p(f"v_sub_f32 v{T+4+t}, v{m[t]}, v{M}")
            for t in range(4):
                p(f"v_exp_f32 v{T+4+t}, v{T+4+t}")
            p(f"v_mul_f32 v{L}, v{l[0]}, v{T+4}")
            for t in range(1, 4):
                p(f"v_fmac_f32 v{L}, v{l[t]}, v{T+4+t}")
        p(f"v_permlane32_swap_b32 v{T}, v{T+1}")
        p(f"v_permlane32_swap_b32 v{T+2}, v{T+3}")
        p(f"v_max_f32 v{T+8}, v{T}, v{T+1}")
        p(f"v_sub_f32 v{T+4}, v{T}, v{T+8}")
        p(f"v_sub_f32 v{T+5}, v{T+1}, v{T+8}")
        p(f"v_exp_f32 v{T+4}, v{T+4}")
        p(f"v_exp_f32 v{T+5}, v{T+5}")
        p(f"v_mul_f32 v{T+9}, v{T+2}, v{T+4}")
        p(f"v_fmac_f32 v{T+9}, v{T+3}, v{T+5}")
        w = [p(f"ds_write_b64 v{vIW}, {vr(T+8,2)} offset:{r*16384}") for r in range(4)]
        stage()
        p("s_barrier", after=w)
        for r in range(4):
            p(f"ds_read_b64 {vr(T+10+2*r,2)}, v{vIR} offset:{r*512}")
        p(f"v_max3_f32 v{T}, v{T+10}, v{T+12}, v{T+14}")
        p(f"v_max_f32 v{T}, v{T}, v{T+16}")
        for r in range(4):
            p(f"v_sub_f32 v{T+4+r}, v{T+10+2*r}, v{T}")
        for r in range(4):
            p(f"v_exp_f32 v{T+4+r}, v{T+4+r}")
        p(f"v_mul_f32 v{T+1}, v{T+11}, v{T+4}")
        for r in range(1, 4):
            p(f"v_fmac_f32 v{T+1}, v{T+11+2*r}, v{T+4+r}")
        p(f"v_log_f32 v{T+1}, v{T+1}")
        p(f"v_add_f32 v{T}, v{T}, v{T+1}")
        p(f"v_mov_b32 v{T+1}, v{T}")
        p(f"v_permlane32_swap_b32 v{T}, v{T+1}")
        F = T + 20
        for t in range(4):
            for qt in range(2):
                p(f"v_sub_f32 v{F + 2*(t*2+qt)}, v{vMC + t*2 + qt}, v{T+qt}")
        for k in range(8):
            p(f"v_exp_f32 v{F+2*k}, v{F+2*k}")
        w = []
        P = 104
        n = 0
        for t in range(4):
            for qt in range(2):
                s = ACC + (t * 2 + qt) * 16
                f = F + 2 * (t * 2 + qt)
                for k in range(8):
                    p(f"v_pk_mul_f32 {vr(s+2*k,2)}, {vr(s+2*k,2)}, {vr(f,2)} op_sel_hi:[1,0]")
                for ks in range(2):
                    d = P + (n % 4) * 4
                    n += 1
                    for k in range(4):
                        p(f"v_cvt_pk_bf16_f32 v{d+k}, v{s+ks*8+2*k}, v{s+ks*8+2*k+1}")
                    w.append(p(f"ds_write_b128 v{vWR}, {vr(d,4)} offset:{((t*2+ks)*2+qt)*1024}"))
            if t in (0, 2):
                stage()
        while stages:
            stage()
        for f in self.all_dma():
            f()
        p("s_barrier", after=w)

    def out_proj(self):
        p, o = self.p, self.o
        M = "v_mfma_f32_32x32x16_bf16"
        for qi in range(2):
            for s in range(16):
                a = vOA + qi + 2 * (s // 8)
                p(f"ds_read_b128 {vr(ACC + (s*2+qi)*4, 4)}, v{a} offset:{((s // 4) % 2)*RSZ + (s % 4)*2048}")
        units = [(0, 0), (0, 1), (1, 0), (1, 1), (2, 0), (2, 1), (3, 0)]
        fl = f" {o['st_fl']}" if (o["fused"] and o["st_fl"]) else ""
        prev = []
        stores = []
        for k, (t, qi) in enumerate(units):
            acc = 64 + (k % 2) * 16
            mf = []
            for s in range(16):
                b = 128 + 16 * s if s < 8 else 16 * (s - 8)
                c = "0" if s == 0 else vr(acc, 16)
                mf.append(f"{M} {vr(acc,16)}, {ar(b + t*4, 4)}, {vr(ACC + (s*2+qi)*4, 4)}, {c}")
            for i, m in enumerate(mf):
                p(m)
                if i >= 2 and prev:
                    for _ in range(2):
                        if prev:
                            prev.pop(0)()
            d = 96 + (k % 2) * 8
            prev = []
            for half in range(2):
                for j in range(4):
                    prev.append(lambda j=j, half=half, acc=acc, d=d: p(
                        f"v_cvt_pk_bf16_f32 v{d+half*4+j}, v{acc+half*8+2*j}, v{acc+half*8+2*j+1}"))
                off = " offset:1024" if half else ""
                prev.append(lambda half=half, d=d, k=k, off=off: stores.append(p(
                    f"buffer_store_dwordx4 {vr(d+half*4,4)}, v{vLIN}, {srd(sWS)}, s{sPT+k} offen{off}{fl}")))
        for f in prev:
            f()
        return stores

    def reduce(self, fl):
        p = self.p
        fl = f" {fl}" if fl else ""
        p(f"s_mul_i32 s3, s{sGRP}, {GRP}")
        p(f"s_lshl_b32 s4, s{sH}, 1")
        p(f"s_lshr_b32 s5, s{sW}, 1")
        p("s_add_u32 s4, s4, s5")
        p("s_lshl_b32 s4, s4, 15")
        p("s_add_u32 s3, s3, s4")
        p(f"s_and_b32 s4, s{sW}, 1")
        p("s_lshl_b32 s4, s4, 10")
        p("s_add_u32 s3, s3, s4")
        p(f"s_add_u32 s3, s3, {PBASE}")
        D = 64
        for i in range(16):
            off = " offset:2048" if i % 2 else ""
            p(f"buffer_load_dwordx4 {vr(D+4*i,4)}, v{vLIN}, {srd(sWS)}, s3 offen{off}{fl}")
            if i % 2 and i < 15:
                p("s_add_u32 s3, s3, 4096")
        p(f"s_lshl_b32 s3, s{sB}, 1")
        p(f"s_and_b32 s4, s{sH}, 1")
        p("s_add_u32 s3, s3, s4")
        p(f"s_mul_i32 s3, s3, {32*1792}")
        p(f"s_mul_i32 s4, s{sBR}, 896")
        p("s_add_u32 s3, s3, s4")
        p(f"s_lshr_b32 s4, s{sH}, 1")
        p("s_lshl_b32 s4, s4, 7")
        p("s_add_u32 s3, s3, s4")
        p(f"s_lshl_b32 s4, s{sW}, 5")
        p("s_add_u32 s3, s3, s4")
        p(f"v_and_b32 v2, 31, v{vL}")
        p("v_mul_u32_u24 v2, 1792, v2")
        p(f"v_lshrrev_b32 v3, 5, v{vL}")
        p("v_lshl_add_u32 v2, v3, 4, v2")
        A, T = 48, 56
        for i in range(16):
            for j in range(4):
                dst = A + 2 * j if i == 0 else T + 2 * j
                p(f"v_lshlrev_b32 v{dst}, 16, v{D+4*i+j}")
                p(f"v_and_b32 v{dst+1}, 0xffff0000, v{D+4*i+j}")
            if i:
                for j in range(4):
                    p(f"v_pk_add_f32 {vr(A+2*j,2)}, {vr(A+2*j,2)}, {vr(T+2*j,2)}")
        for j in range(4):
            p(f"v_cvt_pk_bf16_f32 v{T+j}, v{A+2*j}, v{A+2*j+1}")
        p(f"buffer_store_dwordx4 {vr(T,4)}, v2, {srd(sOUT)}, s3 offen")

    def dump_stamps(self):
        p = self.p
        if not self.o["stamps"]:
            return
        self.stamp()
        p(f"s_lshl_b32 s3, s2, 2")
        p(f"s_add_u32 s3, s3, s{sW}")
        p("s_lshl_b32 s3, s3, 6")
        p("v_mov_b32 v2, 0")
        p("s_mov_b64 exec, 1")
        for k in range(self.nstamp):
            p(f"v_mov_b32 v3, s{sST + 2*k}")
            p(f"buffer_store_dword v3, v2, {srd(sWS)}, s3 offen offset:{4*k}")
        p("s_mov_b64 exec, -1")

    def main(self):
        p, o = self.p, self.o
        self.prologue()
        if o["fused"]:
            p(f"s_lshl_b32 s61, s{sGRP}, 4")
            p("v_mov_b32 v2, 0")
            p("v_mov_b32 v3, 1")
        self.run_phase(o["ph1"])
        if o["fused"]:
            p("s_mov_b64 exec, 1")
            p(f"buffer_atomic_add v3, v2, {srd(sDBG)}, s61 offen sc1", after=[self.clr])
            p("s_mov_b64 exec, -1")
        self.stamp()
        st = self.mid_units(o["mid1"])
        writes = self.pack_and_write(vWR)
        p("s_barrier")
        w = writes()
        for f in st:
            f()
        p("s_barrier", after=w)
        for s in range(16):
            for qt in range(2):
                p(f"ds_read_b128 {ar((s*2+qt)*4, 4)}, v{vLIN} offset:{SH + (s // 4)*16384 + ((s % 4)*2 + qt)*1024}")
        self.stamp()
        last = {"T3": 0, "T7": 1, "K11": 2, "K15": 3}
        rest = self.run_phase(o["ph2"], lambda nme: self.softmax_tile(last[nme]) if nme in last else [])
        self.stamp()
        st = self.mid_units(o["mid2"])
        for k, f in enumerate(rest):
            f()
            if k == len(rest) // 2 and st:
                st.pop(0)()
        self.softmax_finish(st)
        self.stamp()
        if o["fused"]:
            p("v_mov_b32 v2, 0")
            p(f"buffer_load_dword v{vCNT}, v2, {srd(sDBG)}, s61 offen sc0 sc1")
        self.run_phase(o["ph3"])
        assert not self.issue_q
        self.stamp()
        writes = self.pack_and_write(vOW)
        w = writes()
        p("s_barrier", after=w)
        stores = self.out_proj()
        self.stamp()
        if o["fused"]:
            self.handoff(stores)
            p(f"s_cmp_ge_u32 s{sH}, 14")
            p("s_cbranch_scc1 L_fin")
            self.poll()
            self.reduce(o["ld_fl"])
            p("L_fin:")
        self.dump_stamps()
        if o.get("probe") is not None:
            self.probe(*o["probe"])
        p("L_end:")
        return p.finalize()

    def probe(self, wg, k, gain):
        p = self.p
        p(f"s_cmp_lg_u32 s2, {wg}")
        p("s_cbranch_scc1 L_end")
        p(f"s_sub_u32 s3, s{sST + 2*k}, s{sST}")
        p(f"s_mul_i32 s3, s3, {gain}")
        p("s_add_u32 s3, s3, 20000")
        p("s_min_u32 s3, s3, 200000")
        p("L_probe:")
        p("s_memrealtime s[4:5]")
        p("s_waitcnt lgkmcnt(0)")
        p(f"s_sub_u32 s4, s4, s{sST}")
        p("s_cmp_lt_u32 s4, s3")
        p("s_cbranch_scc1 L_probe")

    def handoff(self, stores):
        p = self.p
        p(f"s_mul_i32 s3, s{sGRP}, {GRP}")
        p(f"s_add_u32 s3, s3, {PBASE}")
        p("v_mov_b32 v4, 0")
        for k in range(7):
            p(f"s_sub_u32 s4, s{sPT+k}, s3")
            p("s_lshr_b32 s4, s4, 15")
            p("s_lshl_b32 s4, s4, 8")
            p(f"v_writelane_b32 v4, s4, {2*k}")
            p("s_add_u32 s4, s4, 128")
            p(f"v_writelane_b32 v4, s4, {2*k+1}")
        p(f"s_lshl_b32 s3, s{sGRP}, 13")
        p(f"s_lshl_b32 s4, s{sH}, 2")
        p("s_add_u32 s3, s3, s4")
        p(f"s_add_u32 s3, s3, {FBASE}")
        p("v_mov_b32 v5, 1")
        p("v_mov_b32 v2, 0")
        p("s_mov_b32 s5, 100000")
        p("s_waitcnt vmcnt(0)")
        p("L_ready:")
        p("v_cmp_le_u32 vcc, 64, v7")
        p("s_cbranch_vccnz L_go")
        p(f"buffer_load_dword v7, v2, {srd(sDBG)}, s61 offen sc0 sc1")
        p("s_sub_u32 s5, s5, 1")
        p("s_cmp_lg_u32 s5, 0")
        p("s_waitcnt vmcnt(0)")
        p("s_cbranch_scc1 L_ready")
        p("L_go:")
        p("s_mov_b64 exec, 0x3fff")
        p(f"buffer_store_dword v5, v4, {srd(sWS)}, s3 offen sc0 sc1")
        p("s_mov_b64 exec, -1")

    def poll(self):
        p = self.p
        p(f"v_and_b32 v2, 15, v{vL}")
        p("v_lshlrev_b32 v2, 2, v2")
        p("s_mov_b32 s5, 100000")
        p("L_poll:")
        p(f"buffer_load_dword v3, v2, {srd(sWS)}, s60 offen sc0 sc1")
        p("s_sub_u32 s5, s5, 1")
        p("s_cmp_eq_u32 s5, 0")
        p("s_waitcnt vmcnt(0)")
        p("s_cbranch_scc1 L_polled")
        p("v_cmp_ne_u32 vcc, 1, v3")
        p("s_cbranch_vccnz L_poll")
        p("L_polled:")

    def second(self):
        p = self.p
        self.ids("L_end2", 224)
        p("s_load_dwordx2 s[96:97], s[0:1], 80")
        p("s_load_dwordx2 s[94:95], s[0:1], 96")
        p(f"s_and_b32 s{sGRP}, s2, 15")
        p(f"s_lshr_b32 s{sH}, s2, 4")
        p(f"s_lshr_b32 s{sBR}, s{sGRP}, 3")
        p(f"s_and_b32 s{sB}, s{sGRP}, 7")
        p("v_lshrrev_b32 v7, 6, v0")
        p(f"v_and_b32 v{vL}, 63, v0")
        p(f"v_readfirstlane_b32 s{sW}, v7")
        p(f"v_lshlrev_b32 v{vLIN}, 4, v{vL}")
        for r, src, n in ((sWS, 94, PBASE + 16 * GRP), (sOUT, 96, 917504)):
            p(f"s_mov_b32 s{r}, s{src}")
            p(f"s_mov_b32 s{r+1}, s{src+1}")
            p(f"s_mov_b32 s{r+2}, {n}")
            p(f"s_mov_b32 s{r+3}, 0x20000")
        self.reduce("")
        p("L_end2:")
        return p.finalize()


def kernel_text(label, body):
    return f".globl {label}\n.p2align 8\n.type {label},@function\n{label}:\n{body}    s_endpgm\n"


def descriptor(label, vgpr, acc):
    return f""".p2align 6
.amdhsa_kernel {label}
  .amdhsa_next_free_vgpr {vgpr}
  .amdhsa_next_free_sgpr 102
  .amdhsa_accum_offset {acc}
  .amdhsa_group_segment_fixed_size 0
  .amdhsa_kernarg_size 104
  .amdhsa_user_sgpr_count 2
  .amdhsa_user_sgpr_kernarg_segment_ptr 1
  .amdhsa_system_sgpr_workgroup_id_x 1
.end_amdhsa_kernel
"""


def build(**kw):
    ref = open(f"cdna_kernels/{NAME}.s.ref").read().splitlines() if kw.pop("header", True) else []
    head = [l for l in ref if l.startswith(";") and "@launch" not in l and "Override" not in l
            and "grid=ceil" not in l]
    g = Gen(**kw)
    k1 = NAME + "_kernel"
    body = g.main()
    if g.o["fused"] and g.o.get("aslist"):
        head.append(f"; @launch kernel={k1} grid=(256,1,1) block=(256,1,1) lds=163840")
    elif g.o["fused"]:
        head.append("; @launch grid=(256,1,1) block=(256,1,1) lds=163840")
    else:
        head.append(f"; @launch kernel={k1} grid=(256,1,1) block=(256,1,1) lds=163840")
        head.append("; @launch kernel=head_sum_kernel grid=(224,1,1) block=(256,1,1) lds=0")
    s = "\n".join(head) + '\n.amdgcn_target "amdgcn-amd-amdhsa--gfx950"\n.text\n' + kernel_text(k1, body)
    if not g.o["fused"]:
        s += kernel_text("head_sum_kernel", Gen(**kw).second())
    s += '.section .rodata,"a"\n' + descriptor(k1, 512, 256)
    if not g.o["fused"]:
        s += descriptor("head_sum_kernel", 128, 128)
    return s


if __name__ == "__main__":
    kw = {}
    out = sys.argv[1]
    for a in sys.argv[2:]:
        k, v = a.split("=", 1)
        kw[k] = {"True": True, "False": False}.get(v, int(v) if v.lstrip("-").isdigit() else v)
        if k == "probe":
            kw[k] = tuple(map(int, v.split(",")))
    open(out, "w").write(build(**kw))
```

```python
import re

REG = re.compile(r"\b([vas])(\d+)\b|\b([vas])\[(\d+):(\d+)\]|\b(vcc|exec|m0|scc)(?:_lo|_hi)?\b")
TRANS = ("v_exp_f32", "v_log_f32", "v_rcp_f32", "v_rsq_f32", "v_sqrt_f32")


def regs_of(tok):
    out = []
    for m in REG.finditer(tok):
        if m.group(1):
            out.append(m.group(1) + m.group(2))
        elif m.group(3):
            out += [m.group(3) + str(i) for i in range(int(m.group(4)), int(m.group(5)) + 1)]
        else:
            out.append(m.group(6))
    return out


def split_ops(s):
    ops, depth, cur = [], 0, ""
    for ch in s:
        if ch == "[":
            depth += 1
        if ch == "]":
            depth -= 1
        if ch == "," and depth == 0:
            ops.append(cur.strip())
            cur = ""
        else:
            cur += ch
    if cur.strip():
        ops.append(cur.strip())
    return ops


class Ins:
    def __init__(self, text, after=(), raw=False):
        self.text = text
        self.after = list(after)
        self.rd, self.wr = set(), set()
        self.kind = "other"
        self.srcC = set()
        self.srcAB = set()
        self.passes = 0
        self.store_data = set()
        if raw or text.endswith(":") or text.startswith(";") or text.startswith("."):
            self.kind = "label" if text.endswith(":") else "meta"
            return
        mn, _, rest = text.partition(" ")
        self.mn = mn
        ops = split_ops(rest)
        R = [regs_of(o) for o in ops]
        flat = lambda xs: {r for x in xs for r in x}
        if mn.startswith("v_mfma"):
            self.kind = "mfma"
            self.passes = 8 if "32x32x16" in mn else 4
            self.wr = set(R[0])
            self.srcAB = set(R[1]) | set(R[2])
            self.srcC = set(R[3])
            self.rd = self.srcAB | self.srcC
        elif mn.startswith("ds_read"):
            self.kind = "ds_read"
            self.wr, self.rd = set(R[0]), flat(R[1:])
        elif mn.startswith("ds_write"):
            self.kind = "ds_write"
            self.rd = flat(R)
        elif mn.startswith("buffer_load") and text.rstrip().endswith("lds"):
            self.kind = "dma"
            self.rd = flat(R) | {"m0"}
        elif mn.startswith("buffer_load") or mn.startswith("global_load"):
            self.kind = "vload"
            self.wr, self.rd = set(R[0]), flat(R[1:])
        elif mn.startswith("buffer_store") or mn.startswith("buffer_atomic"):
            self.kind = "vstore"
            self.rd = flat(R)
            if mn.endswith("x4") or mn.endswith("x3"):
                self.store_data = set(R[0])
        elif mn.startswith("s_load") or mn in ("s_memtime", "s_memrealtime"):
            self.kind = "smem"
            self.wr, self.rd = set(R[0]), flat(R[1:])
        elif mn in ("s_waitcnt", "s_barrier", "s_nop", "s_endpgm", "s_setprio", "s_sleep") or \
                mn.startswith("s_cbranch") or mn == "s_branch":
            self.kind = "ctl"
            if "vcc" in mn:
                self.rd = {"vcc"}
        elif mn.startswith("s_cmp") or mn.startswith("s_bitcmp"):
            self.kind = "salu"
            self.rd, self.wr = flat(R), {"scc"}
        elif mn.startswith("s_"):
            self.kind = "salu"
            self.wr, self.rd = set(R[0]), flat(R[1:])
        elif mn.startswith("v_permlane"):
            self.kind = "valu"
            self.wr = self.rd = flat(R)
        elif mn.startswith("v_"):
            self.kind = "trans" if mn.startswith(TRANS) else "valu"
            self.wr, self.rd = set(R[0]), flat(R[1:])
            if mn.startswith("v_fmac") or mn.startswith("v_dot2c"):
                self.rd |= self.wr
        else:
            raise ValueError(text)

    @property
    def states(self):
        if self.kind in ("label", "meta") or getattr(self, "hidden", False):
            return 0
        if self.text.startswith("s_nop"):
            return int(self.text.split()[1]) + 1
        return 1


VM = ("dma", "vload", "vstore")
LG = ("ds_read", "ds_write")


def need_states(p, c):
    n = 0
    valu_p = p.kind in ("valu", "trans")
    valu_c = c.kind in ("valu", "trans")
    vwr = {r for r in p.wr if r[0] in "va" and r != "vcc"}
    swr = {r for r in p.wr if r[0] == "s" or r == "vcc"}
    if valu_p:
        if c.kind == "mfma" and vwr & c.rd:
            n = max(n, 2)
        if valu_c and c.mn.startswith("v_permlane") and vwr & c.rd:
            n = max(n, 2)
        if valu_c and c.mn.startswith(("v_readfirstlane", "v_readlane")) and vwr & c.rd:
            n = max(n, 1)
        if valu_c and "dpp" in c.text and vwr & c.rd:
            n = max(n, 2)
        if p.kind == "trans" and c.kind == "valu" and vwr & c.rd:
            n = max(n, 1)
        if c.kind in VM and swr & c.rd:
            n = max(n, 5)
        if valu_c and swr & c.rd:
            n = max(n, 2)
        if c.kind in ("salu", "ctl", "smem") and swr & c.rd:
            n = max(n, 4)
        if "op_sel" in p.text and valu_c and vwr & (c.rd | c.wr):
            n = max(n, 1)
    if p.kind == "salu" and "m0" in p.wr and c.kind == "dma":
        n = max(n, 1)
    if p.kind == "salu" and "exec" in p.wr and c.kind in VM + LG + ("valu", "trans", "mfma"):
        n = max(n, 1)
    if p.kind == "mfma":
        big = {8: 12, 4: 8}[p.passes]
        if c.kind == "mfma":
            if p.wr & c.srcAB:
                n = max(n, big)
            if p.wr & c.srcC and (p.wr != c.srcC or p.passes != c.passes):
                n = max(n, big - 2)
            if p.wr & c.wr and not (p.wr & c.srcC):
                n = max(n, big)
        elif valu_c or c.kind in VM + LG:
            if p.wr & (c.rd | c.wr):
                n = max(n, big)
        if (valu_c or c.kind in ("ds_read", "vload")) and p.srcC & c.wr:
            n = max(n, {8: 7, 4: 3}[p.passes])
    if p.store_data and p.store_data & c.wr:
        n = max(n, 2)
    return n


class Prog:
    def __init__(self):
        self.ins = []

    def __call__(self, text, after=(), hidden=False):
        i = Ins(text.strip(), after)
        i.hidden = hidden
        self.ins.append(i)
        return i

    def finalize(self):
        out = []
        vm, lg = [], []
        smem = []
        for i in self.ins:
            if i.text.startswith("s_waitcnt") and getattr(i, "hidden", False):
                out.append(i)
                continue
            if i.text.startswith("s_waitcnt"):
                m = re.search(r"vmcnt\((\d+)\)", i.text)
                if m:
                    k = int(m.group(1))
                    vm = vm[len(vm) - k:] if k else []
                m = re.search(r"lgkmcnt\((\d+)\)", i.text)
                if m:
                    k = int(m.group(1))
                    if k == 0:
                        smem = []
                    lg = lg[len(lg) - k:] if k else []
                out.append(i)
                continue
            touched = i.rd | i.wr
            nv = nl = None
            for q, name in ((vm, "vm"), (lg, "lg")):
                last = -1
                for idx, o in enumerate(q):
                    dep = o in i.after or (o.wr & touched)
                    if o.kind == "ds_write" and (o.rd & i.wr) and i.kind != "salu":
                        dep = dep or False
                    if dep:
                        last = idx
                if last >= 0:
                    if name == "vm":
                        nv = len(q) - 1 - last
                    else:
                        nl = len(q) - 1 - last
            if any(o.wr & touched for o in smem):
                nl = 0
            if nl is not None and smem:
                nl = 0
            if nv is not None or nl is not None:
                parts = []
                if nv is not None:
                    nv = min(nv, 62)
                    parts.append(f"vmcnt({nv})")
                    vm = vm[len(vm) - nv:] if nv else []
                if nl is not None:
                    nl = min(nl, 14)
                    parts.append(f"lgkmcnt({nl})")
                    lg = lg[len(lg) - nl:] if nl else []
                    if nl == 0:
                        smem = []
                out.append(Ins("s_waitcnt " + " ".join(parts)))
            if getattr(i, "hidden", False):
                pass
            elif i.kind in VM:
                vm.append(i)
            elif i.kind in LG:
                lg.append(i)
            elif i.kind == "smem":
                smem.append(i)
            out.append(i)
        final = []
        for i in out:
            if i.kind not in ("label", "meta"):
                need, dist = 0, 0
                for p in reversed(final):
                    if dist >= 20:
                        break
                    if p.kind not in ("label", "meta"):
                        need = max(need, need_states(p, i) - dist)
                    dist += p.states
                while need > 0:
                    k = min(need, 16)
                    final.append(Ins(f"s_nop {k-1}"))
                    need -= k
            final.append(i)
        self.final = final
        return "\n".join(("" if i.kind == "label" else "    ") + i.text for i in final) + "\n"
```

```python
import ast, math, struct, sys
from asmlib import Prog

NAME = "concat_heads__gqa_block_cached__mha_block_cached__near_ridge"
SH, RING, RSZ, NSLOT = 0, 65536, 24576, 6
PBASE = 0x100000
FBASE = 0x10000
GRP = 917504

sX, sK, sV, sQ, sO, sWS, sOUT, sDBG = 8, 12, 16, 20, 24, 28, 32, 36
sW, sBR, sH, sB, sRING, sSO, sC, sGRP, sT0, sT1, sT2 = 40, 41, 42, 43, 44, 45, 46, 47, 48, 49, 50
sPT = 52
sINB, sDO, sXW, sJ = 59, 60, 61, 51
sROT = 62
sST = 70
vL = 1
vDX, vDQ, vDK, vDV, vDO = 8, 9, 13, 17, 21
vRX, vRQ, vRK, vRV, vRO = 25, 29, 31, 35, 37
vLIN, vWR, vOA, vOW, vIW, vIR = 41, 42, 43, 47, 6, 8
vMC, vLS = 48, 56
vRDY = 28
ACC = 128
MF = "v_mfma_f32_32x32x16_bf16"


def f32(x):
    return "0x%08x" % struct.unpack("<I", struct.pack("<f", x))[0]


def vr(a, n):
    return f"v[{a}:{a+n-1}]" if n > 1 else f"v{a}"


def ar(a, n):
    return f"a[{a}:{a+n-1}]" if n > 1 else f"a{a}"


def srd(b):
    return f"s[{b}:{b+3}]"


def fl(x):
    return f" {x}" if x else ""


DEFAULT = dict(
    nt_kv="nt", nt_w="", nt_x="", fused=True, stamps=False, st_fl="sc0 sc1", ld_fl="sc0 sc1",
    rot=True, groups=((8, 0),), gsel="b", fill_per=40, nmid=12, early_ld=False, la=3, ksplit=12, pre4=2, more2=3, flagmode='prod', poll_fl='sc0 sc1', flag_fl='sc0 sc1', mask_poll=True, jrot=True, more4=1,
)


def R(c, lo, hi):
    return [f"{c}{i}" for i in range(lo, hi)]


def schedule(spec, nmid):
    if isinstance(spec, str):
        issue = []
        cnt = dict(Q=0, K=0, V=0, W=0)
        for tok in spec.split():
            c, n = tok[0], int(tok[1:])
            issue += R(c, cnt[c], cnt[c] + n)
            cnt[c] += n
        assert cnt == dict(Q=14, K=16, V=16, W=16), cnt
    else:
        npre, nv = spec
        issue = R("Q", 0, 2) + R("K", 0, npre) + R("Q", 2, 14) + R("K", npre, 16) + R("W", 0, 2) + \
            R("V", 0, nv) + R("W", 2, 16) + R("V", nv, 16)
    iq, ik = issue.index("Q13"), issue.index("K15")
    ph1 = issue[:iq + 1]
    assert all(u[0] in "QK" for u in ph1)
    npre = sum(u[0] == "K" for u in ph1)
    assert npre <= 12
    rest = issue[iq + 1:ik + 1]
    assert all(u[0] in "KW" for u in rest)
    T = R("T", 0, npre)
    ph2 = []
    if npre > 8:
        ph2, T = T[:4], T[4:]
    shift = 4 if npre > 8 else 0
    for u in rest:
        if u[0] == "W":
            assert int(u[1:]) < 8
            while T and int(T[0][1:]) <= int(u[1:]) + shift:
                ph2.append(T.pop(0))
            ph2.append(u)
        else:
            ph2 += [u] + T[:2]
            T = T[2:]
    ph2 += T
    after = issue[ik + 1:]
    mid2, held = [], 0
    for u in after:
        if u[0] == "V":
            held += 1
            if held > NSLOT - 4:
                break
        elif len(mid2) < nmid:
            mid2.append(u)
    ph3 = [u for u in after if u not in mid2]
    iv = ph3.index("V15")
    ph3, ph4 = ph3[:iv + 1], ph3[iv + 1:]
    return dict(issue=issue, ph1=ph1, ph2=ph2, mid2=mid2, ph3=ph3, ph4=ph4, npre=npre)


class Gen:
    def __init__(self, sched=None, tag="", **kw):
        self.o = dict(DEFAULT)
        self.o.update(kw)
        self.p = Prog()
        self.sc = sched
        self.tag = tag
        self.issue_q = list(sched["issue"]) if sched else []
        self.free = [(s, []) for s in range(NSLOT)]
        self.unit = {}
        self.eaten = set()
        self.nstamp = 1
        self.buf = 0

    def stamp(self):
        if self.o["stamps"]:
            self.p(("s_memtime" if self.o["stamps"] == "cyc" else "s_memrealtime") + " s[4:5]")
            self.p("s_waitcnt lgkmcnt(0)")
            self.p(f"s_mov_b32 s{sST + self.nstamp}, s4")
            self.nstamp += 1
            assert self.nstamp <= 14

    def dma_items(self):
        name = self.issue_q.pop(0)
        slot, reads = self.free.pop(0)
        kind, u = name[0], int(name[1:])
        r, v, nt = {"Q": (sQ, vDQ, self.o["nt_w"]), "K": (sK, vDK, self.o["nt_kv"]),
                    "V": (sV, vDV, self.o["nt_kv"]), "W": (sO, vDO, self.o["nt_w"])}[kind]
        dm = []
        self.unit[name] = (slot, dm)
        p = self.p

        def head():
            p(f"s_add_u32 m0, s{sRING}, {slot*4096}")
            if kind == "Q":
                p(f"s_lshl_b32 s{sSO}, s{sROT + u // 2}, 12")
                if u % 2:
                    p(f"s_or_b32 s{sSO}, s{sSO}, 0x40000")
            elif kind == "W":
                p(f"s_xor_b32 s{sSO}, s{sXW}, {u}")
                p(f"s_mul_i32 s{sSO}, s{sSO}, {16*896}")
            elif kind == "K":
                p(f"s_mov_b32 s{sSO}, {(u // 4) * 65536 + (u % 4) * 128}")
            else:
                p(f"s_mov_b32 s{sSO}, {u * 16384}")

        def piece(j):
            def f():
                if j == 0:
                    head()
                off = f" offset:{1024*j}" if j else ""
                dm.append(p(f"buffer_load_dwordx4 v{v+j}, {srd(r)}, s{sSO} offen{off}{fl(nt)} lds",
                            after=reads if j == 0 else ()))
            return f
        return [piece(j) for j in range(4)]

    def all_dma(self, la=None):
        la = min(la or self.o["la"], NSLOT)
        out = []
        while self.issue_q and NSLOT - len(self.free) < la:
            out += self.dma_items()
        return out

    def one_more(self):
        def f():
            if self.issue_q and self.free:
                for g in self.dma_items():
                    g()
        return f

    def kreg(self, u, j):
        if self.sc["npre"] > 8:
            return vr(192 + 16 * u + 4 * j, 4) if u < 4 else ar(128 + 16 * (u - 4) + 4 * j, 4)
        return ar(128 + 16 * u + 4 * j, 4)

    def unit_reads(self, name, base):
        kind, u = name[0], int(name[1:])
        p = self.p
        items, done = [], []
        if kind == "T":
            return items, done
        slot, dm = self.unit[name]
        so = slot * 4096

        def ring(text, pieces):
            items.append(lambda: done.append(p(text, after=[dm[j] for j in pieces])))

        def side(text):
            items.append(lambda: p(text))
        if kind in "QV":
            for ks in range(2):
                for mt in range(2):
                    for part in range(2):
                        d = base + (ks * 2 + mt) * 4 + part * 2
                        if kind == "Q":
                            ring(f"ds_read_b64_tr_b16 {vr(d,2)}, v{vRQ+mt} offset:{so + ks*2048 + part*512}",
                                 (2 * ks, 2 * ks + 1))
                        else:
                            ring(f"ds_read_b64_tr_b16 {vr(d,2)}, v{vRV+mt} offset:{so + ks*2048 + part*1024}",
                                 (2 * ks + part,))
                    qt = mt
                    d = base + 16 + (ks * 2 + qt) * 4
                    if kind == "Q":
                        s = 2 * u + ks
                        side(f"ds_read_b128 {vr(d,4)}, v{vRX + s % 4} offset:{(s // 4)*8192 + qt*4096}")
                    else:
                        side(f"ds_read_b128 {vr(d,4)}, v{vLIN} "
                             f"offset:{(u % 4)*16384 + (((u // 4)*2 + ks)*2 + qt)*1024}")
        elif kind == "K":
            for j in range(4):
                d = self.kreg(u, j) if u < self.sc["npre"] else vr(base + 4 * j, 4)
                ring(f"ds_read_b128 {d}, v{vRK+j} offset:{so}", range(4))
        elif kind == "W":
            b = 128 + 16 * u if u < 8 else 16 * (u - 8)
            for part in range(2):
                for t in range(4):
                    ring(f"ds_read_b64_tr_b16 {ar(b + t*4 + part*2, 2)}, v{vRO+t} offset:{so + part*1024}",
                         (part, 2 + part))
        return items, done

    def unit_mfmas(self, name, base):
        kind, u = name[0], int(name[1:])
        out = []
        if kind in "QV":
            for ks in range(2):
                for mt, qt in ((0, 0), (1, 0), (0, 1), (1, 1)):
                    acc = vr(ACC + (mt * 2 + qt) * 16, 16)
                    c = "0" if (u == 0 and ks == 0) else acc
                    out.append(f"{MF} {acc}, {vr(base + (ks*2+mt)*4, 4)}, {vr(base + 16 + (ks*2+qt)*4, 4)}, {c}")
        elif kind == "T" or (kind == "K" and u >= self.sc["npre"]):
            t, cb = u // 4, u % 4
            first = t not in self.started
            self.started.add(t)
            for j in range(4):
                s = 4 * cb + j
                a = self.kreg(u, j) if kind == "T" else vr(base + 4 * j, 4)
                for qt in range(2):
                    acc = vr(ACC + (t * 2 + qt) * 16, 16)
                    c = "0" if (first and j == 0) else acc
                    out.append(f"{MF} {acc}, {a}, {ar((s*2+qt)*4, 4)}, {c}")
        return out

    def window(self, mfmas, early, late, fill):
        p = self.p
        n = len(mfmas)
        if n == 0:
            for f in fill + late + early:
                f()
            return
        gaps = [[] for _ in range(n)]
        lo, mid = 1, n // 2
        for k, f in enumerate(early):
            gaps[lo + k * (mid - lo) // len(early)].append(f)
        for k, f in enumerate(fill):
            gaps[k * n // len(fill)].append(f)
        for k, f in enumerate(late):
            gaps[mid - 1 + k * (n - mid) // len(late)].append(f)
        for m, g in zip(mfmas, gaps):
            p(m)
            for f in g:
                f()

    def release(self, nme, done):
        if nme[0] != "T":
            self.eaten.add(nme)
            self.free.append((self.unit[nme][0], done))

    def run_phase(self, units, fillers=None):
        bufs = (64, 96)
        pend, fillq, prev = [], [], None
        for nme in units:
            base = bufs[self.buf]
            mf = self.unit_mfmas(nme, base)
            if mf and nme[0] != "T":
                self.buf ^= 1
            early = self.all_dma(self.o["la"] + (0 if pend else 1))
            if nme[0] != "T" and not self.unit[nme][1]:
                for f in early:
                    f()
                early = []
            late, done = self.unit_reads(nme, base)
            if nme == "V10":
                late = [lambda: self.p("s_barrier")] + late
            take = fillq[:self.o["fill_per"]]
            fillq = fillq[len(take):]
            self.window(pend, early, late, take)
            if fillers and prev:
                fillq += fillers(prev)
            self.release(nme, done)
            pend, prev = mf, nme
        take = fillq[:self.o["fill_per"]]
        self.window(pend, self.all_dma(), [], take)
        return fillq[len(take):] + (fillers(prev) if fillers else [])

    def stage(self, nme):
        def f():
            held = sum(u[0] == "V" and u not in self.eaten for u in self.unit)
            early = self.all_dma(min(NSLOT, self.o["la"] + 1 + held))
            if not self.unit[nme][1]:
                for g in early:
                    g()
                early = []
            it, d = self.unit_reads(nme, 0)
            for g in it + early:
                g()
            self.release(nme, d)
        return f

    @staticmethod
    def spread(items, stages):
        n, k = len(stages), 0
        for i, f in enumerate(items):
            while k < n and (k + 0.5) * len(items) / n <= i:
                stages[k]()
                k += 1
            f()
        for g in stages[k:]:
            g()

    def head(self):
        p, o = self.p, self.o
        p("s_cmp_ge_u32 s2, 256")
        p("s_cbranch_scc1 L_exit")
        if o["stamps"]:
            p(("s_memtime" if o["stamps"] == "cyc" else "s_memrealtime") + f" s[{sST}:{sST+1}]")
        p("s_lshr_b32 s4, s2, 3")
        p(f"s_lshr_b32 s{sBR}, s4, 4")
        p(f"s_mul_i32 s5, s{sBR}, 40")
        p("s_add_u32 s6, s0, s5")
        p("s_addc_u32 s7, s1, 0")
        p("s_load_dwordx8 s[84:91], s[6:7], 0")
        p("s_load_dwordx2 s[92:93], s[6:7], 32")
        p("s_load_dwordx4 s[96:99], s[0:1], 80")
        p("s_load_dwordx2 s[94:95], s[0:1], 96")
        p(f"s_bfe_u32 s{sB}, s4, 0x30001")
        ng = len(o["groups"])
        if ng > 1:
            if o["gsel"] == "b":
                p(f"s_and_b32 s3, s{sB}, {ng-1}")
            elif o["gsel"] == "br":
                p(f"s_mov_b32 s3, s{sBR}")
            else:
                p(f"s_and_b32 s3, s{sB}, {ng//2-1}")
                p("s_lshl_b32 s3, s3, 1")
                p(f"s_add_u32 s3, s3, s{sBR}")
            for g in range(1, ng):
                p(f"s_cmp_eq_u32 s3, {g}")
                p(f"s_cbranch_scc1 L_class{g}")
        p("s_branch L_class0")
        p("L_exit:")
        p("s_endpgm")
        return p.finalize()

    def prologue(self):
        p, o = self.p, self.o
        p("s_and_b32 s3, s2, 7")
        p("s_and_b32 s5, s4, 1")
        p("s_lshl_b32 s3, s3, 1")
        p(f"s_add_u32 s{sH}, s3, s5")
        p("v_lshrrev_b32 v7, 6, v0")
        p(f"v_and_b32 v{vL}, 63, v0")
        p(f"v_readfirstlane_b32 s{sW}, v7")
        p(f"v_lshrrev_b32 v2, 3, v{vL}")
        p(f"v_and_b32 v3, 7, v{vL}")
        p(f"v_lshrrev_b32 v4, 4, v{vL}")
        if o["rot"]:
            p(f"s_lshl_b32 s{sXW}, s{sB}, 1")
            p(f"s_lshl_b32 s{sROT}, s{sB}, 7")
            p(f"s_cmp_eq_u32 s{sB}, 7")
            p(f"s_cselect_b32 s{sROT}, 384, s{sROT}")
        else:
            p(f"s_mov_b32 s{sXW}, 0")
            p(f"s_mov_b32 s{sROT}, 0")
        for i in range(1, 7):
            p(f"s_add_u32 s{sROT+i}, s{sROT+i-1}, 128")
            p(f"s_cmp_eq_u32 s{sROT+i}, 896")
            p(f"s_cselect_b32 s{sROT+i}, 0, s{sROT+i}")
        p(f"s_mul_i32 s{sRING}, s{sW}, {RSZ}")
        p(f"s_add_u32 s{sRING}, s{sRING}, {RING}")
        p(f"s_and_b32 s{sT2}, s{sW}, 1")
        p(f"s_lshl_b32 s{sGRP}, s{sBR}, 3")
        p(f"s_add_u32 s{sGRP}, s{sGRP}, s{sB}")
        p(f"s_lshl_b32 s{sT0}, s{sT2}, 2")
        p(f"v_add_u32 v5, s{sT0}, v4")
        p("v_xor_b32 v5, v5, v3")
        p(f"s_lshl_b32 s{sT0}, s{sW}, 3")
        p(f"v_add_u32 v6, s{sT0}, v2")
        p("v_mul_u32_u24 v6, 896, v6")
        p(f"v_lshl_add_u32 v{vDX}, v5, 4, v6")
        p(f"v_add_u32 v7, {32*896}, v{vDX}")
        p("v_and_b32 v5, 1, v4")
        p("v_lshlrev_b32 v5, 2, v5")
        p("v_xor_b32 v5, v5, v3")
        p(f"s_lshl_b32 s{sT0}, s{sW}, 7")
        p(f"v_lshl_add_u32 v5, v5, 4, s{sT0}")
        p(f"v_lshl_add_u32 v{vDQ}, v2, 13, v5")
        p(f"s_lshl_b32 s{sT0}, s{sXW}, 5")
        p(f"v_xor_b32 v5, s{sT0}, v5")
        p(f"v_lshl_add_u32 v{vDV}, v2, 9, v5")
        for j in range(1, 4):
            p(f"v_add_u32 v{vDQ+j}, {j*(65536-1024)}, v{vDQ}")
        p("v_xor_b32 v5, v3, v4")
        p(f"s_lshl_b32 s{sT0}, s{sW}, 14")
        p(f"v_lshl_add_u32 v5, v5, 4, s{sT0}")
        p(f"v_lshl_add_u32 v{vDK}, v2, 9, v5")
        p(f"v_xor_b32 v5, 64, v{vDK}")
        p(f"v_add_u32 v{vDK+1}, 3072, v5")
        p(f"v_add_u32 v{vDK+2}, 6144, v{vDK}")
        p(f"v_add_u32 v{vDK+3}, 9216, v5")
        p(f"s_mul_i32 s{sT0}, s{sB}, 57344")
        p(f"s_lshl_b32 s{sT1}, s{sW}, 10")
        p(f"s_mov_b32 s{sX+2}, 57344")
        p(f"s_mov_b32 s{sX+3}, 0x20000")
        p("s_waitcnt lgkmcnt(0)")
        p(f"s_add_u32 s{sX}, s84, s{sT0}")
        p(f"s_addc_u32 s{sX+1}, s85, 0")
        self.xd = []
        for cb in range(7):
            for hi in range(2):
                p(f"s_add_u32 m0, s{sT1}, {SH + cb*8192 + hi*4096}")
                self.xd.append(p(f"buffer_load_dwordx4 v{7 if hi else vDX}, {srd(sX)}, s{sROT+cb} "
                                 f"offen{fl(o['nt_x'])} lds"))
        p(f"s_lshl_b32 s{sT0}, s{sH}, 9")
        p(f"s_add_u32 s{sQ}, s90, s{sT0}")
        p(f"s_addc_u32 s{sQ+1}, s91, 0")
        p(f"s_sub_u32 s{sQ+2}, 3670016, s{sT0}")
        p(f"s_mov_b32 s{sQ+3}, 0x20000")
        p(f"s_lshl_b32 s{sT0}, s{sB}, 4")
        p(f"s_add_u32 s{sT0}, s{sT0}, s{sH}")
        p(f"s_xor_b32 s{sT1}, s{sBR}, 1")
        p(f"s_lshr_b32 s{sT0}, s{sT0}, s{sT1}")
        p(f"s_lshl_b32 s{sT0}, s{sT0}, 18")
        for r, src in ((sK, 86), (sV, 88)):
            p(f"s_add_u32 s{r}, s{src}, s{sT0}")
            p(f"s_addc_u32 s{r+1}, s{src+1}, 0")
            p(f"s_mov_b32 s{r+2}, 262144")
            p(f"s_mov_b32 s{r+3}, 0x20000")
        p(f"s_mul_i32 s{sT0}, s{sH}, 229376")
        p(f"s_add_u32 s{sO}, s92, s{sT0}")
        p(f"s_addc_u32 s{sO+1}, s93, 0")
        p(f"s_mov_b32 s{sO+2}, 229376")
        p(f"s_mov_b32 s{sO+3}, 0x20000")
        for r, src, n in ((sWS, 94, PBASE + 16 * GRP), (sOUT, 96, 917504), (sDBG, 98, 256)):
            p(f"s_mov_b32 s{r}, s{src}")
            p(f"s_mov_b32 s{r+1}, s{src+1}")
            p(f"s_mov_b32 s{r+2}, {n}")
            p(f"s_mov_b32 s{r+3}, 0x20000")
        p(f"v_lshlrev_b32 v{vLIN}, 4, v{vL}")
        if o["fused"]:
            p(f"s_lshl_b32 s{sDO}, s{sGRP}, 4")
            p(f"s_cmp_lg_u32 s{sH}, 15")
            p(f"s_cbranch_scc1 L_noclr{self.tag}")
            p(f"s_lshl_b32 s3, s{sGRP}, 2")
            p(f"s_add_u32 s3, s3, s{sW}")
            p("s_lshl_b32 s3, s3, 11")
            p(f"s_add_u32 s3, s3, {FBASE}")
            p(f"v_lshrrev_b32 v5, 2, v{vL}")
            p(f"v_and_b32 v6, 48, v{vLIN}")
            p("v_lshl_add_u32 v5, v5, 7, v6")
            for k in range(4):
                p(f"v_mov_b32 v{64+k}, 0")
            p(f"buffer_store_dwordx4 v[64:67], v5, {srd(sWS)}, s3 offen sc0 sc1", hidden=True)
            p(f"L_noclr{self.tag}:")
        first = self.all_dma(max(o["la"], 2))
        for f in first[:8]:
            f()
        L = []
        q = lambda t: L.append(lambda: p(t))
        for j in range(1, 4):
            q(f"v_add_u32 v{vDV+j}, {j*3072}, v{vDV}")
        q(f"v_bfe_u32 v5, v{vL}, 2, 2")
        q("v_xor_b32 v5, v5, v4")
        q(f"v_add_u32 v5, s{sT2}, v5")
        q("v_and_b32 v5, 3, v5")
        q(f"v_and_b32 v6, 48, v{vLIN}")
        q("v_lshl_add_u32 v5, v5, 6, v6")
        q("v_mul_u32_u24 v6, 896, v4")
        q(f"s_mul_i32 s{sT0}, s{sW}, 224")
        q(f"s_lshl_b32 s{sT1}, s{sT2}, 5")
        q(f"s_sub_u32 s{sT0}, s{sT0}, s{sT1}")
        q(f"v_add3_u32 v{vDO}, v5, v6, s{sT0}")
        for j in range(1, 4):
            q(f"v_add_u32 v{vDO+j}, {j*(3584-1024)}, v{vDO}")
        q(f"s_mov_b32 s{sC}, {f32(math.log2(math.e) / 16)}")
        q(f"v_lshrrev_b32 v2, 5, v{vL}")
        q(f"v_bfe_u32 v3, v{vL}, 1, 3")
        q("v_xor_b32 v3, v3, v2")
        q(f"v_and_b32 v5, 31, v{vL}")
        q("v_lshlrev_b32 v5, 7, v5")
        q(f"v_lshl_add_u32 v{vRX}, v3, 4, v5")
        for j in range(1, 4):
            q(f"v_xor_b32 v{vRX+j}, {j*32}, v{vRX}")
        for j in range(4):
            q(f"v_add_u32 v{vRK+j}, s{sRING}, v{vRX+j}")
        q(f"v_and_b32 v3, 16, v{vLIN}")
        q(f"v_bfe_u32 v5, v{vL}, 1, 1")
        q("v_lshl_add_u32 v3, v5, 3, v3")
        q("v_and_b32 v5, 1, v4")
        q("v_lshl_add_u32 v3, v5, 5, v3")
        q(f"v_add_u32 v3, s{sRING}, v3")
        q(f"v_bfe_u32 v5, v{vL}, 2, 2")
        q(f"v_bfe_u32 v6, v{vL}, 3, 1")
        q("v_lshl_add_u32 v6, v6, 6, v3")
        q("v_lshl_add_u32 v6, v5, 7, v6")
        q(f"v_lshl_add_u32 v{vRQ}, v2, 10, v6")
        q(f"v_lshl_add_u32 v{vRV}, v2, 9, v6")
        q(f"v_xor_b32 v{vRQ+1}, 64, v{vRQ}")
        q(f"v_xor_b32 v{vRV+1}, 64, v{vRV}")
        q("v_mul_u32_u24 v6, 320, v5")
        q("v_add_u32 v6, v6, v3")
        q(f"v_lshl_add_u32 v{vRO}, v2, 11, v6")
        for t in range(1, 4):
            q(f"v_xor_b32 v{vRO+t}, {t*64}, v{vRO}")
        q(f"s_lshl_b32 s{sT0}, s{sW}, 14")
        q(f"v_add_u32 v{vWR}, s{sT0}, v{vLIN}")
        q(f"s_lshl_b32 s{sT1}, s{sT2}, 10")
        q(f"v_add_u32 v{vOA}, s{sT1}, v{vLIN}")
        q(f"v_xor_b32 v{vOA+1}, 0x400, v{vOA}")
        q(f"s_add_u32 s{sT0}, s{sT0}, 8192")
        q(f"v_lshl_add_u32 v{vIR}, v{vL}, 3, s{sT0}")
        q(f"s_lshl_b32 s{sT0}, s{sW}, 9")
        q(f"s_add_u32 s{sT0}, s{sT0}, 8192")
        q(f"v_lshl_add_u32 v{vIW}, v{vL}, 3, s{sT0}")
        q(f"s_mul_i32 s3, s{sGRP}, {GRP}")
        q(f"s_lshl_b32 s4, s{sH}, 11")
        q("s_add_u32 s3, s3, s4")
        q(f"s_add_u32 s3, s3, {PBASE}")
        q(f"s_lshr_b32 s4, s{sW}, 1")
        q("s_mul_i32 s4, s4, 7")
        q(f"s_mul_i32 s5, s{sT2}, 3")
        q("s_add_u32 s4, s4, s5")
        q(f"s_lshl_b32 s7, s{sT2}, 1")
        q("v_mov_b32 v4, 0")
        for t in range(4):
            q(f"s_add_u32 s5, s{sT2}, {t}")
            q("s_and_b32 s5, s5, 3")
            q("s_add_u32 s5, s5, s4")
            q("s_lshr_b32 s6, s5, 1")
            q("s_lshl_b32 s6, s6, 2")
            q("s_and_b32 s5, s5, 1")
            q("s_add_u32 s5, s5, s6")
            q("s_add_u32 s5, s5, s7")
            for qi in range(2 if t < 3 else 1):
                if qi:
                    q("s_xor_b32 s5, s5, 2")
                q("s_lshl_b32 s6, s5, 15")
                q(f"s_add_u32 s{sPT + 2*t + qi}, s6, s3")
                if o["fused"] and o["flagmode"] == "cons":
                    q("s_lshl_b32 s6, s5, 8")
                    q(f"v_writelane_b32 v4, s6, {2*(2*t+qi)}")
                    q("s_add_u32 s6, s6, 128")
                    q(f"v_writelane_b32 v4, s6, {2*(2*t+qi)+1}")
        for f in L:
            f()
        p("s_barrier", after=self.xd)
        self.stamp()
        if o["fused"]:
            p(f"s_cmp_lg_u32 s{sH}, 15")
            p(f"s_cbranch_scc1 L_noset{self.tag}")
            p(f"s_lshl_b32 s3, s{sW}, 2")
            p(f"s_add_u32 s3, s3, s{sDO}")
            p("v_mov_b32 v2, 0")
            p("v_mov_b32 v3, 1")
            p("s_mov_b64 exec, 1")
            p(f"buffer_store_dword v3, v2, {srd(sDBG)}, s3 offen sc0 sc1", hidden=True)
            p("s_mov_b64 exec, -1")
            p(f"L_noset{self.tag}:")
        for f in first[8:]:
            f()

    def pack(self, addr):
        p = self.p
        out = []
        for mt, qt in ((0, 0), (1, 0), (0, 1), (1, 1)):
            for ks in range(2):
                src = ACC + (mt * 2 + qt) * 16 + ks * 8
                d = 64 + ((mt * 2 + qt) * 2 + ks) * 4
                out.append(([f"v_cvt_pk_bf16_f32 v{d+k}, v{src+2*k}, v{src+2*k+1}" for k in range(4)],
                            f"ds_write_b128 v{addr}, {vr(d,4)} offset:{((2*mt+ks)*2+qt)*1024}"))
        return out

    def softmax_tile(self, t):
        p = self.p
        out = []
        for qt in range(2):
            s = ACC + (t * 2 + qt) * 16
            m, l = vMC + t * 2 + qt, vLS + t * 2 + qt
            seq = [f"v_max3_f32 v{m}, v{s}, v{s+1}, v{s+2}"]
            for k in range(3, 15, 2):
                seq.append(f"v_max3_f32 v{m}, v{m}, v{s+k}, v{s+k+1}")
            seq.append(f"v_max_f32 v{m}, v{m}, v{s+15}")
            seq.append(f"v_mul_f32 v{m}, s{sC}, v{m}")
            for k in range(16):
                seq.append(f"v_fma_f32 v{s+k}, v{s+k}, s{sC}, -v{m}")
            for k in range(16):
                seq.append(f"v_exp_f32 v{s+k}, v{s+k}")
                if k == 2:
                    seq.append(f"v_add_f32 v{l}, v{s}, v{s+1}")
                elif k > 2:
                    seq.append(f"v_add_f32 v{l}, v{l}, v{s+k-1}")
            seq.append(f"v_add_f32 v{l}, v{l}, v{s+15}")
            out += [(lambda x=x: p(x)) for x in seq]
        return out

    def softmax_finish(self):
        p = self.p
        T = 64
        L = []
        q = lambda t: L.append(lambda: p(t))
        w1, w2 = [], []
        for qt in range(2):
            m = [vMC + t * 2 + qt for t in range(4)]
            l = [vLS + t * 2 + qt for t in range(4)]
            M, S = T + qt, T + 2 + qt
            q(f"v_max3_f32 v{M}, v{m[0]}, v{m[1]}, v{m[2]}")
            q(f"v_max_f32 v{M}, v{M}, v{m[3]}")
            for t in range(4):
                q(f"v_sub_f32 v{T+4+t}, v{m[t]}, v{M}")
            for t in range(4):
                q(f"v_exp_f32 v{T+4+t}, v{T+4+t}")
            q(f"v_mul_f32 v{S}, v{l[0]}, v{T+4}")
            for t in range(1, 4):
                q(f"v_fmac_f32 v{S}, v{l[t]}, v{T+4+t}")
        q(f"v_permlane32_swap_b32 v{T}, v{T+1}")
        q(f"v_permlane32_swap_b32 v{T+2}, v{T+3}")
        q(f"v_max_f32 v{T+8}, v{T}, v{T+1}")
        q(f"v_sub_f32 v{T+4}, v{T}, v{T+8}")
        q(f"v_sub_f32 v{T+5}, v{T+1}, v{T+8}")
        q(f"v_exp_f32 v{T+4}, v{T+4}")
        q(f"v_exp_f32 v{T+5}, v{T+5}")
        q(f"v_mul_f32 v{T+9}, v{T+2}, v{T+4}")
        q(f"v_fmac_f32 v{T+9}, v{T+3}, v{T+5}")
        for r in range(4):
            L.append(lambda r=r: w1.append(p(f"ds_write_b64 v{vIW}, {vr(T+8,2)} offset:{r*16384}")))
        L.append(lambda: p("s_barrier", after=w1))
        for r in range(4):
            q(f"ds_read_b64 {vr(T+10+2*r,2)}, v{vIR} offset:{r*512}")
        q(f"v_max3_f32 v{T}, v{T+10}, v{T+12}, v{T+14}")
        q(f"v_max_f32 v{T}, v{T}, v{T+16}")
        for r in range(4):
            q(f"v_sub_f32 v{T+4+r}, v{T+10+2*r}, v{T}")
        for r in range(4):
            q(f"v_exp_f32 v{T+4+r}, v{T+4+r}")
        q(f"v_mul_f32 v{T+1}, v{T+11}, v{T+4}")
        for r in range(1, 4):
            q(f"v_fmac_f32 v{T+1}, v{T+11+2*r}, v{T+4+r}")
        q(f"v_log_f32 v{T+1}, v{T+1}")
        q(f"v_add_f32 v{T}, v{T}, v{T+1}")
        q(f"v_mov_b32 v{T+1}, v{T}")
        q(f"v_permlane32_swap_b32 v{T}, v{T+1}")
        F = T + 20
        for k in range(8):
            q(f"v_sub_f32 v{F + 2*k}, v{vMC + k}, v{T + k % 2}")
        for k in range(8):
            q(f"v_exp_f32 v{F+2*k}, v{F+2*k}")
        P, n = 104, 0
        for t in range(4):
            for qt in range(2):
                s = ACC + (t * 2 + qt) * 16
                f = F + 2 * (t * 2 + qt)
                for k in range(8):
                    q(f"v_pk_mul_f32 {vr(s+2*k,2)}, {vr(s+2*k,2)}, {vr(f,2)} op_sel_hi:[1,0]")
                for ks in range(2):
                    d = P + (n % 4) * 4
                    n += 1
                    for k in range(4):
                        q(f"v_cvt_pk_bf16_f32 v{d+k}, v{s+ks*8+2*k}, v{s+ks*8+2*k+1}")
                    t_ = f"ds_write_b128 v{vWR}, {vr(d,4)} offset:{((t*2+ks)*2+qt)*1024}"
                    L.append(lambda t_=t_: w2.append(p(t_)))
        return L, w2

    def out_proj(self, wq, extra):
        p, o = self.p, self.o
        ks = o["ksplit"]
        assert 8 <= ks <= 16
        units = [(0, 0), (1, 0), (2, 0), (3, 0), (0, 1), (1, 1), (2, 1)]
        sf = fl(o["st_fl"]) if o["fused"] else ""

        def oreg(s, qi):
            return (240 + (s % 2) * 8 if s < ks else 64 + (s - ks) * 8) + qi * 4

        def oread(s):
            return [(lambda qi=qi: p(f"ds_read_b128 {vr(oreg(s, qi), 4)}, v{vOA+qi} "
                                     f"offset:{(s // 4)*16384 + (s % 4)*2048}")) for qi in range(2)]

        def mfma(k, s):
            t, qi = units[k]
            b = 128 + 16 * s if s < 8 else 16 * (s - 8)
            acc = vr(ACC + 16 * k, 16)
            return f"{MF} {acc}, {ar(b + t*4, 4)}, {vr(oreg(s, qi), 4)}, {'0' if s == 0 else acc}"

        def finish(k):
            t, qi = units[k]
            acc, d = ACC + 16 * k, (48, 56, 32)[k % 3]
            L = []
            for half in range(2):
                for j in range(4):
                    L.append(f"v_cvt_pk_bf16_f32 v{d+half*4+j}, v{acc+half*8+2*j}, v{acc+half*8+2*j+1}")
                off = " offset:1024" if half else ""
                L.append(f"buffer_store_dwordx4 {vr(d+half*4,4)}, v{vLIN}, {srd(sWS)}, s{sPT+2*t+qi} offen{off}{sf}")
            return L
        for f in oread(0):
            f()
        tail = [f for s in range(ks, 16) for f in oread(s)]
        wq = list(wq)
        for s in range(ks):
            late = oread(s + 1) if s + 1 < ks else []
            n = (len(tail) + ks - s - 1) // (ks - s)
            late, tail = late + tail[:n], tail[n:]
            early, rel = self.all_dma(), []
            for _ in range((len(wq) + ks - s - 1) // (ks - s) if len(wq) >= ks - s else min(1, len(wq))):
                u = wq.pop(0)
                assert int(u[1:]) > s
                if not self.unit.get(u, (0, []))[1]:
                    for f in early + self.all_dma(NSLOT):
                        f()
                    early = []
                it, d = self.unit_reads(u, 0)
                late += it
                rel.append((u, d))
            fill, extra = extra[:6], extra[6:]
            self.window([mfma(k, s) for k in range(7)], early, late, fill)
            for u, d in rel:
                self.release(u, d)
        assert not wq and not self.issue_q
        for f in extra:
            f()
        prev = []
        for k in range(7):
            chain = [mfma(k, s) for s in range(ks, 16)]
            for i, m in enumerate(chain):
                p(m)
                if i >= 1:
                    n = (len(prev) + len(chain) - i - 1) // (len(chain) - i)
                    for t in prev[:n]:
                        p(t)
                    prev = prev[n:]
            for t in prev:
                p(t)
            prev = finish(k)
        for t in prev:
            p(t)

    def reduce_setup(self):
        L = []
        q = lambda t: L.append(lambda: self.p(t))
        q(f"s_mul_i32 s6, s{sGRP}, {GRP}")
        q(f"s_lshl_b32 s4, s{sJ}, 1")
        q(f"s_lshr_b32 s5, s{sW}, 1")
        q("s_add_u32 s4, s4, s5")
        q("s_lshl_b32 s4, s4, 15")
        q("s_add_u32 s6, s6, s4")
        q(f"s_and_b32 s4, s{sW}, 1")
        q("s_lshl_b32 s4, s4, 10")
        q("s_add_u32 s6, s6, s4")
        q(f"s_add_u32 s6, s6, {PBASE}")
        q(f"s_lshl_b32 s7, s{sB}, 1")
        q(f"s_and_b32 s4, s{sJ}, 1")
        q("s_add_u32 s7, s7, s4")
        q(f"s_mul_i32 s7, s7, {32*1792}")
        q(f"s_mul_i32 s4, s{sBR}, 896")
        q("s_add_u32 s7, s7, s4")
        q(f"s_lshr_b32 s4, s{sJ}, 1")
        q("s_lshl_b32 s4, s4, 7")
        q("s_add_u32 s7, s7, s4")
        q(f"s_lshl_b32 s4, s{sW}, 5")
        q("s_add_u32 s7, s7, s4")
        q(f"v_and_b32 v2, 31, v{vL}")
        q("v_mul_u32_u24 v2, 1792, v2")
        q(f"v_lshrrev_b32 v3, 5, v{vL}")
        q("v_lshl_add_u32 v2, v3, 4, v2")
        return L

    def gather(self, flags):
        p, g = self.p, self.tag
        D = 64
        p("s_mov_b32 s5, 100000")
        p(f"s_mov_b32 s{sT0}, 0")
        p(f"L_poll{g}:")
        p(f"buffer_load_dword v3, v9, {srd(sWS)}, s{sINB} offen sc0 sc1")
        p("s_sub_u32 s5, s5, 1")
        p("s_cmp_eq_u32 s5, 0")
        p("s_waitcnt vmcnt(0)")
        p(f"s_cbranch_scc1 L_polled{g}")
        p("v_cmp_eq_u32 vcc, 1, v3")
        p(f"s_andn2_b32 s{sT1}, vcc_lo, s{sT0}")
        p(f"s_cbranch_scc0 L_poll{g}")
        p(f"s_or_b32 s{sT0}, s{sT0}, s{sT1}")
        for i in range(16):
            p(f"s_bitcmp0_b32 s{sT1}, {i}")
            p(f"s_cbranch_scc1 L_skip{g}_{i}")
            p(f"s_add_u32 s4, s6, {2048*i}")
            p(f"buffer_load_dwordx4 {vr(D+4*i,4)}, v{vLIN}, {srd(sWS)}, s4 offen{fl(flags)}", hidden=True)
            p(f"L_skip{g}_{i}:")
        p(f"s_cmp_lg_u32 s{sT0}, -1")
        p(f"s_cbranch_scc1 L_poll{g}")
        p(f"L_polled{g}:")
        p("s_waitcnt vmcnt(0)")

    def reduce(self, flags, loaded=False):
        p = self.p
        D = 64
        for i in range(0 if loaded else 16):
            off = " offset:2048" if i % 2 else ""
            p(f"buffer_load_dwordx4 {vr(D+4*i,4)}, v{vLIN}, {srd(sWS)}, s6 offen{off}{fl(flags)}")
            if i % 2 and i < 15:
                p("s_add_u32 s6, s6, 4096")
        A, T = 48, 56
        for i in range(16):
            for j in range(4):
                dst = A + 2 * j if i == 0 else T + 2 * j
                p(f"v_lshlrev_b32 v{dst}, 16, v{D+4*i+j}")
                p(f"v_and_b32 v{dst+1}, 0xffff0000, v{D+4*i+j}")
            if i:
                for j in range(4):
                    p(f"v_pk_add_f32 {vr(A+2*j,2)}, {vr(A+2*j,2)}, {vr(T+2*j,2)}")
        for j in range(4):
            p(f"v_cvt_pk_bf16_f32 v{T+j}, v{A+2*j}, v{A+2*j+1}")
        p(f"buffer_store_dwordx4 {vr(T,4)}, v2, {srd(sOUT)}, s7 offen")

    def handoff_setup(self):
        L = []
        q = lambda t: L.append(lambda: self.p(t))
        assert self.o["flagmode"] == "prod" or not self.o["jrot"]
        q(f"s_mul_i32 s{sJ}, s{sGRP}, {2 if self.o['jrot'] else 0}")
        q(f"s_add_u32 s{sJ}, s{sJ}, s{sH}")
        q(f"s_and_b32 s{sJ}, s{sJ}, 15")
        q(f"s_lshl_b32 s3, s{sGRP}, 13")
        q(f"s_add_u32 s3, s3, {FBASE}")
        q(f"s_lshl_b32 s4, s{sH}, 2")
        q(f"s_add_u32 s5, s4, s{sW}")
        q("s_lshl_b32 s5, s5, 7")
        q("v_mov_b32 v5, 1")
        q("v_mov_b32 v7, 0")
        q(f"v_and_b32 v9, 15, v{vL}")
        if self.o["flagmode"] == "cons":
            q(f"s_add_u32 s{sINB}, s3, s5")
            q("s_add_u32 s3, s3, s4")
            q("v_lshlrev_b32 v9, 2, v9")
        else:
            q(f"s_and_b32 s4, s{sJ}, 14")
            q(f"s_lshr_b32 s{sINB}, s{sW}, 1")
            q(f"s_add_u32 s4, s4, s{sINB}")
            q("s_lshl_b32 s4, s4, 1")
            q(f"s_and_b32 s{sINB}, s{sJ}, 1")
            q(f"s_add_u32 s4, s4, s{sINB}")
            q("s_mul_i32 s4, s4, 37")
            q("s_lshr_b32 s4, s4, 8")
            q("s_lshl_b32 s4, s4, 7")
            q(f"s_add_u32 s{sINB}, s3, s4")
            q("s_add_u32 s3, s3, s5")
            q("v_lshlrev_b32 v9, 9, v9")
        q(f"v_and_b32 v{vRDY}, v{vRDY}, v{vRDY+1}")
        q(f"v_and_b32 v{vRDY+2}, v{vRDY+2}, v{vRDY+3}")
        q(f"v_and_b32 v{vRDY}, v{vRDY}, v{vRDY+2}")
        return L

    def handoff(self):
        p, g = self.p, self.tag
        p(f"v_cmp_eq_u32 vcc, 1, v{vRDY}")
        p("s_mov_b32 s5, 100000")
        p("s_waitcnt vmcnt(0)")
        p(f"s_cbranch_vccnz L_go{g}")
        p(f"L_ready{g}:")
        p(f"buffer_load_dwordx4 {vr(vRDY,4)}, v7, {srd(sDBG)}, s{sDO} offen sc0 sc1")
        p("s_sub_u32 s5, s5, 1")
        p("s_cmp_eq_u32 s5, 0")
        p("s_waitcnt vmcnt(0)")
        p(f"s_cbranch_scc1 L_go{g}")
        p(f"v_and_b32 v{vRDY}, v{vRDY}, v{vRDY+1}")
        p(f"v_and_b32 v{vRDY+2}, v{vRDY+2}, v{vRDY+3}")
        p(f"v_and_b32 v{vRDY}, v{vRDY}, v{vRDY+2}")
        p(f"v_cmp_eq_u32 vcc, 1, v{vRDY}")
        p(f"s_cbranch_vccz L_ready{g}")
        p(f"L_go{g}:")
        p("s_mov_b64 exec, " + ("0x3fff" if self.o["flagmode"] == "cons" else "1"))
        p(f"buffer_store_dword v5, v4, {srd(sWS)}, s3 offen{fl(self.o['flag_fl'])}")
        p("s_mov_b64 exec, -1")

    def poll(self):
        p, g = self.p, self.tag
        p("s_mov_b32 s5, 100000")
        p("s_mov_b64 exec, 0xffff")
        p(f"L_poll{g}:")
        if self.o.get("poll_sleep"):
            p(f"s_sleep {self.o['poll_sleep']}")
        p(f"buffer_load_dword v3, v9, {srd(sWS)}, s{sINB} offen{fl(self.o['poll_fl'])}")
        p("s_sub_u32 s5, s5, 1")
        p("s_cmp_eq_u32 s5, 0")
        p("s_waitcnt vmcnt(0)")
        p(f"s_cbranch_scc1 L_polled{g}")
        p("v_cmp_ne_u32 vcc, 1, v3")
        if self.o["mask_poll"]:
            p("s_and_b64 exec, exec, vcc")
            p(f"s_cbranch_scc1 L_poll{g}")
        else:
            p(f"s_cbranch_vccnz L_poll{g}")
        p(f"L_polled{g}:")
        p("s_mov_b64 exec, -1")

    def dump_stamps(self):
        p = self.p
        if not self.o["stamps"]:
            return
        p("s_waitcnt vmcnt(0)")
        self.stamp()
        p("s_lshl_b32 s3, s2, 2")
        p(f"s_add_u32 s3, s3, s{sW}")
        p("s_lshl_b32 s3, s3, 6")
        p("v_mov_b32 v2, 0")
        p("s_mov_b64 exec, 1")
        for k in range(self.nstamp):
            p(f"v_mov_b32 v3, s{sST + k}")
            p(f"buffer_store_dword v3, v2, {srd(sWS)}, s3 offen offset:{4*k}")

    def body(self):
        p, o, sc, g = self.p, self.o, self.sc, self.tag
        self.started = set()
        p(f"L_class{g}:")
        self.prologue()
        self.run_phase(sc["ph1"])
        self.stamp()
        pk = self.pack(vWR)
        for cv, _ in pk:
            for t in cv:
                p(t)
        p("s_barrier")
        w = [p(t) for _, t in pk]
        self.one_more()()
        p("s_barrier", after=w)
        for s in range(16):
            for qt in range(2):
                p(f"ds_read_b128 {ar((s*2+qt)*4, 4)}, v{vLIN} offset:{SH + (s // 4)*16384 + ((s % 4)*2 + qt)*1024}")
            if s == 7:
                self.one_more()()
        self.stamp()
        left = {t: 4 for t in range(4)}

        def fillers(nme):
            if nme[0] == "W":
                return []
            t = int(nme[1:]) // 4
            left[t] -= 1
            return self.softmax_tile(t) if left[t] == 0 else []
        rest = self.run_phase(sc["ph2"], fillers)
        self.stamp()
        L, w = self.softmax_finish()
        self.spread(rest + L, [self.stage(u) for u in sc["mid2"]] + [self.one_more() for _ in range(o["more2"])])
        p("s_barrier", after=w)
        self.stamp()
        if o["fused"]:
            p("v_mov_b32 v2, 0")
            p(f"buffer_load_dwordx4 {vr(vRDY,4)}, v2, {srd(sDBG)}, s{sDO} offen")
        self.run_phase(sc["ph3"])
        self.stamp()
        w, L = [], []
        for cv, t in self.pack(vWR):
            L += [(lambda x=x: p(x)) for x in cv]
            L.append(lambda t=t: w.append(p(t)))
        wq = list(sc["ph4"])
        pre, wq = wq[:o["pre4"]], wq[o["pre4"]:]
        self.spread(L, [self.one_more() for _ in range(o["more4"])])
        for u in pre:
            self.stage(u)()
        p("s_barrier", after=w)
        self.stamp()
        extra = (self.handoff_setup() + self.reduce_setup()) if o["fused"] else []
        self.out_proj(wq, extra)
        self.stamp()
        if o["fused"]:
            self.handoff()
            self.stamp()
            if o["stamps"]:
                p(f"s_mov_b32 s{sST + self.nstamp}, s4")
            p(f"s_cmp_ge_u32 s{sJ}, 14")
            p(f"s_cbranch_scc1 L_fin{g}")
            if o["early_ld"]:
                self.gather(o["ld_fl"])
            else:
                self.poll()
            if o["stamps"]:
                self.stamp()
                self.nstamp -= 1
            self.reduce(o["ld_fl"], o["early_ld"])
            p(f"L_fin{g}:")
            if o["stamps"]:
                self.nstamp += 1
        self.dump_stamps()
        p("s_endpgm")
        return p.finalize()

    def second(self):
        p = self.p
        p("s_cmp_ge_u32 s2, 224")
        p("s_cbranch_scc1 L_end2")
        p("s_load_dwordx2 s[96:97], s[0:1], 80")
        p("s_load_dwordx2 s[94:95], s[0:1], 96")
        p(f"s_and_b32 s{sGRP}, s2, 15")
        p(f"s_lshr_b32 s{sJ}, s2, 4")
        p(f"s_lshr_b32 s{sBR}, s{sGRP}, 3")
        p(f"s_and_b32 s{sB}, s{sGRP}, 7")
        p("v_lshrrev_b32 v7, 6, v0")
        p(f"v_and_b32 v{vL}, 63, v0")
        p(f"v_readfirstlane_b32 s{sW}, v7")
        p(f"v_lshlrev_b32 v{vLIN}, 4, v{vL}")
        for f in self.reduce_setup():
            f()
        for r, src, n in ((sWS, 94, PBASE + 16 * GRP), (sOUT, 96, 917504)):
            p(f"s_mov_b32 s{r}, s{src}")
            p(f"s_mov_b32 s{r+1}, s{src+1}")
            p(f"s_mov_b32 s{r+2}, {n}")
            p(f"s_mov_b32 s{r+3}, 0x20000")
        self.reduce("")
        p("L_end2:")
        p("s_endpgm")
        return p.finalize()


def kernel_text(label, body):
    return f".globl {label}\n.p2align 8\n.type {label},@function\n{label}:\n{body}"


def descriptor(label, vgpr, acc):
    return f""".p2align 6
.amdhsa_kernel {label}
  .amdhsa_next_free_vgpr {vgpr}
  .amdhsa_next_free_sgpr 102
  .amdhsa_accum_offset {acc}
  .amdhsa_group_segment_fixed_size 0
  .amdhsa_kernarg_size 104
  .amdhsa_user_sgpr_count 2
  .amdhsa_user_sgpr_kernarg_segment_ptr 1
  .amdhsa_system_sgpr_workgroup_id_x 1
.end_amdhsa_kernel
"""


NSTAMP = 0


def build(**kw):
    global NSTAMP
    ref = open(f"cdna_kernels/{NAME}.s.ref").read().splitlines() if kw.pop("header", True) else []
    head = [l for l in ref if l.startswith(";") and "@launch" not in l and "Override" not in l
            and "grid=ceil" not in l]
    g0 = Gen(**kw)
    o = g0.o
    k1 = NAME + "_kernel"
    body = g0.head()
    for i, spec in enumerate(o["groups"]):
        g = Gen(schedule(spec, o["nmid"]), str(i), **kw)
        body += ".p2align 6\n" + g.body()
        NSTAMP = g.nstamp if o["stamps"] else 0
    if o["fused"]:
        head.append("; @launch grid=(256,1,1) block=(256,1,1) lds=163840")
    else:
        head.append(f"; @launch kernel={k1} grid=(256,1,1) block=(256,1,1) lds=163840")
        head.append("; @launch kernel=head_sum_kernel grid=(224,1,1) block=(256,1,1) lds=0")
    s = "\n".join(head) + '\n.amdgcn_target "amdgcn-amd-amdhsa--gfx950"\n.text\n' + kernel_text(k1, body)
    if not o["fused"]:
        s += kernel_text("head_sum_kernel", Gen(**kw).second())
    s += '.section .rodata,"a"\n' + descriptor(k1, 512, 256)
    if not o["fused"]:
        s += descriptor("head_sum_kernel", 128, 128)
    return s


if __name__ == "__main__":
    kw = {}
    out = sys.argv[1]
    for a in sys.argv[2:]:
        k, v = a.split("=", 1)
        try:
            kw[k] = ast.literal_eval(v)
        except (ValueError, SyntaxError):
            kw[k] = v
    open(out, "w").write(build(**kw))
```

```python
import ast, math, struct, sys
from asmlib import Prog

NAME = "concat_heads__gqa_block_cached__mha_block_cached__near_ridge"
SH, RING, RSZ, NSLOT = 0, 65536, 24576, 6
PBASE = 0x100000
FBASE = 0x10000
GRP = 917504

sX, sK, sV, sQ, sO, sWS, sOUT, sDBG = 8, 12, 16, 20, 24, 28, 32, 36
sW, sBR, sH, sB, sRING, sSO, sC, sGRP, sT0, sT1, sT2 = 40, 41, 42, 43, 44, 45, 46, 47, 48, 49, 50
sPT = 52
sINB, sDO, sXW, sJ = 59, 60, 61, 51
sROT = 62
sST = 70
vL = 1
vDX, vDQ, vDK, vDV, vDO = 8, 9, 13, 17, 21
vRX, vRQ, vRK, vRV, vRO = 25, 29, 31, 35, 37
vLIN, vWR, vOA, vOW, vIW, vIR = 41, 42, 43, 47, 6, 8
vMC, vLS = 48, 56
vRDY = 28
ACC = 128
MF = "v_mfma_f32_32x32x16_bf16"


def f32(x):
    return "0x%08x" % struct.unpack("<I", struct.pack("<f", x))[0]


def vr(a, n):
    return f"v[{a}:{a+n-1}]" if n > 1 else f"v{a}"


def ar(a, n):
    return f"a[{a}:{a+n-1}]" if n > 1 else f"a{a}"


def srd(b):
    return f"s[{b}:{b+3}]"


def fl(x):
    return f" {x}" if x else ""


def cls(k, w, v, **kw):
    head = "Q14 K16" if k == 0 else f"Q2 K{k} Q12 K{16-k}"
    mid = f"W{w} V16" if (v == 0 or w == 2) else f"W2 V{v} W{w-2} V{16-v}"
    tail = f" W{16-w}" if w < 16 else ""
    return (f"{head} {mid}{tail}", dict(dict(ksplit=max(8, 16 - w)), **kw))


DEFAULT = dict(
    nt_kv="nt", nt_w="", nt_x="", fused=True, stamps=False, st_fl="sc0 sc1", ld_fl="sc0 sc1",
    rot=True, groups=(cls(0, 6, 0), cls(3, 10, 0), cls(6, 6, 0), cls(8, 10, 8)), gsel="bbr",
    fill_per=40, nmid=12, early_ld=False, la=(4, 5, 4, 4), ksplit=8, pre4=0, more2=3, more4=0,
    flagmode="cnt", poll_fl="sc0 sc1", flag_fl="sc0 sc1", mask_poll=True, poll_sleep=8, jrot=True,
    codepf=21504, tper=1, gray=False, hold=3,
)


def R(c, lo, hi):
    return [f"{c}{i}" for i in range(lo, hi)]


def schedule(spec, nmid, tper=2):
    if isinstance(spec, str):
        issue = []
        cnt = dict(Q=0, K=0, V=0, W=0)
        for tok in spec.split():
            c, n = tok[0], int(tok[1:])
            issue += R(c, cnt[c], cnt[c] + n)
            cnt[c] += n
        assert cnt == dict(Q=14, K=16, V=16, W=16), cnt
    else:
        npre, nv = spec
        issue = R("Q", 0, 2) + R("K", 0, npre) + R("Q", 2, 14) + R("K", npre, 16) + R("W", 0, 2) + \
            R("V", 0, nv) + R("W", 2, 16) + R("V", nv, 16)
    iq, ik = issue.index("Q13"), issue.index("K15")
    ph1 = issue[:iq + 1]
    assert all(u[0] in "QK" for u in ph1)
    npre = sum(u[0] == "K" for u in ph1)
    assert npre <= 12
    rest = issue[iq + 1:ik + 1]
    assert all(u[0] in "KW" for u in rest)
    T = R("T", 0, npre)
    ph2 = []
    if npre > 8:
        ph2, T = T[:4], T[4:]
    shift = 4 if npre > 8 else 0
    for u in rest:
        if u[0] == "W":
            assert int(u[1:]) < 8
            while T and int(T[0][1:]) <= int(u[1:]) + shift + 1:
                ph2.append(T.pop(0))
            assert not ph2 or ph2[-1] != f"T{int(u[1:]) + shift}"
            ph2.append(u)
        else:
            ph2 += [u] + T[:tper]
            T = T[tper:]
    ph2 += T
    after = issue[ik + 1:]
    mid2, held = [], 0
    for u in after:
        if u[0] == "V":
            held += 1
            if held > NSLOT - 4:
                break
        elif len(mid2) < nmid:
            mid2.append(u)
    ph3 = [u for u in after if u not in mid2]
    iv = ph3.index("V15")
    ph3, ph4 = ph3[:iv + 1], ph3[iv + 1:]
    return dict(issue=issue, ph1=ph1, ph2=ph2, mid2=mid2, ph3=ph3, ph4=ph4, npre=npre)


class Gen:
    def __init__(self, sched=None, tag="", **kw):
        self.o = dict(DEFAULT)
        self.o.update(kw)
        self.p = Prog()
        self.sc = sched
        self.tag = tag
        self.issue_q = list(sched["issue"]) if sched else []
        self.free = [(s, []) for s in range(NSLOT)]
        self.unit = {}
        self.eaten = set()
        self.nstamp = 1
        self.buf = 0

    def stamp(self):
        if self.o["stamps"]:
            self.p(("s_memtime" if self.o["stamps"] == "cyc" else "s_memrealtime") + " s[4:5]")
            self.p("s_waitcnt lgkmcnt(0)")
            self.p(f"s_mov_b32 s{sST + self.nstamp}, s4")
            self.nstamp += 1
            assert self.nstamp <= 14

    def dma_items(self):
        name = self.issue_q.pop(0)
        slot, reads = self.free.pop(0)
        kind, u = name[0], int(name[1:])
        r, v, nt = {"Q": (sQ, vDQ, self.o["nt_w"]), "K": (sK, vDK, self.o["nt_kv"]),
                    "V": (sV, vDV, self.o["nt_kv"]), "W": (sO, vDO, self.o["nt_w"])}[kind]
        dm = []
        self.unit[name] = (slot, dm)
        p = self.p

        def head():
            p(f"s_add_u32 m0, s{sRING}, {slot*4096}")
            if kind == "Q":
                p(f"s_lshl_b32 s{sSO}, s{sROT + u // 2}, 12")
                if u % 2:
                    p(f"s_or_b32 s{sSO}, s{sSO}, 0x40000")
            elif kind == "W":
                p(f"s_xor_b32 s{sSO}, s{sXW}, {u}")
                p(f"s_mul_i32 s{sSO}, s{sSO}, {16*896}")
            elif kind == "K":
                p(f"s_mov_b32 s{sSO}, {(u // 4) * 65536 + (u % 4) * 128}")
            else:
                p(f"s_mov_b32 s{sSO}, {u * 16384}")

        def piece(j):
            def f():
                if j == 0:
                    head()
                off = f" offset:{1024*j}" if j else ""
                dm.append(p(f"buffer_load_dwordx4 v{v+j}, {srd(r)}, s{sSO} offen{off}{fl(nt)} lds",
                            after=reads if j == 0 else ()))
            return f
        return [piece(j) for j in range(4)]

    def all_dma(self, la=None):
        la = min(la or self.o["la"], NSLOT)
        out = []
        while self.issue_q and NSLOT - len(self.free) < la:
            out += self.dma_items()
        return out

    def one_more(self):
        def f():
            if self.issue_q and self.free:
                for g in self.dma_items():
                    g()
        return f

    def kreg(self, u, j):
        if self.sc["npre"] > 8:
            return vr(192 + 16 * u + 4 * j, 4) if u < 4 else ar(128 + 16 * (u - 4) + 4 * j, 4)
        return ar(128 + 16 * u + 4 * j, 4)

    def unit_reads(self, name, base):
        kind, u = name[0], int(name[1:])
        p = self.p
        items, done = [], []
        if kind == "T":
            return items, done
        slot, dm = self.unit[name]
        so = slot * 4096

        def ring(text, pieces):
            items.append(lambda: done.append(p(text, after=[dm[j] for j in pieces])))

        def side(text):
            items.append(lambda: p(text))
        if kind in "QV":
            for ks in range(2):
                for mt in range(2):
                    for part in range(2):
                        d = base + (ks * 2 + mt) * 4 + part * 2
                        if kind == "Q":
                            ring(f"ds_read_b64_tr_b16 {vr(d,2)}, v{vRQ+mt} offset:{so + ks*2048 + part*512}",
                                 (2 * ks, 2 * ks + 1))
                        else:
                            ring(f"ds_read_b64_tr_b16 {vr(d,2)}, v{vRV+mt} offset:{so + ks*2048 + part*1024}",
                                 (2 * ks + part,))
                    qt = mt
                    d = base + 16 + (ks * 2 + qt) * 4
                    if kind == "Q":
                        s = 2 * u + ks
                        side(f"ds_read_b128 {vr(d,4)}, v{vRX + s % 4} offset:{(s // 4)*8192 + qt*4096}")
                    else:
                        side(f"ds_read_b128 {vr(d,4)}, v{vLIN} "
                             f"offset:{(u % 4)*16384 + (((u // 4)*2 + ks)*2 + qt)*1024}")
        elif kind == "K":
            for j in range(4):
                d = self.kreg(u, j) if u < self.sc["npre"] else vr(base + 4 * j, 4)
                ring(f"ds_read_b128 {d}, v{vRK+j} offset:{so}", range(4))
        elif kind == "W":
            b = 128 + 16 * u if u < 8 else 16 * (u - 8)
            for part in range(2):
                for t in range(4):
                    ring(f"ds_read_b64_tr_b16 {ar(b + t*4 + part*2, 2)}, v{vRO+t} offset:{so + part*1024}",
                         (part, 2 + part))
        return items, done

    def unit_mfmas(self, name, base):
        kind, u = name[0], int(name[1:])
        out = []
        if kind in "QV":
            for ks in range(2):
                for mt, qt in (((0, 0), (1, 0), (1, 1), (0, 1)) if self.o["gray"] else ((0, 0), (1, 0), (0, 1), (1, 1))):
                    acc = vr(ACC + (mt * 2 + qt) * 16, 16)
                    c = "0" if (u == 0 and ks == 0) else acc
                    out.append(f"{MF} {acc}, {vr(base + (ks*2+mt)*4, 4)}, {vr(base + 16 + (ks*2+qt)*4, 4)}, {c}")
        elif kind == "T" or (kind == "K" and u >= self.sc["npre"]):
            t, cb = u // 4, u % 4
            first = t not in self.started
            self.started.add(t)
            for j in range(4):
                s = 4 * cb + j
                a = self.kreg(u, j) if kind == "T" else vr(base + 4 * j, 4)
                for qt in range(2):
                    acc = vr(ACC + (t * 2 + qt) * 16, 16)
                    c = "0" if (first and j == 0) else acc
                    out.append(f"{MF} {acc}, {a}, {ar((s*2+qt)*4, 4)}, {c}")
        return out

    def window(self, mfmas, early, late, fill):
        p = self.p
        n = len(mfmas)
        if n == 0:
            for f in fill + late + early:
                f()
            return
        gaps = [[] for _ in range(n)]
        lo, mid = 1, n // 2
        for k, f in enumerate(early):
            gaps[lo + k * (mid - lo) // len(early)].append(f)
        for k, f in enumerate(fill):
            gaps[k * n // len(fill)].append(f)
        for k, f in enumerate(late):
            gaps[mid - 1 + k * (n - mid) // len(late)].append(f)
        for m, g in zip(mfmas, gaps):
            p(m)
            for f in g:
                f()

    def release(self, nme, done):
        if nme[0] != "T":
            self.eaten.add(nme)
            self.free.append((self.unit[nme][0], done))

    def run_phase(self, units, fillers=None):
        bufs = (64, 96)
        pend, fillq, prev = [], [], None
        for nme in units:
            base = bufs[self.buf]
            mf = self.unit_mfmas(nme, base)
            if mf and nme[0] != "T":
                self.buf ^= 1
            la = self.o["la"] + (0 if pend else 1)
            if nme[0] == "V" and "V15" in self.unit:
                la = min(la, self.o["hold"])
            early = self.all_dma(la)
            if nme[0] != "T" and not self.unit[nme][1]:
                for f in early:
                    f()
                early = []
            late, done = self.unit_reads(nme, base)
            if nme == "V10":
                late = [lambda: self.p("s_barrier")] + late
            take = fillq[:self.o["fill_per"]]
            fillq = fillq[len(take):]
            self.window(pend, early, late, take)
            if fillers and prev:
                fillq += fillers(prev)
            self.release(nme, done)
            pend, prev = mf, nme
        take = fillq[:self.o["fill_per"]]
        self.window(pend, self.all_dma(), [], take)
        return fillq[len(take):] + (fillers(prev) if fillers else [])

    def stage(self, nme):
        def f():
            held = sum(u[0] == "V" and u not in self.eaten for u in self.unit)
            early = self.all_dma(min(NSLOT, self.o["la"] + 1 + held))
            if not self.unit[nme][1]:
                for g in early:
                    g()
                early = []
            it, d = self.unit_reads(nme, 0)
            for g in it + early:
                g()
            self.release(nme, d)
        return f

    @staticmethod
    def spread(items, stages):
        n, k = len(stages), 0
        for i, f in enumerate(items):
            while k < n and (k + 0.5) * len(items) / n <= i:
                stages[k]()
                k += 1
            f()
        for g in stages[k:]:
            g()

    def head(self):
        p, o = self.p, self.o
        p("s_cmp_ge_u32 s2, 256")
        p("s_cbranch_scc1 L_exit")
        if o["stamps"]:
            p(("s_memtime" if o["stamps"] == "cyc" else "s_memrealtime") + f" s[{sST}:{sST+1}]")
        p("s_lshr_b32 s4, s2, 3")
        p(f"s_lshr_b32 s{sBR}, s4, 4")
        p(f"s_mul_i32 s5, s{sBR}, 40")
        p("s_add_u32 s6, s0, s5")
        p("s_addc_u32 s7, s1, 0")
        p("s_load_dwordx8 s[84:91], s[6:7], 0")
        p("s_load_dwordx2 s[92:93], s[6:7], 32")
        p("s_load_dwordx4 s[96:99], s[0:1], 80")
        p("s_load_dwordx2 s[94:95], s[0:1], 96")
        p(f"s_bfe_u32 s{sB}, s4, 0x30001")
        ng = len(o["groups"])
        if ng > 1:
            if o["gsel"] == "b":
                p(f"s_and_b32 s3, s{sB}, {ng-1}")
            elif o["gsel"] == "br":
                p(f"s_mov_b32 s3, s{sBR}")
            else:
                p(f"s_and_b32 s3, s{sB}, {ng//2-1}")
                p("s_lshl_b32 s3, s3, 1")
                p(f"s_add_u32 s3, s3, s{sBR}")
            for g in range(1, ng):
                p(f"s_cmp_eq_u32 s3, {g}")
                p(f"s_cbranch_scc1 L_class{g}")
        p("s_branch L_class0")
        p("L_exit:")
        p("s_endpgm")
        return p.finalize()

    def prologue(self):
        p, o = self.p, self.o
        if o["codepf"]:
            p(f"s_getpc_b64 s[{sT0}:{sT0+1}]")
            p("v_lshlrev_b32 v2, 7, v0")
            p(f"v_min_u32 v2, {o['codepf'] - 128}, v2")
            p(f"global_load_dword v255, v2, s[{sT0}:{sT0+1}]", hidden=True)
        p("s_and_b32 s3, s2, 7")
        p("s_and_b32 s5, s4, 1")
        p("s_lshl_b32 s3, s3, 1")
        p(f"s_add_u32 s{sH}, s3, s5")
        p("v_lshrrev_b32 v7, 6, v0")
        p(f"v_and_b32 v{vL}, 63, v0")
        p(f"v_readfirstlane_b32 s{sW}, v7")
        p(f"v_lshrrev_b32 v2, 3, v{vL}")
        p(f"v_and_b32 v3, 7, v{vL}")
        p(f"v_lshrrev_b32 v4, 4, v{vL}")
        if o["rot"]:
            p(f"s_lshl_b32 s{sXW}, s{sB}, 1")
            p(f"s_lshl_b32 s{sROT}, s{sB}, 7")
            p(f"s_cmp_eq_u32 s{sB}, 7")
            p(f"s_cselect_b32 s{sROT}, 384, s{sROT}")
        else:
            p(f"s_mov_b32 s{sXW}, 0")
            p(f"s_mov_b32 s{sROT}, 0")
        for i in range(1, 7):
            p(f"s_add_u32 s{sROT+i}, s{sROT+i-1}, 128")
            p(f"s_cmp_eq_u32 s{sROT+i}, 896")
            p(f"s_cselect_b32 s{sROT+i}, 0, s{sROT+i}")
        p(f"s_mul_i32 s{sRING}, s{sW}, {RSZ}")
        p(f"s_add_u32 s{sRING}, s{sRING}, {RING}")
        p(f"s_and_b32 s{sT2}, s{sW}, 1")
        p(f"s_lshl_b32 s{sGRP}, s{sBR}, 3")
        p(f"s_add_u32 s{sGRP}, s{sGRP}, s{sB}")
        p(f"s_lshl_b32 s{sT0}, s{sT2}, 2")
        p(f"v_add_u32 v5, s{sT0}, v4")
        p("v_xor_b32 v5, v5, v3")
        p(f"s_lshl_b32 s{sT0}, s{sW}, 3")
        p(f"v_add_u32 v6, s{sT0}, v2")
        p("v_mul_u32_u24 v6, 896, v6")
        p(f"v_lshl_add_u32 v{vDX}, v5, 4, v6")
        p(f"v_add_u32 v7, {32*896}, v{vDX}")
        p("v_and_b32 v5, 1, v4")
        p("v_lshlrev_b32 v5, 2, v5")
        p("v_xor_b32 v5, v5, v3")
        p(f"s_lshl_b32 s{sT0}, s{sW}, 7")
        p(f"v_lshl_add_u32 v5, v5, 4, s{sT0}")
        p(f"v_lshl_add_u32 v{vDQ}, v2, 13, v5")
        p(f"s_lshl_b32 s{sT0}, s{sXW}, 5")
        p(f"v_xor_b32 v5, s{sT0}, v5")
        p(f"v_lshl_add_u32 v{vDV}, v2, 9, v5")
        for j in range(1, 4):
            p(f"v_add_u32 v{vDQ+j}, {j*(65536-1024)}, v{vDQ}")
        p("v_xor_b32 v5, v3, v4")
        p(f"s_lshl_b32 s{sT0}, s{sW}, 14")
        p(f"v_lshl_add_u32 v5, v5, 4, s{sT0}")
        p(f"v_lshl_add_u32 v{vDK}, v2, 9, v5")
        p(f"v_xor_b32 v5, 64, v{vDK}")
        p(f"v_add_u32 v{vDK+1}, 3072, v5")
        p(f"v_add_u32 v{vDK+2}, 6144, v{vDK}")
        p(f"v_add_u32 v{vDK+3}, 9216, v5")
        p(f"s_mul_i32 s{sT0}, s{sB}, 57344")
        p(f"s_lshl_b32 s{sT1}, s{sW}, 10")
        p(f"s_mov_b32 s{sX+2}, 57344")
        p(f"s_mov_b32 s{sX+3}, 0x20000")
        p("s_waitcnt lgkmcnt(0)")
        p(f"s_add_u32 s{sX}, s84, s{sT0}")
        p(f"s_addc_u32 s{sX+1}, s85, 0")
        self.xd = []
        for cb in range(7):
            for hi in range(2):
                p(f"s_add_u32 m0, s{sT1}, {SH + cb*8192 + hi*4096}")
                self.xd.append(p(f"buffer_load_dwordx4 v{7 if hi else vDX}, {srd(sX)}, s{sROT+cb} "
                                 f"offen{fl(o['nt_x'])} lds"))
        p(f"s_lshl_b32 s{sT0}, s{sH}, 9")
        p(f"s_add_u32 s{sQ}, s90, s{sT0}")
        p(f"s_addc_u32 s{sQ+1}, s91, 0")
        p(f"s_sub_u32 s{sQ+2}, 3670016, s{sT0}")
        p(f"s_mov_b32 s{sQ+3}, 0x20000")
        p(f"s_lshl_b32 s{sT0}, s{sB}, 4")
        p(f"s_add_u32 s{sT0}, s{sT0}, s{sH}")
        p(f"s_xor_b32 s{sT1}, s{sBR}, 1")
        p(f"s_lshr_b32 s{sT0}, s{sT0}, s{sT1}")
        p(f"s_lshl_b32 s{sT0}, s{sT0}, 18")
        for r, src in ((sK, 86), (sV, 88)):
            p(f"s_add_u32 s{r}, s{src}, s{sT0}")
            p(f"s_addc_u32 s{r+1}, s{src+1}, 0")
            p(f"s_mov_b32 s{r+2}, 262144")
            p(f"s_mov_b32 s{r+3}, 0x20000")
        p(f"s_mul_i32 s{sT0}, s{sH}, 229376")
        p(f"s_add_u32 s{sO}, s92, s{sT0}")
        p(f"s_addc_u32 s{sO+1}, s93, 0")
        p(f"s_mov_b32 s{sO+2}, 229376")
        p(f"s_mov_b32 s{sO+3}, 0x20000")
        for r, src, n in ((sWS, 94, PBASE + 16 * GRP), (sOUT, 96, 917504), (sDBG, 98, 256)):
            p(f"s_mov_b32 s{r}, s{src}")
            p(f"s_mov_b32 s{r+1}, s{src+1}")
            p(f"s_mov_b32 s{r+2}, {n}")
            p(f"s_mov_b32 s{r+3}, 0x20000")
        p(f"v_lshlrev_b32 v{vLIN}, 4, v{vL}")
        if o["fused"]:
            p(f"s_lshl_b32 s{sDO}, s{sGRP}, 4")
            p(f"s_cmp_lg_u32 s{sH}, 15")
            p(f"s_cbranch_scc1 L_noclr{self.tag}")
            p(f"s_lshl_b32 s3, s{sGRP}, 2")
            p(f"s_add_u32 s3, s3, s{sW}")
            p("s_lshl_b32 s3, s3, 11")
            p(f"s_add_u32 s3, s3, {FBASE}")
            p(f"v_lshrrev_b32 v5, 2, v{vL}")
            p(f"v_and_b32 v6, 48, v{vLIN}")
            p("v_lshl_add_u32 v5, v5, 7, v6")
            for k in range(4):
                p(f"v_mov_b32 v{64+k}, 0")
            p(f"buffer_store_dwordx4 v[64:67], v5, {srd(sWS)}, s3 offen sc0 sc1", hidden=True)
            p(f"L_noclr{self.tag}:")
        first = self.all_dma(max(o["la"], 2))
        for f in first[:8]:
            f()
        L = []
        q = lambda t: L.append(lambda: p(t))
        for j in range(1, 4):
            q(f"v_add_u32 v{vDV+j}, {j*3072}, v{vDV}")
        q(f"v_bfe_u32 v5, v{vL}, 2, 2")
        q("v_xor_b32 v5, v5, v4")
        q(f"v_add_u32 v5, s{sT2}, v5")
        q("v_and_b32 v5, 3, v5")
        q(f"v_and_b32 v6, 48, v{vLIN}")
        q("v_lshl_add_u32 v5, v5, 6, v6")
        q("v_mul_u32_u24 v6, 896, v4")
        q(f"s_mul_i32 s{sT0}, s{sW}, 224")
        q(f"s_lshl_b32 s{sT1}, s{sT2}, 5")
        q(f"s_sub_u32 s{sT0}, s{sT0}, s{sT1}")
        q(f"v_add3_u32 v{vDO}, v5, v6, s{sT0}")
        for j in range(1, 4):
            q(f"v_add_u32 v{vDO+j}, {j*(3584-1024)}, v{vDO}")
        q(f"s_mov_b32 s{sC}, {f32(math.log2(math.e) / 16)}")
        q(f"v_lshrrev_b32 v2, 5, v{vL}")
        q(f"v_bfe_u32 v3, v{vL}, 1, 3")
        q("v_xor_b32 v3, v3, v2")
        q(f"v_and_b32 v5, 31, v{vL}")
        q("v_lshlrev_b32 v5, 7, v5")
        q(f"v_lshl_add_u32 v{vRX}, v3, 4, v5")
        for j in range(1, 4):
            q(f"v_xor_b32 v{vRX+j}, {j*32}, v{vRX}")
        for j in range(4):
            q(f"v_add_u32 v{vRK+j}, s{sRING}, v{vRX+j}")
        q(f"v_and_b32 v3, 16, v{vLIN}")
        q(f"v_bfe_u32 v5, v{vL}, 1, 1")
        q("v_lshl_add_u32 v3, v5, 3, v3")
        q("v_and_b32 v5, 1, v4")
        q("v_lshl_add_u32 v3, v5, 5, v3")
        q(f"v_add_u32 v3, s{sRING}, v3")
        q(f"v_bfe_u32 v5, v{vL}, 2, 2")
        q(f"v_bfe_u32 v6, v{vL}, 3, 1")
        q("v_lshl_add_u32 v6, v6, 6, v3")
        q("v_lshl_add_u32 v6, v5, 7, v6")
        q(f"v_lshl_add_u32 v{vRQ}, v2, 10, v6")
        q(f"v_lshl_add_u32 v{vRV}, v2, 9, v6")
        q(f"v_xor_b32 v{vRQ+1}, 64, v{vRQ}")
        q(f"v_xor_b32 v{vRV+1}, 64, v{vRV}")
        q("v_mul_u32_u24 v6, 320, v5")
        q("v_add_u32 v6, v6, v3")
        q(f"v_lshl_add_u32 v{vRO}, v2, 11, v6")
        for t in range(1, 4):
            q(f"v_xor_b32 v{vRO+t}, {t*64}, v{vRO}")
        q(f"s_lshl_b32 s{sT0}, s{sW}, 14")
        q(f"v_add_u32 v{vWR}, s{sT0}, v{vLIN}")
        q(f"s_lshl_b32 s{sT1}, s{sT2}, 10")
        q(f"v_add_u32 v{vOA}, s{sT1}, v{vLIN}")
        q(f"v_xor_b32 v{vOA+1}, 0x400, v{vOA}")
        q(f"s_add_u32 s{sT0}, s{sT0}, 8192")
        q(f"v_lshl_add_u32 v{vIR}, v{vL}, 3, s{sT0}")
        q(f"s_lshl_b32 s{sT0}, s{sW}, 9")
        q(f"s_add_u32 s{sT0}, s{sT0}, 8192")
        q(f"v_lshl_add_u32 v{vIW}, v{vL}, 3, s{sT0}")
        q(f"s_mul_i32 s3, s{sGRP}, {GRP}")
        q(f"s_lshl_b32 s4, s{sH}, 11")
        q("s_add_u32 s3, s3, s4")
        q(f"s_add_u32 s3, s3, {PBASE}")
        q(f"s_lshr_b32 s4, s{sW}, 1")
        q("s_mul_i32 s4, s4, 7")
        q(f"s_mul_i32 s5, s{sT2}, 3")
        q("s_add_u32 s4, s4, s5")
        q(f"s_lshl_b32 s7, s{sT2}, 1")
        q("v_mov_b32 v4, 0")
        for t in range(4):
            q(f"s_add_u32 s5, s{sT2}, {t}")
            q("s_and_b32 s5, s5, 3")
            q("s_add_u32 s5, s5, s4")
            q("s_lshr_b32 s6, s5, 1")
            q("s_lshl_b32 s6, s6, 2")
            q("s_and_b32 s5, s5, 1")
            q("s_add_u32 s5, s5, s6")
            q("s_add_u32 s5, s5, s7")
            for qi in range(2 if t < 3 else 1):
                if qi:
                    q("s_xor_b32 s5, s5, 2")
                q("s_lshl_b32 s6, s5, 15")
                q(f"s_add_u32 s{sPT + 2*t + qi}, s6, s3")
                if o["fused"] and o["flagmode"] != "prod":
                    q("s_lshl_b32 s6, s5, 8")
                    q(f"v_writelane_b32 v4, s6, {2*(2*t+qi)}")
                    q("s_add_u32 s6, s6, 128")
                    q(f"v_writelane_b32 v4, s6, {2*(2*t+qi)+1}")
        for f in L:
            f()
        p("s_barrier", after=self.xd)
        self.stamp()
        if o["fused"]:
            p(f"s_cmp_lg_u32 s{sH}, 15")
            p(f"s_cbranch_scc1 L_noset{self.tag}")
            p(f"s_lshl_b32 s3, s{sW}, 2")
            p(f"s_add_u32 s3, s3, s{sDO}")
            p("v_mov_b32 v2, 0")
            p("v_mov_b32 v3, 1")
            p("s_mov_b64 exec, 1")
            p(f"buffer_store_dword v3, v2, {srd(sDBG)}, s3 offen sc0 sc1", hidden=True)
            p("s_mov_b64 exec, -1")
            p(f"L_noset{self.tag}:")
        for f in first[8:]:
            f()

    def pack(self, addr):
        p = self.p
        out = []
        for mt, qt in ((0, 0), (1, 0), (0, 1), (1, 1)):
            for ks in range(2):
                src = ACC + (mt * 2 + qt) * 16 + ks * 8
                d = 64 + ((mt * 2 + qt) * 2 + ks) * 4
                out.append(([f"v_cvt_pk_bf16_f32 v{d+k}, v{src+2*k}, v{src+2*k+1}" for k in range(4)],
                            f"ds_write_b128 v{addr}, {vr(d,4)} offset:{((2*mt+ks)*2+qt)*1024}"))
        return out

    def softmax_tile(self, t):
        p = self.p
        out = []
        for qt in range(2):
            s = ACC + (t * 2 + qt) * 16
            m, l = vMC + t * 2 + qt, vLS + t * 2 + qt
            seq = [f"v_max3_f32 v{m}, v{s}, v{s+1}, v{s+2}"]
            for k in range(3, 15, 2):
                seq.append(f"v_max3_f32 v{m}, v{m}, v{s+k}, v{s+k+1}")
            seq.append(f"v_max_f32 v{m}, v{m}, v{s+15}")
            seq.append(f"v_mul_f32 v{m}, s{sC}, v{m}")
            for k in range(16):
                seq.append(f"v_fma_f32 v{s+k}, v{s+k}, s{sC}, -v{m}")
            for k in range(16):
                seq.append(f"v_exp_f32 v{s+k}, v{s+k}")
                if k == 2:
                    seq.append(f"v_add_f32 v{l}, v{s}, v{s+1}")
                elif k > 2:
                    seq.append(f"v_add_f32 v{l}, v{l}, v{s+k-1}")
            seq.append(f"v_add_f32 v{l}, v{l}, v{s+15}")
            out += [(lambda x=x: p(x)) for x in seq]
        return out

    def softmax_finish(self):
        p = self.p
        T = 64
        L = []
        q = lambda t: L.append(lambda: p(t))
        w1, w2 = [], []
        for qt in range(2):
            m = [vMC + t * 2 + qt for t in range(4)]
            l = [vLS + t * 2 + qt for t in range(4)]
            M, S = T + qt, T + 2 + qt
            q(f"v_max3_f32 v{M}, v{m[0]}, v{m[1]}, v{m[2]}")
            q(f"v_max_f32 v{M}, v{M}, v{m[3]}")
            for t in range(4):
                q(f"v_sub_f32 v{T+4+t}, v{m[t]}, v{M}")
            for t in range(4):
                q(f"v_exp_f32 v{T+4+t}, v{T+4+t}")
            q(f"v_mul_f32 v{S}, v{l[0]}, v{T+4}")
            for t in range(1, 4):
                q(f"v_fmac_f32 v{S}, v{l[t]}, v{T+4+t}")
        q(f"v_permlane32_swap_b32 v{T}, v{T+1}")
        q(f"v_permlane32_swap_b32 v{T+2}, v{T+3}")
        q(f"v_max_f32 v{T+8}, v{T}, v{T+1}")
        q(f"v_sub_f32 v{T+4}, v{T}, v{T+8}")
        q(f"v_sub_f32 v{T+5}, v{T+1}, v{T+8}")
        q(f"v_exp_f32 v{T+4}, v{T+4}")
        q(f"v_exp_f32 v{T+5}, v{T+5}")
        q(f"v_mul_f32 v{T+9}, v{T+2}, v{T+4}")
        q(f"v_fmac_f32 v{T+9}, v{T+3}, v{T+5}")
        for r in range(4):
            L.append(lambda r=r: w1.append(p(f"ds_write_b64 v{vIW}, {vr(T+8,2)} offset:{r*16384}")))
        L.append(lambda: p("s_barrier", after=w1))
        for r in range(4):
            q(f"ds_read_b64 {vr(T+10+2*r,2)}, v{vIR} offset:{r*512}")
        q(f"v_max3_f32 v{T}, v{T+10}, v{T+12}, v{T+14}")
        q(f"v_max_f32 v{T}, v{T}, v{T+16}")
        for r in range(4):
            q(f"v_sub_f32 v{T+4+r}, v{T+10+2*r}, v{T}")
        for r in range(4):
            q(f"v_exp_f32 v{T+4+r}, v{T+4+r}")
        q(f"v_mul_f32 v{T+1}, v{T+11}, v{T+4}")
        for r in range(1, 4):
            q(f"v_fmac_f32 v{T+1}, v{T+11+2*r}, v{T+4+r}")
        q(f"v_log_f32 v{T+1}, v{T+1}")
        q(f"v_add_f32 v{T}, v{T}, v{T+1}")
        q(f"v_mov_b32 v{T+1}, v{T}")
        q(f"v_permlane32_swap_b32 v{T}, v{T+1}")
        F = T + 20
        for k in range(8):
            q(f"v_sub_f32 v{F + 2*k}, v{vMC + k}, v{T + k % 2}")
        for k in range(8):
            q(f"v_exp_f32 v{F+2*k}, v{F+2*k}")
        P, n = 104, 0
        for t in range(4):
            for qt in range(2):
                s = ACC + (t * 2 + qt) * 16
                f = F + 2 * (t * 2 + qt)
                for k in range(8):
                    q(f"v_pk_mul_f32 {vr(s+2*k,2)}, {vr(s+2*k,2)}, {vr(f,2)} op_sel_hi:[1,0]")
                for ks in range(2):
                    d = P + (n % 4) * 4
                    n += 1
                    for k in range(4):
                        q(f"v_cvt_pk_bf16_f32 v{d+k}, v{s+ks*8+2*k}, v{s+ks*8+2*k+1}")
                    t_ = f"ds_write_b128 v{vWR}, {vr(d,4)} offset:{((t*2+ks)*2+qt)*1024}"
                    L.append(lambda t_=t_: w2.append(p(t_)))
        return L, w2

    def out_proj(self, wq, extra):
        p, o = self.p, self.o
        ks = o["ksplit"]
        assert 8 <= ks <= 16
        units = [(0, 0), (1, 0), (2, 0), (3, 0), (0, 1), (1, 1), (2, 1)]
        sf = fl(o["st_fl"]) if o["fused"] else ""

        def oreg(s, qi):
            return (240 + (s % 2) * 8 if s < ks else 64 + (s - ks) * 8) + qi * 4

        def oread(s):
            return [(lambda qi=qi: p(f"ds_read_b128 {vr(oreg(s, qi), 4)}, v{vOA+qi} "
                                     f"offset:{(s // 4)*16384 + (s % 4)*2048}")) for qi in range(2)]

        def mfma(k, s):
            t, qi = units[k]
            b = 128 + 16 * s if s < 8 else 16 * (s - 8)
            acc = vr(ACC + 16 * k, 16)
            return f"{MF} {acc}, {ar(b + t*4, 4)}, {vr(oreg(s, qi), 4)}, {'0' if s == 0 else acc}"

        def finish(k):
            t, qi = units[k]
            acc, d = ACC + 16 * k, (48, 56, 32)[k % 3]
            L = []
            for half in range(2):
                for j in range(4):
                    L.append(f"v_cvt_pk_bf16_f32 v{d+half*4+j}, v{acc+half*8+2*j}, v{acc+half*8+2*j+1}")
                off = " offset:1024" if half else ""
                L.append(f"buffer_store_dwordx4 {vr(d+half*4,4)}, v{vLIN}, {srd(sWS)}, s{sPT+2*t+qi} offen{off}{sf}")
            return L
        for f in oread(0):
            f()
        tail = [f for s in range(ks, 16) for f in oread(s)]
        wq = list(wq)
        for s in range(ks):
            late = oread(s + 1) if s + 1 < ks else []
            n = (len(tail) + ks - s - 1) // (ks - s)
            late, tail = late + tail[:n], tail[n:]
            early, rel = self.all_dma(), []
            for _ in range((len(wq) + ks - s - 1) // (ks - s) if len(wq) >= ks - s else min(1, len(wq))):
                u = wq.pop(0)
                assert int(u[1:]) > s
                if not self.unit.get(u, (0, []))[1]:
                    for f in early + self.all_dma(NSLOT):
                        f()
                    early = []
                it, d = self.unit_reads(u, 0)
                late += it
                rel.append((u, d))
            fill, extra = extra[:6], extra[6:]
            self.window([mfma(k, s) for k in range(7)], early, late, fill)
            for u, d in rel:
                self.release(u, d)
        assert not wq and not self.issue_q
        for f in extra:
            f()
        prev = []
        for k in range(7):
            chain = [mfma(k, s) for s in range(ks, 16)]
            for i, m in enumerate(chain):
                p(m)
                if i >= 1:
                    n = (len(prev) + len(chain) - i - 1) // (len(chain) - i)
                    for t in prev[:n]:
                        p(t)
                    prev = prev[n:]
            for t in prev:
                p(t)
            prev = finish(k)
        for t in prev:
            p(t)

    def reduce_setup(self):
        L = []
        q = lambda t: L.append(lambda: self.p(t))
        q(f"s_mul_i32 s6, s{sGRP}, {GRP}")
        q(f"s_lshl_b32 s4, s{sJ}, 1")
        q(f"s_lshr_b32 s5, s{sW}, 1")
        q("s_add_u32 s4, s4, s5")
        q("s_lshl_b32 s4, s4, 15")
        q("s_add_u32 s6, s6, s4")
        q(f"s_and_b32 s4, s{sW}, 1")
        q("s_lshl_b32 s4, s4, 10")
        q("s_add_u32 s6, s6, s4")
        q(f"s_add_u32 s6, s6, {PBASE}")
        q(f"s_lshl_b32 s7, s{sB}, 1")
        q(f"s_and_b32 s4, s{sJ}, 1")
        q("s_add_u32 s7, s7, s4")
        q(f"s_mul_i32 s7, s7, {32*1792}")
        q(f"s_mul_i32 s4, s{sBR}, 896")
        q("s_add_u32 s7, s7, s4")
        q(f"s_lshr_b32 s4, s{sJ}, 1")
        q("s_lshl_b32 s4, s4, 7")
        q("s_add_u32 s7, s7, s4")
        q(f"s_lshl_b32 s4, s{sW}, 5")
        q("s_add_u32 s7, s7, s4")
        q(f"v_and_b32 v2, 31, v{vL}")
        q("v_mul_u32_u24 v2, 1792, v2")
        q(f"v_lshrrev_b32 v3, 5, v{vL}")
        q("v_lshl_add_u32 v2, v3, 4, v2")
        return L

    def gather(self, flags):
        p, g = self.p, self.tag
        D = 64
        p("s_mov_b32 s5, 100000")
        p(f"s_mov_b32 s{sT0}, 0")
        p(f"L_poll{g}:")
        p(f"buffer_load_dword v3, v9, {srd(sWS)}, s{sINB} offen sc0 sc1")
        p("s_sub_u32 s5, s5, 1")
        p("s_cmp_eq_u32 s5, 0")
        p("s_waitcnt vmcnt(0)")
        p(f"s_cbranch_scc1 L_polled{g}")
        p("v_cmp_eq_u32 vcc, 1, v3")
        p(f"s_andn2_b32 s{sT1}, vcc_lo, s{sT0}")
        p(f"s_cbranch_scc0 L_poll{g}")
        p(f"s_or_b32 s{sT0}, s{sT0}, s{sT1}")
        for i in range(16):
            p(f"s_bitcmp0_b32 s{sT1}, {i}")
            p(f"s_cbranch_scc1 L_skip{g}_{i}")
            p(f"s_add_u32 s4, s6, {2048*i}")
            p(f"buffer_load_dwordx4 {vr(D+4*i,4)}, v{vLIN}, {srd(sWS)}, s4 offen{fl(flags)}", hidden=True)
            p(f"L_skip{g}_{i}:")
        p(f"s_cmp_lg_u32 s{sT0}, -1")
        p(f"s_cbranch_scc1 L_poll{g}")
        p(f"L_polled{g}:")
        p("s_waitcnt vmcnt(0)")

    def reduce(self, flags, loaded=False):
        p = self.p
        D = 64
        for i in range(0 if loaded else 16):
            off = " offset:2048" if i % 2 else ""
            p(f"buffer_load_dwordx4 {vr(D+4*i,4)}, v{vLIN}, {srd(sWS)}, s6 offen{off}{fl(flags)}")
            if i % 2 and i < 15:
                p("s_add_u32 s6, s6, 4096")
        A, T = 48, 56
        for i in range(16):
            for j in range(4):
                dst = A + 2 * j if i == 0 else T + 2 * j
                p(f"v_lshlrev_b32 v{dst}, 16, v{D+4*i+j}")
                p(f"v_and_b32 v{dst+1}, 0xffff0000, v{D+4*i+j}")
            if i:
                for j in range(4):
                    p(f"v_pk_add_f32 {vr(A+2*j,2)}, {vr(A+2*j,2)}, {vr(T+2*j,2)}")
        for j in range(4):
            p(f"v_cvt_pk_bf16_f32 v{T+j}, v{A+2*j}, v{A+2*j+1}")
        p(f"buffer_store_dwordx4 {vr(T,4)}, v2, {srd(sOUT)}, s7 offen")

    def handoff_setup(self):
        L = []
        q = lambda t: L.append(lambda: self.p(t))
        q(f"s_mul_i32 s{sJ}, s{sGRP}, {2 if self.o['jrot'] else 0}")
        q(f"s_add_u32 s{sJ}, s{sJ}, s{sH}")
        q(f"s_and_b32 s{sJ}, s{sJ}, 15")
        q(f"s_lshl_b32 s3, s{sGRP}, 13")
        q(f"s_add_u32 s3, s3, {FBASE}")
        q(f"s_lshl_b32 s4, s{sH}, 2")
        q(f"s_add_u32 s5, s4, s{sW}")
        q("s_lshl_b32 s5, s5, 7")
        q("v_mov_b32 v5, 1")
        q("v_mov_b32 v7, 0")
        q(f"v_and_b32 v9, 15, v{vL}")
        if self.o["flagmode"] != "prod":
            q(f"s_lshl_b32 s5, s{sJ}, 2")
            q(f"s_add_u32 s5, s5, s{sW}")
            q("s_lshl_b32 s5, s5, 7")
            q(f"s_add_u32 s{sINB}, s3, s5")
            if self.o["flagmode"] == "cons":
                q("s_add_u32 s3, s3, s4")
            q("v_lshlrev_b32 v9, 2, v9")
        else:
            q(f"s_and_b32 s4, s{sJ}, 14")
            q(f"s_lshr_b32 s{sINB}, s{sW}, 1")
            q(f"s_add_u32 s4, s4, s{sINB}")
            q("s_lshl_b32 s4, s4, 1")
            q(f"s_and_b32 s{sINB}, s{sJ}, 1")
            q(f"s_add_u32 s4, s4, s{sINB}")
            q("s_mul_i32 s4, s4, 37")
            q("s_lshr_b32 s4, s4, 8")
            q("s_lshl_b32 s4, s4, 7")
            q(f"s_add_u32 s{sINB}, s3, s4")
            q("s_add_u32 s3, s3, s5")
            q("v_lshlrev_b32 v9, 9, v9")
        q(f"v_and_b32 v{vRDY}, v{vRDY}, v{vRDY+1}")
        q(f"v_and_b32 v{vRDY+2}, v{vRDY+2}, v{vRDY+3}")
        q(f"v_and_b32 v{vRDY}, v{vRDY}, v{vRDY+2}")
        return L

    def handoff(self):
        p, g = self.p, self.tag
        p(f"v_cmp_eq_u32 vcc, 1, v{vRDY}")
        p("s_mov_b32 s5, 100000")
        p("s_waitcnt vmcnt(0)")
        p(f"s_cbranch_vccnz L_go{g}")
        p(f"L_ready{g}:")
        p(f"buffer_load_dwordx4 {vr(vRDY,4)}, v7, {srd(sDBG)}, s{sDO} offen sc0 sc1")
        p("s_sub_u32 s5, s5, 1")
        p("s_cmp_eq_u32 s5, 0")
        p("s_waitcnt vmcnt(0)")
        p(f"s_cbranch_scc1 L_go{g}")
        p(f"v_and_b32 v{vRDY}, v{vRDY}, v{vRDY+1}")
        p(f"v_and_b32 v{vRDY+2}, v{vRDY+2}, v{vRDY+3}")
        p(f"v_and_b32 v{vRDY}, v{vRDY}, v{vRDY+2}")
        p(f"v_cmp_eq_u32 vcc, 1, v{vRDY}")
        p(f"s_cbranch_vccz L_ready{g}")
        p(f"L_go{g}:")
        p("s_mov_b64 exec, " + ("0x3fff" if self.o["flagmode"] != "prod" else "1"))
        if self.o["flagmode"] == "cnt" or self.o.get("flag_atomic"):
            p(f"buffer_atomic_add v5, v4, {srd(sWS)}, s3 offen sc1")
        else:
            p(f"buffer_store_dword v5, v4, {srd(sWS)}, s3 offen{fl(self.o['flag_fl'])}")
        p("s_mov_b64 exec, -1")

    def poll(self):
        p, g = self.p, self.tag
        cnt = self.o["flagmode"] == "cnt"
        p("s_mov_b32 s5, 100000")
        p("s_mov_b64 exec, " + ("1" if cnt else "0xffff"))
        p(f"L_poll{g}:")
        if self.o.get("poll_sleep"):
            p(f"s_sleep {self.o['poll_sleep']}")
        p(f"buffer_load_dword v3, v9, {srd(sWS)}, s{sINB} offen{fl(self.o['poll_fl'])}")
        p("s_sub_u32 s5, s5, 1")
        p("s_cmp_eq_u32 s5, 0")
        p("s_waitcnt vmcnt(0)")
        p(f"s_cbranch_scc1 L_polled{g}")
        p(f"v_cmp_ne_u32 vcc, {16 if cnt else 1}, v3")
        if self.o["mask_poll"]:
            p("s_and_b64 exec, exec, vcc")
            p(f"s_cbranch_scc1 L_poll{g}")
        else:
            p(f"s_cbranch_vccnz L_poll{g}")
        p(f"L_polled{g}:")
        p("s_mov_b64 exec, -1")

    def dump_stamps(self):
        p = self.p
        if not self.o["stamps"]:
            return
        p("s_waitcnt vmcnt(0)")
        self.stamp()
        p("s_lshl_b32 s3, s2, 2")
        p(f"s_add_u32 s3, s3, s{sW}")
        p("s_lshl_b32 s3, s3, 6")
        p("v_mov_b32 v2, 0")
        p("s_mov_b64 exec, 1")
        for k in range(self.nstamp):
            p(f"v_mov_b32 v3, s{sST + k}")
            p(f"buffer_store_dword v3, v2, {srd(sWS)}, s3 offen offset:{4*k}")

    def body(self):
        p, o, sc, g = self.p, self.o, self.sc, self.tag
        self.started = set()
        p(f"L_class{g}:")
        self.prologue()
        self.run_phase(sc["ph1"])
        self.stamp()
        pk = self.pack(vWR)
        for cv, _ in pk:
            for t in cv:
                p(t)
        p("s_barrier")
        w = [p(t) for _, t in pk]
        self.one_more()()
        p("s_barrier", after=w)
        for s in range(16):
            for qt in range(2):
                p(f"ds_read_b128 {ar((s*2+qt)*4, 4)}, v{vLIN} offset:{SH + (s // 4)*16384 + ((s % 4)*2 + qt)*1024}")
            if s == 7:
                self.one_more()()
        self.stamp()
        left = {t: 4 for t in range(4)}

        def fillers(nme):
            if nme[0] == "W":
                return []
            t = int(nme[1:]) // 4
            left[t] -= 1
            return self.softmax_tile(t) if left[t] == 0 else []
        rest = self.run_phase(sc["ph2"], fillers)
        self.stamp()
        L, w = self.softmax_finish()
        self.spread(rest + L, [self.stage(u) for u in sc["mid2"]] + [self.one_more() for _ in range(o["more2"])])
        p("s_barrier", after=w)
        self.stamp()
        if o["fused"]:
            p("v_mov_b32 v2, 0")
            p(f"buffer_load_dwordx4 {vr(vRDY,4)}, v2, {srd(sDBG)}, s{sDO} offen")
        self.run_phase(sc["ph3"])
        self.stamp()
        w, L = [], []
        for cv, t in self.pack(vWR):
            L += [(lambda x=x: p(x)) for x in cv]
            L.append(lambda t=t: w.append(p(t)))
        wq = list(sc["ph4"])
        pre, wq = wq[:o["pre4"]], wq[o["pre4"]:]
        self.spread(L, [self.one_more() for _ in range(o["more4"])])
        for u in pre:
            self.stage(u)()
        p("s_barrier", after=w)
        self.stamp()
        extra = (self.handoff_setup() + self.reduce_setup()) if o["fused"] else []
        self.out_proj(wq, extra)
        self.stamp()
        if o["fused"]:
            self.handoff()
            self.stamp()
            if o["stamps"]:
                p(f"s_mov_b32 s{sST + self.nstamp}, s4")
            p(f"s_cmp_ge_u32 s{sJ}, 14")
            p(f"s_cbranch_scc1 L_fin{g}")
            if o["early_ld"]:
                self.gather(o["ld_fl"])
            else:
                self.poll()
            if o["stamps"]:
                self.stamp()
                self.nstamp -= 1
            self.reduce(o["ld_fl"], o["early_ld"])
            p(f"L_fin{g}:")
            if o["stamps"]:
                self.nstamp += 1
        self.dump_stamps()
        p("s_endpgm")
        if o.get("fake16"):
            self.fake16(o["fake16"])
        return p.finalize()

    def fake16(self, mode):
        import re
        from asmlib import Ins
        out, n, nb = [], 0, 0
        for i in self.p.ins:
            nb += i.text == "s_barrier"
            ph = {0: 1, 1: 1, 2: 1, 3: 2, 4: 2, 5: 3, 6: 3}.get(nb, 4)
            if i.kind == "mfma" and mode.startswith("drop") and (mode == "drop" or str(ph) in mode):
                continue
            if i.kind == "mfma" and (mode == "all" or (mode.startswith("ph") and str(ph) in mode)):
                m = re.match(r"\S+ v\[(\d+):\d+\], (\S+), (\S+), (\S+)", i.text)
                for h in range(2):
                    a = int(m.group(1)) + 4 * ((2 * n + h) % 4)
                    c = "0" if m.group(4) == "0" else vr(a, 4)
                    out.append(Ins(f"v_mfma_f32_16x16x32_bf16 {vr(a,4)}, {m.group(2)}, {m.group(3)}, {c}"))
                n += 1
            else:
                out.append(i)
        self.p.ins = out

    def second(self):
        p = self.p
        p("s_cmp_ge_u32 s2, 224")
        p("s_cbranch_scc1 L_end2")
        p("s_load_dwordx2 s[96:97], s[0:1], 80")
        p("s_load_dwordx2 s[94:95], s[0:1], 96")
        p(f"s_and_b32 s{sGRP}, s2, 15")
        p(f"s_lshr_b32 s{sJ}, s2, 4")
        p(f"s_lshr_b32 s{sBR}, s{sGRP}, 3")
        p(f"s_and_b32 s{sB}, s{sGRP}, 7")
        p("v_lshrrev_b32 v7, 6, v0")
        p(f"v_and_b32 v{vL}, 63, v0")
        p(f"v_readfirstlane_b32 s{sW}, v7")
        p(f"v_lshlrev_b32 v{vLIN}, 4, v{vL}")
        for f in self.reduce_setup():
            f()
        for r, src, n in ((sWS, 94, PBASE + 16 * GRP), (sOUT, 96, 917504)):
            p(f"s_mov_b32 s{r}, s{src}")
            p(f"s_mov_b32 s{r+1}, s{src+1}")
            p(f"s_mov_b32 s{r+2}, {n}")
            p(f"s_mov_b32 s{r+3}, 0x20000")
        self.reduce("")
        p("L_end2:")
        p("s_endpgm")
        return p.finalize()


def kernel_text(label, body):
    return f".globl {label}\n.p2align 8\n.type {label},@function\n{label}:\n{body}"


def descriptor(label, vgpr, acc):
    return f""".p2align 6
.amdhsa_kernel {label}
  .amdhsa_next_free_vgpr {vgpr}
  .amdhsa_next_free_sgpr 102
  .amdhsa_accum_offset {acc}
  .amdhsa_group_segment_fixed_size 0
  .amdhsa_kernarg_size 104
  .amdhsa_user_sgpr_count 2
  .amdhsa_user_sgpr_kernarg_segment_ptr 1
  .amdhsa_system_sgpr_workgroup_id_x 1
.end_amdhsa_kernel
"""


NSTAMP = 0


def build(**kw):
    global NSTAMP
    ref = open(f"cdna_kernels/{NAME}.s.ref").read().splitlines() if kw.pop("header", True) else []
    head = [l for l in ref if l.startswith(";") and "@launch" not in l and "Override" not in l
            and "grid=ceil" not in l]
    g0 = Gen(**kw)
    o = g0.o
    k1 = NAME + "_kernel"
    body = g0.head()
    for i, spec in enumerate(o["groups"]):
        kc = dict(kw)
        if isinstance(spec[-1], dict):
            kc.update(spec[1])
            spec = spec[0]
        g = Gen(schedule(spec, o["nmid"], kc.get("tper", o["tper"])), str(i), **kc)
        body += ".p2align 6\n" + g.body()
        NSTAMP = g.nstamp if o["stamps"] else 0
    if o["fused"]:
        head.append("; @launch grid=(256,1,1) block=(256,1,1) lds=163840")
    else:
        head.append(f"; @launch kernel={k1} grid=(256,1,1) block=(256,1,1) lds=163840")
        head.append("; @launch kernel=head_sum_kernel grid=(224,1,1) block=(256,1,1) lds=0")
    s = "\n".join(head) + '\n.amdgcn_target "amdgcn-amd-amdhsa--gfx950"\n.text\n' + kernel_text(k1, body)
    if not o["fused"]:
        s += kernel_text("head_sum_kernel", Gen(**kw).second())
    s += '.section .rodata,"a"\n' + descriptor(k1, 512, 256)
    if not o["fused"]:
        s += descriptor("head_sum_kernel", 128, 128)
    return s


if __name__ == "__main__":
    kw = {}
    out = sys.argv[1]
    for a in sys.argv[2:]:
        k, v = a.split("=", 1)
        try:
            kw[k] = ast.literal_eval(v)
        except (ValueError, SyntaxError):
            kw[k] = v
    open(out, "w").write(build(**kw))
```

```python
import ast, math, struct, sys
from asmlib import Prog

NAME = "concat_heads__gqa_block_cached__mha_block_cached__near_ridge"
SH, RING, RSZ, NSLOT = 0, 65536, 24576, 6
PBASE = 0x100000
FBASE = 0x10000
GRP = 917504

sX, sK, sV, sQ, sO, sWS, sOUT, sDBG = 8, 12, 16, 20, 24, 28, 32, 36
sW, sBR, sH, sB, sRING, sSO, sC, sGRP, sT0, sT1, sT2 = 40, 41, 42, 43, 44, 45, 46, 47, 48, 49, 50
sPT = 52
sINB, sDO, sXW, sJ = 59, 60, 61, 51
sROT = 62
sST = 70
vL = 1
vDX, vDQ, vDK, vDV, vDO = 8, 9, 13, 17, 21
vRX, vRQ, vRK, vRV, vRO = 25, 29, 31, 35, 37
vLIN, vWR, vOA, vOW, vIW, vIR = 41, 42, 43, 47, 6, 8
vMC, vLS = 48, 56
vRDY = 28
ACC = 128
MF = "v_mfma_f32_32x32x16_bf16"


def f32(x):
    return "0x%08x" % struct.unpack("<I", struct.pack("<f", x))[0]


def vr(a, n):
    return f"v[{a}:{a+n-1}]" if n > 1 else f"v{a}"


def ar(a, n):
    return f"a[{a}:{a+n-1}]" if n > 1 else f"a{a}"


def srd(b):
    return f"s[{b}:{b+3}]"


def fl(x):
    return f" {x}" if x else ""


def cls(k, w, v, **kw):
    head = "Q14 K16" if k == 0 else f"Q2 K{k} Q12 K{16-k}"
    mid = f"W{w} V16" if (v == 0 or w == 2) else f"W2 V{v} W{w-2} V{16-v}"
    tail = f" W{16-w}" if w < 16 else ""
    return (f"{head} {mid}{tail}", dict(dict(ksplit=max(8, 16 - w)), **kw))


DEFAULT = dict(
    nt_kv="nt", nt_w="", nt_x="", fused=True, stamps=False, st_fl="sc0 sc1", ld_fl="sc0 sc1",
    rot=True, groups=(cls(0, 6, 0), cls(3, 10, 0), cls(6, 6, 0), cls(8, 10, 8)), gsel="bbr",
    fill_per=40, nmid=12, early_ld=False, la=(4, 5, 4, 4), ksplit=8, pre4=0, more2=3, more4=0,
    flagmode="cnt", poll_fl="sc0 sc1", flag_fl="sc0 sc1", mask_poll=True, poll_sleep=8, jrot=True,
    codepf=21504, tper=1, gray=False, hold=3,
)


def R(c, lo, hi):
    return [f"{c}{i}" for i in range(lo, hi)]


def schedule(spec, nmid, tper=2):
    if isinstance(spec, str):
        issue = []
        cnt = dict(Q=0, K=0, V=0, W=0)
        for tok in spec.split():
            c, n = tok[0], int(tok[1:])
            issue += R(c, cnt[c], cnt[c] + n)
            cnt[c] += n
        assert cnt == dict(Q=14, K=16, V=16, W=16), cnt
    else:
        npre, nv = spec
        issue = R("Q", 0, 2) + R("K", 0, npre) + R("Q", 2, 14) + R("K", npre, 16) + R("W", 0, 2) + \
            R("V", 0, nv) + R("W", 2, 16) + R("V", nv, 16)
    iq, ik = issue.index("Q13"), issue.index("K15")
    ph1 = issue[:iq + 1]
    assert all(u[0] in "QK" for u in ph1)
    npre = sum(u[0] == "K" for u in ph1)
    assert npre <= 12
    rest = issue[iq + 1:ik + 1]
    assert all(u[0] in "KW" for u in rest)
    T = R("T", 0, npre)
    ph2 = []
    if npre > 8:
        ph2, T = T[:4], T[4:]
    shift = 4 if npre > 8 else 0
    for u in rest:
        if u[0] == "W":
            assert int(u[1:]) < 8
            while T and int(T[0][1:]) <= int(u[1:]) + shift + 1:
                ph2.append(T.pop(0))
            assert not ph2 or ph2[-1] != f"T{int(u[1:]) + shift}"
            ph2.append(u)
        else:
            ph2 += [u] + T[:tper]
            T = T[tper:]
    ph2 += T
    after = issue[ik + 1:]
    mid2, held = [], 0
    for u in after:
        if u[0] == "V":
            held += 1
            if held > NSLOT - 4:
                break
        elif len(mid2) < nmid:
            mid2.append(u)
    ph3 = [u for u in after if u not in mid2]
    iv = ph3.index("V15")
    ph3, ph4 = ph3[:iv + 1], ph3[iv + 1:]
    return dict(issue=issue, ph1=ph1, ph2=ph2, mid2=mid2, ph3=ph3, ph4=ph4, npre=npre)


class Gen:
    def __init__(self, sched=None, tag="", **kw):
        self.o = dict(DEFAULT)
        self.o.update(kw)
        self.p = Prog()
        self.sc = sched
        self.tag = tag
        self.issue_q = list(sched["issue"]) if sched else []
        self.free = [(s, []) for s in range(NSLOT)]
        self.unit = {}
        self.eaten = set()
        self.nstamp = 1
        self.buf = 0

    def stamp(self):
        if self.o["stamps"]:
            self.p(("s_memtime" if self.o["stamps"] == "cyc" else "s_memrealtime") + " s[4:5]")
            self.p("s_waitcnt lgkmcnt(0)")
            self.p(f"s_mov_b32 s{sST + self.nstamp}, s4")
            self.nstamp += 1
            assert self.nstamp <= 14

    def dma_items(self):
        name = self.issue_q.pop(0)
        slot, reads = self.free.pop(0)
        kind, u = name[0], int(name[1:])
        r, v, nt = {"Q": (sQ, vDQ, self.o["nt_w"]), "K": (sK, vDK, self.o["nt_kv"]),
                    "V": (sV, vDV, self.o["nt_kv"]), "W": (sO, vDO, self.o["nt_w"])}[kind]
        dm = []
        self.unit[name] = (slot, dm)
        p = self.p

        def head():
            p(f"s_add_u32 m0, s{sRING}, {slot*4096}")
            if kind == "Q":
                p(f"s_lshl_b32 s{sSO}, s{sROT + u // 2}, 12")
                if u % 2:
                    p(f"s_or_b32 s{sSO}, s{sSO}, 0x40000")
            elif kind == "W":
                p(f"s_xor_b32 s{sSO}, s{sXW}, {u}")
                p(f"s_mul_i32 s{sSO}, s{sSO}, {16*896}")
            elif kind == "K":
                p(f"s_mov_b32 s{sSO}, {(u // 4) * 65536 + (u % 4) * 128}")
            else:
                p(f"s_mov_b32 s{sSO}, {u * 16384}")

        def piece(j):
            def f():
                if j == 0:
                    head()
                off = f" offset:{1024*j}" if j else ""
                dm.append(p(f"buffer_load_dwordx4 v{v+j}, {srd(r)}, s{sSO} offen{off}{fl(nt)} lds",
                            after=reads if j == 0 else ()))
            return f
        return [piece(j) for j in range(4)]

    def all_dma(self, la=None):
        la = min(la or self.o["la"], NSLOT)
        out = []
        while self.issue_q and NSLOT - len(self.free) < la:
            out += self.dma_items()
        return out

    def one_more(self):
        def f():
            if self.issue_q and self.free:
                for g in self.dma_items():
                    g()
        return f

    def kreg(self, u, j):
        if self.sc["npre"] > 8:
            return vr(192 + 16 * u + 4 * j, 4) if u < 4 else ar(128 + 16 * (u - 4) + 4 * j, 4)
        return ar(128 + 16 * u + 4 * j, 4)

    def unit_reads(self, name, base):
        kind, u = name[0], int(name[1:])
        p = self.p
        items, done = [], []
        if kind == "T":
            return items, done
        slot, dm = self.unit[name]
        so = slot * 4096

        def ring(text, pieces):
            items.append(lambda: done.append(p(text, after=[dm[j] for j in pieces])))

        def side(text):
            items.append(lambda: p(text))
        if kind in "QV":
            for ks in range(2):
                for mt in range(2):
                    for part in range(2):
                        d = base + (ks * 2 + mt) * 4 + part * 2
                        if kind == "Q":
                            ring(f"ds_read_b64_tr_b16 {vr(d,2)}, v{vRQ+mt} offset:{so + ks*2048 + part*512}",
                                 (2 * ks, 2 * ks + 1))
                        else:
                            ring(f"ds_read_b64_tr_b16 {vr(d,2)}, v{vRV+mt} offset:{so + ks*2048 + part*1024}",
                                 (2 * ks + part,))
                    qt = mt
                    d = base + 16 + (ks * 2 + qt) * 4
                    if kind == "Q":
                        s = 2 * u + ks
                        side(f"ds_read_b128 {vr(d,4)}, v{vRX + s % 4} offset:{(s // 4)*8192 + qt*4096}")
                    else:
                        side(f"ds_read_b128 {vr(d,4)}, v{vLIN} "
                             f"offset:{(u % 4)*16384 + (((u // 4)*2 + ks)*2 + qt)*1024}")
        elif kind == "K":
            for j in range(4):
                d = self.kreg(u, j) if u < self.sc["npre"] else vr(base + 4 * j, 4)
                ring(f"ds_read_b128 {d}, v{vRK+j} offset:{so}", range(4))
        elif kind == "W":
            b = 128 + 16 * u if u < 8 else 16 * (u - 8)
            for part in range(2):
                for t in range(4):
                    ring(f"ds_read_b64_tr_b16 {ar(b + t*4 + part*2, 2)}, v{vRO+t} offset:{so + part*1024}",
                         (part, 2 + part))
        return items, done

    def unit_mfmas(self, name, base):
        kind, u = name[0], int(name[1:])
        out = []
        if kind in "QV":
            for ks in range(2):
                for mt, qt in (((0, 0), (1, 0), (1, 1), (0, 1)) if self.o["gray"] else ((0, 0), (1, 0), (0, 1), (1, 1))):
                    acc = vr(ACC + (mt * 2 + qt) * 16, 16)
                    c = "0" if (u == 0 and ks == 0) else acc
                    out.append(f"{MF} {acc}, {vr(base + (ks*2+mt)*4, 4)}, {vr(base + 16 + (ks*2+qt)*4, 4)}, {c}")
        elif kind == "T" or (kind == "K" and u >= self.sc["npre"]):
            t, cb = u // 4, u % 4
            first = t not in self.started
            self.started.add(t)
            for j in range(4):
                s = 4 * cb + j
                a = self.kreg(u, j) if kind == "T" else vr(base + 4 * j, 4)
                for qt in range(2):
                    acc = vr(ACC + (t * 2 + qt) * 16, 16)
                    c = "0" if (first and j == 0) else acc
                    out.append(f"{MF} {acc}, {a}, {ar((s*2+qt)*4, 4)}, {c}")
        return out

    def window(self, mfmas, early, late, fill):
        p = self.p
        n = len(mfmas)
        if n == 0:
            for f in fill + late + early:
                f()
            return
        gaps = [[] for _ in range(n)]
        lo, mid = 1, n // 2
        for k, f in enumerate(early):
            gaps[lo + k * (mid - lo) // len(early)].append(f)
        for k, f in enumerate(fill):
            gaps[k * n // len(fill)].append(f)
        for k, f in enumerate(late):
            gaps[mid - 1 + k * (n - mid) // len(late)].append(f)
        for m, g in zip(mfmas, gaps):
            p(m)
            for f in g:
                f()

    def release(self, nme, done):
        if nme[0] != "T":
            self.eaten.add(nme)
            self.free.append((self.unit[nme][0], done))

    def run_phase(self, units, fillers=None):
        bufs = (64, 96)
        pend, fillq, prev = [], [], None
        for nme in units:
            base = bufs[self.buf]
            mf = self.unit_mfmas(nme, base)
            if mf and nme[0] != "T":
                self.buf ^= 1
            la = self.o["la"] + (0 if pend else 1)
            if nme[0] == "V" and "V15" in self.unit:
                la = min(la, self.o["hold"])
            early = self.all_dma(la)
            if nme[0] != "T" and not self.unit[nme][1]:
                for f in early:
                    f()
                early = []
            late, done = self.unit_reads(nme, base)
            if nme == "V10":
                late = [lambda: self.p("s_barrier")] + late
            take = fillq[:self.o["fill_per"]]
            fillq = fillq[len(take):]
            self.window(pend, early, late, take)
            if fillers and prev:
                fillq += fillers(prev)
            self.release(nme, done)
            pend, prev = mf, nme
        take = fillq[:self.o["fill_per"]]
        self.window(pend, self.all_dma(), [], take)
        return fillq[len(take):] + (fillers(prev) if fillers else [])

    def stage(self, nme):
        def f():
            held = sum(u[0] == "V" and u not in self.eaten for u in self.unit)
            early = self.all_dma(min(NSLOT, self.o["la"] + 1 + held))
            if not self.unit[nme][1]:
                for g in early:
                    g()
                early = []
            it, d = self.unit_reads(nme, 0)
            for g in it + early:
                g()
            self.release(nme, d)
        return f

    @staticmethod
    def spread(items, stages):
        n, k = len(stages), 0
        for i, f in enumerate(items):
            while k < n and (k + 0.5) * len(items) / n <= i:
                stages[k]()
                k += 1
            f()
        for g in stages[k:]:
            g()

    def head(self):
        p, o = self.p, self.o
        p("s_cmp_ge_u32 s2, 256")
        p("s_cbranch_scc1 L_exit")
        if o["stamps"]:
            p(("s_memtime" if o["stamps"] == "cyc" else "s_memrealtime") + f" s[{sST}:{sST+1}]")
        p("s_lshr_b32 s4, s2, 3")
        p(f"s_lshr_b32 s{sBR}, s4, 4")
        p(f"s_mul_i32 s5, s{sBR}, 40")
        p("s_add_u32 s6, s0, s5")
        p("s_addc_u32 s7, s1, 0")
        p("s_load_dwordx8 s[84:91], s[6:7], 0")
        p("s_load_dwordx2 s[92:93], s[6:7], 32")
        p("s_load_dwordx4 s[96:99], s[0:1], 80")
        p("s_load_dwordx2 s[94:95], s[0:1], 96")
        p(f"s_bfe_u32 s{sB}, s4, 0x30001")
        ng = len(o["groups"])
        if ng > 1:
            if o["gsel"] == "b":
                p(f"s_and_b32 s3, s{sB}, {ng-1}")
            elif o["gsel"] == "br":
                p(f"s_mov_b32 s3, s{sBR}")
            else:
                p(f"s_and_b32 s3, s{sB}, {ng//2-1}")
                p("s_lshl_b32 s3, s3, 1")
                p(f"s_add_u32 s3, s3, s{sBR}")
            for g in range(1, ng):
                p(f"s_cmp_eq_u32 s3, {g}")
                p(f"s_cbranch_scc1 L_class{g}")
        p("s_branch L_class0")
        p("L_exit:")
        p("s_endpgm")
        return p.finalize()

    def prologue(self):
        p, o = self.p, self.o
        if o["codepf"]:
            p(f"s_getpc_b64 s[{sT0}:{sT0+1}]")
            p("v_lshlrev_b32 v2, 7, v0")
            p(f"v_min_u32 v2, {o['codepf'] - 128}, v2")
            p(f"global_load_dword v255, v2, s[{sT0}:{sT0+1}]", hidden=True)
        p("s_and_b32 s3, s2, 7")
        p("s_and_b32 s5, s4, 1")
        p("s_lshl_b32 s3, s3, 1")
        p(f"s_add_u32 s{sH}, s3, s5")
        p("v_lshrrev_b32 v7, 6, v0")
        p(f"v_and_b32 v{vL}, 63, v0")
        p(f"v_readfirstlane_b32 s{sW}, v7")
        p(f"v_lshrrev_b32 v2, 3, v{vL}")
        p(f"v_and_b32 v3, 7, v{vL}")
        p(f"v_lshrrev_b32 v4, 4, v{vL}")
        if o["rot"]:
            p(f"s_lshl_b32 s{sXW}, s{sB}, 1")
            p(f"s_lshl_b32 s{sROT}, s{sB}, 7")
            p(f"s_cmp_eq_u32 s{sB}, 7")
            p(f"s_cselect_b32 s{sROT}, 384, s{sROT}")
        else:
            p(f"s_mov_b32 s{sXW}, 0")
            p(f"s_mov_b32 s{sROT}, 0")
        for i in range(1, 7):
            p(f"s_add_u32 s{sROT+i}, s{sROT+i-1}, 128")
            p(f"s_cmp_eq_u32 s{sROT+i}, 896")
            p(f"s_cselect_b32 s{sROT+i}, 0, s{sROT+i}")
        p(f"s_mul_i32 s{sRING}, s{sW}, {RSZ}")
        p(f"s_add_u32 s{sRING}, s{sRING}, {RING}")
        p(f"s_and_b32 s{sT2}, s{sW}, 1")
        p(f"s_lshl_b32 s{sGRP}, s{sBR}, 3")
        p(f"s_add_u32 s{sGRP}, s{sGRP}, s{sB}")
        p(f"s_lshl_b32 s{sT0}, s{sT2}, 2")
        p(f"v_add_u32 v5, s{sT0}, v4")
        p("v_xor_b32 v5, v5, v3")
        p(f"s_lshl_b32 s{sT0}, s{sW}, 3")
        p(f"v_add_u32 v6, s{sT0}, v2")
        p("v_mul_u32_u24 v6, 896, v6")
        p(f"v_lshl_add_u32 v{vDX}, v5, 4, v6")
        p(f"v_add_u32 v7, {32*896}, v{vDX}")
        p("v_and_b32 v5, 1, v4")
        p("v_lshlrev_b32 v5, 2, v5")
        p("v_xor_b32 v5, v5, v3")
        p(f"s_lshl_b32 s{sT0}, s{sW}, 7")
        p(f"v_lshl_add_u32 v5, v5, 4, s{sT0}")
        p(f"v_lshl_add_u32 v{vDQ}, v2, 13, v5")
        p(f"s_lshl_b32 s{sT0}, s{sXW}, 5")
        p(f"v_xor_b32 v5, s{sT0}, v5")
        p(f"v_lshl_add_u32 v{vDV}, v2, 9, v5")
        for j in range(1, 4):
            p(f"v_add_u32 v{vDQ+j}, {j*(65536-1024)}, v{vDQ}")
        p("v_xor_b32 v5, v3, v4")
        p(f"s_lshl_b32 s{sT0}, s{sW}, 14")
        p(f"v_lshl_add_u32 v5, v5, 4, s{sT0}")
        p(f"v_lshl_add_u32 v{vDK}, v2, 9, v5")
        p(f"v_xor_b32 v5, 64, v{vDK}")
        p(f"v_add_u32 v{vDK+1}, 3072, v5")
        p(f"v_add_u32 v{vDK+2}, 6144, v{vDK}")
        p(f"v_add_u32 v{vDK+3}, 9216, v5")
        p(f"s_mul_i32 s{sT0}, s{sB}, 57344")
        p(f"s_lshl_b32 s{sT1}, s{sW}, 10")
        p(f"s_mov_b32 s{sX+2}, 57344")
        p(f"s_mov_b32 s{sX+3}, 0x20000")
        if o.get("fine"):
            p("s_memrealtime s[100:101]")
        p("s_waitcnt lgkmcnt(0)")
        if o.get("fine"):
            p(f"s_mov_b32 s{sST + self.nstamp}, s100")
            self.nstamp += 1
            self.stamp()
        p(f"s_add_u32 s{sX}, s84, s{sT0}")
        p(f"s_addc_u32 s{sX+1}, s85, 0")
        self.xd = []
        for cb in range(7):
            for hi in range(2):
                p(f"s_add_u32 m0, s{sT1}, {SH + cb*8192 + hi*4096}")
                self.xd.append(p(f"buffer_load_dwordx4 v{7 if hi else vDX}, {srd(sX)}, s{sROT+cb} "
                                 f"offen{fl(o['nt_x'])} lds"))
        p(f"s_lshl_b32 s{sT0}, s{sH}, 9")
        p(f"s_add_u32 s{sQ}, s90, s{sT0}")
        p(f"s_addc_u32 s{sQ+1}, s91, 0")
        p(f"s_sub_u32 s{sQ+2}, 3670016, s{sT0}")
        p(f"s_mov_b32 s{sQ+3}, 0x20000")
        p(f"s_lshl_b32 s{sT0}, s{sB}, 4")
        p(f"s_add_u32 s{sT0}, s{sT0}, s{sH}")
        p(f"s_xor_b32 s{sT1}, s{sBR}, 1")
        p(f"s_lshr_b32 s{sT0}, s{sT0}, s{sT1}")
        p(f"s_lshl_b32 s{sT0}, s{sT0}, 18")
        for r, src in ((sK, 86), (sV, 88)):
            p(f"s_add_u32 s{r}, s{src}, s{sT0}")
            p(f"s_addc_u32 s{r+1}, s{src+1}, 0")
            p(f"s_mov_b32 s{r+2}, 262144")
            p(f"s_mov_b32 s{r+3}, 0x20000")
        p(f"s_mul_i32 s{sT0}, s{sH}, 229376")
        p(f"s_add_u32 s{sO}, s92, s{sT0}")
        p(f"s_addc_u32 s{sO+1}, s93, 0")
        p(f"s_mov_b32 s{sO+2}, 229376")
        p(f"s_mov_b32 s{sO+3}, 0x20000")
        for r, src, n in ((sWS, 94, PBASE + 16 * GRP), (sOUT, 96, 917504), (sDBG, 98, 256)):
            p(f"s_mov_b32 s{r}, s{src}")
            p(f"s_mov_b32 s{r+1}, s{src+1}")
            p(f"s_mov_b32 s{r+2}, {n}")
            p(f"s_mov_b32 s{r+3}, 0x20000")
        p(f"v_lshlrev_b32 v{vLIN}, 4, v{vL}")
        if o["fused"]:
            p(f"s_lshl_b32 s{sDO}, s{sGRP}, 4")
            p(f"s_cmp_lg_u32 s{sH}, 15")
            p(f"s_cbranch_scc1 L_noclr{self.tag}")
            p(f"s_lshl_b32 s3, s{sGRP}, 2")
            p(f"s_add_u32 s3, s3, s{sW}")
            p("s_lshl_b32 s3, s3, 11")
            p(f"s_add_u32 s3, s3, {FBASE}")
            p(f"v_lshrrev_b32 v5, 2, v{vL}")
            p(f"v_and_b32 v6, 48, v{vLIN}")
            p("v_lshl_add_u32 v5, v5, 7, v6")
            for k in range(4):
                p(f"v_mov_b32 v{64+k}, 0")
            p(f"buffer_store_dwordx4 v[64:67], v5, {srd(sWS)}, s3 offen sc0 sc1", hidden=True)
            p(f"L_noclr{self.tag}:")
        first = self.all_dma(max(o["la"], 2))
        for f in first[:8]:
            f()
        L = []
        q = lambda t: L.append(lambda: p(t))
        for j in range(1, 4):
            q(f"v_add_u32 v{vDV+j}, {j*3072}, v{vDV}")
        q(f"v_bfe_u32 v5, v{vL}, 2, 2")
        q("v_xor_b32 v5, v5, v4")
        q(f"v_add_u32 v5, s{sT2}, v5")
        q("v_and_b32 v5, 3, v5")
        q(f"v_and_b32 v6, 48, v{vLIN}")
        q("v_lshl_add_u32 v5, v5, 6, v6")
        q("v_mul_u32_u24 v6, 896, v4")
        q(f"s_mul_i32 s{sT0}, s{sW}, 224")
        q(f"s_lshl_b32 s{sT1}, s{sT2}, 5")
        q(f"s_sub_u32 s{sT0}, s{sT0}, s{sT1}")
        q(f"v_add3_u32 v{vDO}, v5, v6, s{sT0}")
        for j in range(1, 4):
            q(f"v_add_u32 v{vDO+j}, {j*(3584-1024)}, v{vDO}")
        q(f"s_mov_b32 s{sC}, {f32(math.log2(math.e) / 16)}")
        q(f"v_lshrrev_b32 v2, 5, v{vL}")
        q(f"v_bfe_u32 v3, v{vL}, 1, 3")
        q("v_xor_b32 v3, v3, v2")
        q(f"v_and_b32 v5, 31, v{vL}")
        q("v_lshlrev_b32 v5, 7, v5")
        q(f"v_lshl_add_u32 v{vRX}, v3, 4, v5")
        for j in range(1, 4):
            q(f"v_xor_b32 v{vRX+j}, {j*32}, v{vRX}")
        for j in range(4):
            q(f"v_add_u32 v{vRK+j}, s{sRING}, v{vRX+j}")
        q(f"v_and_b32 v3, 16, v{vLIN}")
        q(f"v_bfe_u32 v5, v{vL}, 1, 1")
        q("v_lshl_add_u32 v3, v5, 3, v3")
        q("v_and_b32 v5, 1, v4")
        q("v_lshl_add_u32 v3, v5, 5, v3")
        q(f"v_add_u32 v3, s{sRING}, v3")
        q(f"v_bfe_u32 v5, v{vL}, 2, 2")
        q(f"v_bfe_u32 v6, v{vL}, 3, 1")
        q("v_lshl_add_u32 v6, v6, 6, v3")
        q("v_lshl_add_u32 v6, v5, 7, v6")
        q(f"v_lshl_add_u32 v{vRQ}, v2, 10, v6")
        q(f"v_lshl_add_u32 v{vRV}, v2, 9, v6")
        q(f"v_xor_b32 v{vRQ+1}, 64, v{vRQ}")
        q(f"v_xor_b32 v{vRV+1}, 64, v{vRV}")
        q("v_mul_u32_u24 v6, 320, v5")
        q("v_add_u32 v6, v6, v3")
        q(f"v_lshl_add_u32 v{vRO}, v2, 11, v6")
        for t in range(1, 4):
            q(f"v_xor_b32 v{vRO+t}, {t*64}, v{vRO}")
        q(f"s_lshl_b32 s{sT0}, s{sW}, 14")
        q(f"v_add_u32 v{vWR}, s{sT0}, v{vLIN}")
        q(f"s_lshl_b32 s{sT1}, s{sT2}, 10")
        q(f"v_add_u32 v{vOA}, s{sT1}, v{vLIN}")
        q(f"v_xor_b32 v{vOA+1}, 0x400, v{vOA}")
        q(f"s_add_u32 s{sT0}, s{sT0}, 8192")
        q(f"v_lshl_add_u32 v{vIR}, v{vL}, 3, s{sT0}")
        q(f"s_lshl_b32 s{sT0}, s{sW}, 9")
        q(f"s_add_u32 s{sT0}, s{sT0}, 8192")
        q(f"v_lshl_add_u32 v{vIW}, v{vL}, 3, s{sT0}")
        q(f"s_mul_i32 s3, s{sGRP}, {GRP}")
        q(f"s_lshl_b32 s4, s{sH}, 11")
        q("s_add_u32 s3, s3, s4")
        q(f"s_add_u32 s3, s3, {PBASE}")
        q(f"s_lshr_b32 s4, s{sW}, 1")
        q("s_mul_i32 s4, s4, 7")
        q(f"s_mul_i32 s5, s{sT2}, 3")
        q("s_add_u32 s4, s4, s5")
        q(f"s_lshl_b32 s7, s{sT2}, 1")
        q("v_mov_b32 v4, 0")
        for t in range(4):
            q(f"s_add_u32 s5, s{sT2}, {t}")
            q("s_and_b32 s5, s5, 3")
            q("s_add_u32 s5, s5, s4")
            q("s_lshr_b32 s6, s5, 1")
            q("s_lshl_b32 s6, s6, 2")
            q("s_and_b32 s5, s5, 1")
            q("s_add_u32 s5, s5, s6")
            q("s_add_u32 s5, s5, s7")
            for qi in range(2 if t < 3 else 1):
                if qi:
                    q("s_xor_b32 s5, s5, 2")
                q("s_lshl_b32 s6, s5, 15")
                q(f"s_add_u32 s{sPT + 2*t + qi}, s6, s3")
                if o["fused"] and o["flagmode"] != "prod":
                    q("s_lshl_b32 s6, s5, 8")
                    q(f"v_writelane_b32 v4, s6, {2*(2*t+qi)}")
                    q("s_add_u32 s6, s6, 128")
                    q(f"v_writelane_b32 v4, s6, {2*(2*t+qi)+1}")
        for f in L:
            f()
        p("s_barrier", after=self.xd)
        self.stamp()
        if o["fused"]:
            p(f"s_cmp_lg_u32 s{sH}, 15")
            p(f"s_cbranch_scc1 L_noset{self.tag}")
            p(f"s_lshl_b32 s3, s{sW}, 2")
            p(f"s_add_u32 s3, s3, s{sDO}")
            p("v_mov_b32 v2, 0")
            p("v_mov_b32 v3, 1")
            p("s_mov_b64 exec, 1")
            p(f"buffer_store_dword v3, v2, {srd(sDBG)}, s3 offen sc0 sc1", hidden=True)
            p("s_mov_b64 exec, -1")
            p(f"L_noset{self.tag}:")
        for f in first[8:]:
            f()

    def pack(self, addr):
        p = self.p
        out = []
        for mt, qt in ((0, 0), (1, 0), (0, 1), (1, 1)):
            for ks in range(2):
                src = ACC + (mt * 2 + qt) * 16 + ks * 8
                d = 64 + ((mt * 2 + qt) * 2 + ks) * 4
                out.append(([f"v_cvt_pk_bf16_f32 v{d+k}, v{src+2*k}, v{src+2*k+1}" for k in range(4)],
                            f"ds_write_b128 v{addr}, {vr(d,4)} offset:{((2*mt+ks)*2+qt)*1024}"))
        return out

    def softmax_tile(self, t):
        p = self.p
        out = []
        for qt in range(2):
            s = ACC + (t * 2 + qt) * 16
            m, l = vMC + t * 2 + qt, vLS + t * 2 + qt
            seq = [f"v_max3_f32 v{m}, v{s}, v{s+1}, v{s+2}"]
            for k in range(3, 15, 2):
                seq.append(f"v_max3_f32 v{m}, v{m}, v{s+k}, v{s+k+1}")
            seq.append(f"v_max_f32 v{m}, v{m}, v{s+15}")
            seq.append(f"v_mul_f32 v{m}, s{sC}, v{m}")
            for k in range(16):
                seq.append(f"v_fma_f32 v{s+k}, v{s+k}, s{sC}, -v{m}")
            for k in range(16):
                seq.append(f"v_exp_f32 v{s+k}, v{s+k}")
                if k == 2:
                    seq.append(f"v_add_f32 v{l}, v{s}, v{s+1}")
                elif k > 2:
                    seq.append(f"v_add_f32 v{l}, v{l}, v{s+k-1}")
            seq.append(f"v_add_f32 v{l}, v{l}, v{s+15}")
            out += [(lambda x=x: p(x)) for x in seq]
        return out

    def softmax_finish(self):
        p = self.p
        T = 64
        L = []
        q = lambda t: L.append(lambda: p(t))
        w1, w2 = [], []
        for qt in range(2):
            m = [vMC + t * 2 + qt for t in range(4)]
            l = [vLS + t * 2 + qt for t in range(4)]
            M, S = T + qt, T + 2 + qt
            q(f"v_max3_f32 v{M}, v{m[0]}, v{m[1]}, v{m[2]}")
            q(f"v_max_f32 v{M}, v{M}, v{m[3]}")
            for t in range(4):
                q(f"v_sub_f32 v{T+4+t}, v{m[t]}, v{M}")
            for t in range(4):
                q(f"v_exp_f32 v{T+4+t}, v{T+4+t}")
            q(f"v_mul_f32 v{S}, v{l[0]}, v{T+4}")
            for t in range(1, 4):
                q(f"v_fmac_f32 v{S}, v{l[t]}, v{T+4+t}")
        q(f"v_permlane32_swap_b32 v{T}, v{T+1}")
        q(f"v_permlane32_swap_b32 v{T+2}, v{T+3}")
        q(f"v_max_f32 v{T+8}, v{T}, v{T+1}")
        q(f"v_sub_f32 v{T+4}, v{T}, v{T+8}")
        q(f"v_sub_f32 v{T+5}, v{T+1}, v{T+8}")
        q(f"v_exp_f32 v{T+4}, v{T+4}")
        q(f"v_exp_f32 v{T+5}, v{T+5}")
        q(f"v_mul_f32 v{T+9}, v{T+2}, v{T+4}")
        q(f"v_fmac_f32 v{T+9}, v{T+3}, v{T+5}")
        for r in range(4):
            L.append(lambda r=r: w1.append(p(f"ds_write_b64 v{vIW}, {vr(T+8,2)} offset:{r*16384}")))
        L.append(lambda: p("s_barrier", after=w1))
        for r in range(4):
            q(f"ds_read_b64 {vr(T+10+2*r,2)}, v{vIR} offset:{r*512}")
        q(f"v_max3_f32 v{T}, v{T+10}, v{T+12}, v{T+14}")
        q(f"v_max_f32 v{T}, v{T}, v{T+16}")
        for r in range(4):
            q(f"v_sub_f32 v{T+4+r}, v{T+10+2*r}, v{T}")
        for r in range(4):
            q(f"v_exp_f32 v{T+4+r}, v{T+4+r}")
        q(f"v_mul_f32 v{T+1}, v{T+11}, v{T+4}")
        for r in range(1, 4):
            q(f"v_fmac_f32 v{T+1}, v{T+11+2*r}, v{T+4+r}")
        q(f"v_log_f32 v{T+1}, v{T+1}")
        q(f"v_add_f32 v{T}, v{T}, v{T+1}")
        q(f"v_mov_b32 v{T+1}, v{T}")
        q(f"v_permlane32_swap_b32 v{T}, v{T+1}")
        F = T + 20
        for k in range(8):
            q(f"v_sub_f32 v{F + 2*k}, v{vMC + k}, v{T + k % 2}")
        for k in range(8):
            q(f"v_exp_f32 v{F+2*k}, v{F+2*k}")
        P, n = 104, 0
        for t in range(4):
            for qt in range(2):
                s = ACC + (t * 2 + qt) * 16
                f = F + 2 * (t * 2 + qt)
                for k in range(8):
                    q(f"v_pk_mul_f32 {vr(s+2*k,2)}, {vr(s+2*k,2)}, {vr(f,2)} op_sel_hi:[1,0]")
                for ks in range(2):
                    d = P + (n % 4) * 4
                    n += 1
                    for k in range(4):
                        q(f"v_cvt_pk_bf16_f32 v{d+k}, v{s+ks*8+2*k}, v{s+ks*8+2*k+1}")
                    t_ = f"ds_write_b128 v{vWR}, {vr(d,4)} offset:{((t*2+ks)*2+qt)*1024}"
                    L.append(lambda t_=t_: w2.append(p(t_)))
        return L, w2

    def out_proj(self, wq, extra):
        p, o = self.p, self.o
        ks = o["ksplit"]
        assert 8 <= ks <= 16
        units = [(0, 0), (1, 0), (2, 0), (3, 0), (0, 1), (1, 1), (2, 1)]
        sf = fl(o["st_fl"]) if o["fused"] else ""

        def oreg(s, qi):
            return (240 + (s % 2) * 8 if s < ks else 64 + (s - ks) * 8) + qi * 4

        def oread(s):
            return [(lambda qi=qi: p(f"ds_read_b128 {vr(oreg(s, qi), 4)}, v{vOA+qi} "
                                     f"offset:{(s // 4)*16384 + (s % 4)*2048}")) for qi in range(2)]

        def mfma(k, s):
            t, qi = units[k]
            b = 128 + 16 * s if s < 8 else 16 * (s - 8)
            acc = vr(ACC + 16 * k, 16)
            return f"{MF} {acc}, {ar(b + t*4, 4)}, {vr(oreg(s, qi), 4)}, {'0' if s == 0 else acc}"

        def finish(k):
            t, qi = units[k]
            acc, d = ACC + 16 * k, (48, 56, 32)[k % 3]
            L = []
            for half in range(2):
                for j in range(4):
                    L.append(f"v_cvt_pk_bf16_f32 v{d+half*4+j}, v{acc+half*8+2*j}, v{acc+half*8+2*j+1}")
                off = " offset:1024" if half else ""
                L.append(f"buffer_store_dwordx4 {vr(d+half*4,4)}, v{vLIN}, {srd(sWS)}, s{sPT+2*t+qi} offen{off}{sf}")
            return L
        for f in oread(0):
            f()
        tail = [f for s in range(ks, 16) for f in oread(s)]
        wq = list(wq)
        for s in range(ks):
            late = oread(s + 1) if s + 1 < ks else []
            n = (len(tail) + ks - s - 1) // (ks - s)
            late, tail = late + tail[:n], tail[n:]
            early, rel = self.all_dma(), []
            for _ in range((len(wq) + ks - s - 1) // (ks - s) if len(wq) >= ks - s else min(1, len(wq))):
                u = wq.pop(0)
                assert int(u[1:]) > s
                if not self.unit.get(u, (0, []))[1]:
                    for f in early + self.all_dma(NSLOT):
                        f()
                    early = []
                it, d = self.unit_reads(u, 0)
                late += it
                rel.append((u, d))
            fill, extra = extra[:6], extra[6:]
            self.window([mfma(k, s) for k in range(7)], early, late, fill)
            for u, d in rel:
                self.release(u, d)
        assert not wq and not self.issue_q
        for f in extra:
            f()
        prev = []
        for k in range(7):
            chain = [mfma(k, s) for s in range(ks, 16)]
            for i, m in enumerate(chain):
                p(m)
                if i >= 1:
                    n = (len(prev) + len(chain) - i - 1) // (len(chain) - i)
                    for t in prev[:n]:
                        p(t)
                    prev = prev[n:]
            for t in prev:
                p(t)
            prev = finish(k)
        for t in prev:
            p(t)

    def reduce_setup(self):
        L = []
        q = lambda t: L.append(lambda: self.p(t))
        q(f"s_mul_i32 s6, s{sGRP}, {GRP}")
        q(f"s_lshl_b32 s4, s{sJ}, 1")
        q(f"s_lshr_b32 s5, s{sW}, 1")
        q("s_add_u32 s4, s4, s5")
        q("s_lshl_b32 s4, s4, 15")
        q("s_add_u32 s6, s6, s4")
        q(f"s_and_b32 s4, s{sW}, 1")
        q("s_lshl_b32 s4, s4, 10")
        q("s_add_u32 s6, s6, s4")
        q(f"s_add_u32 s6, s6, {PBASE}")
        q(f"s_lshl_b32 s7, s{sB}, 1")
        q(f"s_and_b32 s4, s{sJ}, 1")
        q("s_add_u32 s7, s7, s4")
        q(f"s_mul_i32 s7, s7, {32*1792}")
        q(f"s_mul_i32 s4, s{sBR}, 896")
        q("s_add_u32 s7, s7, s4")
        q(f"s_lshr_b32 s4, s{sJ}, 1")
        q("s_lshl_b32 s4, s4, 7")
        q("s_add_u32 s7, s7, s4")
        q(f"s_lshl_b32 s4, s{sW}, 5")
        q("s_add_u32 s7, s7, s4")
        q(f"v_and_b32 v2, 31, v{vL}")
        q("v_mul_u32_u24 v2, 1792, v2")
        q(f"v_lshrrev_b32 v3, 5, v{vL}")
        q("v_lshl_add_u32 v2, v3, 4, v2")
        return L

    def gather(self, flags):
        p, g = self.p, self.tag
        D = 64
        p("s_mov_b32 s5, 100000")
        p(f"s_mov_b32 s{sT0}, 0")
        p(f"L_poll{g}:")
        p(f"buffer_load_dword v3, v9, {srd(sWS)}, s{sINB} offen sc0 sc1")
        p("s_sub_u32 s5, s5, 1")
        p("s_cmp_eq_u32 s5, 0")
        p("s_waitcnt vmcnt(0)")
        p(f"s_cbranch_scc1 L_polled{g}")
        p("v_cmp_eq_u32 vcc, 1, v3")
        p(f"s_andn2_b32 s{sT1}, vcc_lo, s{sT0}")
        p(f"s_cbranch_scc0 L_poll{g}")
        p(f"s_or_b32 s{sT0}, s{sT0}, s{sT1}")
        for i in range(16):
            p(f"s_bitcmp0_b32 s{sT1}, {i}")
            p(f"s_cbranch_scc1 L_skip{g}_{i}")
            p(f"s_add_u32 s4, s6, {2048*i}")
            p(f"buffer_load_dwordx4 {vr(D+4*i,4)}, v{vLIN}, {srd(sWS)}, s4 offen{fl(flags)}", hidden=True)
            p(f"L_skip{g}_{i}:")
        p(f"s_cmp_lg_u32 s{sT0}, -1")
        p(f"s_cbranch_scc1 L_poll{g}")
        p(f"L_polled{g}:")
        p("s_waitcnt vmcnt(0)")

    def reduce(self, flags, loaded=False):
        p = self.p
        D = 64
        for i in range(0 if loaded else 16):
            off = " offset:2048" if i % 2 else ""
            p(f"buffer_load_dwordx4 {vr(D+4*i,4)}, v{vLIN}, {srd(sWS)}, s6 offen{off}{fl(flags)}")
            if i % 2 and i < 15:
                p("s_add_u32 s6, s6, 4096")
        A, T = 48, 56
        for i in range(16):
            for j in range(4):
                dst = A + 2 * j if i == 0 else T + 2 * j
                p(f"v_lshlrev_b32 v{dst}, 16, v{D+4*i+j}")
                p(f"v_and_b32 v{dst+1}, 0xffff0000, v{D+4*i+j}")
            if i:
                for j in range(4):
                    p(f"v_pk_add_f32 {vr(A+2*j,2)}, {vr(A+2*j,2)}, {vr(T+2*j,2)}")
        for j in range(4):
            p(f"v_cvt_pk_bf16_f32 v{T+j}, v{A+2*j}, v{A+2*j+1}")
        p(f"buffer_store_dwordx4 {vr(T,4)}, v2, {srd(sOUT)}, s7 offen{fl(self.o.get('out_fl', ''))}")

    def handoff_setup(self):
        L = []
        q = lambda t: L.append(lambda: self.p(t))
        q(f"s_mul_i32 s{sJ}, s{sGRP}, {2 if self.o['jrot'] else 0}")
        q(f"s_add_u32 s{sJ}, s{sJ}, s{sH}")
        q(f"s_and_b32 s{sJ}, s{sJ}, 15")
        q(f"s_lshl_b32 s3, s{sGRP}, 13")
        q(f"s_add_u32 s3, s3, {FBASE}")
        q(f"s_lshl_b32 s4, s{sH}, 2")
        q(f"s_add_u32 s5, s4, s{sW}")
        q("s_lshl_b32 s5, s5, 7")
        q("v_mov_b32 v5, 1")
        q("v_mov_b32 v7, 0")
        q(f"v_and_b32 v9, 15, v{vL}")
        if self.o["flagmode"] != "prod":
            q(f"s_lshl_b32 s5, s{sJ}, 2")
            q(f"s_add_u32 s5, s5, s{sW}")
            q("s_lshl_b32 s5, s5, 7")
            q(f"s_add_u32 s{sINB}, s3, s5")
            if self.o["flagmode"] == "cons":
                q("s_add_u32 s3, s3, s4")
            q("v_lshlrev_b32 v9, 2, v9")
        else:
            q(f"s_and_b32 s4, s{sJ}, 14")
            q(f"s_lshr_b32 s{sINB}, s{sW}, 1")
            q(f"s_add_u32 s4, s4, s{sINB}")
            q("s_lshl_b32 s4, s4, 1")
            q(f"s_and_b32 s{sINB}, s{sJ}, 1")
            q(f"s_add_u32 s4, s4, s{sINB}")
            q("s_mul_i32 s4, s4, 37")
            q("s_lshr_b32 s4, s4, 8")
            q("s_lshl_b32 s4, s4, 7")
            q(f"s_add_u32 s{sINB}, s3, s4")
            q("s_add_u32 s3, s3, s5")
            q("v_lshlrev_b32 v9, 9, v9")
        q(f"v_and_b32 v{vRDY}, v{vRDY}, v{vRDY+1}")
        q(f"v_and_b32 v{vRDY+2}, v{vRDY+2}, v{vRDY+3}")
        q(f"v_and_b32 v{vRDY}, v{vRDY}, v{vRDY+2}")
        return L

    def handoff(self):
        p, g = self.p, self.tag
        p(f"v_cmp_eq_u32 vcc, 1, v{vRDY}")
        p("s_mov_b32 s5, 100000")
        p("s_waitcnt vmcnt(0)")
        p(f"s_cbranch_vccnz L_go{g}")
        p(f"L_ready{g}:")
        p(f"buffer_load_dwordx4 {vr(vRDY,4)}, v7, {srd(sDBG)}, s{sDO} offen sc0 sc1")
        p("s_sub_u32 s5, s5, 1")
        p("s_cmp_eq_u32 s5, 0")
        p("s_waitcnt vmcnt(0)")
        p(f"s_cbranch_scc1 L_go{g}")
        p(f"v_and_b32 v{vRDY}, v{vRDY}, v{vRDY+1}")
        p(f"v_and_b32 v{vRDY+2}, v{vRDY+2}, v{vRDY+3}")
        p(f"v_and_b32 v{vRDY}, v{vRDY}, v{vRDY+2}")
        p(f"v_cmp_eq_u32 vcc, 1, v{vRDY}")
        p(f"s_cbranch_vccz L_ready{g}")
        p(f"L_go{g}:")
        p("s_mov_b64 exec, " + ("0x3fff" if self.o["flagmode"] != "prod" else "1"))
        if self.o["flagmode"] == "cnt" or self.o.get("flag_atomic"):
            p(f"buffer_atomic_add v5, v4, {srd(sWS)}, s3 offen sc1")
        else:
            p(f"buffer_store_dword v5, v4, {srd(sWS)}, s3 offen{fl(self.o['flag_fl'])}")
        p("s_mov_b64 exec, -1")

    def poll(self):
        p, g = self.p, self.tag
        cnt = self.o["flagmode"] == "cnt"
        p("s_mov_b32 s5, 100000")
        p("s_mov_b64 exec, " + ("1" if cnt else "0xffff"))
        p(f"L_poll{g}:")
        if self.o.get("poll_sleep"):
            p(f"s_sleep {self.o['poll_sleep']}")
        p(f"buffer_load_dword v3, v9, {srd(sWS)}, s{sINB} offen{fl(self.o['poll_fl'])}")
        p("s_sub_u32 s5, s5, 1")
        p("s_cmp_eq_u32 s5, 0")
        p("s_waitcnt vmcnt(0)")
        p(f"s_cbranch_scc1 L_polled{g}")
        p(f"v_cmp_ne_u32 vcc, {16 if cnt else 1}, v3")
        if self.o["mask_poll"]:
            p("s_and_b64 exec, exec, vcc")
            p(f"s_cbranch_scc1 L_poll{g}")
        else:
            p(f"s_cbranch_vccnz L_poll{g}")
        p(f"L_polled{g}:")
        p("s_mov_b64 exec, -1")

    def dump_stamps(self):
        p = self.p
        if not self.o["stamps"]:
            return
        p("s_waitcnt vmcnt(0)")
        self.stamp()
        p("s_lshl_b32 s3, s2, 2")
        p(f"s_add_u32 s3, s3, s{sW}")
        p("s_lshl_b32 s3, s3, 6")
        p("v_mov_b32 v2, 0")
        p("s_mov_b64 exec, 1")
        for k in range(self.nstamp):
            p(f"v_mov_b32 v3, s{sST + k}")
            p(f"buffer_store_dword v3, v2, {srd(sWS)}, s3 offen offset:{4*k}")

    def body(self):
        p, o, sc, g = self.p, self.o, self.sc, self.tag
        self.started = set()
        p(f"L_class{g}:")
        self.prologue()
        self.run_phase(sc["ph1"])
        self.stamp()
        pk = self.pack(vWR)
        for cv, _ in pk:
            for t in cv:
                p(t)
        p("s_barrier")
        w = [p(t) for _, t in pk]
        self.one_more()()
        p("s_barrier", after=w)
        for s in range(16):
            for qt in range(2):
                p(f"ds_read_b128 {ar((s*2+qt)*4, 4)}, v{vLIN} offset:{SH + (s // 4)*16384 + ((s % 4)*2 + qt)*1024}")
            if s == 7:
                self.one_more()()
        self.stamp()
        left = {t: 4 for t in range(4)}

        def fillers(nme):
            if nme[0] == "W":
                return []
            t = int(nme[1:]) // 4
            left[t] -= 1
            return self.softmax_tile(t) if left[t] == 0 else []
        rest = self.run_phase(sc["ph2"], fillers)
        self.stamp()
        L, w = self.softmax_finish()
        self.spread(rest + L, [self.stage(u) for u in sc["mid2"]] + [self.one_more() for _ in range(o["more2"])])
        p("s_barrier", after=w)
        self.stamp()
        if o["fused"]:
            p("v_mov_b32 v2, 0")
            p(f"buffer_load_dwordx4 {vr(vRDY,4)}, v2, {srd(sDBG)}, s{sDO} offen")
        self.run_phase(sc["ph3"])
        self.stamp()
        w, L = [], []
        for cv, t in self.pack(vWR):
            L += [(lambda x=x: p(x)) for x in cv]
            L.append(lambda t=t: w.append(p(t)))
        wq = list(sc["ph4"])
        pre, wq = wq[:o["pre4"]], wq[o["pre4"]:]
        self.spread(L, [self.one_more() for _ in range(o["more4"])])
        for u in pre:
            self.stage(u)()
        p("s_barrier", after=w)
        self.stamp()
        extra = (self.handoff_setup() + self.reduce_setup()) if o["fused"] else []
        self.out_proj(wq, extra)
        self.stamp()
        if o["fused"]:
            self.handoff()
            self.stamp()
            if o["stamps"]:
                p(f"s_mov_b32 s{sST + self.nstamp}, s4")
            p(f"s_cmp_ge_u32 s{sJ}, 14")
            p(f"s_cbranch_scc1 L_fin{g}")
            if o["early_ld"]:
                self.gather(o["ld_fl"])
            else:
                self.poll()
            if o["stamps"]:
                self.stamp()
                self.nstamp -= 1
            self.reduce(o["ld_fl"], o["early_ld"])
            p(f"L_fin{g}:")
            if o["stamps"]:
                self.nstamp += 1
        self.dump_stamps()
        p("s_endpgm")
        if o.get("fake16"):
            self.fake16(o["fake16"])
        return p.finalize()

    def fake16(self, mode):
        import re
        from asmlib import Ins
        out, n, nb = [], 0, 0
        for i in self.p.ins:
            nb += i.text == "s_barrier"
            ph = {0: 1, 1: 1, 2: 1, 3: 2, 4: 2, 5: 3, 6: 3}.get(nb, 4)
            if i.kind == "mfma" and mode.startswith("drop") and (mode == "drop" or str(ph) in mode):
                continue
            if i.kind == "mfma" and (mode == "all" or (mode.startswith("ph") and str(ph) in mode)):
                m = re.match(r"\S+ v\[(\d+):\d+\], (\S+), (\S+), (\S+)", i.text)
                for h in range(2):
                    a = int(m.group(1)) + 4 * ((2 * n + h) % 4)
                    c = "0" if m.group(4) == "0" else vr(a, 4)
                    out.append(Ins(f"v_mfma_f32_16x16x32_bf16 {vr(a,4)}, {m.group(2)}, {m.group(3)}, {c}"))
                n += 1
            else:
                out.append(i)
        self.p.ins = out

    def second(self):
        p = self.p
        p("s_cmp_ge_u32 s2, 224")
        p("s_cbranch_scc1 L_end2")
        p("s_load_dwordx2 s[96:97], s[0:1], 80")
        p("s_load_dwordx2 s[94:95], s[0:1], 96")
        p(f"s_and_b32 s{sGRP}, s2, 15")
        p(f"s_lshr_b32 s{sJ}, s2, 4")
        p(f"s_lshr_b32 s{sBR}, s{sGRP}, 3")
        p(f"s_and_b32 s{sB}, s{sGRP}, 7")
        p("v_lshrrev_b32 v7, 6, v0")
        p(f"v_and_b32 v{vL}, 63, v0")
        p(f"v_readfirstlane_b32 s{sW}, v7")
        p(f"v_lshlrev_b32 v{vLIN}, 4, v{vL}")
        for f in self.reduce_setup():
            f()
        for r, src, n in ((sWS, 94, PBASE + 16 * GRP), (sOUT, 96, 917504)):
            p(f"s_mov_b32 s{r}, s{src}")
            p(f"s_mov_b32 s{r+1}, s{src+1}")
            p(f"s_mov_b32 s{r+2}, {n}")
            p(f"s_mov_b32 s{r+3}, 0x20000")
        self.reduce("")
        p("L_end2:")
        p("s_endpgm")
        return p.finalize()


def kernel_text(label, body):
    return f".globl {label}\n.p2align 8\n.type {label},@function\n{label}:\n{body}"


def descriptor(label, vgpr, acc):
    return f""".p2align 6
.amdhsa_kernel {label}
  .amdhsa_next_free_vgpr {vgpr}
  .amdhsa_next_free_sgpr 102
  .amdhsa_accum_offset {acc}
  .amdhsa_group_segment_fixed_size 0
  .amdhsa_kernarg_size 104
  .amdhsa_user_sgpr_count 2
  .amdhsa_user_sgpr_kernarg_segment_ptr 1
  .amdhsa_system_sgpr_workgroup_id_x 1
.end_amdhsa_kernel
"""


NSTAMP = 0


def build(**kw):
    global NSTAMP
    ref = open(f"cdna_kernels/{NAME}.s.ref").read().splitlines() if kw.pop("header", True) else []
    head = [l for l in ref if l.startswith(";") and "@launch" not in l and "Override" not in l
            and "grid=ceil" not in l]
    g0 = Gen(**kw)
    o = g0.o
    k1 = NAME + "_kernel"
    body = g0.head()
    for i, spec in enumerate(o["groups"]):
        kc = dict(kw)
        if isinstance(spec[-1], dict):
            kc.update(spec[1])
            spec = spec[0]
        g = Gen(schedule(spec, o["nmid"], kc.get("tper", o["tper"])), str(i), **kc)
        body += ".p2align 6\n" + g.body()
        NSTAMP = g.nstamp if o["stamps"] else 0
    if o["fused"]:
        head.append("; @launch grid=(256,1,1) block=(256,1,1) lds=163840")
    else:
        head.append(f"; @launch kernel={k1} grid=(256,1,1) block=(256,1,1) lds=163840")
        head.append("; @launch kernel=head_sum_kernel grid=(224,1,1) block=(256,1,1) lds=0")
    s = "\n".join(head) + '\n.amdgcn_target "amdgcn-amd-amdhsa--gfx950"\n.text\n' + kernel_text(k1, body)
    if not o["fused"]:
        s += kernel_text("head_sum_kernel", Gen(**kw).second())
    s += '.section .rodata,"a"\n' + descriptor(k1, 512, 256)
    if not o["fused"]:
        s += descriptor("head_sum_kernel", 128, 128)
    return s


if __name__ == "__main__":
    kw = {}
    out = sys.argv[1]
    for a in sys.argv[2:]:
        k, v = a.split("=", 1)
        try:
            kw[k] = ast.literal_eval(v)
        except (ValueError, SyntaxError):
            kw[k] = v
    open(out, "w").write(build(**kw))
```

```python
import ast, math, re, struct, sys
from asmlib import Prog, Ins

NAME = "concat_heads__gqa_block_cached__mha_block_cached__near_ridge"
SH, RING, RSZ, NSLOT = 0, 65536, 24576, 6
XPOS = (0, 2, 4, 6, 1, 3, 5)
PBASE = 0x100000
FBASE = 0x10000
GRP = 917504

sX, sK, sV, sQ, sO, sWS, sOUT, sDBG = 8, 12, 16, 20, 24, 28, 32, 36
sW, sBR, sH, sB, sRING, sSO, sC, sGRP, sT0, sT1, sT2, sJ = 40, 41, 42, 43, 44, 45, 46, 47, 48, 49, 50, 51
sPT = 52
sINB, sDO, sXW = 59, 60, 61
sROT = 62
sW128, sCLS = 69, 84
sST = 70
vL, vFL, vIW, vIR = 1, 4, 6, 8
vDX, vDQ, vDK, vDV, vDO = 8, 9, 13, 17, 21
vRX, vRQ, vRK, vRV, vRO = 25, 29, 31, 35, 37
vLIN, vWR, vPA, vQA = 41, 42, 43, 45
vQB, vWA, vWB = 13, 16, 12
vMC, vLS = 48, 56
vRDY = 28
ACC = 128
MF = "v_mfma_f32_32x32x16_bf16"
SPLIT = "; class code"


def f32(x):
    return "0x%08x" % struct.unpack("<I", struct.pack("<f", x))[0]


def vr(a, n):
    return f"v[{a}:{a+n-1}]" if n > 1 else f"v{a}"


def ar(a, n):
    return f"a[{a}:{a+n-1}]" if n > 1 else f"a{a}"


def srd(b):
    return f"s[{b}:{b+3}]"


def fl(x):
    return f" {x}" if x else ""


def R(c, lo, hi):
    return [f"{c}{i}" for i in range(lo, hi)]


def cls(k, w, v, **kw):
    head = "Q14 K16" if k == 0 else f"Q2 K{k} Q12 K{16-k}"
    mid = f"W{w} V16" if (v == 0 or w == 2) else f"W2 V{v} W{w-2} V{16-v}"
    tail = f" W{16-w}" if w < 16 else ""
    return (f"{head} {mid}{tail}", dict(dict(ksplit=max(8, 16 - w)), **kw))


DEFAULT = dict(
    nt_kv="nt", nt_w="", nt_x="", stamps=False, st_fl="sc0 sc1", ld_fl="sc0 sc1",
    groups=(cls(0, 4, 0), cls(6, 8, 8), cls(2, 4, 0), cls(11, 8, 0)), gsel="bbr",
    fill_per=40, fill3=14, nmid=12, la=(4, 4, 4, 4), ksplit=8, more1=2, more2=1,
    poll_sleep=0, codepf=True, tper=2, hold=3, win=(0, 8, 1, 7), xrot=False, obar=2, xorder='cb', xsplit=13, kick=True, ownfirst=False, headmajor=False, kcap=9, kcap2=9, xcdrot=0, poll_depth=1, poll_gap=0, lastla=1, lastla2=3,
)


def schedule(spec, nmid, tper):
    issue = []
    cnt = dict(Q=0, K=0, V=0, W=0)
    for tok in spec.split():
        c, n = tok[0], int(tok[1:])
        issue += R(c, cnt[c], cnt[c] + n)
        cnt[c] += n
    assert cnt == dict(Q=14, K=16, V=16, W=16), cnt
    assert issue[:2] == ["Q0", "Q1"]
    iq, ik = issue.index("Q13"), issue.index("K15")
    ph1 = issue[:iq + 1]
    assert all(u[0] in "QK" for u in ph1)
    npre = sum(u[0] == "K" for u in ph1)
    assert npre <= 14
    rest = issue[iq + 1:ik + 1]
    assert all(u[0] in "KW" for u in rest)
    T = R("T", 0, npre)
    ph2 = [u for u in ("T0", "T4") if u in T]
    if npre > 10:
        ph2 += ["T1", "T2", "T3"]
    T = [u for u in T if u not in ph2]
    shift = 4 if npre > 10 else 0
    for u in rest:
        if u[0] == "W":
            assert int(u[1:]) < 8
            while T and int(T[0][1:]) <= int(u[1:]) + shift + 1:
                ph2.append(T.pop(0))
            assert not ph2 or ph2[-1] != f"T{int(u[1:]) + shift}"
            ph2.append(u)
        else:
            ph2 += [u] + T[:tper]
            T = T[tper:]
    ph2 += T
    after = issue[ik + 1:]
    mid2, held = [], 0
    for u in after:
        if u[0] == "V":
            held += 1
            if held > NSLOT - 4:
                break
        elif len(mid2) < nmid:
            mid2.append(u)
    ph3 = [u for u in after if u not in mid2]
    iv = ph3.index("V15")
    ph3, ph4 = ph3[:iv + 1], ph3[iv + 1:]
    return dict(issue=issue, ph1=ph1, ph2=ph2, mid2=mid2, ph3=ph3, ph4=ph4, npre=npre)


class Gen:
    def __init__(self, sched, tag, **kw):
        self.o = dict(DEFAULT)
        self.o.update(kw)
        self.p = Prog()
        self.sc = sched
        self.tag = tag
        self.issue_q = list(sched["issue"])
        self.free = [(s, []) for s in range(NSLOT)]
        self.unit = {}
        self.side = {}
        self.eaten, self.started = set(), set()
        self.order = []
        self.nstamp = 1
        self.bufs, self.buf = (64, 96), 0

    def lines(self, texts):
        return [(lambda t=t: self.p(t)) for t in texts]

    def stamp(self, name=""):
        if self.o["stamps"] and (self.o["stamps"] != "ends" or name == "end"):
            self.p(("s_memtime" if self.o["stamps"] == "cyc" else "s_memrealtime") + " s[100:101]")
            self.p("s_waitcnt lgkmcnt(0)")
            self.p(f"s_mov_b32 s{sST + self.nstamp}, s100")
            self.nstamp += 1
            assert self.nstamp <= 14

    def dma_items(self):
        name = self.issue_q.pop(0)
        slot, reads = self.free.pop(0)
        kind, u = name[0], int(name[1:])
        r, v, nt = {"Q": (sQ, vDQ, self.o["nt_w"]), "K": (sK, vDK, self.o["nt_kv"]),
                    "V": (sV, vDV, self.o["nt_kv"]), "W": (sO, vDO, self.o["nt_w"])}[kind]
        dm = []
        self.unit[name] = (slot, dm)
        p = self.p

        def head():
            p(f"s_add_u32 m0, s{sRING}, {slot*4096}")
            if kind == "Q":
                p(f"s_lshl_b32 s{sSO}, s{sROT + u // 2}, 12")
                if u % 2:
                    p(f"s_bitset1_b32 s{sSO}, 18")
            elif kind == "W":
                p(f"s_xor_b32 s{sSO}, s{sXW}, {u}")
                p(f"s_mulk_i32 s{sSO}, {16*896}")
            elif kind == "K":
                p(f"s_xor_b32 s{sSO}, s{sW128}, {(u // 4) * 65536 + (u % 4) * 128}")
            else:
                p(f"s_mov_b32 s{sSO}, {u * 16384}")

        def piece(j):
            def f():
                if j == 0:
                    head()
                off = f" offset:{1024*j}" if j else ""
                dm.append(p(f"buffer_load_dwordx4 v{v+j}, {srd(r)}, s{sSO} offen{off}{fl(nt)} lds",
                            after=reads if j == 0 else ()))
            return f
        return [piece(j) for j in range(4)]

    def all_dma(self, la=None):
        la = min(la or self.o["la"], NSLOT)
        out = []
        while self.issue_q and NSLOT - len(self.free) < la:
            out += self.dma_items()
        return out

    def one_more(self):
        def f():
            if self.issue_q and self.free:
                for g in self.dma_items():
                    g()
        return f

    def kreg(self, u, j):
        if self.sc["npre"] > 10:
            if u < 4:
                return vr(192 + 16 * u + 4 * j, 4)
            u -= 4
        return ar(self.wreg(u) + 4 * j, 4)

    @staticmethod
    def wreg(u):
        return 128 + 16 * u if u < 8 else 16 * (u - 8)

    def unit_reads(self, name, base):
        kind, u = name[0], int(name[1:])
        p = self.p
        items, done = [], []
        if kind == "T":
            return items, done
        slot, dm = self.unit[name]
        so = slot * 4096
        sd = self.side.setdefault(name, [])

        def ring(text, pieces):
            items.append(lambda: done.append(p(text, after=[dm[j] for j in pieces])))

        def side(text):
            items.append(lambda: sd.append(p(text)))
        if self.o.get("trace"):
            def mark():
                p("s_nop 0", after=list(dm))
                p("s_memrealtime s[100:101]")
                p("s_waitcnt lgkmcnt(0)")
                p(f"v_writelane_b32 v0, s100, {len(self.order)}")
                self.order.append(name)
            items.append(mark)
        if kind in "QV":
            for ks in range(2):
                for mt in range(2):
                    for part in range(2):
                        d = base + (ks * 2 + mt) * 4 + part * 2
                        if kind == "Q":
                            ring(f"ds_read_b64_tr_b16 {vr(d,2)}, v{vRQ+mt} offset:{so + ks*2048 + part*512}",
                                 (2 * ks, 2 * ks + 1))
                        else:
                            ring(f"ds_read_b64_tr_b16 {vr(d,2)}, v{vRV+mt} offset:{so + ks*2048 + part*1024}",
                                 (2 * ks + part,))
                    qt = mt
                    d = base + 16 + (ks * 2 + qt) * 4
                    if kind == "Q":
                        s = 2 * u + ks
                        side(f"ds_read_b128 {vr(d,4)}, v{vRX + s % 4} offset:{XPOS[s // 4]*8192 + qt*4096}")
                    else:
                        side(f"ds_read_b128 {vr(d,4)}, v{vPA+qt} offset:{(u % 4)*16384 + ((u // 4)*2 + ks)*2048}")
        elif kind == "K":
            for j in range(4):
                d = self.kreg(u, j) if u < self.sc["npre"] else vr(base + 4 * j, 4)
                ring(f"ds_read_b128 {d}, v{vRK+j} offset:{so}", range(4))
        elif kind == "W":
            for part in range(2):
                for t in range(4):
                    ring(f"ds_read_b64_tr_b16 {ar(self.wreg(u) + t*4 + part*2, 2)}, v{vRO+t} "
                         f"offset:{so + part*1024}", (part, 2 + part))
        return items, done

    def unit_mfmas(self, name, base):
        kind, u = name[0], int(name[1:])
        out = []
        if kind in "QV":
            order = [(ks, mt, qt) for ks in range(2) for mt, qt in ((0, 0), (1, 0), (0, 1), (1, 1))]
            if name in ("Q13", "V15"):
                order = [(ks, mt, qt) for mt in range(2) for qt in range(2) for ks in range(2)]
            for ks, mt, qt in order:
                acc = vr(ACC + (mt * 2 + qt) * 16, 16)
                c = "0" if (u == 0 and ks == 0) else acc
                out.append(f"{MF} {acc}, {vr(base + (ks*2+mt)*4, 4)}, {vr(base + 16 + (ks*2+qt)*4, 4)}, {c}")
        elif kind == "T" or (kind == "K" and u >= self.sc["npre"]):
            t, i = u // 4, u % 4
            first = t not in self.started
            self.started.add(t)
            for j in range(4):
                a = self.kreg(u, j) if kind == "T" else vr(base + 4 * j, 4)
                for qt in range(2):
                    acc = vr(ACC + (t * 2 + qt) * 16, 16)
                    b = vr(self.own + (j * 2 + qt) * 4, 4) if i == 0 else ar(((i * 4 + j) * 2 + qt) * 4, 4)
                    out.append(f"{MF} {acc}, {a}, {b}, {'0' if (first and j == 0) else acc}")
        return out

    def window(self, mfmas, early, late, fill):
        p = self.p
        n = len(mfmas)
        if n == 0:
            for f in fill + late + early:
                f()
            return
        gaps = [[] for _ in range(n)]
        e0, e1, l0, l1 = self.o["win"]
        e1, l1 = min(e1, n), min(l1, n - 1)
        for k, f in enumerate(early):
            gaps[e0 + k * (e1 - e0) // len(early)].append(f)
        for k, f in enumerate(late):
            gaps[l0 + k * (l1 - l0) // len(late)].append(f)
        for k, f in enumerate(fill):
            gaps[k * n // len(fill)].append(f)
        for m, g in zip(mfmas, gaps):
            p(m)
            for f in g:
                f()

    def release(self, nme, done):
        if nme[0] != "T":
            self.eaten.add(nme)
            self.free.append((self.unit[nme][0], done))

    def run_phase(self, units, fillq=(), per=0, after=None, before=None):
        pend, prev = [], None
        self.fillq = list(fillq)
        for nme in units:
            base = self.bufs[self.buf]
            mf = self.unit_mfmas(nme, base)
            if mf and nme[0] != "T":
                self.buf ^= 1
            la = self.o["la"] + (0 if pend else 1)
            if nme[0] == "V" and "V15" in self.unit:
                la = min(la, self.o["hold"])
            if nme[0] == "Q" and "Q13" in self.unit:
                la = min(la, 14 - int(nme[1:]) + self.o["kcap"])
            early = self.all_dma(la)
            if nme[0] != "T" and not self.unit[nme][1]:
                for f in early:
                    f()
                early = []
            late, done = self.unit_reads(nme, base)
            if before:
                late = before(nme) + late
            take, self.fillq = self.fillq[:per], self.fillq[per:]
            self.window(pend, early, late, take)
            if after and prev:
                self.fillq += after(prev)
            self.release(nme, done)
            pend, prev = mf, nme
        return pend

    def stage(self, nme):
        def f():
            held = sum(u[0] == "V" and u not in self.eaten for u in self.unit)
            early = self.all_dma(min(NSLOT, self.o["la"] + 1 + held))
            if not self.unit[nme][1]:
                for g in early:
                    g()
                early = []
            it, d = self.unit_reads(nme, 0)
            for g in it + early:
                g()
            self.release(nme, d)
        return f

    @staticmethod
    def spread(items, stages):
        n, k = len(stages), 0
        for i, f in enumerate(items):
            while k < n and (k + 0.5) * len(items) / n <= i:
                stages[k]()
                k += 1
            f()
        for g in stages[k:]:
            g()

    def last_window(self, mfmas, early, addr):
        p = self.p
        self.own = self.bufs[self.buf]
        w = []

        def pack(a):
            mt, q = a // 2, a % 2
            for ks in range(2):
                src = ACC + a * 16 + ks * 8
                d = self.own + ((2 * mt + ks) * 2 + q) * 4
                for k in range(4):
                    p(f"v_cvt_pk_bf16_f32 v{d+k}, v{src+2*k}, v{src+2*k+1}")
                reg, off = addr(2 * mt + ks, q)
                w.append(p(f"ds_write_b128 v{reg}, {vr(d,4)} offset:{off}"))
        early = list(early)
        for i, m in enumerate(mfmas):
            p(m)
            if i < 4:
                for f in early[i * len(early) // 4:(i + 1) * len(early) // 4]:
                    f()
            if i in (4, 6):
                pack((i - 4) // 2)
        pack(2)
        pack(3)
        return w

    def prologue(self):
        p, o = self.p, self.o
        ng = len(o["groups"])
        p("s_cmp_ge_u32 s2, 256")
        p("s_cbranch_scc1 L_exit")
        if o["stamps"]:
            p(("s_memtime" if o["stamps"] == "cyc" else "s_memrealtime") + f" s[{sST}:{sST+1}]")
        p(f"s_lshr_b32 s{sBR}, s2, 7")
        p(f"s_mul_i32 s5, s{sBR}, 40")
        p("s_add_u32 s6, s0, s5")
        p("s_addc_u32 s7, s1, 0")
        p("s_load_dwordx8 s[88:95], s[6:7], 0")
        p("s_load_dwordx2 s[86:87], s[6:7], 32")
        p(f"s_load_dwordx2 s[{sWS}:{sWS+1}], s[0:1], 96")
        p("s_load_dwordx4 s[96:99], s[0:1], 80")
        if o.get("headpf"):
            p("s_getpc_b64 s[10:11]")
            p("v_min_u32 v5, 12, v0")
            p("v_lshlrev_b32 v5, 7, v5")
            p("global_load_dword v254, v5, s[10:11]", hidden=True)
        p("v_lshrrev_b32 v7, 6, v0")
        p(f"v_and_b32 v{vL}, 63, v0")
        p(f"v_readfirstlane_b32 s{sW}, v7")
        p(f"v_lshrrev_b32 v2, 3, v{vL}")
        p(f"v_and_b32 v3, 7, v{vL}")
        p(f"v_lshrrev_b32 v4, 4, v{vL}")
        p(f"s_bfe_u32 s{sB}, s2, 0x30004")
        p("s_bfe_u32 s4, s2, 0x10003")
        p(f"s_and_b32 s{sT2}, s{sW}, 1")
        p(f"s_cmp_eq_u32 s{sB}, 7")
        p(f"s_cselect_b32 s{sROT}, 3, s{sB}")
        if o["xcdrot"]:
            p("s_and_b32 s3, s2, 7")
            if o["xcdrot"] > 1:
                p(f"s_mul_i32 s3, s3, {o['xcdrot']}")
            p(f"s_add_u32 s{sROT}, s{sROT}, s3")
            p(f"s_mul_i32 s3, s{sROT}, 37")
            p("s_lshr_b32 s3, s3, 8")
            p("s_mul_i32 s3, s3, 7")
            p(f"s_sub_u32 s{sROT}, s{sROT}, s3")
        p(f"s_lshl_b32 s{sROT}, s{sROT}, 7")
        p(f"s_lshl_b32 s{sT0}, s{sT2}, 2")
        p(f"v_add_u32 v5, s{sT0}, v4")
        p("v_xor_b32 v5, v5, v3")
        p(f"s_lshl_b32 s5, s4, {2 if o['xrot'] else 31}")
        p("s_and_b32 s5, s5, 4")
        p(f"s_add_u32 s5, s5, s{sW}")
        p(f"s_lshl_b32 s{sT0}, s5, 3")
        p(f"v_add_u32 v6, s{sT0}, v2")
        p("v_xor_b32 v7, 32, v6")
        p("v_mul_u32_u24 v6, 896, v6")
        p("v_mul_u32_u24 v7, 896, v7")
        p(f"v_lshl_add_u32 v{vDX}, v5, 4, v6")
        p("v_lshl_add_u32 v7, v5, 4, v7")
        p(f"s_lshl_b32 s{sT1}, s5, 10")
        p(f"s_mul_i32 s{sT0}, s{sB}, 57344")
        p(f"s_mov_b32 s{sX+2}, 57344")
        p(f"s_mov_b32 s{sX+3}, 0x20000")
        p("s_waitcnt lgkmcnt(0)")
        p(f"s_add_u32 s{sX}, s88, s{sT0}")
        p(f"s_addc_u32 s{sX+1}, s89, 0")
        self.xd = []
        p(f"s_xor_b32 s5, s{sT1}, 0x1000")
        seq = [(h, cb) for h in range(2) for cb in range(7)] if o["xorder"] == "half" else \
            [(h, cb) for cb in range(7) for h in range(2)]
        for n, (half, cb) in enumerate(seq):
            if True:
                p(f"s_add_u32 m0, s{5 if half else sT1}, {SH + XPOS[cb]*8192}")
                if half == 0 and cb:
                    p(f"s_add_u32 s{sROT+cb}, s{sROT+cb-1}, 128")
                    p(f"s_cmp_eq_u32 s{sROT+cb}, 896")
                    p(f"s_cselect_b32 s{sROT+cb}, 0, s{sROT+cb}")
                self.xd.append(p(f"buffer_load_dwordx4 v{7 if half else vDX}, {srd(sX)}, s{sROT+cb} "
                                 f"offen{fl(o['nt_x'])} lds"))
            if n == o["xsplit"]:
                p("s_and_b32 s3, s2, 7")
                p("s_lshl_b32 s3, s3, 1")
                p(f"s_add_u32 s{sH}, s3, s4")
                if ng > 1:
                    if o["gsel"] == "b":
                        p(f"s_and_b32 s{sCLS}, s{sB}, {ng-1}")
                    elif o["gsel"] == "br":
                        p(f"s_mov_b32 s{sCLS}, s{sBR}")
                    else:
                        p(f"s_and_b32 s{sCLS}, s{sB}, {ng//2-1}")
                        p(f"s_lshl_b32 s{sCLS}, s{sCLS}, 1")
                        p(f"s_add_u32 s{sCLS}, s{sCLS}, s{sBR}")
                if o["codepf"]:
                    p("s_getpc_b64 s[6:7]")
                    p("L_pc:")
                    p("s_mov_b32 s3, L_class0-L_pc")
                    for g in range(1, ng):
                        p(f"s_cmp_eq_u32 s{sCLS}, {g}")
                        p(f"s_cselect_b32 s3, L_class{g}-L_pc, s3")
                    p("s_add_u32 s6, s6, s3")
                    p("s_addc_u32 s7, s7, 0")
                    if o["codepf"] == "full":
                        p("v_min_u32 v5, 158, v0")
                        p("v_lshlrev_b32 v5, 7, v5")
                    else:
                        p(f"s_and_b32 s3, s{sB}, 6")
                        p("s_add_u32 s3, s3, s4")
                        p("s_mulk_i32 s3, 20")
                        p("v_min_u32 v5, 19, v0")
                        p("v_add_u32 v5, s3, v5")
                        p("v_min_u32 v5, 158, v5")
                        p("v_lshlrev_b32 v5, 7, v5")
                    p("global_load_dword v255, v5, s[6:7]", hidden=True)
                p(f"s_mul_i32 s{sRING}, s{sW}, {RSZ}")
                p(f"s_add_u32 s{sRING}, s{sRING}, {RING}")
                p("v_and_b32 v5, 1, v4")
                p("v_lshlrev_b32 v5, 2, v5")
                p("v_xor_b32 v5, v5, v3")
                p(f"s_lshl_b32 s{sW128}, s{sW}, 7")
                p(f"v_lshl_add_u32 v5, v5, 4, s{sW128}")
                if o.get("fakek"):
                    p(f"s_mov_b32 s{sW128}, 0")
                p(f"v_lshl_add_u32 v{vDQ}, v2, 13, v5")
                p(f"s_lshl_b32 s{sT0}, s{sB}, 6")
                p(f"v_xor_b32 v5, s{sT0}, v5")
                p(f"v_lshl_add_u32 v{vDV}, v2, 9, v5")
                for j in range(1, 4):
                    p(f"v_add_u32 v{vDQ+j}, {j*(65536-1024)}, v{vDQ}")
                p(f"s_lshl_b32 s{sT0}, s{sH}, 9")
                p(f"s_add_u32 s{sQ}, s94, s{sT0}")
                p(f"s_addc_u32 s{sQ+1}, s95, 0")
                p(f"s_sub_u32 s{sQ+2}, 3670016, s{sT0}")
                p(f"s_mov_b32 s{sQ+3}, 0x20000")
                p(f"s_lshl_b32 s{sGRP}, s{sBR}, 3")
                p(f"s_add_u32 s{sGRP}, s{sGRP}, s{sB}")
                p(f"s_mov_b32 s{sWS+2}, {PBASE + 16 * GRP}")
                p(f"s_mov_b32 s{sWS+3}, 0x20000")
                p(f"v_lshlrev_b32 v{vLIN}, 4, v{vL}")
        p(f"s_cmp_lg_u32 s{sH}, 15")
        p("s_cbranch_scc1 L_noclr")
        p(f"s_lshl_b32 s3, s{sGRP}, 2")
        p(f"s_add_u32 s3, s3, s{sW}")
        p("s_lshl_b32 s3, s3, 11")
        p(f"s_add_u32 s3, s3, {FBASE}")
        p(f"v_lshrrev_b32 v5, 2, v{vL}")
        p(f"v_and_b32 v6, 48, v{vLIN}")
        p("v_lshl_add_u32 v5, v5, 7, v6")
        for k in range(4):
            p(f"v_mov_b32 v{64+k}, 0")
        p(f"buffer_store_dwordx4 v[64:67], v5, {srd(sWS)}, s3 offen sc0 sc1", hidden=True)
        p("L_noclr:")
        for f in self.all_dma(2):
            f()
        p(f"s_lshl_b32 s{sT0}, s{sB}, 4")
        p(f"s_add_u32 s{sT0}, s{sT0}, s{sH}")
        p(f"s_xor_b32 s{sT1}, s{sBR}, 1")
        p(f"s_lshr_b32 s{sT0}, s{sT0}, s{sT1}")
        p(f"s_lshl_b32 s{sT0}, s{sT0}, 18")
        for r, src in ((sK, 90), (sV, 92)):
            p(f"s_add_u32 s{r}, s{src}, s{sT0}")
            p(f"s_addc_u32 s{r+1}, s{src+1}, 0")
            p(f"s_mov_b32 s{r+2}, 262144")
            p(f"s_mov_b32 s{r+3}, 0x20000")
        p(f"s_mul_i32 s{sT0}, s{sH}, 229376")
        p(f"s_add_u32 s{sO}, s86, s{sT0}")
        p(f"s_addc_u32 s{sO+1}, s87, 0")
        p(f"s_mov_b32 s{sO+2}, 229376")
        p(f"s_mov_b32 s{sO+3}, 0x20000")
        for r, src, n in ((sOUT, 96, 917504), (sDBG, 98, 256)):
            p(f"s_mov_b32 s{r}, s{src}")
            p(f"s_mov_b32 s{r+1}, s{src+1}")
            p(f"s_mov_b32 s{r+2}, {n}")
            p(f"s_mov_b32 s{r+3}, 0x20000")
        p(f"s_lshl_b32 s{sDO}, s{sGRP}, 4")
        if o.get("tlb0"):
            p("v_mov_b32 v5, 0")
            for r in (sK, sV, sO):
                p(f"buffer_load_dword v254, v5, {srd(r)}, 0 offen nt", hidden=True)
        p(f"s_lshl_b32 s{sXW}, s{sW}, {1 if o['ownfirst'] and not o.get('fakew') else 31}")
        p(f"s_xor_b32 s{sXW}, s{sXW}, s{sB}")
        p(f"s_lshl_b32 s{sXW}, s{sXW}, 1")
        p(f"s_mov_b32 s{sC}, {f32(math.log2(math.e) / 16)}")
        p("v_xor_b32 v5, v3, v4")
        p(f"s_lshl_b32 s{sT0}, s{sW}, 14")
        p(f"v_lshl_add_u32 v5, v5, 4, s{sT0}")
        p(f"v_lshl_add_u32 v{vDK}, v2, 9, v5")
        p(f"v_xor_b32 v5, 64, v{vDK}")
        p(f"v_add_u32 v{vDK+1}, 3072, v5")
        p(f"v_add_u32 v{vDK+2}, 6144, v{vDK}")
        p(f"v_add_u32 v{vDK+3}, 9216, v5")
        for j in range(1, 4):
            p(f"v_add_u32 v{vDV+j}, {j*3072}, v{vDV}")
        p(f"v_add_u32 v{vWR}, s{sT0}, v{vLIN}")
        for j in range(1, 4):
            p(f"v_xor_b32 v{vQA+j-1}, {j*16384}, v{vWR}")
        p(f"s_add_u32 s{sT0}, s{sT0}, 8192")
        p(f"v_lshl_add_u32 v{vIR}, v{vL}, 3, s{sT0}")
        p(f"v_bfe_u32 v5, v{vL}, 2, 2")
        p("v_xor_b32 v5, v5, v4")
        p(f"v_add_u32 v5, s{sT2}, v5")
        p("v_and_b32 v5, 3, v5")
        p(f"v_and_b32 v6, 48, v{vLIN}")
        p("v_lshl_add_u32 v5, v5, 6, v6")
        p("v_mul_u32_u24 v6, 896, v4")
        p(f"s_mul_i32 s{sT0}, s{sW}, 224")
        p(f"s_lshl_b32 s{sT1}, s{sT2}, 5")
        p(f"s_sub_u32 s{sT0}, s{sT0}, s{sT1}")
        p(f"v_add3_u32 v{vDO}, v5, v6, s{sT0}")
        for j in range(1, 4):
            p(f"v_add_u32 v{vDO+j}, {j*(3584-1024)}, v{vDO}")
        p(f"v_lshrrev_b32 v2, 5, v{vL}")
        p(f"v_bfe_u32 v3, v{vL}, 1, 3")
        p("v_xor_b32 v3, v3, v2")
        p(f"v_and_b32 v5, 31, v{vL}")
        p("v_lshlrev_b32 v5, 7, v5")
        p(f"v_lshl_add_u32 v{vRX}, v3, 4, v5")
        for j in range(1, 4):
            p(f"v_xor_b32 v{vRX+j}, {j*32}, v{vRX}")
        for j in range(4):
            p(f"v_add_u32 v{vRK+j}, s{sRING}, v{vRX+j}")
        p(f"v_and_b32 v3, 16, v{vLIN}")
        p(f"v_bfe_u32 v5, v{vL}, 1, 1")
        p("v_lshl_add_u32 v3, v5, 3, v3")
        p("v_and_b32 v5, 1, v4")
        p("v_lshl_add_u32 v3, v5, 5, v3")
        p(f"v_add_u32 v3, s{sRING}, v3")
        p(f"v_bfe_u32 v5, v{vL}, 2, 2")
        p(f"v_bfe_u32 v6, v{vL}, 3, 1")
        p("v_lshl_add_u32 v6, v6, 6, v3")
        p("v_lshl_add_u32 v6, v5, 7, v6")
        p(f"v_lshl_add_u32 v{vRQ}, v2, 10, v6")
        p(f"v_lshl_add_u32 v{vRV}, v2, 9, v6")
        p(f"v_xor_b32 v{vRQ+1}, 64, v{vRQ}")
        p(f"v_xor_b32 v{vRV+1}, 64, v{vRV}")
        p("v_mul_u32_u24 v6, 320, v5")
        p("v_add_u32 v6, v6, v3")
        p(f"v_lshl_add_u32 v{vRO}, v2, 11, v6")
        for t in range(1, 4):
            p(f"v_xor_b32 v{vRO+t}, {t*64}, v{vRO}")
        p(f"s_lshl_b32 s{sT1}, s{sT2}, 10")
        p(f"v_add_u32 v{vPA}, s{sT1}, v{vLIN}")
        p(f"v_xor_b32 v{vPA+1}, 0x400, v{vPA}")
        p(f"s_lshl_b32 s{sT0}, s{sW}, 9")
        p(f"s_add_u32 s{sT0}, s{sT0}, 8192")
        p(f"v_lshl_add_u32 v{vIW}, v{vL}, 3, s{sT0}")
        for g in range(1, ng):
            p(f"s_cmp_eq_u32 s{sCLS}, {g}")
            p(f"s_cbranch_scc1 L_class{g}")
        p("s_branch L_class0")
        p("L_exit:")
        p("s_endpgm")
        p(SPLIT)
        p(f"L_class{self.tag}:")
        p("s_barrier", after=self.xd)
        self.stamp()
        p(f"s_cmp_lg_u32 s{sH}, 15")
        p(f"s_cbranch_scc1 L_noset{self.tag}")
        p(f"s_lshl_b32 s3, s{sW}, 2")
        p(f"s_add_u32 s3, s3, s{sDO}")
        p("v_mov_b32 v2, 0")
        p("v_mov_b32 v3, 1")
        p("s_mov_b64 exec, 1")
        p(f"buffer_store_dword v3, v2, {srd(sDBG)}, s3 offen sc0 sc1", hidden=True)
        p("s_mov_b64 exec, -1")
        p(f"L_noset{self.tag}:")
        if o["kick"]:
            for f in self.all_dma():
                f()

    def store_setup(self):
        hm = self.o["headmajor"]
        L = [f"s_mul_i32 s3, s{sGRP}, {GRP}", f"s_mul_i32 s4, s{sH}, {57344 if hm else 2048}", "s_add_u32 s3, s3, s4",
             f"s_add_u32 s3, s3, {PBASE}", f"s_lshr_b32 s4, s{sW}, 1", "s_mul_i32 s4, s4, 7",
             f"s_mul_i32 s5, s{sT2}, 3", "s_add_u32 s4, s4, s5", f"s_lshl_b32 s7, s{sT2}, 1",
             f"v_mov_b32 v{vFL}, 0"]
        for t in range(4):
            L += [f"s_add_u32 s5, s{sT2}, {t}", "s_and_b32 s5, s5, 3", "s_add_u32 s5, s5, s4",
                  "s_lshr_b32 s6, s5, 1", "s_lshl_b32 s6, s6, 2", "s_and_b32 s5, s5, 1",
                  "s_add_u32 s5, s5, s6", "s_add_u32 s5, s5, s7"]
            for qi in range(2 if t < 3 else 1):
                if qi:
                    L.append("s_xor_b32 s5, s5, 2")
                L += [f"s_lshl_b32 s6, s5, {11 if hm else 15}", f"s_add_u32 s{sPT + 2*t + qi}, s6, s3", "s_lshl_b32 s6, s5, 8",
                      f"v_writelane_b32 v{vFL}, s6, {2*(2*t+qi)}", "s_add_u32 s6, s6, 128",
                      f"v_writelane_b32 v{vFL}, s6, {2*(2*t+qi)+1}"]
        return self.lines(L)

    def softmax_tile(self, t, packed=False):
        seq = []
        for qt in range(2):
            s = ACC + (t * 2 + qt) * 16
            m, l = vMC + t * 2 + qt, vLS + t * 2 + qt
            seq.append(f"v_max3_f32 v{m}, v{s}, v{s+1}, v{s+2}")
            for k in range(3, 15, 2):
                seq.append(f"v_max3_f32 v{m}, v{m}, v{s+k}, v{s+k+1}")
            seq.append(f"v_max_f32 v{m}, v{m}, v{s+15}")
            seq.append(f"v_mul_f32 v{m}, s{sC}, v{m}")
            if packed:
                for k in range(0, 16, 2):
                    seq.append(f"v_pk_fma_f32 {vr(s+k,2)}, {vr(s+k,2)}, s[{sC}:{sC+1}], {vr(m & ~1, 2)} "
                               f"op_sel:[0,0,{m & 1}] op_sel_hi:[1,0,{m & 1}] neg_lo:[0,0,1] neg_hi:[0,0,1]")
                for k in range(16):
                    seq.append(f"v_exp_f32 v{s+k}, v{s+k}")
                    if k == 4:
                        seq.append(f"v_pk_add_f32 v[2:3], {vr(s,2)}, {vr(s+2,2)}")
                    elif k > 4 and k % 2 == 0:
                        seq.append(f"v_pk_add_f32 v[2:3], v[2:3], {vr(s+k-2,2)}")
                seq.append(f"v_pk_add_f32 v[2:3], v[2:3], {vr(s+14,2)}")
                seq.append(f"v_add_f32 v{l}, v2, v3")
            else:
                for k in range(16):
                    seq.append(f"v_fma_f32 v{s+k}, v{s+k}, s{sC}, -v{m}")
                for k in range(16):
                    seq.append(f"v_exp_f32 v{s+k}, v{s+k}")
                    if k == 2:
                        seq.append(f"v_add_f32 v{l}, v{s}, v{s+1}")
                    elif k > 2:
                        seq.append(f"v_add_f32 v{l}, v{l}, v{s+k-1}")
                seq.append(f"v_add_f32 v{l}, v{l}, v{s+15}")
        return self.lines(seq)

    def softmax_combine(self):
        p = self.p
        T = 64
        L = []
        q = lambda t: L.append(lambda: p(t))
        w1 = []
        for qt in range(2):
            m = [vMC + t * 2 + qt for t in range(4)]
            q(f"v_max3_f32 v{T+qt}, v{m[0]}, v{m[1]}, v{m[2]}")
            q(f"v_max_f32 v{T+qt}, v{T+qt}, v{m[3]}")
        for k in range(8):
            q(f"v_sub_f32 v{T+4+k}, v{vMC+k}, v{T + k % 2}")
        for k in range(8):
            q(f"v_exp_f32 v{T+4+k}, v{T+4+k}")
        q(f"v_pk_mul_f32 {vr(T+2,2)}, {vr(vLS,2)}, {vr(T+4,2)}")
        for t in range(1, 4):
            q(f"v_pk_fma_f32 {vr(T+2,2)}, {vr(vLS+2*t,2)}, {vr(T+4+2*t,2)}, {vr(T+2,2)}")
        q(f"v_permlane32_swap_b32 v{T}, v{T+1}")
        q(f"v_permlane32_swap_b32 v{T+2}, v{T+3}")
        q(f"v_max_f32 v{T+8}, v{T}, v{T+1}")
        q(f"v_sub_f32 v{T+4}, v{T}, v{T+8}")
        q(f"v_sub_f32 v{T+5}, v{T+1}, v{T+8}")
        q(f"v_exp_f32 v{T+4}, v{T+4}")
        q(f"v_exp_f32 v{T+5}, v{T+5}")
        q(f"v_mul_f32 v{T+9}, v{T+2}, v{T+4}")
        q(f"v_fmac_f32 v{T+9}, v{T+3}, v{T+5}")
        for r in range(4):
            L.append(lambda r=r: w1.append(p(f"ds_write_b64 v{vIW}, {vr(T+8,2)} offset:{r*16384}")))
        L.append(lambda: p("s_barrier", after=w1))
        for r in range(4):
            q(f"ds_read_b64 {vr(T+10+2*r,2)}, v{vIR} offset:{r*512}")
        q(f"v_max3_f32 v{T}, v{T+10}, v{T+12}, v{T+14}")
        q(f"v_max_f32 v{T}, v{T}, v{T+16}")
        for r in range(4):
            q(f"v_sub_f32 v{T+4+r}, v{T+10+2*r}, v{T}")
        for r in range(4):
            q(f"v_exp_f32 v{T+4+r}, v{T+4+r}")
        q(f"v_mul_f32 v{T+1}, v{T+11}, v{T+4}")
        for r in range(1, 4):
            q(f"v_fmac_f32 v{T+1}, v{T+11+2*r}, v{T+4+r}")
        q(f"v_log_f32 v{T+1}, v{T+1}")
        q(f"v_add_f32 v{T}, v{T}, v{T+1}")
        q(f"v_mov_b32 v{T+1}, v{T}")
        q(f"v_permlane32_swap_b32 v{T}, v{T+1}")
        for k in range(8):
            q(f"v_sub_f32 v{vMC+k}, v{vMC+k}, v{T + k % 2}")
        for k in range(8):
            q(f"v_exp_f32 v{vMC+k}, v{vMC+k}")
        return L

    def publish_p(self, t, w, packed):
        p = self.p
        L = []
        for qt in range(2):
            s, f = ACC + (t * 2 + qt) * 16, vMC + t * 2 + qt
            for ks in range(2):
                b = s + ks * 8
                if packed:
                    L += self.lines([f"v_pk_mul_f32 {vr(b+k,2)}, {vr(b+k,2)}, {vr(f & ~1, 2)} "
                                     f"op_sel:[0,{f & 1}] op_sel_hi:[1,{f & 1}]" for k in range(0, 8, 2)])
                else:
                    L += self.lines([f"v_mul_f32 v{b+k}, v{b+k}, v{f}" for k in range(8)])
                L += self.lines([f"v_cvt_pk_bf16_f32 v{b+k}, v{b+2*k}, v{b+2*k+1}" for k in range(4)])
                x = f"ds_write_b128 v{vWR}, {vr(b,4)} offset:{((t*2+ks)*2+qt)*1024}"
                L.append(lambda x=x: w.append(p(x)))
        return L

    def out_proj(self, wq, ow, extra):
        p, o = self.p, self.o
        ks = o["ksplit"]
        assert 8 <= ks <= 16
        units = [(0, 0), (1, 0), (2, 0), (3, 0), (0, 1), (1, 1), (2, 1)]
        other = 160 - self.own

        nown = 4 if o["ownfirst"] else 0
        obar = o["obar"] if nown else -1

        def oreg(s, qi):
            if s < nown:
                b = self.own + s * 8
            elif s < ks:
                b = 240 + (s % 2) * 8
            else:
                b = other + (s - ks) * 8 if s - ks < 4 else self.own + (s - ks - 4) * 8
            return b + qi * 4

        def oread(s):
            if not nown:
                return self.lines([f"ds_read_b128 {vr(oreg(s, qi), 4)}, v{vPA+qi} "
                                   f"offset:{(s // 4)*16384 + (s % 4)*2048}" for qi in range(2)])
            return self.lines([f"ds_read_b128 {vr(oreg(s, qi), 4)}, v{(vQB if qi else vQA) + s // 4 - 1} "
                               f"offset:{(s % 4)*2048}" for qi in range(2)])

        def mfma(k, s):
            t, qi = units[k]
            acc = vr(ACC + 16 * k, 16)
            return f"{MF} {acc}, {ar(self.wreg(s) + t*4, 4)}, {vr(oreg(s, qi), 4)}, {'0' if s == 0 else acc}"

        def finish(k):
            t, qi = units[k]
            acc, d = ACC + 16 * k, (48, 56, 32)[k % 3]
            L = []
            for half in range(2):
                for j in range(4):
                    L.append(f"v_cvt_pk_bf16_f32 v{d+half*4+j}, v{acc+half*8+2*j}, v{acc+half*8+2*j+1}")
                off = " offset:1024" if half else ""
                if o.get("fakehalf") and half:
                    continue
                L.append(f"buffer_store_dwordx4 {vr(d+half*4,4)}, v{vLIN}, {srd(sWS)}, s{sPT+2*t+qi} "
                         f"offen{off}{fl(o['st_fl'])}")
            return L
        tail = list(range(ks, 16))
        wq = list(wq)
        if not nown:
            p("s_barrier", after=ow)
            for f in oread(0):
                f()
        for s in range(ks):
            late = []
            if s == obar:
                late.append(lambda: p("s_barrier", after=ow))
            if s + 1 >= nown and s + 1 < ks:
                late += oread(s + 1)
            if s >= obar:
                for _ in range((len(tail) + ks - s - 1) // (ks - s)):
                    if tail[0] - ks < 4 or s > tail[0] - ks - 4:
                        late += oread(tail.pop(0))
            early, rel = self.all_dma(), []
            for _ in range((len(wq) + ks - s - 1) // (ks - s) if len(wq) >= ks - s else min(1, len(wq))):
                u = wq.pop(0)
                assert int(u[1:]) > s
                if not self.unit.get(u, (0, []))[1]:
                    for f in early + self.all_dma(NSLOT):
                        f()
                    early = []
                it, d = self.unit_reads(u, 0)
                late += it
                rel.append((u, d))
            fill, extra = extra[:8], extra[8:]
            self.window([mfma(k, s) for k in range(7)], early, late, fill)
            for u, d in rel:
                self.release(u, d)
        assert not wq and not self.issue_q and not tail
        for f in extra:
            f()
        prev = []
        for k in range(7):
            chain = [mfma(k, s) for s in range(ks, 16)]
            for i, m in enumerate(chain):
                p(m)
                if i >= 1:
                    n = (len(prev) + len(chain) - i - 1) // (len(chain) - i)
                    for t in prev[:n]:
                        p(t)
                    prev = prev[n:]
            for t in prev:
                p(t)
            prev = finish(k)
        for t in prev:
            p(t)

    def tail_setup(self):
        return self.lines([
            f"s_lshl_b32 s{sJ}, s{sGRP}, 1", f"s_add_u32 s{sJ}, s{sJ}, s{sH}", f"s_and_b32 s{sJ}, s{sJ}, 15",
            f"s_lshl_b32 s3, s{sGRP}, 13", f"s_add_u32 s3, s3, {FBASE}",
            f"s_lshl_b32 s5, s{sJ}, 2", f"s_add_u32 s5, s5, s{sW}", "s_lshl_b32 s4, s5, 7",
            f"s_add_u32 s{sINB}, s3, s4", "v_mov_b32 v5, 1", "v_mov_b32 v7, 0",
            f"v_and_b32 v{vRDY}, v{vRDY}, v{vRDY+1}", f"v_and_b32 v{vRDY+2}, v{vRDY+2}, v{vRDY+3}",
            f"v_and_b32 v{vRDY}, v{vRDY}, v{vRDY+2}",
            f"s_mul_i32 s6, s{sGRP}, {GRP}", "s_lshr_b32 s4, s5, 1",
            f"s_lshl_b32 s4, s4, {11 if self.o['headmajor'] else 15}", "s_add_u32 s6, s6, s4",
            f"s_lshl_b32 s4, s{sT2}, 10", "s_add_u32 s6, s6, s4", f"s_add_u32 s6, s6, {PBASE}",
            f"s_lshl_b32 s7, s{sB}, 1", f"s_and_b32 s4, s{sJ}, 1", "s_add_u32 s7, s7, s4",
            f"s_mul_i32 s7, s7, {32*1792}", f"s_mul_i32 s4, s{sBR}, 896", "s_add_u32 s7, s7, s4",
            f"s_lshr_b32 s4, s{sJ}, 1", "s_lshl_b32 s4, s4, 7", "s_add_u32 s7, s7, s4",
            f"s_lshl_b32 s4, s{sW}, 5", "s_add_u32 s7, s7, s4",
            f"v_and_b32 v2, 31, v{vL}", "v_mul_u32_u24 v2, 1792, v2", f"v_lshrrev_b32 v3, 5, v{vL}",
            "v_lshl_add_u32 v2, v3, 4, v2"])

    def handoff(self):
        p, g = self.p, self.tag
        p(f"v_cmp_eq_u32 vcc, 1, v{vRDY}")
        p("s_mov_b32 s5, 100000")
        p("s_waitcnt vmcnt(0)")
        p(f"s_cbranch_vccnz L_go{g}")
        p(f"L_ready{g}:")
        p(f"buffer_load_dwordx4 {vr(vRDY,4)}, v7, {srd(sDBG)}, s{sDO} offen sc0 sc1")
        p("s_sub_u32 s5, s5, 1")
        p("s_cmp_eq_u32 s5, 0")
        p("s_waitcnt vmcnt(0)")
        p(f"s_cbranch_scc1 L_go{g}")
        p(f"v_and_b32 v{vRDY}, v{vRDY}, v{vRDY+1}")
        p(f"v_and_b32 v{vRDY+2}, v{vRDY+2}, v{vRDY+3}")
        p(f"v_and_b32 v{vRDY}, v{vRDY}, v{vRDY+2}")
        p(f"v_cmp_eq_u32 vcc, 1, v{vRDY}")
        p(f"s_cbranch_vccz L_ready{g}")
        p(f"L_go{g}:")
        p("s_mov_b64 exec, 0x3fff")
        p(f"buffer_atomic_add v5, v{vFL}, {srd(sWS)}, s3 offen sc1")
        p("s_mov_b64 exec, -1")

    def poll(self):
        p, g, d = self.p, self.tag, self.o["poll_depth"]
        regs = (3, 9, 10, 11)[:d]
        p("s_mov_b32 s5, 100000")
        p("s_mov_b64 exec, 1")

        def ask(r):
            p(f"v_mov_b32 v{r}, 0")
            p(f"buffer_atomic_add v{r}, v7, {srd(sWS)}, s{sINB} offen sc0 sc1", hidden=True)
        for r in regs[1:]:
            ask(r)
            for _ in range(self.o["poll_gap"]):
                p("s_nop 15")
        p(f"L_poll{g}:")
        for k in range(d):
            ask(regs[k])
            p(f"s_waitcnt vmcnt({d-1})")
            p(f"v_cmp_eq_u32 vcc, 16, v{regs[(k + 1) % d]}")
            p(f"s_cbranch_vccnz L_polled{g}")
        p("s_sub_u32 s5, s5, 1")
        p("s_cmp_lg_u32 s5, 0")
        p(f"s_cbranch_scc1 L_poll{g}")
        p(f"L_polled{g}:")
        p("s_mov_b64 exec, -1")

    def reduce(self):
        p = self.p
        D, A, T = 64, 48, 56
        if self.o.get("fakehalf"):
            p("s_bitset0_b32 s6, 10")
            p(f"s_lshl_b32 s4, s{sT2}, 14")
            p("s_add_u32 s6, s6, s4")
        for i in range(8 if self.o.get("fakehalf") else 16):
            if self.o["headmajor"]:
                p(f"buffer_load_dwordx4 {vr(D+4*i,4)}, v{vLIN}, {srd(sWS)}, s6 offen{fl(self.o['ld_fl'])}")
                p("s_add_u32 s6, s6, 57344")
                continue
            off = " offset:2048" if i % 2 else ""
            p(f"buffer_load_dwordx4 {vr(D+4*i,4)}, v{vLIN}, {srd(sWS)}, s6 offen{off}{fl(self.o['ld_fl'])}")
            if i % 2 and i < 15:
                p("s_addk_i32 s6, 4096")
        p("s_mov_b32 s4, 0xffff0000")
        for i in range(8 if self.o.get("fakehalf") else 16):
            for j in range(4):
                dst = A + 2 * j if i == 0 else T + 2 * j
                p(f"v_lshlrev_b32 v{dst}, 16, v{D+4*i+j}")
                p(f"v_and_b32 v{dst+1}, s4, v{D+4*i+j}")
            if i:
                for j in range(4):
                    p(f"v_pk_add_f32 {vr(A+2*j,2)}, {vr(A+2*j,2)}, {vr(T+2*j,2)}")
        for j in range(4):
            p(f"v_cvt_pk_bf16_f32 v{T+j}, v{A+2*j}, v{A+2*j+1}")
        p(f"buffer_store_dwordx4 {vr(T,4)}, v2, {srd(sOUT)}, s7 offen")

    def dump_stamps(self):
        p = self.p
        if not self.o["stamps"]:
            return
        p("s_waitcnt vmcnt(0)")
        self.stamp("end")
        p("s_lshl_b32 s3, s2, 2")
        p(f"s_add_u32 s3, s3, s{sW}")
        if self.o.get("trace"):
            p("s_lshl_b32 s4, s3, 8")
            p("s_add_u32 s4, s4, 0x40000")
            p(f"v_lshlrev_b32 v2, 2, v{vL}")
            p(f"buffer_store_dword v0, v2, {srd(sWS)}, s4 offen")
        p("s_lshl_b32 s3, s3, 6")
        p("v_mov_b32 v2, 0")
        p("s_mov_b64 exec, 1")
        for k in range(self.nstamp):
            p(f"v_mov_b32 v3, s{sST + k}")
            p(f"buffer_store_dword v3, v2, {srd(sWS)}, s3 offen offset:{4*k}")

    def body(self):
        p, o, sc, g = self.p, self.o, self.sc, self.tag
        las = o["la"] if isinstance(o["la"], (tuple, list)) else (o["la"],) * 4
        o["la"] = las[0]
        self.prologue()
        p("; phase 1")
        pend = self.run_phase(sc["ph1"], self.store_setup(), 8,
                              before=lambda u: [lambda: p("s_barrier")] if u == "Q9" else [])
        assert not self.fillq
        qw = self.last_window(pend, self.all_dma(min(o["la"], o["kcap2"])), lambda j, q: (vWR, (j * 2 + q) * 1024))
        self.stamp()
        p("; phase 2")
        o["la"] = las[1]
        cur = 160 - self.own
        self.bufs, self.buf = (cur, cur + 16), 0
        left = {t: 4 for t in range(4)}
        have = {0}
        more = [self.one_more() for _ in range(o["more1"])]

        def need_q(u):
            if u[0] == "W":
                return []
            i = int(u[1:]) % 4
            if i in have:
                return []
            L = []
            if len(have) == 1:
                L.append(lambda: p("s_barrier", after=qw))
            have.add(i)
            L += self.lines([f"ds_read_b128 {ar((i*8 + k)*4, 4)}, v{vQA+i-1} offset:{k*1024}" for k in range(8)])
            return L

        def tile_done(u):
            if u[0] == "W":
                return []
            t = int(u[1:]) // 4
            left[t] -= 1
            return self.softmax_tile(t) if left[t] == 0 else []
        pend = self.run_phase(sc["ph2"], (), o["fill_per"], after=tile_done, before=need_q)
        take, rest = self.fillq[:o["fill_per"]], self.fillq[o["fill_per"]:]
        self.window(pend, self.all_dma(), [], take)
        self.stamp()
        last = [t for t in left if left[t] == 1]
        assert len(last) == 1
        pw = []
        L = rest + self.softmax_tile(last[0], True) + self.softmax_combine() + \
            self.publish_p(0, pw, True) + self.publish_p(1, pw, True)
        self.spread(L, [self.stage(u) for u in sc["mid2"]] + [self.one_more() for _ in range(o["more2"])])
        p("s_barrier", after=pw)
        self.stamp()
        p("; phase 3")
        o["la"] = las[2]
        self.bufs, self.buf = (64, 96), 0
        pw = []
        setup = ["v_mov_b32 v2, 0", f"buffer_load_dwordx4 {vr(vRDY,4)}, v2, {srd(sDBG)}, s{sDO} offen",
                 f"s_lshl_b32 s3, s{sT2}, 10", f"v_add_u32 v{vWA}, s3, v{vWR}", f"v_xor_b32 v{vWB}, 0x400, v{vWA}"]
        if o.get("tlb"):
            setup += [f"s_mul_i32 s4, s{sB}, {64*1792}", f"buffer_load_dword v3, v2, {srd(sOUT)}, s4 offen{fl(o['tlb'] if o['tlb'] != True else '')}",
                      f"s_mul_i32 s4, s{sGRP}, {GRP}", f"s_add_u32 s4, s4, {PBASE - 128}",
                      f"buffer_load_dword v5, v2, {srd(sWS)}, s4 offen nt",
                      f"s_add_u32 s4, s4, {GRP}", f"buffer_load_dword v7, v2, {srd(sWS)}, s4 offen nt"]
        for j in range(3 if o["ownfirst"] else 0):
            setup += [f"v_add_u32 v{vQA+j}, s3, v{vQA+j}", f"v_xor_b32 v{vQB+j}, 0x400, v{vQA+j}"]
        fill = self.publish_p(2, pw, False) + self.publish_p(3, pw, False) + self.lines(setup)

        def p_ready(u):
            if u != "V8":
                return []
            L, self.fillq = self.fillq, []
            return L + [lambda: p("s_barrier", after=pw + self.side["V7"])]
        pend = self.run_phase(sc["ph3"], fill, o["fill3"], before=p_ready)
        o["la"] = las[3]
        self.stamp()
        ow = self.last_window(pend, self.all_dma(o["lastla"]), lambda j, q: (vWB if q else vWA, j * 2048))
        for f in self.all_dma(o["lastla2"]):
            f()
        self.stamp()
        p("; phase 4")
        self.out_proj(sc["ph4"], ow, self.tail_setup())
        self.stamp()
        self.handoff()
        self.stamp()
        if o["stamps"]:
            p(f"s_mov_b32 s{sST + self.nstamp}, s100")
        p(f"s_cmp_ge_u32 s{sJ}, 14")
        p(f"s_cbranch_scc1 L_fin{g}")
        self.poll()
        self.stamp()
        self.reduce()
        p(f"L_fin{g}:")
        self.dump_stamps()
        p("s_endpgm")
        if o.get("fake16"):
            out, cnt, ph = [], {}, 0
            for i in self.p.ins:
                if i.text.startswith("; phase"):
                    ph = i.text.split()[-1]
                if i.kind == "mfma" and ph in o["fake16"]:
                    m = re.match(r"\S+ v\[(\d+):\d+\], (\S+), (\S+), (\S+)", i.text)
                    a0 = int(m.group(1))
                    if m.group(4) == "0":
                        cnt[a0] = 0
                    for h in range(2):
                        n = cnt[a0]
                        a = a0 + 4 * (n % 4)
                        x, y = (m.group(2), m.group(3)) if h == 0 else (m.group(3), m.group(2))
                        out.append(Ins(f"v_mfma_f32_16x16x32_bf16 {vr(a,4)}, {x}, {y}, {'0' if n < 4 else vr(a,4)}"))
                        cnt[a0] += 1
                else:
                    out.append(i)
            self.p.ins = out
        if o.get("fake"):
            self.p.ins = [i for i in self.p.ins if i.kind != {"nodma": "dma", "nomfma": "mfma"}[o["fake"]]]
        return p.finalize()


NSTAMP = 0
ORDERS = []


def build(**kw):
    global NSTAMP
    ORDERS.clear()
    ref = open(f"cdna_kernels/{NAME}.s.ref").read().splitlines() if kw.pop("header", True) else []
    head = [l for l in ref if l.startswith(";") and "@launch" not in l and "Override" not in l
            and "grid=ceil" not in l]
    o = dict(DEFAULT, **kw)
    k1 = NAME + "_kernel"
    common, body = None, ""
    for i, spec in enumerate(o["groups"]):
        kc = dict(kw)
        if not isinstance(spec, str):
            kc.update(spec[1])
            spec = spec[0]
        g = Gen(schedule(spec, o["nmid"], kc.get("tper", o["tper"])), str(i), **kc)
        pre, post = g.body().split("    " + SPLIT + "\n")
        assert common in (None, pre)
        common = pre
        body += ".p2align 6\n" + post
        NSTAMP = g.nstamp if o["stamps"] else 0
        ORDERS.append(g.order)
    head.append("; @launch grid=(256,1,1) block=(256,1,1) lds=163840")
    return "\n".join(head) + f"""
.amdgcn_target "amdgcn-amd-amdhsa--gfx950"
.text
.globl {k1}
.p2align 8
.type {k1},@function
{k1}:
{common}{body}.section .rodata,"a"
.p2align 6
.amdhsa_kernel {k1}
  .amdhsa_next_free_vgpr 512
  .amdhsa_next_free_sgpr 102
  .amdhsa_accum_offset 256
  .amdhsa_group_segment_fixed_size 0
  .amdhsa_kernarg_size 104
  .amdhsa_user_sgpr_count 2
  .amdhsa_user_sgpr_kernarg_segment_ptr 1
  .amdhsa_system_sgpr_workgroup_id_x 1
.end_amdhsa_kernel
"""


if __name__ == "__main__":
    kw = {}
    out = sys.argv[1]
    for a in sys.argv[2:]:
        k, v = a.split("=", 1)
        try:
            kw[k] = eval(v)
        except (NameError, SyntaxError):
            kw[k] = v
    open(out, "w").write(build(**kw))
```

```python
import ast, math, re, struct, sys
from asmlib import Prog, Ins

NAME = "concat_heads__gqa_block_cached__mha_block_cached__near_ridge"
SH, RING, RSZ, NSLOT = 0, 65536, 24576, 6
XPOS = (0, 2, 4, 6, 1, 3, 5)
PBASE = 0x100000
FBASE = 0x10000
GRP = 917504

sX, sK, sV, sQ, sO, sWS, sOUT, sDBG = 8, 12, 16, 20, 24, 28, 32, 36
sW, sBR, sH, sB, sRING, sSO, sC, sGRP, sT0, sT1, sT2, sJ = 40, 41, 42, 43, 44, 45, 46, 47, 48, 49, 50, 51
sPT = 52
sINB, sDO, sXW = 59, 60, 61
sROT = 62
sW128, sCLS = 69, 84
sST = 70
vL, vFL, vIW, vIR = 1, 4, 6, 8
vDX, vDQ, vDK, vDV, vDO = 8, 9, 13, 17, 21
vRX, vRQ, vRK, vRV, vRO = 25, 29, 31, 35, 37
vLIN, vWR, vPA, vQA = 41, 42, 43, 45
vQB, vWA, vWB = 13, 16, 12
vMC, vLS = 48, 56
vRDY = 28
ACC = 128
MF = "v_mfma_f32_32x32x16_bf16"
SPLIT = "; class code"


def f32(x):
    return "0x%08x" % struct.unpack("<I", struct.pack("<f", x))[0]


def vr(a, n):
    return f"v[{a}:{a+n-1}]" if n > 1 else f"v{a}"


def ar(a, n):
    return f"a[{a}:{a+n-1}]" if n > 1 else f"a{a}"


def srd(b):
    return f"s[{b}:{b+3}]"


def fl(x):
    return f" {x}" if x else ""


def R(c, lo, hi):
    return [f"{c}{i}" for i in range(lo, hi)]


def cls(k, w, v, **kw):
    head = "Q14 K16" if k == 0 else f"Q2 K{k} Q12 K{16-k}"
    mid = f"W{w} V16" if (v == 0 or w == 2) else f"W2 V{v} W{w-2} V{16-v}"
    tail = f" W{16-w}" if w < 16 else ""
    return (f"{head} {mid}{tail}", dict(dict(ksplit=max(8, 16 - w)), **kw))


DEFAULT = dict(
    nt_kv="nt", nt_w="", nt_x="", stamps=False, st_fl="sc0 sc1", ld_fl="sc0 sc1",
    groups=(cls(0, 5, 0), cls(6, 8, 8), cls(2, 5, 0), cls(10, 8, 0)), gsel="bbr",
    fill_per=40, fill3=14, nmid=12, la=(4, 4, 4, 4), ksplit=8, more1=2, more2=1,
    poll_sleep=0, codepf=True, tper=2, hold=3, win=(0, 8, 1, 7), xrot=False, obar=2, xorder='cb', xsplit=13, kick=True, ownfirst=False, headmajor=False, kcap=9, kcap2=9, xcdrot=0, poll_depth=1, poll_gap=0, lastla=1, lastla2=3,
)


def schedule(spec, nmid, tper):
    issue = []
    cnt = dict(Q=0, K=0, V=0, W=0)
    for tok in spec.split():
        c, n = tok[0], int(tok[1:])
        issue += R(c, cnt[c], cnt[c] + n)
        cnt[c] += n
    assert cnt == dict(Q=14, K=16, V=16, W=16), cnt
    assert issue[:2] == ["Q0", "Q1"]
    iq, ik = issue.index("Q13"), issue.index("K15")
    ph1 = issue[:iq + 1]
    assert all(u[0] in "QK" for u in ph1)
    npre = sum(u[0] == "K" for u in ph1)
    assert npre <= 14
    rest = issue[iq + 1:ik + 1]
    assert all(u[0] in "KW" for u in rest)
    T = R("T", 0, npre)
    ph2 = [u for u in ("T0", "T4") if u in T]
    if npre > 10:
        ph2 += ["T1", "T2", "T3"]
    T = [u for u in T if u not in ph2]
    shift = 4 if npre > 10 else 0
    for u in rest:
        if u[0] == "W":
            assert int(u[1:]) < 8
            while T and int(T[0][1:]) <= int(u[1:]) + shift + 1:
                ph2.append(T.pop(0))
            assert not ph2 or ph2[-1] != f"T{int(u[1:]) + shift}"
            ph2.append(u)
        else:
            ph2 += [u] + T[:tper]
            T = T[tper:]
    ph2 += T
    after = issue[ik + 1:]
    mid2, held = [], 0
    for u in after:
        if u[0] == "V":
            held += 1
            if held > NSLOT - 4:
                break
        elif len(mid2) < nmid:
            mid2.append(u)
    ph3 = [u for u in after if u not in mid2]
    iv = ph3.index("V15")
    ph3, ph4 = ph3[:iv + 1], ph3[iv + 1:]
    return dict(issue=issue, ph1=ph1, ph2=ph2, mid2=mid2, ph3=ph3, ph4=ph4, npre=npre)


class Gen:
    def __init__(self, sched, tag, **kw):
        self.o = dict(DEFAULT)
        self.o.update(kw)
        self.p = Prog()
        self.sc = sched
        self.tag = tag
        self.issue_q = list(sched["issue"])
        self.free = [(s, []) for s in range(NSLOT)]
        self.unit = {}
        self.side = {}
        self.eaten, self.started = set(), set()
        self.order = []
        self.nstamp = 1
        self.bufs, self.buf = (64, 96), 0

    def lines(self, texts):
        return [(lambda t=t: self.p(t)) for t in texts]

    def stamp(self, name=""):
        if self.o["stamps"] and (self.o["stamps"] != "ends" or name == "end"):
            self.p(("s_memtime" if self.o["stamps"] == "cyc" else "s_memrealtime") + " s[100:101]")
            self.p("s_waitcnt lgkmcnt(0)")
            self.p(f"s_mov_b32 s{sST + self.nstamp}, s100")
            self.nstamp += 1
            assert self.nstamp <= 14

    def dma_items(self):
        name = self.issue_q.pop(0)
        slot, reads = self.free.pop(0)
        kind, u = name[0], int(name[1:])
        r, v, nt = {"Q": (sQ, vDQ, self.o["nt_w"]), "K": (sK, vDK, self.o["nt_kv"]),
                    "V": (sV, vDV, self.o["nt_kv"]), "W": (sO, vDO, self.o["nt_w"])}[kind]
        dm = []
        self.unit[name] = (slot, dm)
        p = self.p

        def head():
            p(f"s_add_u32 m0, s{sRING}, {slot*4096}")
            if kind == "Q":
                p(f"s_lshl_b32 s{sSO}, s{sROT + u // 2}, 12")
                if u % 2:
                    p(f"s_bitset1_b32 s{sSO}, 18")
            elif kind == "W":
                p(f"s_xor_b32 s{sSO}, s{sXW}, {u}")
                p(f"s_mulk_i32 s{sSO}, {16*896}")
            elif kind == "K":
                p(f"s_xor_b32 s{sSO}, s{sW128}, {(u // 4) * 65536 + (u % 4) * 128}")
            else:
                p(f"s_mov_b32 s{sSO}, {u * 16384}")

        def piece(j):
            def f():
                if j == 0:
                    head()
                off = f" offset:{1024*j}" if j else ""
                dm.append(p(f"buffer_load_dwordx4 v{v+j}, {srd(r)}, s{sSO} offen{off}{fl(nt)} lds",
                            after=reads if j == 0 else ()))
            return f
        return [piece(j) for j in range(4)]

    def all_dma(self, la=None):
        la = min(la or self.o["la"], NSLOT)
        out = []
        while self.issue_q and NSLOT - len(self.free) < la:
            out += self.dma_items()
        return out

    def one_more(self):
        def f():
            if self.issue_q and self.free:
                for g in self.dma_items():
                    g()
        return f

    def kreg(self, u, j):
        if self.sc["npre"] > 10:
            if u < 4:
                return vr(192 + 16 * u + 4 * j, 4)
            u -= 4
        return ar(self.wreg(u) + 4 * j, 4)

    @staticmethod
    def wreg(u):
        return 128 + 16 * u if u < 8 else 16 * (u - 8)

    def unit_reads(self, name, base):
        kind, u = name[0], int(name[1:])
        p = self.p
        items, done = [], []
        if kind == "T":
            return items, done
        slot, dm = self.unit[name]
        so = slot * 4096
        sd = self.side.setdefault(name, [])

        def ring(text, pieces):
            items.append(lambda: done.append(p(text, after=[dm[j] for j in pieces])))

        def side(text):
            items.append(lambda: sd.append(p(text)))
        if self.o.get("trace"):
            def mark():
                p("s_nop 0", after=list(dm))
                p("s_memrealtime s[100:101]")
                p("s_waitcnt lgkmcnt(0)")
                p(f"v_writelane_b32 v0, s100, {len(self.order)}")
                self.order.append(name)
            items.append(mark)
        if kind in "QV":
            for ks in range(2):
                for mt in range(2):
                    for part in range(2):
                        d = base + (ks * 2 + mt) * 4 + part * 2
                        if kind == "Q":
                            ring(f"ds_read_b64_tr_b16 {vr(d,2)}, v{vRQ+mt} offset:{so + ks*2048 + part*512}",
                                 (2 * ks, 2 * ks + 1))
                        else:
                            ring(f"ds_read_b64_tr_b16 {vr(d,2)}, v{vRV+mt} offset:{so + ks*2048 + part*1024}",
                                 (2 * ks + part,))
                    qt = mt
                    d = base + 16 + (ks * 2 + qt) * 4
                    if kind == "Q":
                        s = 2 * u + ks
                        side(f"ds_read_b128 {vr(d,4)}, v{vRX + s % 4} offset:{XPOS[s // 4]*8192 + qt*4096}")
                    else:
                        side(f"ds_read_b128 {vr(d,4)}, v{vPA+qt} offset:{(u % 4)*16384 + ((u // 4)*2 + ks)*2048}")
        elif kind == "K":
            for j in range(4):
                d = self.kreg(u, j) if u < self.sc["npre"] else vr(base + 4 * j, 4)
                ring(f"ds_read_b128 {d}, v{vRK+j} offset:{so}", range(4))
        elif kind == "W":
            for part in range(2):
                for t in range(4):
                    ring(f"ds_read_b64_tr_b16 {ar(self.wreg(u) + t*4 + part*2, 2)}, v{vRO+t} "
                         f"offset:{so + part*1024}", (part, 2 + part))
        return items, done

    def unit_mfmas(self, name, base):
        kind, u = name[0], int(name[1:])
        out = []
        if kind in "QV":
            order = [(ks, mt, qt) for ks in range(2) for mt, qt in ((0, 0), (1, 0), (0, 1), (1, 1))]
            if name in ("Q13", "V15"):
                order = [(ks, mt, qt) for mt in range(2) for qt in range(2) for ks in range(2)]
            for ks, mt, qt in order:
                acc = vr(ACC + (mt * 2 + qt) * 16, 16)
                c = "0" if (u == 0 and ks == 0) else acc
                out.append(f"{MF} {acc}, {vr(base + (ks*2+mt)*4, 4)}, {vr(base + 16 + (ks*2+qt)*4, 4)}, {c}")
        elif kind == "T" or (kind == "K" and u >= self.sc["npre"]):
            t, i = u // 4, u % 4
            first = t not in self.started
            self.started.add(t)
            for j in range(4):
                a = self.kreg(u, j) if kind == "T" else vr(base + 4 * j, 4)
                for qt in range(2):
                    acc = vr(ACC + (t * 2 + qt) * 16, 16)
                    b = vr(self.own + (j * 2 + qt) * 4, 4) if i == 0 else ar(((i * 4 + j) * 2 + qt) * 4, 4)
                    out.append(f"{MF} {acc}, {a}, {b}, {'0' if (first and j == 0) else acc}")
        return out

    def window(self, mfmas, early, late, fill):
        p = self.p
        n = len(mfmas)
        if n == 0:
            for f in fill + late + early:
                f()
            return
        gaps = [[] for _ in range(n)]
        e0, e1, l0, l1 = self.o["win"]
        e1, l1 = min(e1, n), min(l1, n - 1)
        for k, f in enumerate(early):
            gaps[e0 + k * (e1 - e0) // len(early)].append(f)
        for k, f in enumerate(late):
            gaps[l0 + k * (l1 - l0) // len(late)].append(f)
        for k, f in enumerate(fill):
            gaps[k * n // len(fill)].append(f)
        for m, g in zip(mfmas, gaps):
            p(m)
            for f in g:
                f()

    def release(self, nme, done):
        if nme[0] != "T":
            self.eaten.add(nme)
            self.free.append((self.unit[nme][0], done))

    def run_phase(self, units, fillq=(), per=0, after=None, before=None):
        pend, prev = [], None
        self.fillq = list(fillq)
        for nme in units:
            base = self.bufs[self.buf]
            mf = self.unit_mfmas(nme, base)
            if mf and nme[0] != "T":
                self.buf ^= 1
            la = self.o["la"] + (0 if pend else 1)
            if nme[0] == "V" and "V15" in self.unit:
                la = min(la, self.o["hold"])
            if nme[0] == "Q" and "Q13" in self.unit:
                la = min(la, 14 - int(nme[1:]) + self.o["kcap"])
            early = self.all_dma(la)
            if nme[0] != "T" and not self.unit[nme][1]:
                for f in early:
                    f()
                early = []
            late, done = self.unit_reads(nme, base)
            if before:
                late = before(nme) + late
            take, self.fillq = self.fillq[:per], self.fillq[per:]
            self.window(pend, early, late, take)
            if after and prev:
                self.fillq += after(prev)
            self.release(nme, done)
            pend, prev = mf, nme
        return pend

    def stage(self, nme):
        def f():
            held = sum(u[0] == "V" and u not in self.eaten for u in self.unit)
            early = self.all_dma(min(NSLOT, self.o["la"] + 1 + held))
            if not self.unit[nme][1]:
                for g in early:
                    g()
                early = []
            it, d = self.unit_reads(nme, 0)
            for g in it + early:
                g()
            self.release(nme, d)
        return f

    @staticmethod
    def spread(items, stages):
        n, k = len(stages), 0
        for i, f in enumerate(items):
            while k < n and (k + 0.5) * len(items) / n <= i:
                stages[k]()
                k += 1
            f()
        for g in stages[k:]:
            g()

    def last_window(self, mfmas, early, addr):
        p = self.p
        self.own = self.bufs[self.buf]
        w = []

        def pack(a):
            mt, q = a // 2, a % 2
            for ks in range(2):
                src = ACC + a * 16 + ks * 8
                d = self.own + ((2 * mt + ks) * 2 + q) * 4
                for k in range(4):
                    p(f"v_cvt_pk_bf16_f32 v{d+k}, v{src+2*k}, v{src+2*k+1}")
                reg, off = addr(2 * mt + ks, q)
                w.append(p(f"ds_write_b128 v{reg}, {vr(d,4)} offset:{off}"))
        early = list(early)
        for i, m in enumerate(mfmas):
            p(m)
            if i < 4:
                for f in early[i * len(early) // 4:(i + 1) * len(early) // 4]:
                    f()
            if i in (4, 6):
                pack((i - 4) // 2)
        pack(2)
        pack(3)
        return w

    def prologue(self):
        p, o = self.p, self.o
        ng = len(o["groups"])
        p("s_cmp_ge_u32 s2, 256")
        p("s_cbranch_scc1 L_exit")
        if o["stamps"]:
            p(("s_memtime" if o["stamps"] == "cyc" else "s_memrealtime") + f" s[{sST}:{sST+1}]")
        p(f"s_lshr_b32 s{sBR}, s2, 7")
        p(f"s_mul_i32 s5, s{sBR}, 40")
        p("s_add_u32 s6, s0, s5")
        p("s_addc_u32 s7, s1, 0")
        p("s_load_dwordx8 s[88:95], s[6:7], 0")
        p("s_load_dwordx2 s[86:87], s[6:7], 32")
        p(f"s_load_dwordx2 s[{sWS}:{sWS+1}], s[0:1], 96")
        p("s_load_dwordx4 s[96:99], s[0:1], 80")
        if o.get("headpf"):
            p("s_getpc_b64 s[10:11]")
            p("v_min_u32 v5, 12, v0")
            p("v_lshlrev_b32 v5, 7, v5")
            p("global_load_dword v254, v5, s[10:11]", hidden=True)
        p("v_lshrrev_b32 v7, 6, v0")
        p(f"v_and_b32 v{vL}, 63, v0")
        p(f"v_readfirstlane_b32 s{sW}, v7")
        p(f"v_lshrrev_b32 v2, 3, v{vL}")
        p(f"v_and_b32 v3, 7, v{vL}")
        p(f"v_lshrrev_b32 v4, 4, v{vL}")
        p(f"s_bfe_u32 s{sB}, s2, 0x30004")
        p("s_bfe_u32 s4, s2, 0x10003")
        p(f"s_and_b32 s{sT2}, s{sW}, 1")
        p(f"s_cmp_eq_u32 s{sB}, 7")
        p(f"s_cselect_b32 s{sROT}, 3, s{sB}")
        if o["xcdrot"]:
            p("s_and_b32 s3, s2, 7")
            if o["xcdrot"] > 1:
                p(f"s_mul_i32 s3, s3, {o['xcdrot']}")
            p(f"s_add_u32 s{sROT}, s{sROT}, s3")
            p(f"s_mul_i32 s3, s{sROT}, 37")
            p("s_lshr_b32 s3, s3, 8")
            p("s_mul_i32 s3, s3, 7")
            p(f"s_sub_u32 s{sROT}, s{sROT}, s3")
        p(f"s_lshl_b32 s{sROT}, s{sROT}, 7")
        p(f"s_lshl_b32 s{sT0}, s{sT2}, 2")
        p(f"v_add_u32 v5, s{sT0}, v4")
        p("v_xor_b32 v5, v5, v3")
        p(f"s_lshl_b32 s5, s4, {2 if o['xrot'] else 31}")
        p("s_and_b32 s5, s5, 4")
        p(f"s_add_u32 s5, s5, s{sW}")
        p(f"s_lshl_b32 s{sT0}, s5, 3")
        p(f"v_add_u32 v6, s{sT0}, v2")
        p("v_xor_b32 v7, 32, v6")
        p("v_mul_u32_u24 v6, 896, v6")
        p("v_mul_u32_u24 v7, 896, v7")
        p(f"v_lshl_add_u32 v{vDX}, v5, 4, v6")
        p("v_lshl_add_u32 v7, v5, 4, v7")
        p(f"s_lshl_b32 s{sT1}, s5, 10")
        p(f"s_mul_i32 s{sT0}, s{sB}, 57344")
        p(f"s_mov_b32 s{sX+2}, 57344")
        p(f"s_mov_b32 s{sX+3}, 0x20000")
        p("s_waitcnt lgkmcnt(0)")
        p(f"s_add_u32 s{sX}, s88, s{sT0}")
        p(f"s_addc_u32 s{sX+1}, s89, 0")
        self.xd = []
        p(f"s_xor_b32 s5, s{sT1}, 0x1000")
        seq = [(h, cb) for h in range(2) for cb in range(7)] if o["xorder"] == "half" else \
            [(h, cb) for cb in range(7) for h in range(2)]
        for n, (half, cb) in enumerate(seq):
            if True:
                p(f"s_add_u32 m0, s{5 if half else sT1}, {SH + XPOS[cb]*8192}")
                if half == 0 and cb:
                    p(f"s_add_u32 s{sROT+cb}, s{sROT+cb-1}, 128")
                    p(f"s_cmp_eq_u32 s{sROT+cb}, 896")
                    p(f"s_cselect_b32 s{sROT+cb}, 0, s{sROT+cb}")
                self.xd.append(p(f"buffer_load_dwordx4 v{7 if half else vDX}, {srd(sX)}, s{sROT+cb} "
                                 f"offen{fl(o['nt_x'])} lds"))
            if n == o["xsplit"]:
                p("s_and_b32 s3, s2, 7")
                p("s_lshl_b32 s3, s3, 1")
                p(f"s_add_u32 s{sH}, s3, s4")
                if ng > 1:
                    if o["gsel"] == "b":
                        p(f"s_and_b32 s{sCLS}, s{sB}, {ng-1}")
                    elif o["gsel"] == "br":
                        p(f"s_mov_b32 s{sCLS}, s{sBR}")
                    else:
                        p(f"s_and_b32 s{sCLS}, s{sB}, {ng//2-1}")
                        p(f"s_lshl_b32 s{sCLS}, s{sCLS}, 1")
                        p(f"s_add_u32 s{sCLS}, s{sCLS}, s{sBR}")
                if o["codepf"] and o["codepf"] != "late":
                    p("s_getpc_b64 s[6:7]")
                    p("L_pc:")
                    p("s_mov_b32 s3, L_class0-L_pc")
                    for g in range(1, ng):
                        p(f"s_cmp_eq_u32 s{sCLS}, {g}")
                        p(f"s_cselect_b32 s3, L_class{g}-L_pc, s3")
                    p("s_add_u32 s6, s6, s3")
                    p("s_addc_u32 s7, s7, 0")
                    if o["codepf"] == "full":
                        p("v_min_u32 v5, 158, v0")
                        p("v_lshlrev_b32 v5, 7, v5")
                    else:
                        p(f"s_and_b32 s3, s{sB}, 6")
                        p("s_add_u32 s3, s3, s4")
                        p("s_mulk_i32 s3, 20")
                        p("v_min_u32 v5, 19, v0")
                        p("v_add_u32 v5, s3, v5")
                        p("v_min_u32 v5, 158, v5")
                        p("v_lshlrev_b32 v5, 7, v5")
                    p("global_load_dword v255, v5, s[6:7]", hidden=True)
                p(f"s_mul_i32 s{sRING}, s{sW}, {RSZ}")
                p(f"s_add_u32 s{sRING}, s{sRING}, {RING}")
                p("v_and_b32 v5, 1, v4")
                p("v_lshlrev_b32 v5, 2, v5")
                p("v_xor_b32 v5, v5, v3")
                p(f"s_lshl_b32 s{sW128}, s{sW}, 7")
                p(f"v_lshl_add_u32 v5, v5, 4, s{sW128}")
                if o.get("fakek"):
                    p(f"s_mov_b32 s{sW128}, 0")
                p(f"v_lshl_add_u32 v{vDQ}, v2, 13, v5")
                p(f"s_lshl_b32 s{sT0}, s{sB}, 6")
                p(f"v_xor_b32 v5, s{sT0}, v5")
                p(f"v_lshl_add_u32 v{vDV}, v2, 9, v5")
                for j in range(1, 4):
                    p(f"v_add_u32 v{vDQ+j}, {j*(65536-1024)}, v{vDQ}")
                p(f"s_lshl_b32 s{sT0}, s{sH}, 9")
                p(f"s_add_u32 s{sQ}, s94, s{sT0}")
                p(f"s_addc_u32 s{sQ+1}, s95, 0")
                p(f"s_sub_u32 s{sQ+2}, 3670016, s{sT0}")
                p(f"s_mov_b32 s{sQ+3}, 0x20000")
                p(f"s_lshl_b32 s{sGRP}, s{sBR}, 3")
                p(f"s_add_u32 s{sGRP}, s{sGRP}, s{sB}")
                p(f"s_mov_b32 s{sWS+2}, {PBASE + 16 * GRP}")
                p(f"s_mov_b32 s{sWS+3}, 0x20000")
                p(f"v_lshlrev_b32 v{vLIN}, 4, v{vL}")
        p(f"s_cmp_lg_u32 s{sH}, 15")
        p("s_cbranch_scc1 L_noclr")
        p(f"s_lshl_b32 s3, s{sGRP}, 2")
        p(f"s_add_u32 s3, s3, s{sW}")
        p("s_lshl_b32 s3, s3, 11")
        p(f"s_add_u32 s3, s3, {FBASE}")
        p(f"v_lshrrev_b32 v5, 2, v{vL}")
        p(f"v_and_b32 v6, 48, v{vLIN}")
        p("v_lshl_add_u32 v5, v5, 7, v6")
        for k in range(4):
            p(f"v_mov_b32 v{64+k}, 0")
        p(f"buffer_store_dwordx4 v[64:67], v5, {srd(sWS)}, s3 offen sc0 sc1", hidden=True)
        p("L_noclr:")
        for f in self.all_dma(2):
            f()
        p(f"s_lshl_b32 s{sT0}, s{sB}, 4")
        p(f"s_add_u32 s{sT0}, s{sT0}, s{sH}")
        p(f"s_xor_b32 s{sT1}, s{sBR}, 1")
        p(f"s_lshr_b32 s{sT0}, s{sT0}, s{sT1}")
        p(f"s_lshl_b32 s{sT0}, s{sT0}, 18")
        for r, src in ((sK, 90), (sV, 92)):
            p(f"s_add_u32 s{r}, s{src}, s{sT0}")
            p(f"s_addc_u32 s{r+1}, s{src+1}, 0")
            p(f"s_mov_b32 s{r+2}, 262144")
            p(f"s_mov_b32 s{r+3}, 0x20000")
        p(f"s_mul_i32 s{sT0}, s{sH}, 229376")
        p(f"s_add_u32 s{sO}, s86, s{sT0}")
        p(f"s_addc_u32 s{sO+1}, s87, 0")
        p(f"s_mov_b32 s{sO+2}, 229376")
        p(f"s_mov_b32 s{sO+3}, 0x20000")
        for r, src, n in ((sOUT, 96, 917504), (sDBG, 98, 256)):
            p(f"s_mov_b32 s{r}, s{src}")
            p(f"s_mov_b32 s{r+1}, s{src+1}")
            p(f"s_mov_b32 s{r+2}, {n}")
            p(f"s_mov_b32 s{r+3}, 0x20000")
        p(f"s_lshl_b32 s{sDO}, s{sGRP}, 4")
        if o.get("tlb0"):
            p("v_mov_b32 v5, 0")
            for r in (sK, sV, sO):
                p(f"buffer_load_dword v254, v5, {srd(r)}, 0 offen nt", hidden=True)
        p(f"s_lshl_b32 s{sXW}, s{sW}, {1 if o['ownfirst'] and not o.get('fakew') else 31}")
        p(f"s_xor_b32 s{sXW}, s{sXW}, s{sB}")
        p(f"s_lshl_b32 s{sXW}, s{sXW}, 1")
        p(f"s_mov_b32 s{sC}, {f32(math.log2(math.e) / 16)}")
        p("v_xor_b32 v5, v3, v4")
        p(f"s_lshl_b32 s{sT0}, s{sW}, 14")
        p(f"v_lshl_add_u32 v5, v5, 4, s{sT0}")
        p(f"v_lshl_add_u32 v{vDK}, v2, 9, v5")
        p(f"v_xor_b32 v5, 64, v{vDK}")
        p(f"v_add_u32 v{vDK+1}, 3072, v5")
        p(f"v_add_u32 v{vDK+2}, 6144, v{vDK}")
        p(f"v_add_u32 v{vDK+3}, 9216, v5")
        for j in range(1, 4):
            p(f"v_add_u32 v{vDV+j}, {j*3072}, v{vDV}")
        p(f"v_add_u32 v{vWR}, s{sT0}, v{vLIN}")
        for j in range(1, 4):
            p(f"v_xor_b32 v{vQA+j-1}, {j*16384}, v{vWR}")
        p(f"s_add_u32 s{sT0}, s{sT0}, 8192")
        p(f"v_lshl_add_u32 v{vIR}, v{vL}, 3, s{sT0}")
        p(f"v_bfe_u32 v5, v{vL}, 2, 2")
        p("v_xor_b32 v5, v5, v4")
        p(f"v_add_u32 v5, s{sT2}, v5")
        p("v_and_b32 v5, 3, v5")
        p(f"v_and_b32 v6, 48, v{vLIN}")
        p("v_lshl_add_u32 v5, v5, 6, v6")
        p("v_mul_u32_u24 v6, 896, v4")
        p(f"s_mul_i32 s{sT0}, s{sW}, 224")
        p(f"s_lshl_b32 s{sT1}, s{sT2}, 5")
        p(f"s_sub_u32 s{sT0}, s{sT0}, s{sT1}")
        p(f"v_add3_u32 v{vDO}, v5, v6, s{sT0}")
        for j in range(1, 4):
            p(f"v_add_u32 v{vDO+j}, {j*(3584-1024)}, v{vDO}")
        p(f"v_lshrrev_b32 v2, 5, v{vL}")
        p(f"v_bfe_u32 v3, v{vL}, 1, 3")
        p("v_xor_b32 v3, v3, v2")
        p(f"v_and_b32 v5, 31, v{vL}")
        p("v_lshlrev_b32 v5, 7, v5")
        p(f"v_lshl_add_u32 v{vRX}, v3, 4, v5")
        for j in range(1, 4):
            p(f"v_xor_b32 v{vRX+j}, {j*32}, v{vRX}")
        for j in range(4):
            p(f"v_add_u32 v{vRK+j}, s{sRING}, v{vRX+j}")
        p(f"v_and_b32 v3, 16, v{vLIN}")
        p(f"v_bfe_u32 v5, v{vL}, 1, 1")
        p("v_lshl_add_u32 v3, v5, 3, v3")
        p("v_and_b32 v5, 1, v4")
        p("v_lshl_add_u32 v3, v5, 5, v3")
        p(f"v_add_u32 v3, s{sRING}, v3")
        p(f"v_bfe_u32 v5, v{vL}, 2, 2")
        p(f"v_bfe_u32 v6, v{vL}, 3, 1")
        p("v_lshl_add_u32 v6, v6, 6, v3")
        p("v_lshl_add_u32 v6, v5, 7, v6")
        p(f"v_lshl_add_u32 v{vRQ}, v2, 10, v6")
        p(f"v_lshl_add_u32 v{vRV}, v2, 9, v6")
        p(f"v_xor_b32 v{vRQ+1}, 64, v{vRQ}")
        p(f"v_xor_b32 v{vRV+1}, 64, v{vRV}")
        p("v_mul_u32_u24 v6, 320, v5")
        p("v_add_u32 v6, v6, v3")
        p(f"v_lshl_add_u32 v{vRO}, v2, 11, v6")
        for t in range(1, 4):
            p(f"v_xor_b32 v{vRO+t}, {t*64}, v{vRO}")
        p(f"s_lshl_b32 s{sT1}, s{sT2}, 10")
        p(f"v_add_u32 v{vPA}, s{sT1}, v{vLIN}")
        p(f"v_xor_b32 v{vPA+1}, 0x400, v{vPA}")
        p(f"s_lshl_b32 s{sT0}, s{sW}, 9")
        p(f"s_add_u32 s{sT0}, s{sT0}, 8192")
        p(f"v_lshl_add_u32 v{vIW}, v{vL}, 3, s{sT0}")
        for g in range(1, ng):
            p(f"s_cmp_eq_u32 s{sCLS}, {g}")
            p(f"s_cbranch_scc1 L_class{g}")
        p("s_branch L_class0")
        p("L_exit:")
        p("s_endpgm")
        p(SPLIT)
        p(f"L_class{self.tag}:")
        p("s_barrier", after=self.xd)
        self.stamp()
        p(f"s_cmp_lg_u32 s{sH}, 15")
        p(f"s_cbranch_scc1 L_noset{self.tag}")
        p(f"s_lshl_b32 s3, s{sW}, 2")
        p(f"s_add_u32 s3, s3, s{sDO}")
        p("v_mov_b32 v2, 0")
        p("v_mov_b32 v3, 1")
        p("s_mov_b64 exec, 1")
        p(f"buffer_store_dword v3, v2, {srd(sDBG)}, s3 offen sc0 sc1", hidden=True)
        p("s_mov_b64 exec, -1")
        p(f"L_noset{self.tag}:")
        if o["kick"]:
            for f in self.all_dma():
                f()
        if o["codepf"] == "late":
            p("s_getpc_b64 s[6:7]")
            p(f"s_and_b32 s3, s{sB}, 6")
            p(f"s_and_b32 s4, s{sH}, 1")
            p("s_add_u32 s3, s3, s4")
            p("s_mulk_i32 s3, 20")
            p("v_min_u32 v5, 19, v0")
            p("v_add_u32 v5, s3, v5")
            p("v_min_u32 v5, 155, v5")
            p("v_lshlrev_b32 v5, 7, v5")
            p("global_load_dword v5, v5, s[6:7]")

    def store_setup(self):
        hm = self.o["headmajor"]
        L = [f"s_mul_i32 s3, s{sGRP}, {GRP}", f"s_mul_i32 s4, s{sH}, {57344 if hm else 2048}", "s_add_u32 s3, s3, s4",
             f"s_add_u32 s3, s3, {PBASE}", f"s_lshr_b32 s4, s{sW}, 1", "s_mul_i32 s4, s4, 7",
             f"s_mul_i32 s5, s{sT2}, 3", "s_add_u32 s4, s4, s5", f"s_lshl_b32 s7, s{sT2}, 1",
             f"v_mov_b32 v{vFL}, 0"]
        for t in range(4):
            L += [f"s_add_u32 s5, s{sT2}, {t}", "s_and_b32 s5, s5, 3", "s_add_u32 s5, s5, s4",
                  "s_lshr_b32 s6, s5, 1", "s_lshl_b32 s6, s6, 2", "s_and_b32 s5, s5, 1",
                  "s_add_u32 s5, s5, s6", "s_add_u32 s5, s5, s7"]
            for qi in range(2 if t < 3 else 1):
                if qi:
                    L.append("s_xor_b32 s5, s5, 2")
                L += [f"s_lshl_b32 s6, s5, {11 if hm else 15}", f"s_add_u32 s{sPT + 2*t + qi}, s6, s3", "s_lshl_b32 s6, s5, 8",
                      f"v_writelane_b32 v{vFL}, s6, {2*(2*t+qi)}", "s_add_u32 s6, s6, 128",
                      f"v_writelane_b32 v{vFL}, s6, {2*(2*t+qi)+1}"]
        return self.lines(L)

    def softmax_tile(self, t, packed=False):
        seq = []
        for qt in range(2):
            s = ACC + (t * 2 + qt) * 16
            m, l = vMC + t * 2 + qt, vLS + t * 2 + qt
            seq.append(f"v_max3_f32 v{m}, v{s}, v{s+1}, v{s+2}")
            for k in range(3, 15, 2):
                seq.append(f"v_max3_f32 v{m}, v{m}, v{s+k}, v{s+k+1}")
            seq.append(f"v_max_f32 v{m}, v{m}, v{s+15}")
            seq.append(f"v_mul_f32 v{m}, s{sC}, v{m}")
            if packed:
                for k in range(0, 16, 2):
                    seq.append(f"v_pk_fma_f32 {vr(s+k,2)}, {vr(s+k,2)}, s[{sC}:{sC+1}], {vr(m & ~1, 2)} "
                               f"op_sel:[0,0,{m & 1}] op_sel_hi:[1,0,{m & 1}] neg_lo:[0,0,1] neg_hi:[0,0,1]")
                for k in range(16):
                    seq.append(f"v_exp_f32 v{s+k}, v{s+k}")
                    if k == 4:
                        seq.append(f"v_pk_add_f32 v[2:3], {vr(s,2)}, {vr(s+2,2)}")
                    elif k > 4 and k % 2 == 0:
                        seq.append(f"v_pk_add_f32 v[2:3], v[2:3], {vr(s+k-2,2)}")
                seq.append(f"v_pk_add_f32 v[2:3], v[2:3], {vr(s+14,2)}")
                seq.append(f"v_add_f32 v{l}, v2, v3")
            else:
                for k in range(16):
                    seq.append(f"v_fma_f32 v{s+k}, v{s+k}, s{sC}, -v{m}")
                for k in range(16):
                    seq.append(f"v_exp_f32 v{s+k}, v{s+k}")
                    if k == 2:
                        seq.append(f"v_add_f32 v{l}, v{s}, v{s+1}")
                    elif k > 2:
                        seq.append(f"v_add_f32 v{l}, v{l}, v{s+k-1}")
                seq.append(f"v_add_f32 v{l}, v{l}, v{s+15}")
        return self.lines(seq)

    def softmax_combine(self):
        p = self.p
        T = 64
        L = []
        q = lambda t: L.append(lambda: p(t))
        w1 = []
        for qt in range(2):
            m = [vMC + t * 2 + qt for t in range(4)]
            q(f"v_max3_f32 v{T+qt}, v{m[0]}, v{m[1]}, v{m[2]}")
            q(f"v_max_f32 v{T+qt}, v{T+qt}, v{m[3]}")
        for k in range(8):
            q(f"v_sub_f32 v{T+4+k}, v{vMC+k}, v{T + k % 2}")
        for k in range(8):
            q(f"v_exp_f32 v{T+4+k}, v{T+4+k}")
        q(f"v_pk_mul_f32 {vr(T+2,2)}, {vr(vLS,2)}, {vr(T+4,2)}")
        for t in range(1, 4):
            q(f"v_pk_fma_f32 {vr(T+2,2)}, {vr(vLS+2*t,2)}, {vr(T+4+2*t,2)}, {vr(T+2,2)}")
        q(f"v_permlane32_swap_b32 v{T}, v{T+1}")
        q(f"v_permlane32_swap_b32 v{T+2}, v{T+3}")
        q(f"v_max_f32 v{T+8}, v{T}, v{T+1}")
        q(f"v_sub_f32 v{T+4}, v{T}, v{T+8}")
        q(f"v_sub_f32 v{T+5}, v{T+1}, v{T+8}")
        q(f"v_exp_f32 v{T+4}, v{T+4}")
        q(f"v_exp_f32 v{T+5}, v{T+5}")
        q(f"v_mul_f32 v{T+9}, v{T+2}, v{T+4}")
        q(f"v_fmac_f32 v{T+9}, v{T+3}, v{T+5}")
        for r in range(4):
            L.append(lambda r=r: w1.append(p(f"ds_write_b64 v{vIW}, {vr(T+8,2)} offset:{r*16384}")))
        L.append(lambda: p("s_barrier", after=w1))
        for r in range(4):
            q(f"ds_read_b64 {vr(T+10+2*r,2)}, v{vIR} offset:{r*512}")
        q(f"v_max3_f32 v{T}, v{T+10}, v{T+12}, v{T+14}")
        q(f"v_max_f32 v{T}, v{T}, v{T+16}")
        for r in range(4):
            q(f"v_sub_f32 v{T+4+r}, v{T+10+2*r}, v{T}")
        for r in range(4):
            q(f"v_exp_f32 v{T+4+r}, v{T+4+r}")
        q(f"v_mul_f32 v{T+1}, v{T+11}, v{T+4}")
        for r in range(1, 4):
            q(f"v_fmac_f32 v{T+1}, v{T+11+2*r}, v{T+4+r}")
        q(f"v_log_f32 v{T+1}, v{T+1}")
        q(f"v_add_f32 v{T}, v{T}, v{T+1}")
        q(f"v_mov_b32 v{T+1}, v{T}")
        q(f"v_permlane32_swap_b32 v{T}, v{T+1}")
        for k in range(8):
            q(f"v_sub_f32 v{vMC+k}, v{vMC+k}, v{T + k % 2}")
        for k in range(8):
            q(f"v_exp_f32 v{vMC+k}, v{vMC+k}")
        return L

    def publish_p(self, t, w, packed):
        p = self.p
        L = []
        for qt in range(2):
            s, f = ACC + (t * 2 + qt) * 16, vMC + t * 2 + qt
            for ks in range(2):
                b = s + ks * 8
                if packed:
                    L += self.lines([f"v_pk_mul_f32 {vr(b+k,2)}, {vr(b+k,2)}, {vr(f & ~1, 2)} "
                                     f"op_sel:[0,{f & 1}] op_sel_hi:[1,{f & 1}]" for k in range(0, 8, 2)])
                else:
                    L += self.lines([f"v_mul_f32 v{b+k}, v{b+k}, v{f}" for k in range(8)])
                L += self.lines([f"v_cvt_pk_bf16_f32 v{b+k}, v{b+2*k}, v{b+2*k+1}" for k in range(4)])
                x = f"ds_write_b128 v{vWR}, {vr(b,4)} offset:{((t*2+ks)*2+qt)*1024}"
                L.append(lambda x=x: w.append(p(x)))
        return L

    def out_proj(self, wq, ow, extra):
        p, o = self.p, self.o
        ks = o["ksplit"]
        assert 8 <= ks <= 16
        units = [(0, 0), (1, 0), (2, 0), (3, 0), (0, 1), (1, 1), (2, 1)]
        other = 160 - self.own

        nown = 4 if o["ownfirst"] else 0
        obar = o["obar"] if nown else -1

        def oreg(s, qi):
            if s < nown:
                b = self.own + s * 8
            elif s < ks:
                b = 240 + (s % 2) * 8
            else:
                b = other + (s - ks) * 8 if s - ks < 4 else self.own + (s - ks - 4) * 8
            return b + qi * 4

        def oread(s):
            if not nown:
                return self.lines([f"ds_read_b128 {vr(oreg(s, qi), 4)}, v{vPA+qi} "
                                   f"offset:{(s // 4)*16384 + (s % 4)*2048}" for qi in range(2)])
            return self.lines([f"ds_read_b128 {vr(oreg(s, qi), 4)}, v{(vQB if qi else vQA) + s // 4 - 1} "
                               f"offset:{(s % 4)*2048}" for qi in range(2)])

        def mfma(k, s):
            t, qi = units[k]
            acc = vr(ACC + 16 * k, 16)
            return f"{MF} {acc}, {ar(self.wreg(s) + t*4, 4)}, {vr(oreg(s, qi), 4)}, {'0' if s == 0 else acc}"

        def finish(k):
            t, qi = units[k]
            acc, d = ACC + 16 * k, (48, 56, 32)[k % 3]
            L = []
            for half in range(2):
                for j in range(4):
                    L.append(f"v_cvt_pk_bf16_f32 v{d+half*4+j}, v{acc+half*8+2*j}, v{acc+half*8+2*j+1}")
                off = " offset:1024" if half else ""
                if o.get("fakehalf") and half:
                    continue
                L.append(f"buffer_store_dwordx4 {vr(d+half*4,4)}, v{vLIN}, {srd(sWS)}, s{sPT+2*t+qi} "
                         f"offen{off}{fl(o['st_fl'])}")
            return L
        tail = list(range(ks, 16))
        wq = list(wq)
        if not nown:
            p("s_barrier", after=ow)
            for f in oread(0):
                f()
        for s in range(ks):
            late = []
            if s == obar:
                late.append(lambda: p("s_barrier", after=ow))
            if s + 1 >= nown and s + 1 < ks:
                late += oread(s + 1)
            if s >= obar:
                for _ in range((len(tail) + ks - s - 1) // (ks - s)):
                    if tail[0] - ks < 4 or s > tail[0] - ks - 4:
                        late += oread(tail.pop(0))
            early, rel = self.all_dma(), []
            for _ in range((len(wq) + ks - s - 1) // (ks - s) if len(wq) >= ks - s else min(1, len(wq))):
                u = wq.pop(0)
                assert int(u[1:]) > s
                if not self.unit.get(u, (0, []))[1]:
                    for f in early + self.all_dma(NSLOT):
                        f()
                    early = []
                it, d = self.unit_reads(u, 0)
                late += it
                rel.append((u, d))
            fill, extra = extra[:8], extra[8:]
            self.window([mfma(k, s) for k in range(7)], early, late, fill)
            for u, d in rel:
                self.release(u, d)
        assert not wq and not self.issue_q and not tail
        for f in extra:
            f()
        prev = []
        for k in range(7):
            chain = [mfma(k, s) for s in range(ks, 16)]
            for i, m in enumerate(chain):
                p(m)
                if i >= 1:
                    n = (len(prev) + len(chain) - i - 1) // (len(chain) - i)
                    for t in prev[:n]:
                        p(t)
                    prev = prev[n:]
            for t in prev:
                p(t)
            prev = finish(k)
        for t in prev:
            p(t)

    def tail_setup(self):
        return self.lines([
            f"s_lshl_b32 s{sJ}, s{sGRP}, 1", f"s_add_u32 s{sJ}, s{sJ}, s{sH}", f"s_and_b32 s{sJ}, s{sJ}, 15",
            f"s_lshl_b32 s3, s{sGRP}, 13", f"s_add_u32 s3, s3, {FBASE}",
            f"s_lshl_b32 s5, s{sJ}, 2", f"s_add_u32 s5, s5, s{sW}", "s_lshl_b32 s4, s5, 7",
            f"s_add_u32 s{sINB}, s3, s4", "v_mov_b32 v5, 1", "v_mov_b32 v7, 0",
            f"v_and_b32 v{vRDY}, v{vRDY}, v{vRDY+1}", f"v_and_b32 v{vRDY+2}, v{vRDY+2}, v{vRDY+3}",
            f"v_and_b32 v{vRDY}, v{vRDY}, v{vRDY+2}",
            f"s_mul_i32 s6, s{sGRP}, {GRP}", "s_lshr_b32 s4, s5, 1",
            f"s_lshl_b32 s4, s4, {11 if self.o['headmajor'] else 15}", "s_add_u32 s6, s6, s4",
            f"s_lshl_b32 s4, s{sT2}, 10", "s_add_u32 s6, s6, s4", f"s_add_u32 s6, s6, {PBASE}",
            f"s_lshl_b32 s7, s{sB}, 1", f"s_and_b32 s4, s{sJ}, 1", "s_add_u32 s7, s7, s4",
            f"s_mul_i32 s7, s7, {32*1792}", f"s_mul_i32 s4, s{sBR}, 896", "s_add_u32 s7, s7, s4",
            f"s_lshr_b32 s4, s{sJ}, 1", "s_lshl_b32 s4, s4, 7", "s_add_u32 s7, s7, s4",
            f"s_lshl_b32 s4, s{sW}, 5", "s_add_u32 s7, s7, s4",
            f"v_and_b32 v2, 31, v{vL}", "v_mul_u32_u24 v2, 1792, v2", f"v_lshrrev_b32 v3, 5, v{vL}",
            "v_lshl_add_u32 v2, v3, 4, v2"])

    def handoff(self):
        p, g = self.p, self.tag
        p(f"v_cmp_eq_u32 vcc, 1, v{vRDY}")
        p("s_mov_b32 s5, 100000")
        p("s_waitcnt vmcnt(0)")
        p(f"s_cbranch_vccnz L_go{g}")
        p(f"L_ready{g}:")
        p(f"buffer_load_dwordx4 {vr(vRDY,4)}, v7, {srd(sDBG)}, s{sDO} offen sc0 sc1")
        p("s_sub_u32 s5, s5, 1")
        p("s_cmp_eq_u32 s5, 0")
        p("s_waitcnt vmcnt(0)")
        p(f"s_cbranch_scc1 L_go{g}")
        p(f"v_and_b32 v{vRDY}, v{vRDY}, v{vRDY+1}")
        p(f"v_and_b32 v{vRDY+2}, v{vRDY+2}, v{vRDY+3}")
        p(f"v_and_b32 v{vRDY}, v{vRDY}, v{vRDY+2}")
        p(f"v_cmp_eq_u32 vcc, 1, v{vRDY}")
        p(f"s_cbranch_vccz L_ready{g}")
        p(f"L_go{g}:")
        p("s_mov_b64 exec, 0x3fff")
        p(f"buffer_atomic_add v5, v{vFL}, {srd(sWS)}, s3 offen sc1")
        p("s_mov_b64 exec, -1")

    def poll(self):
        p, g, d = self.p, self.tag, self.o["poll_depth"]
        regs = (3, 9, 10, 11)[:d]
        p("s_mov_b32 s5, 100000")
        p("s_mov_b64 exec, 1")

        def ask(r):
            p(f"v_mov_b32 v{r}, 0")
            p(f"buffer_atomic_add v{r}, v7, {srd(sWS)}, s{sINB} offen sc0 sc1", hidden=True)
        for r in regs[1:]:
            ask(r)
            for _ in range(self.o["poll_gap"]):
                p("s_nop 15")
        p(f"L_poll{g}:")
        for k in range(d):
            ask(regs[k])
            p(f"s_waitcnt vmcnt({d-1})")
            p(f"v_cmp_eq_u32 vcc, 16, v{regs[(k + 1) % d]}")
            p(f"s_cbranch_vccnz L_polled{g}")
        p("s_sub_u32 s5, s5, 1")
        p("s_cmp_lg_u32 s5, 0")
        p(f"s_cbranch_scc1 L_poll{g}")
        p(f"L_polled{g}:")
        p("s_mov_b64 exec, -1")

    def reduce(self):
        p = self.p
        D, A, T = 64, 48, 56
        if self.o.get("fakehalf"):
            p("s_bitset0_b32 s6, 10")
            p(f"s_lshl_b32 s4, s{sT2}, 14")
            p("s_add_u32 s6, s6, s4")
        for i in range(8 if self.o.get("fakehalf") else 16):
            if self.o["headmajor"]:
                p(f"buffer_load_dwordx4 {vr(D+4*i,4)}, v{vLIN}, {srd(sWS)}, s6 offen{fl(self.o['ld_fl'])}")
                p("s_add_u32 s6, s6, 57344")
                continue
            off = " offset:2048" if i % 2 else ""
            p(f"buffer_load_dwordx4 {vr(D+4*i,4)}, v{vLIN}, {srd(sWS)}, s6 offen{off}{fl(self.o['ld_fl'])}")
            if i % 2 and i < 15:
                p("s_addk_i32 s6, 4096")
        p("s_mov_b32 s4, 0xffff0000")
        for i in range(8 if self.o.get("fakehalf") else 16):
            for j in range(4):
                dst = A + 2 * j if i == 0 else T + 2 * j
                p(f"v_lshlrev_b32 v{dst}, 16, v{D+4*i+j}")
                p(f"v_and_b32 v{dst+1}, s4, v{D+4*i+j}")
            if i:
                for j in range(4):
                    p(f"v_pk_add_f32 {vr(A+2*j,2)}, {vr(A+2*j,2)}, {vr(T+2*j,2)}")
        for j in range(4):
            p(f"v_cvt_pk_bf16_f32 v{T+j}, v{A+2*j}, v{A+2*j+1}")
        p(f"buffer_store_dwordx4 {vr(T,4)}, v2, {srd(sOUT)}, s7 offen")

    def dump_stamps(self):
        p = self.p
        if not self.o["stamps"]:
            return
        p("s_waitcnt vmcnt(0)")
        self.stamp("end")
        p("s_lshl_b32 s3, s2, 2")
        p(f"s_add_u32 s3, s3, s{sW}")
        if self.o.get("trace"):
            p("s_lshl_b32 s4, s3, 8")
            p("s_add_u32 s4, s4, 0x40000")
            p(f"v_lshlrev_b32 v2, 2, v{vL}")
            p(f"buffer_store_dword v0, v2, {srd(sWS)}, s4 offen")
        p("s_lshl_b32 s3, s3, 6")
        p("v_mov_b32 v2, 0")
        p("s_mov_b64 exec, 1")
        for k in range(self.nstamp):
            p(f"v_mov_b32 v3, s{sST + k}")
            p(f"buffer_store_dword v3, v2, {srd(sWS)}, s3 offen offset:{4*k}")

    def body(self):
        p, o, sc, g = self.p, self.o, self.sc, self.tag
        las = o["la"] if isinstance(o["la"], (tuple, list)) else (o["la"],) * 4
        o["la"] = las[0]
        self.prologue()
        p("; phase 1")
        pend = self.run_phase(sc["ph1"], self.store_setup(), 8,
                              before=lambda u: [lambda: p("s_barrier")] if u == "Q9" else [])
        assert not self.fillq
        qw = self.last_window(pend, self.all_dma(min(o["la"], o["kcap2"])), lambda j, q: (vWR, (j * 2 + q) * 1024))
        self.stamp()
        p("; phase 2")
        o["la"] = las[1]
        cur = 160 - self.own
        self.bufs, self.buf = (cur, cur + 16), 0
        left = {t: 4 for t in range(4)}
        have = {0}
        more = [self.one_more() for _ in range(o["more1"])]

        def need_q(u):
            if u[0] == "W":
                return []
            i = int(u[1:]) % 4
            if i in have:
                return []
            L = []
            if len(have) == 1:
                L.append(lambda: p("s_barrier", after=qw))
            have.add(i)
            L += self.lines([f"ds_read_b128 {ar((i*8 + k)*4, 4)}, v{vQA+i-1} offset:{k*1024}" for k in range(8)])
            return L

        def tile_done(u):
            if u[0] == "W":
                return []
            t = int(u[1:]) // 4
            left[t] -= 1
            return self.softmax_tile(t) if left[t] == 0 else []
        pend = self.run_phase(sc["ph2"], (), o["fill_per"], after=tile_done, before=need_q)
        take, rest = self.fillq[:o["fill_per"]], self.fillq[o["fill_per"]:]
        self.window(pend, self.all_dma(), [], take)
        self.stamp()
        last = [t for t in left if left[t] == 1]
        assert len(last) == 1
        pw = []
        L = rest + self.softmax_tile(last[0], True) + self.softmax_combine() + \
            self.publish_p(0, pw, True) + self.publish_p(1, pw, True)
        self.spread(L, [self.stage(u) for u in sc["mid2"]] + [self.one_more() for _ in range(o["more2"])])
        p("s_barrier", after=pw)
        self.stamp()
        p("; phase 3")
        o["la"] = las[2]
        self.bufs, self.buf = (64, 96), 0
        pw = []
        setup = ["v_mov_b32 v2, 0", f"buffer_load_dwordx4 {vr(vRDY,4)}, v2, {srd(sDBG)}, s{sDO} offen",
                 f"s_lshl_b32 s3, s{sT2}, 10", f"v_add_u32 v{vWA}, s3, v{vWR}", f"v_xor_b32 v{vWB}, 0x400, v{vWA}"]
        if o.get("tlb"):
            setup += [f"s_mul_i32 s4, s{sB}, {64*1792}", f"buffer_load_dword v3, v2, {srd(sOUT)}, s4 offen{fl(o['tlb'] if o['tlb'] != True else '')}",
                      f"s_mul_i32 s4, s{sGRP}, {GRP}", f"s_add_u32 s4, s4, {PBASE - 128}",
                      f"buffer_load_dword v5, v2, {srd(sWS)}, s4 offen nt",
                      f"s_add_u32 s4, s4, {GRP}", f"buffer_load_dword v7, v2, {srd(sWS)}, s4 offen nt"]
        for j in range(3 if o["ownfirst"] else 0):
            setup += [f"v_add_u32 v{vQA+j}, s3, v{vQA+j}", f"v_xor_b32 v{vQB+j}, 0x400, v{vQA+j}"]
        fill = self.publish_p(2, pw, False) + self.publish_p(3, pw, False) + self.lines(setup)

        def p_ready(u):
            if u != "V8":
                return []
            L, self.fillq = self.fillq, []
            return L + [lambda: p("s_barrier", after=pw + self.side["V7"])]
        pend = self.run_phase(sc["ph3"], fill, o["fill3"], before=p_ready)
        o["la"] = las[3]
        self.stamp()
        ow = self.last_window(pend, self.all_dma(o["lastla"]), lambda j, q: (vWB if q else vWA, j * 2048))
        for f in self.all_dma(o["lastla2"]):
            f()
        self.stamp()
        p("; phase 4")
        self.out_proj(sc["ph4"], ow, self.tail_setup())
        self.stamp()
        self.handoff()
        self.stamp()
        if o["stamps"]:
            p(f"s_mov_b32 s{sST + self.nstamp}, s100")
        p(f"s_cmp_ge_u32 s{sJ}, 14")
        p(f"s_cbranch_scc1 L_fin{g}")
        self.poll()
        self.stamp()
        self.reduce()
        p(f"L_fin{g}:")
        self.dump_stamps()
        p("s_endpgm")
        if o.get("fake16"):
            out, cnt, ph = [], {}, 0
            for i in self.p.ins:
                if i.text.startswith("; phase"):
                    ph = i.text.split()[-1]
                if i.kind == "mfma" and ph in o["fake16"]:
                    m = re.match(r"\S+ v\[(\d+):\d+\], (\S+), (\S+), (\S+)", i.text)
                    a0 = int(m.group(1))
                    if m.group(4) == "0":
                        cnt[a0] = 0
                    for h in range(2):
                        n = cnt[a0]
                        a = a0 + 4 * (n % 4)
                        x, y = (m.group(2), m.group(3)) if h == 0 else (m.group(3), m.group(2))
                        out.append(Ins(f"v_mfma_f32_16x16x32_bf16 {vr(a,4)}, {x}, {y}, {'0' if n < 4 else vr(a,4)}"))
                        cnt[a0] += 1
                else:
                    out.append(i)
            self.p.ins = out
        if o.get("fake"):
            self.p.ins = [i for i in self.p.ins if i.kind != {"nodma": "dma", "nomfma": "mfma"}[o["fake"]]]
        return p.finalize()


NSTAMP = 0
ORDERS = []


def build(**kw):
    global NSTAMP
    ORDERS.clear()
    ref = open(f"cdna_kernels/{NAME}.s.ref").read().splitlines() if kw.pop("header", True) else []
    head = [l for l in ref if l.startswith(";") and "@launch" not in l and "Override" not in l
            and "grid=ceil" not in l]
    o = dict(DEFAULT, **kw)
    k1 = NAME + "_kernel"
    common, body = None, ""
    for i, spec in enumerate(o["groups"]):
        kc = dict(kw)
        if not isinstance(spec, str):
            kc.update(spec[1])
            spec = spec[0]
        g = Gen(schedule(spec, o["nmid"], kc.get("tper", o["tper"])), str(i), **kc)
        pre, post = g.body().split("    " + SPLIT + "\n")
        assert common in (None, pre)
        common = pre
        body += ".p2align 6\n" + post
        NSTAMP = g.nstamp if o["stamps"] else 0
        ORDERS.append(g.order)
    head.append("; @launch grid=(256,1,1) block=(256,1,1) lds=163840")
    return "\n".join(head) + f"""
.amdgcn_target "amdgcn-amd-amdhsa--gfx950"
.text
.globl {k1}
.p2align 8
.type {k1},@function
{k1}:
{common}{body}.section .rodata,"a"
.p2align 6
.amdhsa_kernel {k1}
  .amdhsa_next_free_vgpr 512
  .amdhsa_next_free_sgpr 102
  .amdhsa_accum_offset 256
  .amdhsa_group_segment_fixed_size 0
  .amdhsa_kernarg_size 104
  .amdhsa_user_sgpr_count 2
  .amdhsa_user_sgpr_kernarg_segment_ptr 1
  .amdhsa_system_sgpr_workgroup_id_x 1
.end_amdhsa_kernel
"""


if __name__ == "__main__":
    kw = {}
    out = sys.argv[1]
    for a in sys.argv[2:]:
        k, v = a.split("=", 1)
        try:
            kw[k] = eval(v)
        except (NameError, SyntaxError):
            kw[k] = v
    open(out, "w").write(build(**kw))
```

```python
import ast, math, re, struct, sys
from asmlib import Prog, Ins

NAME = "concat_heads__gqa_block_cached__mha_block_cached__near_ridge"
SH, RING, RSZ, NSLOT = 0, 65536, 24576, 6
XPOS = (0, 2, 4, 6, 1, 3, 5)
PBASE = 0x100000
FBASE = 0x10000
GRP = 917504

sX, sK, sV, sQ, sO, sWS, sOUT, sDBG = 8, 12, 16, 20, 24, 28, 32, 36
sW, sBR, sH, sB, sRING, sSO, sC, sGRP, sT0, sT1, sT2, sJ = 40, 41, 42, 43, 44, 45, 46, 47, 48, 49, 50, 51
sPT = 52
sINB, sDO, sXW = 59, 60, 61
sROT = 62
sW128, sCLS = 69, 84
sST = 70
vL, vFL, vIW, vIR = 1, 4, 6, 8
vDX, vDQ, vDK, vDV, vDO = 8, 9, 13, 17, 21
vRX, vRQ, vRK, vRV, vRO = 25, 29, 31, 35, 37
vLIN, vWR, vPA, vQA = 41, 42, 43, 45
vQB, vWA, vWB = 13, 16, 12
vMC, vLS = 48, 56
vRDY, vSEL = 28, 16
ACC = 128
MF = "v_mfma_f32_32x32x16_bf16"
SPLIT = "; class code"


def f32(x):
    return "0x%08x" % struct.unpack("<I", struct.pack("<f", x))[0]


def vr(a, n):
    return f"v[{a}:{a+n-1}]" if n > 1 else f"v{a}"


def ar(a, n):
    return f"a[{a}:{a+n-1}]" if n > 1 else f"a{a}"


def srd(b):
    return f"s[{b}:{b+3}]"


def fl(x):
    return f" {x}" if x else ""


def R(c, lo, hi):
    return [f"{c}{i}" for i in range(lo, hi)]


def cls(k, w, v, **kw):
    head = "Q14 K16" if k == 0 else f"Q2 K{k} Q12 K{16-k}"
    mid = f"W{w} V16" if (v == 0 or w == 2) else f"W2 V{v} W{w-2} V{16-v}"
    tail = f" W{16-w}" if w < 16 else ""
    return (f"{head} {mid}{tail}", dict(dict(ksplit=max(8, 16 - w)), **kw))


DEFAULT = dict(
    nt_kv="nt", nt_w="", nt_x="", stamps=False, st_fl="sc0 sc1", ld_fl="sc0 sc1",
    groups=(cls(0, 5, 0), cls(7, 8, 8), cls(4, 5, 0), cls(10, 8, 0)), gsel="bbr",
    fill_per=40, fill3=14, nmid=12, la=(4, 4, 4, 4), ksplit=8, more1=2, more2=1,
    poll_sleep=0, codepf=True, tper=2, hold=3, win=(0, 8, 1, 7), xrot=False, obar=2, xorder='cb', xsplit=13, kick=True, ownfirst=False, headmajor=False, rdy_fl='sc1', msum=True, early=0, early_min=6, kcap=9, kcap2=9, xcdrot=0, poll_depth=1, poll_gap=0, lastla=1, lastla2=3,
)


def schedule(spec, nmid, tper):
    issue = []
    cnt = dict(Q=0, K=0, V=0, W=0)
    for tok in spec.split():
        c, n = tok[0], int(tok[1:])
        issue += R(c, cnt[c], cnt[c] + n)
        cnt[c] += n
    assert cnt == dict(Q=14, K=16, V=16, W=16), cnt
    assert issue[:2] == ["Q0", "Q1"]
    iq, ik = issue.index("Q13"), issue.index("K15")
    ph1 = issue[:iq + 1]
    assert all(u[0] in "QK" for u in ph1)
    npre = sum(u[0] == "K" for u in ph1)
    assert npre <= 14
    rest = issue[iq + 1:ik + 1]
    assert all(u[0] in "KW" for u in rest)
    T = R("T", 0, npre)
    ph2 = [u for u in ("T0", "T4") if u in T]
    if npre > 10:
        ph2 += ["T1", "T2", "T3"]
    T = [u for u in T if u not in ph2]
    shift = 4 if npre > 10 else 0
    for u in rest:
        if u[0] == "W":
            assert int(u[1:]) < 8
            while T and int(T[0][1:]) <= int(u[1:]) + shift + 1:
                ph2.append(T.pop(0))
            assert not ph2 or ph2[-1] != f"T{int(u[1:]) + shift}"
            ph2.append(u)
        else:
            ph2 += [u] + T[:tper]
            T = T[tper:]
    ph2 += T
    after = issue[ik + 1:]
    mid2, held = [], 0
    for u in after:
        if u[0] == "V":
            held += 1
            if held > NSLOT - 4:
                break
        elif len(mid2) < nmid:
            mid2.append(u)
    ph3 = [u for u in after if u not in mid2]
    iv = ph3.index("V15")
    ph3, ph4 = ph3[:iv + 1], ph3[iv + 1:]
    return dict(issue=issue, ph1=ph1, ph2=ph2, mid2=mid2, ph3=ph3, ph4=ph4, npre=npre)


class Gen:
    def __init__(self, sched, tag, **kw):
        self.o = dict(DEFAULT)
        self.o.update(kw)
        self.p = Prog()
        self.sc = sched
        self.tag = tag
        self.issue_q = list(sched["issue"])
        self.free = [(s, []) for s in range(NSLOT)]
        self.unit = {}
        self.side = {}
        self.eaten, self.started = set(), set()
        self.order = []
        self.nstamp = 1
        self.bufs, self.buf = (64, 96), 0

    def lines(self, texts):
        return [(lambda t=t: self.p(t)) for t in texts]

    def stamp(self, name=""):
        if self.o["stamps"] and (self.o["stamps"] != "ends" or name == "end"):
            self.p(("s_memtime" if self.o["stamps"] == "cyc" else "s_memrealtime") + " s[100:101]")
            self.p("s_waitcnt lgkmcnt(0)")
            self.p(f"s_mov_b32 s{sST + self.nstamp}, s100")
            self.nstamp += 1
            assert self.nstamp <= 14

    def dma_items(self):
        name = self.issue_q.pop(0)
        slot, reads = self.free.pop(0)
        kind, u = name[0], int(name[1:])
        r, v, nt = {"Q": (sQ, vDQ, self.o["nt_w"]), "K": (sK, vDK, self.o.get("nt_k", self.o["nt_kv"])),
                    "V": (sV, vDV, self.o.get("nt_v", self.o["nt_kv"])), "W": (sO, vDO, self.o["nt_w"])}[kind]
        dm = []
        self.unit[name] = (slot, dm)
        p = self.p

        def head():
            p(f"s_add_u32 m0, s{sRING}, {slot*4096}")
            if kind == "Q":
                p(f"s_lshl_b32 s{sSO}, s{sROT + u // 2}, 12")
                if u % 2:
                    p(f"s_bitset1_b32 s{sSO}, 18")
            elif kind == "W":
                p(f"s_xor_b32 s{sSO}, s{sXW}, {u}")
                p(f"s_mulk_i32 s{sSO}, {16*896}")
            elif kind == "K":
                p(f"s_xor_b32 s{sSO}, s{sW128}, {(u // 4) * 65536 + (u % 4) * 128}")
            else:
                p(f"s_mov_b32 s{sSO}, {u * 16384}")

        def piece(j):
            def f():
                if j == 0:
                    head()
                off = f" offset:{1024*j}" if j else ""
                dm.append(p(f"buffer_load_dwordx4 v{v+j}, {srd(r)}, s{sSO} offen{off}{fl(nt)} lds",
                            after=reads if j == 0 else ()))
            return f
        return [piece(j) for j in range(4)]

    def all_dma(self, la=None):
        la = min(la or self.o["la"], NSLOT)
        out = []
        while self.issue_q and NSLOT - len(self.free) < la:
            out += self.dma_items()
        return out

    def one_more(self):
        def f():
            if self.issue_q and self.free:
                for g in self.dma_items():
                    g()
        return f

    def kreg(self, u, j):
        if self.sc["npre"] > 10:
            if u < 4:
                return vr(192 + 16 * u + 4 * j, 4)
            u -= 4
        return ar(self.wreg(u) + 4 * j, 4)

    @staticmethod
    def wreg(u):
        return 128 + 16 * u if u < 8 else 16 * (u - 8)

    def unit_reads(self, name, base):
        kind, u = name[0], int(name[1:])
        p = self.p
        items, done = [], []
        if kind == "T":
            return items, done
        slot, dm = self.unit[name]
        so = slot * 4096
        sd = self.side.setdefault(name, [])

        def ring(text, pieces):
            items.append(lambda: done.append(p(text, after=[dm[j] for j in pieces])))

        def side(text):
            items.append(lambda: sd.append(p(text)))
        if self.o.get("trace"):
            def mark():
                p("s_nop 0", after=list(dm))
                p("s_memrealtime s[100:101]")
                p("s_waitcnt lgkmcnt(0)")
                p(f"v_writelane_b32 v0, s100, {len(self.order)}")
                self.order.append(name)
            items.append(mark)
        if kind in "QV":
            for ks in range(2):
                for mt in range(2):
                    for part in range(2):
                        d = base + (ks * 2 + mt) * 4 + part * 2
                        if kind == "Q":
                            ring(f"ds_read_b64_tr_b16 {vr(d,2)}, v{vRQ+mt} offset:{so + ks*2048 + part*512}",
                                 (2 * ks, 2 * ks + 1))
                        else:
                            ring(f"ds_read_b64_tr_b16 {vr(d,2)}, v{vRV+mt} offset:{so + ks*2048 + part*1024}",
                                 (2 * ks + part,))
                    qt = mt
                    d = base + 16 + (ks * 2 + qt) * 4
                    if kind == "Q":
                        s = 2 * u + ks
                        side(f"ds_read_b128 {vr(d,4)}, v{vRX + s % 4} offset:{XPOS[s // 4]*8192 + qt*4096}")
                    else:
                        side(f"ds_read_b128 {vr(d,4)}, v{vPA+qt} offset:{(u % 4)*16384 + ((u // 4)*2 + ks)*2048}")
        elif kind == "K":
            for j in range(4):
                d = self.kreg(u, j) if u < self.sc["npre"] else vr(base + 4 * j, 4)
                ring(f"ds_read_b128 {d}, v{vRK+j} offset:{so}", range(4))
        elif kind == "W":
            for part in range(2):
                for t in range(4):
                    ring(f"ds_read_b64_tr_b16 {ar(self.wreg(u) + t*4 + part*2, 2)}, v{vRO+t} "
                         f"offset:{so + part*1024}", (part, 2 + part))
        return items, done

    def unit_mfmas(self, name, base):
        kind, u = name[0], int(name[1:])
        out = []
        if kind in "QV":
            order = [(ks, mt, qt) for ks in range(2) for mt, qt in ((0, 0), (1, 0), (0, 1), (1, 1))]
            if name in ("Q13", "V15"):
                order = [(ks, mt, qt) for mt in range(2) for qt in range(2) for ks in range(2)]
            for ks, mt, qt in order:
                acc = vr(ACC + (mt * 2 + qt) * 16, 16)
                c = "0" if (u == 0 and ks == 0) else acc
                out.append(f"{MF} {acc}, {vr(base + (ks*2+mt)*4, 4)}, {vr(base + 16 + (ks*2+qt)*4, 4)}, {c}")
        elif kind == "T" or (kind == "K" and u >= self.sc["npre"]):
            t, i = u // 4, u % 4
            first = t not in self.started
            self.started.add(t)
            for j in range(4):
                a = self.kreg(u, j) if kind == "T" else vr(base + 4 * j, 4)
                for qt in range(2):
                    acc = vr(ACC + (t * 2 + qt) * 16, 16)
                    b = vr(self.own + (j * 2 + qt) * 4, 4) if i == 0 else ar(((i * 4 + j) * 2 + qt) * 4, 4)
                    out.append(f"{MF} {acc}, {a}, {b}, {'0' if (first and j == 0) else acc}")
        return out

    def window(self, mfmas, early, late, fill):
        p = self.p
        n = len(mfmas)
        if n == 0:
            for f in fill + late + early:
                f()
            return
        gaps = [[] for _ in range(n)]
        e0, e1, l0, l1 = self.o["win"]
        e1, l1 = min(e1, n), min(l1, n - 1)
        for k, f in enumerate(early):
            gaps[e0 + k * (e1 - e0) // len(early)].append(f)
        for k, f in enumerate(late):
            gaps[l0 + k * (l1 - l0) // len(late)].append(f)
        for k, f in enumerate(fill):
            gaps[k * n // len(fill)].append(f)
        for m, g in zip(mfmas, gaps):
            p(m)
            for f in g:
                f()

    def release(self, nme, done):
        if nme[0] != "T":
            self.eaten.add(nme)
            self.free.append((self.unit[nme][0], done))

    def run_phase(self, units, fillq=(), per=0, after=None, before=None):
        pend, prev = [], None
        self.fillq = list(fillq)
        for nme in units:
            base = self.bufs[self.buf]
            mf = self.unit_mfmas(nme, base)
            if mf and nme[0] != "T":
                self.buf ^= 1
            la = self.o["la"] + (0 if pend else 1)
            if nme[0] == "V" and "V15" in self.unit:
                la = min(la, self.o["hold"])
            if nme[0] == "Q" and "Q13" in self.unit:
                la = min(la, 14 - int(nme[1:]) + self.o["kcap"])
            early = self.all_dma(la)
            if nme[0] != "T" and not self.unit[nme][1]:
                for f in early:
                    f()
                early = []
            late, done = self.unit_reads(nme, base)
            if before:
                late = before(nme) + late
            take, self.fillq = self.fillq[:per], self.fillq[per:]
            self.window(pend, early, late, take)
            if after and prev:
                self.fillq += after(prev)
            self.release(nme, done)
            pend, prev = mf, nme
        return pend

    def stage(self, nme):
        def f():
            held = sum(u[0] == "V" and u not in self.eaten for u in self.unit)
            early = self.all_dma(min(NSLOT, self.o["la"] + 1 + held))
            if not self.unit[nme][1]:
                for g in early:
                    g()
                early = []
            it, d = self.unit_reads(nme, 0)
            for g in it + early:
                g()
            self.release(nme, d)
        return f

    @staticmethod
    def spread(items, stages):
        n, k = len(stages), 0
        for i, f in enumerate(items):
            while k < n and (k + 0.5) * len(items) / n <= i:
                stages[k]()
                k += 1
            f()
        for g in stages[k:]:
            g()

    def last_window(self, mfmas, early, addr):
        p = self.p
        self.own = self.bufs[self.buf]
        w = []

        def pack(a):
            mt, q = a // 2, a % 2
            for ks in range(2):
                src = ACC + a * 16 + ks * 8
                d = self.own + ((2 * mt + ks) * 2 + q) * 4
                for k in range(4):
                    p(f"v_cvt_pk_bf16_f32 v{d+k}, v{src+2*k}, v{src+2*k+1}")
                reg, off = addr(2 * mt + ks, q)
                w.append(p(f"ds_write_b128 v{reg}, {vr(d,4)} offset:{off}"))
        early = list(early)
        for i, m in enumerate(mfmas):
            p(m)
            if i < 4:
                for f in early[i * len(early) // 4:(i + 1) * len(early) // 4]:
                    f()
            if i in (4, 6):
                pack((i - 4) // 2)
        pack(2)
        pack(3)
        return w

    def prologue(self):
        p, o = self.p, self.o
        ng = len(o["groups"])
        p("s_cmp_ge_u32 s2, 256")
        p("s_cbranch_scc1 L_exit")
        if o["stamps"]:
            p(("s_memtime" if o["stamps"] == "cyc" else "s_memrealtime") + f" s[{sST}:{sST+1}]")
        p(f"s_lshr_b32 s{sBR}, s2, 7")
        p(f"s_mul_i32 s5, s{sBR}, 40")
        p("s_add_u32 s6, s0, s5")
        p("s_addc_u32 s7, s1, 0")
        p("s_load_dwordx8 s[88:95], s[6:7], 0")
        p("s_load_dwordx2 s[86:87], s[6:7], 32")
        p(f"s_load_dwordx2 s[{sWS}:{sWS+1}], s[0:1], 96")
        p("s_load_dwordx4 s[96:99], s[0:1], 80")
        if o.get("headpf"):
            p("s_getpc_b64 s[10:11]")
            p("v_min_u32 v5, 12, v0")
            p("v_lshlrev_b32 v5, 7, v5")
            p("global_load_dword v254, v5, s[10:11]", hidden=True)
        p("v_lshrrev_b32 v7, 6, v0")
        p(f"v_and_b32 v{vL}, 63, v0")
        p(f"v_readfirstlane_b32 s{sW}, v7")
        p(f"v_lshrrev_b32 v2, 3, v{vL}")
        p(f"v_and_b32 v3, 7, v{vL}")
        p(f"v_lshrrev_b32 v4, 4, v{vL}")
        p(f"s_bfe_u32 s{sB}, s2, 0x30004")
        p("s_bfe_u32 s4, s2, 0x10003")
        p(f"s_and_b32 s{sT2}, s{sW}, 1")
        p(f"s_cmp_eq_u32 s{sB}, 7")
        p(f"s_cselect_b32 s{sROT}, 3, s{sB}")
        if o["xcdrot"]:
            p("s_and_b32 s3, s2, 7")
            if o["xcdrot"] > 1:
                p(f"s_mul_i32 s3, s3, {o['xcdrot']}")
            p(f"s_add_u32 s{sROT}, s{sROT}, s3")
            p(f"s_mul_i32 s3, s{sROT}, 37")
            p("s_lshr_b32 s3, s3, 8")
            p("s_mul_i32 s3, s3, 7")
            p(f"s_sub_u32 s{sROT}, s{sROT}, s3")
        p(f"s_lshl_b32 s{sROT}, s{sROT}, 7")
        p(f"s_lshl_b32 s{sT0}, s{sT2}, 2")
        p(f"v_add_u32 v5, s{sT0}, v4")
        p("v_xor_b32 v5, v5, v3")
        p(f"s_lshl_b32 s5, s4, {2 if o['xrot'] else 31}")
        p("s_and_b32 s5, s5, 4")
        p(f"s_add_u32 s5, s5, s{sW}")
        p(f"s_lshl_b32 s{sT0}, s5, 3")
        p(f"v_add_u32 v6, s{sT0}, v2")
        p("v_xor_b32 v7, 32, v6")
        p("v_mul_u32_u24 v6, 896, v6")
        p("v_mul_u32_u24 v7, 896, v7")
        p(f"v_lshl_add_u32 v{vDX}, v5, 4, v6")
        p("v_lshl_add_u32 v7, v5, 4, v7")
        p(f"s_lshl_b32 s{sT1}, s5, 10")
        p(f"s_mul_i32 s{sT0}, s{sB}, 57344")
        p(f"s_mov_b32 s{sX+2}, 57344")
        p(f"s_mov_b32 s{sX+3}, 0x20000")
        p("s_waitcnt lgkmcnt(0)")
        p(f"s_add_u32 s{sX}, s88, s{sT0}")
        p(f"s_addc_u32 s{sX+1}, s89, 0")
        self.xd = []
        p(f"s_xor_b32 s5, s{sT1}, 0x1000")
        seq = [(h, cb) for h in range(2) for cb in range(7)] if o["xorder"] == "half" else \
            [(h, cb) for cb in range(7) for h in range(2)]
        for n, (half, cb) in enumerate(seq):
            if True:
                p(f"s_add_u32 m0, s{5 if half else sT1}, {SH + XPOS[cb]*8192}")
                if half == 0 and cb:
                    p(f"s_add_u32 s{sROT+cb}, s{sROT+cb-1}, 128")
                    p(f"s_cmp_eq_u32 s{sROT+cb}, 896")
                    p(f"s_cselect_b32 s{sROT+cb}, 0, s{sROT+cb}")
                self.xd.append(p(f"buffer_load_dwordx4 v{7 if half else vDX}, {srd(sX)}, s{sROT+cb} "
                                 f"offen{fl(o['nt_x'])} lds"))
            if n == o["xsplit"]:
                p("s_and_b32 s3, s2, 7")
                p("s_lshl_b32 s3, s3, 1")
                p(f"s_add_u32 s{sH}, s3, s4")
                if ng > 1:
                    if o["gsel"] == "b":
                        p(f"s_and_b32 s{sCLS}, s{sB}, {ng-1}")
                    elif o["gsel"] == "br":
                        p(f"s_mov_b32 s{sCLS}, s{sBR}")
                    else:
                        p(f"s_and_b32 s{sCLS}, s{sB}, {ng//2-1}")
                        p(f"s_lshl_b32 s{sCLS}, s{sCLS}, 1")
                        p(f"s_add_u32 s{sCLS}, s{sCLS}, s{sBR}")
                if o["codepf"] and o["codepf"] != "late":
                    p("s_getpc_b64 s[6:7]")
                    p("L_pc:")
                    p("s_mov_b32 s3, L_class0-L_pc")
                    for g in range(1, ng):
                        p(f"s_cmp_eq_u32 s{sCLS}, {g}")
                        p(f"s_cselect_b32 s3, L_class{g}-L_pc, s3")
                    p("s_add_u32 s6, s6, s3")
                    p("s_addc_u32 s7, s7, 0")
                    if o["codepf"] == "full":
                        p(f"v_min_u32 v5, (L_codeend-L_class{ng-1})/128-1, v0")
                        p("v_lshlrev_b32 v5, 7, v5")
                    else:
                        p(f"s_and_b32 s3, s{sB}, 6")
                        p("s_add_u32 s3, s3, s4")
                        p("s_mulk_i32 s3, 20")
                        p("v_min_u32 v5, 19, v0")
                        p("v_add_u32 v5, s3, v5")
                        p(f"v_min_u32 v5, (L_codeend-L_class{ng-1})/128-1, v5")
                        p("v_lshlrev_b32 v5, 7, v5")
                    p("global_load_dword v255, v5, s[6:7]", hidden=True)
                p(f"s_mul_i32 s{sRING}, s{sW}, {RSZ}")
                p(f"s_add_u32 s{sRING}, s{sRING}, {RING}")
                p("v_and_b32 v5, 1, v4")
                p("v_lshlrev_b32 v5, 2, v5")
                p("v_xor_b32 v5, v5, v3")
                p(f"s_lshl_b32 s{sW128}, s{sW}, 7")
                p(f"v_lshl_add_u32 v5, v5, 4, s{sW128}")
                if o.get("fakek"):
                    p(f"s_mov_b32 s{sW128}, 0")
                p(f"v_lshl_add_u32 v{vDQ}, v2, 13, v5")
                p(f"s_lshl_b32 s{sT0}, s{sB}, 6")
                p(f"v_xor_b32 v5, s{sT0}, v5")
                p(f"v_lshl_add_u32 v{vDV}, v2, 9, v5")
                for j in range(1, 4):
                    p(f"v_add_u32 v{vDQ+j}, {j*(65536-1024)}, v{vDQ}")
                p(f"s_lshl_b32 s{sT0}, s{sH}, 9")
                p(f"s_add_u32 s{sQ}, s94, s{sT0}")
                p(f"s_addc_u32 s{sQ+1}, s95, 0")
                p(f"s_sub_u32 s{sQ+2}, 3670016, s{sT0}")
                p(f"s_mov_b32 s{sQ+3}, 0x20000")
                p(f"s_lshl_b32 s{sGRP}, s{sBR}, 3")
                p(f"s_add_u32 s{sGRP}, s{sGRP}, s{sB}")
                p(f"s_mov_b32 s{sWS+2}, {PBASE + 16 * GRP}")
                p(f"s_mov_b32 s{sWS+3}, 0x20000")
                p(f"v_lshlrev_b32 v{vLIN}, 4, v{vL}")
        p(f"s_cmp_lg_u32 s{sH}, 15")
        p("s_cbranch_scc1 L_noclr")
        p(f"s_lshl_b32 s3, s{sGRP}, 2")
        p(f"s_add_u32 s3, s3, s{sW}")
        p("s_lshl_b32 s3, s3, 11")
        p(f"s_add_u32 s3, s3, {FBASE}")
        p(f"v_lshrrev_b32 v5, 2, v{vL}")
        p(f"v_and_b32 v6, 48, v{vLIN}")
        p("v_lshl_add_u32 v5, v5, 7, v6")
        for k in range(4):
            p(f"v_mov_b32 v{64+k}, 0")
        p(f"buffer_store_dwordx4 v[64:67], v5, {srd(sWS)}, s3 offen sc0 sc1", hidden=True)
        p("L_noclr:")
        for f in self.all_dma(2):
            f()
        p(f"s_lshl_b32 s{sT0}, s{sB}, 4")
        p(f"s_add_u32 s{sT0}, s{sT0}, s{sH}")
        p(f"s_xor_b32 s{sT1}, s{sBR}, 1")
        p(f"s_lshr_b32 s{sT0}, s{sT0}, s{sT1}")
        p(f"s_lshl_b32 s{sT0}, s{sT0}, 18")
        for r, src in ((sK, 90), (sV, 92)):
            p(f"s_add_u32 s{r}, s{src}, s{sT0}")
            p(f"s_addc_u32 s{r+1}, s{src+1}, 0")
            p(f"s_mov_b32 s{r+2}, 262144")
            p(f"s_mov_b32 s{r+3}, 0x20000")
        p(f"s_mul_i32 s{sT0}, s{sH}, 229376")
        p(f"s_add_u32 s{sO}, s86, s{sT0}")
        p(f"s_addc_u32 s{sO+1}, s87, 0")
        p(f"s_mov_b32 s{sO+2}, 229376")
        p(f"s_mov_b32 s{sO+3}, 0x20000")
        for r, src, n in ((sOUT, 96, 917504), (sDBG, 98, 256)):
            p(f"s_mov_b32 s{r}, s{src}")
            p(f"s_mov_b32 s{r+1}, s{src+1}")
            p(f"s_mov_b32 s{r+2}, {n}")
            p(f"s_mov_b32 s{r+3}, 0x20000")
        p(f"s_lshl_b32 s{sDO}, s{sGRP}, 4")
        if o.get("tlb0"):
            p("v_mov_b32 v5, 0")
            for r in (sK, sV, sO):
                p(f"buffer_load_dword v254, v5, {srd(r)}, 0 offen nt", hidden=True)
        p(f"s_lshl_b32 s{sXW}, s{sW}, {1 if o['ownfirst'] and not o.get('fakew') else 31}")
        p(f"s_xor_b32 s{sXW}, s{sXW}, s{sB}")
        p(f"s_lshl_b32 s{sXW}, s{sXW}, 1")
        p(f"s_mov_b32 s{sC}, {f32(math.log2(math.e) / 16)}")
        p("v_xor_b32 v5, v3, v4")
        p(f"s_lshl_b32 s{sT0}, s{sW}, 14")
        p(f"v_lshl_add_u32 v5, v5, 4, s{sT0}")
        p(f"v_lshl_add_u32 v{vDK}, v2, 9, v5")
        p(f"v_xor_b32 v5, 64, v{vDK}")
        p(f"v_add_u32 v{vDK+1}, 3072, v5")
        p(f"v_add_u32 v{vDK+2}, 6144, v{vDK}")
        p(f"v_add_u32 v{vDK+3}, 9216, v5")
        for j in range(1, 4):
            p(f"v_add_u32 v{vDV+j}, {j*3072}, v{vDV}")
        p(f"v_add_u32 v{vWR}, s{sT0}, v{vLIN}")
        for j in range(1, 4):
            p(f"v_xor_b32 v{vQA+j-1}, {j*16384}, v{vWR}")
        p(f"s_add_u32 s{sT0}, s{sT0}, 8192")
        p(f"v_lshl_add_u32 v{vIR}, v{vL}, 3, s{sT0}")
        p(f"v_bfe_u32 v5, v{vL}, 2, 2")
        p("v_xor_b32 v5, v5, v4")
        p(f"v_add_u32 v5, s{sT2}, v5")
        p("v_and_b32 v5, 3, v5")
        p(f"v_and_b32 v6, 48, v{vLIN}")
        p("v_lshl_add_u32 v5, v5, 6, v6")
        p("v_mul_u32_u24 v6, 896, v4")
        p(f"s_mul_i32 s{sT0}, s{sW}, 224")
        p(f"s_lshl_b32 s{sT1}, s{sT2}, 5")
        p(f"s_sub_u32 s{sT0}, s{sT0}, s{sT1}")
        p(f"v_add3_u32 v{vDO}, v5, v6, s{sT0}")
        for j in range(1, 4):
            p(f"v_add_u32 v{vDO+j}, {j*(3584-1024)}, v{vDO}")
        p(f"v_lshrrev_b32 v2, 5, v{vL}")
        p(f"v_bfe_u32 v3, v{vL}, 1, 3")
        p("v_xor_b32 v3, v3, v2")
        p(f"v_and_b32 v5, 31, v{vL}")
        p("v_lshlrev_b32 v5, 7, v5")
        p(f"v_lshl_add_u32 v{vRX}, v3, 4, v5")
        for j in range(1, 4):
            p(f"v_xor_b32 v{vRX+j}, {j*32}, v{vRX}")
        for j in range(4):
            p(f"v_add_u32 v{vRK+j}, s{sRING}, v{vRX+j}")
        p(f"v_and_b32 v3, 16, v{vLIN}")
        p(f"v_bfe_u32 v5, v{vL}, 1, 1")
        p("v_lshl_add_u32 v3, v5, 3, v3")
        p("v_and_b32 v5, 1, v4")
        p("v_lshl_add_u32 v3, v5, 5, v3")
        p(f"v_add_u32 v3, s{sRING}, v3")
        p(f"v_bfe_u32 v5, v{vL}, 2, 2")
        p(f"v_bfe_u32 v6, v{vL}, 3, 1")
        p("v_lshl_add_u32 v6, v6, 6, v3")
        p("v_lshl_add_u32 v6, v5, 7, v6")
        p(f"v_lshl_add_u32 v{vRQ}, v2, 10, v6")
        p(f"v_lshl_add_u32 v{vRV}, v2, 9, v6")
        p(f"v_xor_b32 v{vRQ+1}, 64, v{vRQ}")
        p(f"v_xor_b32 v{vRV+1}, 64, v{vRV}")
        p("v_mul_u32_u24 v6, 320, v5")
        p("v_add_u32 v6, v6, v3")
        p(f"v_lshl_add_u32 v{vRO}, v2, 11, v6")
        for t in range(1, 4):
            p(f"v_xor_b32 v{vRO+t}, {t*64}, v{vRO}")
        p(f"s_lshl_b32 s{sT1}, s{sT2}, 10")
        p(f"v_add_u32 v{vPA}, s{sT1}, v{vLIN}")
        p(f"v_xor_b32 v{vPA+1}, 0x400, v{vPA}")
        p(f"s_lshl_b32 s{sT0}, s{sW}, 9")
        p(f"s_add_u32 s{sT0}, s{sT0}, 8192")
        p(f"v_lshl_add_u32 v{vIW}, v{vL}, 3, s{sT0}")
        for g in range(1, ng):
            p(f"s_cmp_eq_u32 s{sCLS}, {g}")
            p(f"s_cbranch_scc1 L_class{g}")
        p("s_branch L_class0")
        p("L_exit:")
        p("s_endpgm")
        p(SPLIT)
        p(f"L_class{self.tag}:")
        p("s_barrier", after=self.xd)
        self.stamp()
        p(f"s_cmp_lg_u32 s{sH}, 15")
        p(f"s_cbranch_scc1 L_noset{self.tag}")
        p(f"s_lshl_b32 s3, s{sW}, 2")
        p(f"s_add_u32 s3, s3, s{sDO}")
        p("v_mov_b32 v2, 0")
        p("v_mov_b32 v3, 1")
        p("s_mov_b64 exec, 1")
        p(f"buffer_store_dword v3, v2, {srd(sDBG)}, s3 offen sc0 sc1", hidden=True)
        p("s_mov_b64 exec, -1")
        p(f"L_noset{self.tag}:")
        if o["kick"]:
            for f in self.all_dma():
                f()
        if o["codepf"] == "late":
            p("s_getpc_b64 s[6:7]")
            p(f"s_and_b32 s3, s{sB}, 6")
            p(f"s_and_b32 s4, s{sH}, 1")
            p("s_add_u32 s3, s3, s4")
            p("s_mulk_i32 s3, 20")
            p("v_min_u32 v5, 19, v0")
            p("v_add_u32 v5, s3, v5")
            p("v_min_u32 v5, 155, v5")
            p("v_lshlrev_b32 v5, 7, v5")
            p("global_load_dword v5, v5, s[6:7]")

    def store_setup(self):
        hm = self.o["headmajor"]
        L = [f"s_mul_i32 s3, s{sGRP}, {GRP}", f"s_mul_i32 s4, s{sH}, {57344 if hm else 2048}", "s_add_u32 s3, s3, s4",
             f"s_add_u32 s3, s3, {PBASE}", f"s_lshr_b32 s4, s{sW}, 1", "s_mul_i32 s4, s4, 7",
             f"s_mul_i32 s5, s{sT2}, 3", "s_add_u32 s4, s4, s5", f"s_lshl_b32 s7, s{sT2}, 1",
             f"v_mov_b32 v{vFL}, 0"]
        for t in range(4):
            L += [f"s_add_u32 s5, s{sT2}, {t}", "s_and_b32 s5, s5, 3", "s_add_u32 s5, s5, s4",
                  "s_lshr_b32 s6, s5, 1", "s_lshl_b32 s6, s6, 2", "s_and_b32 s5, s5, 1",
                  "s_add_u32 s5, s5, s6", "s_add_u32 s5, s5, s7"]
            for qi in range(2 if t < 3 else 1):
                if qi:
                    L.append("s_xor_b32 s5, s5, 2")
                L += [f"s_lshl_b32 s6, s5, {11 if hm else 15}", f"s_add_u32 s{sPT + 2*t + qi}, s6, s3", "s_lshl_b32 s6, s5, 8",
                      f"v_writelane_b32 v{vFL}, s6, {2*(2*t+qi)}", "s_add_u32 s6, s6, 128",
                      f"v_writelane_b32 v{vFL}, s6, {2*(2*t+qi)+1}"]
        return self.lines(L)

    def softmax_tile(self, t, packed=False):
        seq = []
        for qt in range(2):
            s = ACC + (t * 2 + qt) * 16
            m, l = vMC + t * 2 + qt, vLS + t * 2 + qt
            seq.append(f"v_max3_f32 v{m}, v{s}, v{s+1}, v{s+2}")
            for k in range(3, 15, 2):
                seq.append(f"v_max3_f32 v{m}, v{m}, v{s+k}, v{s+k+1}")
            seq.append(f"v_max_f32 v{m}, v{m}, v{s+15}")
            seq.append(f"v_mul_f32 v{m}, s{sC}, v{m}")
            if packed:
                for k in range(0, 16, 2):
                    seq.append(f"v_pk_fma_f32 {vr(s+k,2)}, {vr(s+k,2)}, s[{sC}:{sC+1}], {vr(m & ~1, 2)} "
                               f"op_sel:[0,0,{m & 1}] op_sel_hi:[1,0,{m & 1}] neg_lo:[0,0,1] neg_hi:[0,0,1]")
                for k in range(16):
                    seq.append(f"v_exp_f32 v{s+k}, v{s+k}")
                    if k == 4:
                        seq.append(f"v_pk_add_f32 v[2:3], {vr(s,2)}, {vr(s+2,2)}")
                    elif k > 4 and k % 2 == 0:
                        seq.append(f"v_pk_add_f32 v[2:3], v[2:3], {vr(s+k-2,2)}")
                seq.append(f"v_pk_add_f32 v[2:3], v[2:3], {vr(s+14,2)}")
                seq.append(f"v_add_f32 v{l}, v2, v3")
            else:
                for k in range(16):
                    seq.append(f"v_fma_f32 v{s+k}, v{s+k}, s{sC}, -v{m}")
                for k in range(16):
                    seq.append(f"v_exp_f32 v{s+k}, v{s+k}")
                    if k == 2:
                        seq.append(f"v_add_f32 v{l}, v{s}, v{s+1}")
                    elif k > 2:
                        seq.append(f"v_add_f32 v{l}, v{l}, v{s+k-1}")
                seq.append(f"v_add_f32 v{l}, v{l}, v{s+15}")
        return self.lines(seq)

    def softmax_combine(self):
        p = self.p
        T = 64
        L = []
        q = lambda t: L.append(lambda: p(t))
        w1 = []
        for qt in range(2):
            m = [vMC + t * 2 + qt for t in range(4)]
            q(f"v_max3_f32 v{T+qt}, v{m[0]}, v{m[1]}, v{m[2]}")
            q(f"v_max_f32 v{T+qt}, v{T+qt}, v{m[3]}")
        for k in range(8):
            q(f"v_sub_f32 v{T+4+k}, v{vMC+k}, v{T + k % 2}")
        for k in range(8):
            q(f"v_exp_f32 v{T+4+k}, v{T+4+k}")
        q(f"v_pk_mul_f32 {vr(T+2,2)}, {vr(vLS,2)}, {vr(T+4,2)}")
        for t in range(1, 4):
            q(f"v_pk_fma_f32 {vr(T+2,2)}, {vr(vLS+2*t,2)}, {vr(T+4+2*t,2)}, {vr(T+2,2)}")
        q(f"v_permlane32_swap_b32 v{T}, v{T+1}")
        q(f"v_permlane32_swap_b32 v{T+2}, v{T+3}")
        q(f"v_max_f32 v{T+8}, v{T}, v{T+1}")
        q(f"v_sub_f32 v{T+4}, v{T}, v{T+8}")
        q(f"v_sub_f32 v{T+5}, v{T+1}, v{T+8}")
        q(f"v_exp_f32 v{T+4}, v{T+4}")
        q(f"v_exp_f32 v{T+5}, v{T+5}")
        q(f"v_mul_f32 v{T+9}, v{T+2}, v{T+4}")
        q(f"v_fmac_f32 v{T+9}, v{T+3}, v{T+5}")
        for r in range(4):
            L.append(lambda r=r: w1.append(p(f"ds_write_b64 v{vIW}, {vr(T+8,2)} offset:{r*16384}")))
        L.append(lambda: p("s_barrier", after=w1))
        for r in range(4):
            q(f"ds_read_b64 {vr(T+10+2*r,2)}, v{vIR} offset:{r*512}")
        q(f"v_max3_f32 v{T}, v{T+10}, v{T+12}, v{T+14}")
        q(f"v_max_f32 v{T}, v{T}, v{T+16}")
        for r in range(4):
            q(f"v_sub_f32 v{T+4+r}, v{T+10+2*r}, v{T}")
        for r in range(4):
            q(f"v_exp_f32 v{T+4+r}, v{T+4+r}")
        q(f"v_mul_f32 v{T+1}, v{T+11}, v{T+4}")
        for r in range(1, 4):
            q(f"v_fmac_f32 v{T+1}, v{T+11+2*r}, v{T+4+r}")
        q(f"v_log_f32 v{T+1}, v{T+1}")
        q(f"v_add_f32 v{T}, v{T}, v{T+1}")
        q(f"v_mov_b32 v{T+1}, v{T}")
        q(f"v_permlane32_swap_b32 v{T}, v{T+1}")
        for k in range(8):
            q(f"v_sub_f32 v{vMC+k}, v{vMC+k}, v{T + k % 2}")
        for k in range(8):
            q(f"v_exp_f32 v{vMC+k}, v{vMC+k}")
        return L

    def publish_p(self, t, w, packed):
        p = self.p
        L = []
        for qt in range(2):
            s, f = ACC + (t * 2 + qt) * 16, vMC + t * 2 + qt
            for ks in range(2):
                b = s + ks * 8
                if packed:
                    L += self.lines([f"v_pk_mul_f32 {vr(b+k,2)}, {vr(b+k,2)}, {vr(f & ~1, 2)} "
                                     f"op_sel:[0,{f & 1}] op_sel_hi:[1,{f & 1}]" for k in range(0, 8, 2)])
                else:
                    L += self.lines([f"v_mul_f32 v{b+k}, v{b+k}, v{f}" for k in range(8)])
                L += self.lines([f"v_cvt_pk_bf16_f32 v{b+k}, v{b+2*k}, v{b+2*k+1}" for k in range(4)])
                x = f"ds_write_b128 v{vWR}, {vr(b,4)} offset:{((t*2+ks)*2+qt)*1024}"
                L.append(lambda x=x: w.append(p(x)))
        return L

    def out_proj(self, wq, ow, extra):
        p, o = self.p, self.o
        ks = o["ksplit"]
        assert 8 <= ks <= 16
        units = [(0, 0), (1, 0), (2, 0), (3, 0), (0, 1), (1, 1), (2, 1)]
        other = 160 - self.own

        nown = 4 if o["ownfirst"] else 0
        obar = o["obar"] if nown else -1

        def oreg(s, qi):
            if s < nown:
                b = self.own + s * 8
            elif s < ks:
                b = 240 + (s % 2) * 8
            else:
                b = other + (s - ks) * 8 if s - ks < 4 else self.own + (s - ks - 4) * 8
            return b + qi * 4

        def oread(s):
            if not nown:
                return self.lines([f"ds_read_b128 {vr(oreg(s, qi), 4)}, v{vPA+qi} "
                                   f"offset:{(s // 4)*16384 + (s % 4)*2048}" for qi in range(2)])
            return self.lines([f"ds_read_b128 {vr(oreg(s, qi), 4)}, v{(vQB if qi else vQA) + s // 4 - 1} "
                               f"offset:{(s % 4)*2048}" for qi in range(2)])

        def mfma(k, s):
            t, qi = units[k]
            acc = vr(ACC + 16 * k, 16)
            return f"{MF} {acc}, {ar(self.wreg(s) + t*4, 4)}, {vr(oreg(s, qi), 4)}, {'0' if s == 0 else acc}"

        def finish(k):
            t, qi = units[k]
            acc, d = ACC + 16 * k, (48, 56, 32)[k % 3]
            L = []
            for half in range(2):
                for j in range(4):
                    L.append(f"v_cvt_pk_bf16_f32 v{d+half*4+j}, v{acc+half*8+2*j}, v{acc+half*8+2*j+1}")
                off = " offset:1024" if half else ""
                if o.get("fakehalf") and half:
                    continue
                L.append(f"buffer_store_dwordx4 {vr(d+half*4,4)}, v{vLIN}, {srd(sWS)}, s{sPT+2*t+qi} "
                         f"offen{off}{fl(o['st_fl'])}")
            return L
        tail = list(range(ks, 16))
        wq = list(wq)
        if not nown:
            p("s_barrier", after=ow)
            for f in oread(0):
                f()
        for s in range(ks):
            late = []
            if s == obar:
                late.append(lambda: p("s_barrier", after=ow))
            if s + 1 >= nown and s + 1 < ks:
                late += oread(s + 1)
            if s >= obar:
                for _ in range((len(tail) + ks - s - 1) // (ks - s)):
                    if tail[0] - ks < 4 or s > tail[0] - ks - 4:
                        late += oread(tail.pop(0))
            early, rel = self.all_dma(), []
            for _ in range((len(wq) + ks - s - 1) // (ks - s) if len(wq) >= ks - s else min(1, len(wq))):
                u = wq.pop(0)
                assert int(u[1:]) > s
                if not self.unit.get(u, (0, []))[1]:
                    for f in early + self.all_dma(NSLOT):
                        f()
                    early = []
                it, d = self.unit_reads(u, 0)
                late += it
                rel.append((u, d))
            fill, extra = extra[:8], extra[8:]
            self.window([mfma(k, s) for k in range(7)], early, late, fill)
            for u, d in rel:
                self.release(u, d)
        assert not wq and not self.issue_q and not tail
        for f in extra:
            f()
        prev = []
        for k in range(7):
            chain = [mfma(k, s) for s in range(ks, 16)]
            for i, m in enumerate(chain):
                p(m)
                if i >= 1:
                    n = (len(prev) + len(chain) - i - 1) // (len(chain) - i)
                    for t in prev[:n]:
                        p(t)
                    prev = prev[n:]
            for t in prev:
                p(t)
            prev = finish(k)
        for t in prev:
            p(t)

    def tail_setup(self):
        return self.lines([
            f"s_lshl_b32 s{sJ}, s{sGRP}, 1", f"s_add_u32 s{sJ}, s{sJ}, s{sH}", f"s_and_b32 s{sJ}, s{sJ}, 15",
            f"s_lshl_b32 s3, s{sGRP}, 13", f"s_add_u32 s3, s3, {FBASE}",
            f"s_lshl_b32 s5, s{sJ}, 2", f"s_add_u32 s5, s5, s{sW}", "s_lshl_b32 s4, s5, 7",
            f"s_add_u32 s{sINB}, s3, s4", "v_mov_b32 v5, 1", "v_mov_b32 v7, 0",
            f"v_lshlrev_b32 v5, {'s%d' % sH if self.o['early'] else 0}, v5",
            f"v_and_b32 v{vRDY}, v{vRDY}, v{vRDY+1}", f"v_and_b32 v{vRDY+2}, v{vRDY+2}, v{vRDY+3}",
            f"v_and_b32 v{vRDY}, v{vRDY}, v{vRDY+2}",
            f"s_mul_i32 s6, s{sGRP}, {GRP}", "s_lshr_b32 s4, s5, 1",
            f"s_lshl_b32 s4, s4, {11 if self.o['headmajor'] else 15}", "s_add_u32 s6, s6, s4",
            f"s_lshl_b32 s4, s{sT2}, 10", "s_add_u32 s6, s6, s4", f"s_add_u32 s6, s6, {PBASE}",
            f"s_lshl_b32 s7, s{sB}, 1", f"s_and_b32 s4, s{sJ}, 1", "s_add_u32 s7, s7, s4",
            f"s_mul_i32 s7, s7, {32*1792}", f"s_mul_i32 s4, s{sBR}, 896", "s_add_u32 s7, s7, s4",
            f"s_lshr_b32 s4, s{sJ}, 1", "s_lshl_b32 s4, s4, 7", "s_add_u32 s7, s7, s4",
            f"s_lshl_b32 s4, s{sW}, 5", "s_add_u32 s7, s7, s4",
            f"v_and_b32 v2, 31, v{vL}", "v_mul_u32_u24 v2, 1792, v2", f"v_lshrrev_b32 v3, 5, v{vL}",
            "v_lshl_add_u32 v2, v3, 4, v2"] + (self.select_setup() if self.o["msum"] else []))

    @staticmethod
    def select_setup():
        L = [f"v_bfe_u32 v9, v{vL}, 2, 1", "v_xor_b32 v9, v9, v3", f"v_bfe_u32 v10, v{vL}, 4, 1",
             "v_or_b32 v9, v9, v10", "v_lshlrev_b32 v9, 2, v9", f"v_bfe_u32 v10, v{vL}, 3, 1",
             "v_lshl_add_u32 v9, v10, 1, v9", f"v_bfe_u32 v10, v{vL}, 1, 1", "v_add_u32 v9, v9, v10",
             f"v_and_b32 v10, 1, v{vL}", "v_lshlrev_b32 v10, 4, v10", "v_mov_b32 v11, 0x3f80",
             "v_lshlrev_b32 v10, v10, v11"]
        for k in range(4):
            L += [f"v_cmp_eq_u32 vcc, {k}, v9", f"v_cndmask_b32 v{vSEL+k}, 0, v10, vcc"]
        return L

    def handoff(self):
        p, g = self.p, self.tag
        p(f"v_cmp_eq_u32 vcc, 1, v{vRDY}")
        p("s_mov_b32 s5, 100000")
        p("s_waitcnt vmcnt(0)")
        p(f"s_cbranch_vccnz L_go{g}")
        p(f"L_ready{g}:")
        p(f"buffer_load_dwordx4 {vr(vRDY,4)}, v7, {srd(sDBG)}, s{sDO} offen sc0 sc1")
        p("s_sub_u32 s5, s5, 1")
        p("s_cmp_eq_u32 s5, 0")
        p("s_waitcnt vmcnt(0)")
        p(f"s_cbranch_scc1 L_go{g}")
        p(f"v_and_b32 v{vRDY}, v{vRDY}, v{vRDY+1}")
        p(f"v_and_b32 v{vRDY+2}, v{vRDY+2}, v{vRDY+3}")
        p(f"v_and_b32 v{vRDY}, v{vRDY}, v{vRDY+2}")
        p(f"v_cmp_eq_u32 vcc, 1, v{vRDY}")
        p(f"s_cbranch_vccz L_ready{g}")
        p(f"L_go{g}:")
        p("s_mov_b64 exec, 0x3fff")
        p(f"buffer_atomic_add v5, v{vFL}, {srd(sWS)}, s3 offen sc1")
        p("s_mov_b64 exec, -1")

    def poll(self):
        p, g, d = self.p, self.tag, self.o["poll_depth"]
        regs = (3, 9, 10, 11)[:d]
        p("s_mov_b32 s5, 100000")
        p("s_mov_b64 exec, 1")

        def ask(r):
            p(f"v_mov_b32 v{r}, 0")
            p(f"buffer_atomic_add v{r}, v7, {srd(sWS)}, s{sINB} offen sc0 sc1", hidden=True)
        for r in regs[1:]:
            ask(r)
            for _ in range(self.o["poll_gap"]):
                p("s_nop 15")
        p(f"L_poll{g}:")
        for k in range(d):
            ask(regs[k])
            p(f"s_waitcnt vmcnt({d-1})")
            p(f"v_cmp_eq_u32 vcc, 16, v{regs[(k + 1) % d]}")
            p(f"s_cbranch_vccnz L_polled{g}")
        p("s_sub_u32 s5, s5, 1")
        p("s_cmp_lg_u32 s5, 0")
        p(f"s_cbranch_scc1 L_poll{g}")
        p(f"L_polled{g}:")
        p("s_mov_b64 exec, -1")

    def gather(self):
        p, g = self.p, self.tag
        p("s_mov_b32 s5, 100000")
        p(f"s_mov_b32 s{sT0}, 0")
        p(f"s_mov_b32 s{sSO}, {self.o['early']}")
        p(f"L_poll{g}:")
        p("s_mov_b64 exec, 1")
        p("v_mov_b32 v3, 0")
        p(f"buffer_atomic_add v3, v7, {srd(sWS)}, s{sINB} offen sc0 sc1", hidden=True)
        p("s_mov_b64 exec, -1")
        p("s_sub_u32 s5, s5, 1")
        p("s_cmp_eq_u32 s5, 0")
        p("s_waitcnt vmcnt(0)")
        p(f"s_cbranch_scc1 L_polled{g}")
        p("v_readfirstlane_b32 s4, v3")
        p("s_cmp_eq_u32 s4, 0xffff")
        p(f"s_cbranch_scc1 L_take{g}")
        p(f"s_cmp_eq_u32 s{sSO}, 0")
        p(f"s_cbranch_scc1 L_poll{g}")
        p(f"s_andn2_b32 s{sT1}, s4, s{sT0}")
        p(f"s_bcnt1_i32_b32 s{sT1}, s{sT1}")
        p(f"s_cmp_lt_u32 s{sT1}, {self.o['early_min']}")
        p(f"s_cbranch_scc1 L_poll{g}")
        p(f"s_sub_u32 s{sSO}, s{sSO}, 1")
        p(f"L_take{g}:")
        p(f"s_andn2_b32 s{sT1}, s4, s{sT0}")
        p(f"s_mov_b32 s{sT0}, s4")
        for i in range(16):
            p(f"s_bitcmp0_b32 s{sT1}, {i}")
            p(f"s_cbranch_scc1 L_skip{g}_{i}")
            p(f"s_add_u32 s4, s6, {2048*i}")
            p(f"buffer_load_dwordx4 {vr(64+4*i,4)}, v{vLIN}, {srd(sWS)}, s4 offen{fl(self.o['ld_fl'])}", hidden=True)
            p(f"L_skip{g}_{i}:")
        p(f"s_cmp_lg_u32 s{sT0}, 0xffff")
        p(f"s_cbranch_scc1 L_poll{g}")
        p(f"L_polled{g}:")
        p("s_waitcnt vmcnt(0)")

    def reduce(self):
        p = self.p
        D, A, T = 64, 48, 56
        if self.o.get("fakehalf"):
            p("s_bitset0_b32 s6, 10")
            p(f"s_lshl_b32 s4, s{sT2}, 14")
            p("s_add_u32 s6, s6, s4")
        for i in range(0 if self.o["early"] else 8 if self.o.get("fakehalf") else 16):
            if self.o["headmajor"]:
                p(f"buffer_load_dwordx4 {vr(D+4*i,4)}, v{vLIN}, {srd(sWS)}, s6 offen{fl(self.o['ld_fl'])}")
                p("s_add_u32 s6, s6, 57344")
                continue
            off = " offset:2048" if i % 2 else ""
            p(f"buffer_load_dwordx4 {vr(D+4*i,4)}, v{vLIN}, {srd(sWS)}, s6 offen{off}{fl(self.o['ld_fl'])}")
            if i % 2 and i < 15:
                p("s_addk_i32 s6, 4096")
        if self.o["msum"]:
            for i in range(16):
                p(f"{MF} {vr(ACC,16)}, {vr(vSEL,4)}, {vr(D+4*i,4)}, {vr(ACC,16) if i else 0}")
            for j in range(4):
                p(f"v_cvt_pk_bf16_f32 v{T+j}, v{ACC+2*j}, v{ACC+2*j+1}")
            p(f"buffer_store_dwordx4 {vr(T,4)}, v2, {srd(sOUT)}, s7 offen")
            return
        p("s_mov_b32 s4, 0xffff0000")
        for i in range(8 if self.o.get("fakehalf") else 16):
            for j in range(4):
                dst = A + 2 * j if i == 0 else T + 2 * j
                p(f"v_lshlrev_b32 v{dst}, 16, v{D+4*i+j}")
                p(f"v_and_b32 v{dst+1}, s4, v{D+4*i+j}")
            if i:
                for j in range(4):
                    p(f"v_pk_add_f32 {vr(A+2*j,2)}, {vr(A+2*j,2)}, {vr(T+2*j,2)}")
        for j in range(4):
            p(f"v_cvt_pk_bf16_f32 v{T+j}, v{A+2*j}, v{A+2*j+1}")
        p(f"buffer_store_dwordx4 {vr(T,4)}, v2, {srd(sOUT)}, s7 offen")

    def dump_stamps(self):
        p = self.p
        if not self.o["stamps"]:
            return
        p("s_waitcnt vmcnt(0)")
        self.stamp("end")
        p("s_lshl_b32 s3, s2, 2")
        p(f"s_add_u32 s3, s3, s{sW}")
        if self.o.get("trace"):
            p("s_lshl_b32 s4, s3, 8")
            p("s_add_u32 s4, s4, 0x40000")
            p(f"v_lshlrev_b32 v2, 2, v{vL}")
            p(f"buffer_store_dword v0, v2, {srd(sWS)}, s4 offen")
        p("s_lshl_b32 s3, s3, 6")
        p("v_mov_b32 v2, 0")
        p("s_mov_b64 exec, 1")
        for k in range(self.nstamp):
            p(f"v_mov_b32 v3, s{sST + k}")
            p(f"buffer_store_dword v3, v2, {srd(sWS)}, s3 offen offset:{4*k}")

    def body(self):
        p, o, sc, g = self.p, self.o, self.sc, self.tag
        las = o["la"] if isinstance(o["la"], (tuple, list)) else (o["la"],) * 4
        o["la"] = las[0]
        self.prologue()
        p("; phase 1")
        pend = self.run_phase(sc["ph1"], self.store_setup(), 8,
                              before=lambda u: [lambda: p("s_barrier")] if u == "Q9" else [])
        assert not self.fillq
        qw = self.last_window(pend, self.all_dma(min(o["la"], o["kcap2"])), lambda j, q: (vWR, (j * 2 + q) * 1024))
        self.stamp()
        p("; phase 2")
        o["la"] = las[1]
        cur = 160 - self.own
        self.bufs, self.buf = (cur, cur + 16), 0
        left = {t: 4 for t in range(4)}
        have = {0}
        more = [self.one_more() for _ in range(o["more1"])]

        def need_q(u):
            if u[0] == "W":
                return []
            i = int(u[1:]) % 4
            if i in have:
                return []
            L = []
            if len(have) == 1:
                L.append(lambda: p("s_barrier", after=qw))
            have.add(i)
            L += self.lines([f"ds_read_b128 {ar((i*8 + k)*4, 4)}, v{vQA+i-1} offset:{k*1024}" for k in range(8)])
            return L

        def tile_done(u):
            if u[0] == "W":
                return []
            t = int(u[1:]) // 4
            left[t] -= 1
            return self.softmax_tile(t) if left[t] == 0 else []
        pend = self.run_phase(sc["ph2"], (), o["fill_per"], after=tile_done, before=need_q)
        take, rest = self.fillq[:o["fill_per"]], self.fillq[o["fill_per"]:]
        self.window(pend, self.all_dma(), [], take)
        self.stamp()
        last = [t for t in left if left[t] == 1]
        assert len(last) == 1
        pw = []
        L = rest + self.softmax_tile(last[0], True) + self.softmax_combine() + \
            self.publish_p(0, pw, True) + self.publish_p(1, pw, True)
        self.spread(L, [self.stage(u) for u in sc["mid2"]] + [self.one_more() for _ in range(o["more2"])])
        p("s_barrier", after=pw)
        self.stamp()
        p("; phase 3")
        o["la"] = las[2]
        self.bufs, self.buf = (64, 96), 0
        pw = []
        setup = ["v_mov_b32 v2, 0", f"buffer_load_dwordx4 {vr(vRDY,4)}, v2, {srd(sDBG)}, s{sDO} offen{fl(o['rdy_fl'])}",
                 f"s_lshl_b32 s3, s{sT2}, 10", f"v_add_u32 v{vWA}, s3, v{vWR}", f"v_xor_b32 v{vWB}, 0x400, v{vWA}"]
        if o.get("tlb"):
            setup += [f"s_mul_i32 s4, s{sB}, {64*1792}", f"buffer_load_dword v3, v2, {srd(sOUT)}, s4 offen{fl(o['tlb'] if o['tlb'] != True else '')}",
                      f"s_mul_i32 s4, s{sGRP}, {GRP}", f"s_add_u32 s4, s4, {PBASE - 128}",
                      f"buffer_load_dword v5, v2, {srd(sWS)}, s4 offen nt",
                      f"s_add_u32 s4, s4, {GRP}", f"buffer_load_dword v7, v2, {srd(sWS)}, s4 offen nt"]
        for j in range(3 if o["ownfirst"] else 0):
            setup += [f"v_add_u32 v{vQA+j}, s3, v{vQA+j}", f"v_xor_b32 v{vQB+j}, 0x400, v{vQA+j}"]
        fill = self.publish_p(2, pw, False) + self.publish_p(3, pw, False) + self.lines(setup)

        def p_ready(u):
            if u != "V8":
                return []
            L, self.fillq = self.fillq, []
            return L + [lambda: p("s_barrier", after=pw + self.side["V7"])]
        pend = self.run_phase(sc["ph3"], fill, o["fill3"], before=p_ready)
        o["la"] = las[3]
        self.stamp()
        ow = self.last_window(pend, self.all_dma(o["lastla"]), lambda j, q: (vWB if q else vWA, j * 2048))
        for f in self.all_dma(o["lastla2"]):
            f()
        self.stamp()
        p("; phase 4")
        self.out_proj(sc["ph4"], ow, self.tail_setup())
        self.stamp()
        self.handoff()
        self.stamp()
        if o["stamps"]:
            p(f"s_mov_b32 s{sST + self.nstamp}, s100")
        p(f"s_cmp_ge_u32 s{sJ}, 14")
        p(f"s_cbranch_scc1 L_fin{g}")
        if o["early"]:
            self.gather()
        else:
            self.poll()
        self.stamp()
        self.reduce()
        p(f"L_fin{g}:")
        self.dump_stamps()
        p("s_endpgm")
        if o.get("fake16"):
            out, cnt, ph = [], {}, 0
            for i in self.p.ins:
                if i.text.startswith("; phase"):
                    ph = i.text.split()[-1]
                if i.kind == "mfma" and ph in o["fake16"]:
                    m = re.match(r"\S+ v\[(\d+):\d+\], (\S+), (\S+), (\S+)", i.text)
                    a0 = int(m.group(1))
                    if m.group(4) == "0":
                        cnt[a0] = 0
                    for h in range(2):
                        n = cnt[a0]
                        a = a0 + 4 * (n % 4)
                        x, y = (m.group(2), m.group(3)) if h == 0 else (m.group(3), m.group(2))
                        out.append(Ins(f"v_mfma_f32_16x16x32_bf16 {vr(a,4)}, {x}, {y}, {'0' if n < 4 else vr(a,4)}"))
                        cnt[a0] += 1
                else:
                    out.append(i)
            self.p.ins = out
        if o.get("fake"):
            self.p.ins = [i for i in self.p.ins if i.kind != {"nodma": "dma", "nomfma": "mfma"}[o["fake"]]]
        return p.finalize()


DOC = """
;
; One workgroup (4 waves, 512 registers each) per (branch, batch, head); id = branch*128 + batch*16 + (head&1)*8 + head/2.
;   phase 4  partial^T = Wo^T O^T    bf16 partial sums go to d_ws; 14 workgroups per (branch, batch) add the 16 heads
"""
NSTAMP = 0
ORDERS = []


def build(**kw):
    global NSTAMP
    ORDERS.clear()
    ref = open(f"cdna_kernels/{NAME}.s.ref").read().splitlines() if kw.pop("header", True) else []
    head = [l for l in ref if l.startswith(";") and "@launch" not in l and "Override" not in l
            and "grid=ceil" not in l]
    o = dict(DEFAULT, **kw)
    k1 = NAME + "_kernel"
    common, body = None, ""
    for i, spec in enumerate(o["groups"]):
        kc = dict(kw)
        if not isinstance(spec, str):
            kc.update(spec[1])
            spec = spec[0]
        g = Gen(schedule(spec, o["nmid"], kc.get("tper", o["tper"])), str(i), **kc)
        pre, post = g.body().split("    " + SPLIT + "\n")
        assert common in (None, pre)
        common = pre
        body += ".p2align 6\n" + post
        NSTAMP = g.nstamp if o["stamps"] else 0
        ORDERS.append(g.order)
    head.append("; @launch grid=(256,1,1) block=(256,1,1) lds=163840")
    head += DOC.strip().splitlines()
    return "\n".join(head) + f"""
.amdgcn_target "amdgcn-amd-amdhsa--gfx950"
.text
.globl {k1}
.p2align 8
.type {k1},@function
{k1}:
{common}{body}L_codeend:
.section .rodata,"a"
.p2align 6
.amdhsa_kernel {k1}
  .amdhsa_next_free_vgpr 512
  .amdhsa_next_free_sgpr 102
  .amdhsa_accum_offset 256
  .amdhsa_group_segment_fixed_size 0
  .amdhsa_kernarg_size 104
  .amdhsa_user_sgpr_count 2
  .amdhsa_user_sgpr_kernarg_segment_ptr 1
  .amdhsa_system_sgpr_workgroup_id_x 1
.end_amdhsa_kernel
"""


if __name__ == "__main__":
    kw = {}
    out = sys.argv[1]
    for a in sys.argv[2:]:
        k, v = a.split("=", 1)
        try:
            kw[k] = eval(v)
        except (NameError, SyntaxError):
            kw[k] = v
    open(out, "w").write(build(**kw))
```

```python
import ast, math, re, struct, sys
from asmlib import Prog, Ins

NAME = "concat_heads__gqa_block_cached__mha_block_cached__near_ridge"
SH, RING, RSZ, NSLOT = 0, 65536, 24576, 6
XPOS = (0, 2, 4, 6, 1, 3, 5)
PBASE = 0x100000
FBASE = 0x10000
GRP = 917504

sX, sK, sV, sQ, sO, sWS, sOUT, sDBG = 8, 12, 16, 20, 24, 28, 32, 36
sW, sBR, sH, sB, sRING, sSO, sC, sGRP, sT0, sT1, sT2, sJ = 40, 41, 42, 43, 44, 45, 46, 47, 48, 49, 50, 51
sPT = 52
sINB, sDO, sXW = 59, 60, 61
sROT = 62
sW128, sCLS, sVX = 69, 84, 85
sST = 70
vL, vFL, vIW, vIR = 1, 4, 6, 8
vDX, vDQ, vDK, vDV, vDO = 8, 9, 13, 17, 21
vRX, vRQ, vRK, vRV, vRO = 25, 29, 31, 35, 37
vLIN, vWR, vPA, vQA = 41, 42, 43, 45
vQB, vWA, vWB = 13, 16, 12
vMC, vLS = 48, 56
vRDY, vSEL = 28, 16
ACC = 128
MF = "v_mfma_f32_32x32x16_bf16"
SPLIT = "; class code"


def f32(x):
    return "0x%08x" % struct.unpack("<I", struct.pack("<f", x))[0]


def vr(a, n):
    return f"v[{a}:{a+n-1}]" if n > 1 else f"v{a}"


def ar(a, n):
    return f"a[{a}:{a+n-1}]" if n > 1 else f"a{a}"


def srd(b):
    return f"s[{b}:{b+3}]"


def fl(x):
    return f" {x}" if x else ""


def R(c, lo, hi):
    return [f"{c}{i}" for i in range(lo, hi)]


def cls(k, w, v, **kw):
    head = "Q14 K16" if k == 0 else f"Q2 K{k} Q12 K{16-k}"
    mid = f"W{w} V16" if (v == 0 or w == 2) else f"W2 V{v} W{w-2} V{16-v}"
    tail = f" W{16-w}" if w < 16 else ""
    return (f"{head} {mid}{tail}", dict(dict(ksplit=max(8, 16 - w)), **kw))


DEFAULT = dict(
    nt_kv="nt", nt_w="", nt_x="", stamps=False, st_fl="sc0 sc1", ld_fl="sc0 sc1",
    groups=(cls(0, 5, 0), cls(7, 8, 8), cls(4, 5, 0), cls(10, 8, 0)), gsel="bbr",
    fill_per=40, fill3=14, nmid=12, la=(4, 4, 4, 4), ksplit=8, more1=2, more2=1,
    poll_sleep=0, codepf=True, tper=2, hold=3, win=(0, 8, 1, 7), xrot=False, obar=2, xorder='cb', xsplit=13, kick=True, ownfirst=False, headmajor=False, rdy_fl='sc1', msum=True, aligned=False, early=0, early_min=6, kcap=9, kcap2=9, xcdrot=0, poll_depth=1, poll_gap=0, lastla=1, lastla2=3,
)


def schedule(spec, nmid, tper):
    issue = []
    cnt = dict(Q=0, K=0, V=0, W=0)
    for tok in spec.split():
        c, n = tok[0], int(tok[1:])
        issue += R(c, cnt[c], cnt[c] + n)
        cnt[c] += n
    assert cnt == dict(Q=14, K=16, V=16, W=16), cnt
    assert issue[:2] == ["Q0", "Q1"]
    iq, ik = issue.index("Q13"), issue.index("K15")
    ph1 = issue[:iq + 1]
    assert all(u[0] in "QK" for u in ph1)
    npre = sum(u[0] == "K" for u in ph1)
    assert npre <= 14
    rest = issue[iq + 1:ik + 1]
    assert all(u[0] in "KW" for u in rest)
    T = R("T", 0, npre)
    ph2 = [u for u in ("T0", "T4") if u in T]
    if npre > 10:
        ph2 += ["T1", "T2", "T3"]
    T = [u for u in T if u not in ph2]
    shift = 4 if npre > 10 else 0
    for u in rest:
        if u[0] == "W":
            assert int(u[1:]) < 8
            while T and int(T[0][1:]) <= int(u[1:]) + shift + 1:
                ph2.append(T.pop(0))
            assert not ph2 or ph2[-1] != f"T{int(u[1:]) + shift}"
            ph2.append(u)
        else:
            ph2 += [u] + T[:tper]
            T = T[tper:]
    ph2 += T
    after = issue[ik + 1:]
    mid2, held = [], 0
    for u in after:
        if u[0] == "V":
            held += 1
            if held > NSLOT - 4:
                break
        elif len(mid2) < nmid:
            mid2.append(u)
    ph3 = [u for u in after if u not in mid2]
    iv = ph3.index("V15")
    ph3, ph4 = ph3[:iv + 1], ph3[iv + 1:]
    return dict(issue=issue, ph1=ph1, ph2=ph2, mid2=mid2, ph3=ph3, ph4=ph4, npre=npre)


class Gen:
    def __init__(self, sched, tag, **kw):
        self.o = dict(DEFAULT)
        self.o.update(kw)
        self.p = Prog()
        self.sc = sched
        self.tag = tag
        self.issue_q = list(sched["issue"])
        self.free = [(s, []) for s in range(NSLOT)]
        self.unit = {}
        self.side = {}
        self.eaten, self.started = set(), set()
        self.order = []
        self.nstamp = 1
        self.bufs, self.buf = (64, 96), 0

    def lines(self, texts):
        return [(lambda t=t: self.p(t)) for t in texts]

    def stamp(self, name=""):
        if self.o["stamps"] and (self.o["stamps"] != "ends" or name == "end"):
            self.p(("s_memtime" if self.o["stamps"] == "cyc" else "s_memrealtime") + " s[100:101]")
            self.p("s_waitcnt lgkmcnt(0)")
            self.p(f"s_mov_b32 s{sST + self.nstamp}, s100")
            self.nstamp += 1
            assert self.nstamp <= 14

    def dma_items(self):
        name = self.issue_q.pop(0)
        slot, reads = self.free.pop(0)
        kind, u = name[0], int(name[1:])
        r, v, nt = {"Q": (sQ, vDQ, self.o["nt_w"]), "K": (sK, vDK, self.o.get("nt_k", self.o["nt_kv"])),
                    "V": (sV, vDV, self.o.get("nt_v", self.o["nt_kv"])), "W": (sO, vDO, self.o["nt_w"])}[kind]
        if self.o.get("split") and kind in self.o["split"]:
            nt = "" if (u // 4) % 2 == 0 else self.o.get("split_nt", "nt")
        dm = []
        self.unit[name] = (slot, dm)
        p = self.p

        def head():
            p(f"s_add_u32 m0, s{sRING}, {slot*4096}")
            if kind == "Q":
                p(f"s_lshl_b32 s{sSO}, s{sROT + u // 2}, 12")
                if u % 2:
                    p(f"s_bitset1_b32 s{sSO}, 18")
            elif kind == "W":
                p(f"s_xor_b32 s{sSO}, s{sXW}, {u}")
                p(f"s_mulk_i32 s{sSO}, {16*896}")
            elif kind == "K":
                p(f"s_xor_b32 s{sSO}, s{sW128}, {(u // 4) * 65536 + (u % 4) * 128}")
            else:
                p(f"s_xor_b32 s{sSO}, s{sVX}, {u * 16384}")

        def piece(j):
            def f():
                if j == 0:
                    head()
                off = f" offset:{1024*j}" if j else ""
                dm.append(p(f"buffer_load_dwordx4 v{v+j}, {srd(r)}, s{sSO} offen{off}{fl(nt)} lds",
                            after=reads if j == 0 else ()))
            return f
        return [piece(j) for j in range(4)]

    def all_dma(self, la=None):
        la = min(la or self.o["la"], NSLOT)
        out = []
        while self.issue_q and NSLOT - len(self.free) < la:
            out += self.dma_items()
        return out

    def one_more(self):
        def f():
            if self.issue_q and self.free:
                for g in self.dma_items():
                    g()
        return f

    def kreg(self, u, j):
        if self.sc["npre"] > 10:
            if u < 4:
                return vr(192 + 16 * u + 4 * j, 4)
            u -= 4
        return ar(self.wreg(u) + 4 * j, 4)

    @staticmethod
    def wreg(u):
        return 128 + 16 * u if u < 8 else 16 * (u - 8)

    def unit_reads(self, name, base):
        kind, u = name[0], int(name[1:])
        p = self.p
        items, done = [], []
        if kind == "T":
            return items, done
        slot, dm = self.unit[name]
        so = slot * 4096
        sd = self.side.setdefault(name, [])

        def ring(text, pieces):
            items.append(lambda: done.append(p(text, after=[dm[j] for j in pieces])))

        def side(text):
            items.append(lambda: sd.append(p(text)))
        if self.o.get("trace"):
            def mark():
                p("s_nop 0", after=list(dm))
                p("s_memrealtime s[100:101]")
                p("s_waitcnt lgkmcnt(0)")
                p(f"v_writelane_b32 v0, s100, {len(self.order)}")
                self.order.append(name)
            items.append(mark)
        if kind in "QV":
            for ks in range(2):
                for mt in range(2):
                    for part in range(2):
                        d = base + (ks * 2 + mt) * 4 + part * 2
                        if kind == "Q":
                            ring(f"ds_read_b64_tr_b16 {vr(d,2)}, v{vRQ+mt} offset:{so + ks*2048 + part*512}",
                                 (2 * ks, 2 * ks + 1))
                        else:
                            ring(f"ds_read_b64_tr_b16 {vr(d,2)}, v{vRV+mt} offset:{so + ks*2048 + part*1024}",
                                 (2 * ks + part,))
                    qt = mt
                    d = base + 16 + (ks * 2 + qt) * 4
                    if kind == "Q":
                        s = 2 * u + ks
                        side(f"ds_read_b128 {vr(d,4)}, v{vRX + s % 4} offset:{XPOS[s // 4]*8192 + qt*4096}")
                    else:
                        side(f"ds_read_b128 {vr(d,4)}, v{vPA+qt} offset:{(u % 4)*16384 + ((u // 4)*2 + ks)*2048}")
        elif kind == "K":
            for j in range(4):
                d = self.kreg(u, j) if u < self.sc["npre"] else vr(base + 4 * j, 4)
                ring(f"ds_read_b128 {d}, v{vRK+j} offset:{so}", range(4))
        elif kind == "W":
            for part in range(2):
                for t in range(4):
                    ring(f"ds_read_b64_tr_b16 {ar(self.wreg(u) + t*4 + part*2, 2)}, v{vRO+t} "
                         f"offset:{so + part*1024}", (part, 2 + part))
        return items, done

    def unit_mfmas(self, name, base):
        kind, u = name[0], int(name[1:])
        out = []
        if kind in "QV":
            order = [(ks, mt, qt) for ks in range(2) for mt, qt in ((0, 0), (1, 0), (0, 1), (1, 1))]
            if name in ("Q13", "V15"):
                order = [(ks, mt, qt) for mt in range(2) for qt in range(2) for ks in range(2)]
            for ks, mt, qt in order:
                acc = vr(ACC + (mt * 2 + qt) * 16, 16)
                c = "0" if (u == 0 and ks == 0) else acc
                out.append(f"{MF} {acc}, {vr(base + (ks*2+mt)*4, 4)}, {vr(base + 16 + (ks*2+qt)*4, 4)}, {c}")
        elif kind == "T" or (kind == "K" and u >= self.sc["npre"]):
            t, i = u // 4, u % 4
            first = t not in self.started
            self.started.add(t)
            for j in range(4):
                a = self.kreg(u, j) if kind == "T" else vr(base + 4 * j, 4)
                for qt in range(2):
                    acc = vr(ACC + (t * 2 + qt) * 16, 16)
                    b = vr(self.own + (j * 2 + qt) * 4, 4) if i == 0 else ar(((i * 4 + j) * 2 + qt) * 4, 4)
                    out.append(f"{MF} {acc}, {a}, {b}, {'0' if (first and j == 0) else acc}")
        return out

    def window(self, mfmas, early, late, fill):
        p = self.p
        n = len(mfmas)
        if n == 0:
            for f in fill + late + early:
                f()
            return
        gaps = [[] for _ in range(n)]
        e0, e1, l0, l1 = self.o["win"]
        e1, l1 = min(e1, n), min(l1, n - 1)
        for k, f in enumerate(early):
            gaps[e0 + k * (e1 - e0) // len(early)].append(f)
        for k, f in enumerate(late):
            gaps[l0 + k * (l1 - l0) // len(late)].append(f)
        for k, f in enumerate(fill):
            gaps[k * n // len(fill)].append(f)
        for m, g in zip(mfmas, gaps):
            p(m)
            for f in g:
                f()

    def release(self, nme, done):
        if nme[0] != "T":
            self.eaten.add(nme)
            self.free.append((self.unit[nme][0], done))

    def run_phase(self, units, fillq=(), per=0, after=None, before=None):
        pend, prev = [], None
        self.fillq = list(fillq)
        for nme in units:
            base = self.bufs[self.buf]
            mf = self.unit_mfmas(nme, base)
            if mf and nme[0] != "T":
                self.buf ^= 1
            la = self.o["la"] + (0 if pend else 1)
            if nme[0] == "V" and "V15" in self.unit:
                la = min(la, self.o["hold"])
            if nme[0] == "Q" and "Q13" in self.unit:
                la = min(la, 14 - int(nme[1:]) + self.o["kcap"])
            early = self.all_dma(la)
            if nme[0] != "T" and not self.unit[nme][1]:
                for f in early:
                    f()
                early = []
            late, done = self.unit_reads(nme, base)
            if before:
                late = before(nme) + late
            take, self.fillq = self.fillq[:per], self.fillq[per:]
            self.window(pend, early, late, take)
            if after and prev:
                self.fillq += after(prev)
            self.release(nme, done)
            pend, prev = mf, nme
        return pend

    def stage(self, nme):
        def f():
            held = sum(u[0] == "V" and u not in self.eaten for u in self.unit)
            early = self.all_dma(min(NSLOT, self.o["la"] + 1 + held))
            if not self.unit[nme][1]:
                for g in early:
                    g()
                early = []
            it, d = self.unit_reads(nme, 0)
            for g in it + early:
                g()
            self.release(nme, d)
        return f

    @staticmethod
    def spread(items, stages):
        n, k = len(stages), 0
        for i, f in enumerate(items):
            while k < n and (k + 0.5) * len(items) / n <= i:
                stages[k]()
                k += 1
            f()
        for g in stages[k:]:
            g()

    def last_window(self, mfmas, early, addr):
        p = self.p
        self.own = self.bufs[self.buf]
        w = []

        def pack(a):
            mt, q = a // 2, a % 2
            for ks in range(2):
                src = ACC + a * 16 + ks * 8
                d = self.own + ((2 * mt + ks) * 2 + q) * 4
                for k in range(4):
                    p(f"v_cvt_pk_bf16_f32 v{d+k}, v{src+2*k}, v{src+2*k+1}")
                reg, off = addr(2 * mt + ks, q)
                w.append(p(f"ds_write_b128 v{reg}, {vr(d,4)} offset:{off}"))
        early = list(early)
        for i, m in enumerate(mfmas):
            p(m)
            if i < 4:
                for f in early[i * len(early) // 4:(i + 1) * len(early) // 4]:
                    f()
            if i in (4, 6):
                pack((i - 4) // 2)
        pack(2)
        pack(3)
        return w

    def prologue(self):
        p, o = self.p, self.o
        ng = len(o["groups"])
        p("s_cmp_ge_u32 s2, 256")
        p("s_cbranch_scc1 L_exit")
        if o["stamps"]:
            p(("s_memtime" if o["stamps"] == "cyc" else "s_memrealtime") + f" s[{sST}:{sST+1}]")
        p(f"s_lshr_b32 s{sBR}, s2, 7")
        p(f"s_mul_i32 s5, s{sBR}, 40")
        p("s_add_u32 s6, s0, s5")
        p("s_addc_u32 s7, s1, 0")
        p("s_load_dwordx8 s[88:95], s[6:7], 0")
        p("s_load_dwordx2 s[86:87], s[6:7], 32")
        p(f"s_load_dwordx2 s[{sWS}:{sWS+1}], s[0:1], 96")
        p("s_load_dwordx4 s[96:99], s[0:1], 80")
        if o.get("headpf"):
            p("s_getpc_b64 s[10:11]")
            p("v_min_u32 v5, 12, v0")
            p("v_lshlrev_b32 v5, 7, v5")
            p("global_load_dword v254, v5, s[10:11]", hidden=True)
        p("v_lshrrev_b32 v7, 6, v0")
        p(f"v_and_b32 v{vL}, 63, v0")
        p(f"v_readfirstlane_b32 s{sW}, v7")
        p(f"v_lshrrev_b32 v2, 3, v{vL}")
        p(f"v_and_b32 v3, 7, v{vL}")
        p(f"v_lshrrev_b32 v4, 4, v{vL}")
        p(f"s_bfe_u32 s{sB}, s2, 0x30004")
        p("s_bfe_u32 s4, s2, 0x10003")
        p(f"s_and_b32 s{sT2}, s{sW}, 1")
        p(f"s_cmp_eq_u32 s{sB}, 7")
        p(f"s_cselect_b32 s{sROT}, 3, s{sB}")
        if o["xcdrot"]:
            p("s_and_b32 s3, s2, 7")
            if o["xcdrot"] > 1:
                p(f"s_mul_i32 s3, s3, {o['xcdrot']}")
            p(f"s_add_u32 s{sROT}, s{sROT}, s3")
            p(f"s_mul_i32 s3, s{sROT}, 37")
            p("s_lshr_b32 s3, s3, 8")
            p("s_mul_i32 s3, s3, 7")
            p(f"s_sub_u32 s{sROT}, s{sROT}, s3")
        p(f"s_lshl_b32 s{sROT}, s{sROT}, 7")
        p(f"s_lshl_b32 s{sT0}, s{sT2}, 2")
        p(f"v_add_u32 v5, s{sT0}, v4")
        p("v_xor_b32 v5, v5, v3")
        p(f"s_lshl_b32 s5, s4, {2 if o['xrot'] else 31}")
        p("s_and_b32 s5, s5, 4")
        p(f"s_add_u32 s5, s5, s{sW}")
        p(f"s_lshl_b32 s{sT0}, s5, 3")
        p(f"v_add_u32 v6, s{sT0}, v2")
        p("v_xor_b32 v7, 32, v6")
        p("v_mul_u32_u24 v6, 896, v6")
        p("v_mul_u32_u24 v7, 896, v7")
        p(f"v_lshl_add_u32 v{vDX}, v5, 4, v6")
        p("v_lshl_add_u32 v7, v5, 4, v7")
        p(f"s_lshl_b32 s{sT1}, s5, 10")
        p(f"s_mul_i32 s{sT0}, s{sB}, 57344")
        p(f"s_mov_b32 s{sX+2}, 57344")
        p(f"s_mov_b32 s{sX+3}, 0x20000")
        p("s_waitcnt lgkmcnt(0)")
        p(f"s_add_u32 s{sX}, s88, s{sT0}")
        p(f"s_addc_u32 s{sX+1}, s89, 0")
        self.xd = []
        p(f"s_xor_b32 s5, s{sT1}, 0x1000")
        seq = [(h, cb) for h in range(2) for cb in range(7)] if o["xorder"] == "half" else \
            [(h, cb) for cb in range(7) for h in range(2)]
        for n, (half, cb) in enumerate(seq):
            if True:
                p(f"s_add_u32 m0, s{5 if half else sT1}, {SH + XPOS[cb]*8192}")
                if half == 0 and cb:
                    p(f"s_add_u32 s{sROT+cb}, s{sROT+cb-1}, 128")
                    p(f"s_cmp_eq_u32 s{sROT+cb}, 896")
                    p(f"s_cselect_b32 s{sROT+cb}, 0, s{sROT+cb}")
                self.xd.append(p(f"buffer_load_dwordx4 v{7 if half else vDX}, {srd(sX)}, s{sROT+cb} "
                                 f"offen{fl(o['nt_x'])} lds"))
            if n == o["xsplit"]:
                p("s_and_b32 s3, s2, 7")
                p("s_lshl_b32 s3, s3, 1")
                p(f"s_add_u32 s{sH}, s3, s4")
                if ng > 1:
                    if o["gsel"] == "b":
                        p(f"s_and_b32 s{sCLS}, s{sB}, {ng-1}")
                    elif o["gsel"] == "br":
                        p(f"s_mov_b32 s{sCLS}, s{sBR}")
                    else:
                        p(f"s_and_b32 s{sCLS}, s{sB}, {ng//2-1}")
                        p(f"s_lshl_b32 s{sCLS}, s{sCLS}, 1")
                        p(f"s_add_u32 s{sCLS}, s{sCLS}, s{sBR}")
                if o["codepf"] and o["codepf"] != "late":
                    p("s_getpc_b64 s[6:7]")
                    p("L_pc:")
                    p("s_mov_b32 s3, L_class0-L_pc")
                    for g in range(1, ng):
                        p(f"s_cmp_eq_u32 s{sCLS}, {g}")
                        p(f"s_cselect_b32 s3, L_class{g}-L_pc, s3")
                    p("s_add_u32 s6, s6, s3")
                    p("s_addc_u32 s7, s7, 0")
                    if o["codepf"] == "full":
                        p(f"v_min_u32 v5, (L_codeend-L_class{ng-1})/128-1, v0")
                        p("v_lshlrev_b32 v5, 7, v5")
                    else:
                        p(f"s_and_b32 s3, s{sB}, 6")
                        p("s_add_u32 s3, s3, s4")
                        p("s_mulk_i32 s3, 20")
                        p("v_min_u32 v5, 19, v0")
                        p("v_add_u32 v5, s3, v5")
                        p(f"v_min_u32 v5, (L_codeend-L_class{ng-1})/128-1, v5")
                        p("v_lshlrev_b32 v5, 7, v5")
                    p("global_load_dword v255, v5, s[6:7]", hidden=True)
                p(f"s_mul_i32 s{sRING}, s{sW}, {RSZ}")
                p(f"s_add_u32 s{sRING}, s{sRING}, {RING}")
                p("v_and_b32 v5, 1, v4")
                p("v_lshlrev_b32 v5, 2, v5")
                p("v_xor_b32 v5, v5, v3")
                p(f"s_lshl_b32 s{sW128}, s{sW}, 7")
                p(f"v_lshl_add_u32 v5, v5, 4, s{sW128}")
                if o.get("fakek"):
                    p(f"s_mov_b32 s{sW128}, 0")
                p(f"v_lshl_add_u32 v{vDQ}, v2, 13, v5")
                p(f"s_lshl_b32 s{sT0}, s{sB}, 6")
                p(f"v_xor_b32 v5, s{sT0}, v5")
                p(f"v_lshl_add_u32 v{vDV}, v2, 9, v5")
                for j in range(1, 4):
                    p(f"v_add_u32 v{vDQ+j}, {j*(65536-1024)}, v{vDQ}")
                p(f"s_lshl_b32 s{sT0}, s{sH}, 9")
                p(f"s_add_u32 s{sQ}, s94, s{sT0}")
                p(f"s_addc_u32 s{sQ+1}, s95, 0")
                p(f"s_sub_u32 s{sQ+2}, 3670016, s{sT0}")
                p(f"s_mov_b32 s{sQ+3}, 0x20000")
                p(f"s_lshl_b32 s{sGRP}, s{sBR}, 3")
                p(f"s_add_u32 s{sGRP}, s{sGRP}, s{sB}")
                p(f"s_mov_b32 s{sWS+2}, {PBASE + 16 * GRP}")
                p(f"s_mov_b32 s{sWS+3}, 0x20000")
                p(f"v_lshlrev_b32 v{vLIN}, 4, v{vL}")
        p(f"s_cmp_lg_u32 s{sH}, 15")
        p("s_cbranch_scc1 L_noclr")
        p(f"s_lshl_b32 s3, s{sGRP}, 2")
        p(f"s_add_u32 s3, s3, s{sW}")
        p("s_lshl_b32 s3, s3, 11")
        p(f"s_add_u32 s3, s3, {FBASE}")
        p(f"v_lshrrev_b32 v5, 2, v{vL}")
        p(f"v_and_b32 v6, 48, v{vLIN}")
        p("v_lshl_add_u32 v5, v5, 7, v6")
        for k in range(4):
            p(f"v_mov_b32 v{64+k}, 0")
        p(f"buffer_store_dwordx4 v[64:67], v5, {srd(sWS)}, s3 offen sc0 sc1", hidden=True)
        p("L_noclr:")
        for f in self.all_dma(2):
            f()
        p(f"s_lshl_b32 s{sT0}, s{sB}, 4")
        p(f"s_add_u32 s{sT0}, s{sT0}, s{sH}")
        p(f"s_xor_b32 s{sT1}, s{sBR}, 1")
        p(f"s_lshr_b32 s{sT0}, s{sT0}, s{sT1}")
        p(f"s_lshl_b32 s{sT0}, s{sT0}, 18")
        for r, src in ((sK, 90), (sV, 92)):
            p(f"s_add_u32 s{r}, s{src}, s{sT0}")
            p(f"s_addc_u32 s{r+1}, s{src+1}, 0")
            p(f"s_mov_b32 s{r+2}, 262144")
            p(f"s_mov_b32 s{r+3}, 0x20000")
        p(f"s_mul_i32 s{sT0}, s{sH}, 229376")
        p(f"s_add_u32 s{sO}, s86, s{sT0}")
        p(f"s_addc_u32 s{sO+1}, s87, 0")
        p(f"s_mov_b32 s{sO+2}, 229376")
        p(f"s_mov_b32 s{sO+3}, 0x20000")
        for r, src, n in ((sOUT, 96, 917504), (sDBG, 98, 256)):
            p(f"s_mov_b32 s{r}, s{src}")
            p(f"s_mov_b32 s{r+1}, s{src+1}")
            p(f"s_mov_b32 s{r+2}, {n}")
            p(f"s_mov_b32 s{r+3}, 0x20000")
        p(f"s_lshl_b32 s{sDO}, s{sGRP}, 4")
        if o.get("tlb0"):
            p("v_mov_b32 v5, 0")
            for r in (sK, sV, sO):
                p(f"buffer_load_dword v254, v5, {srd(r)}, 0 offen nt", hidden=True)
        p(f"s_lshl_b32 s{sXW}, s{sW}, {1 if o['ownfirst'] and not o.get('fakew') else 31}")
        p(f"s_xor_b32 s{sXW}, s{sXW}, s{sB}")
        p(f"s_lshl_b32 s{sXW}, s{sXW}, 1")
        p(f"s_mov_b32 s{sC}, {f32(math.log2(math.e) / 16)}")
        p("v_xor_b32 v5, v3, v4")
        p(f"s_lshl_b32 s{sT0}, s{sW}, 14")
        p(f"v_lshl_add_u32 v5, v5, 4, s{sT0}")
        p(f"v_lshl_add_u32 v{vDK}, v2, 9, v5")
        p(f"v_xor_b32 v5, 64, v{vDK}")
        p(f"v_add_u32 v{vDK+1}, 3072, v5")
        p(f"v_add_u32 v{vDK+2}, 6144, v{vDK}")
        p(f"v_add_u32 v{vDK+3}, 9216, v5")
        for j in range(1, 4):
            p(f"v_add_u32 v{vDV+j}, {j*3072}, v{vDV}")
        p(f"v_add_u32 v{vWR}, s{sT0}, v{vLIN}")
        for j in range(1, 4):
            p(f"v_xor_b32 v{vQA+j-1}, {j*16384}, v{vWR}")
        p(f"s_add_u32 s{sT0}, s{sT0}, 8192")
        p(f"v_lshl_add_u32 v{vIR}, v{vL}, 3, s{sT0}")
        if o["aligned"]:
            p(f"v_bfe_u32 v5, v{vL}, 2, 2")
            p("v_xor_b32 v5, v5, v4")
            p(f"v_and_b32 v6, 48, v{vLIN}")
            p("v_lshl_add_u32 v6, v5, 6, v6")
            p(f"s_cmp_eq_u32 s{sW}, 3")
            p(f"s_cselect_b32 s{sT1}, 2, 0")
            p(f"v_and_b32 v5, s{sT1}, v5")
            p("v_lshl_add_u32 v5, v5, 29, v6")
            p("v_mul_u32_u24 v6, 896, v4")
            p(f"s_lshl_b32 s{sT0}, s{sW}, 8")
            p(f"v_add3_u32 v{vDO}, v5, v6, s{sT0}")
        else:
            p(f"v_bfe_u32 v5, v{vL}, 2, 2")
            p("v_xor_b32 v5, v5, v4")
            p(f"v_add_u32 v5, s{sT2}, v5")
            p("v_and_b32 v5, 3, v5")
            p(f"v_and_b32 v6, 48, v{vLIN}")
            p("v_lshl_add_u32 v5, v5, 6, v6")
            p("v_mul_u32_u24 v6, 896, v4")
            p(f"s_mul_i32 s{sT0}, s{sW}, 224")
            p(f"s_lshl_b32 s{sT1}, s{sT2}, 5")
            p(f"s_sub_u32 s{sT0}, s{sT0}, s{sT1}")
            p(f"v_add3_u32 v{vDO}, v5, v6, s{sT0}")
        for j in range(1, 4):
            p(f"v_add_u32 v{vDO+j}, {j*(3584-1024)}, v{vDO}")
        p(f"v_lshrrev_b32 v2, 5, v{vL}")
        p(f"v_bfe_u32 v3, v{vL}, 1, 3")
        p("v_xor_b32 v3, v3, v2")
        p(f"v_and_b32 v5, 31, v{vL}")
        p("v_lshlrev_b32 v5, 7, v5")
        p(f"v_lshl_add_u32 v{vRX}, v3, 4, v5")
        for j in range(1, 4):
            p(f"v_xor_b32 v{vRX+j}, {j*32}, v{vRX}")
        for j in range(4):
            p(f"v_add_u32 v{vRK+j}, s{sRING}, v{vRX+j}")
        p(f"v_and_b32 v3, 16, v{vLIN}")
        p(f"v_bfe_u32 v5, v{vL}, 1, 1")
        p("v_lshl_add_u32 v3, v5, 3, v3")
        p("v_and_b32 v5, 1, v4")
        p("v_lshl_add_u32 v3, v5, 5, v3")
        p(f"v_add_u32 v3, s{sRING}, v3")
        p(f"v_bfe_u32 v5, v{vL}, 2, 2")
        p(f"v_bfe_u32 v6, v{vL}, 3, 1")
        p("v_lshl_add_u32 v6, v6, 6, v3")
        p("v_lshl_add_u32 v6, v5, 7, v6")
        p(f"v_lshl_add_u32 v{vRQ}, v2, 10, v6")
        p(f"v_lshl_add_u32 v{vRV}, v2, 9, v6")
        p(f"v_xor_b32 v{vRQ+1}, 64, v{vRQ}")
        p(f"v_xor_b32 v{vRV+1}, 64, v{vRV}")
        p("v_mul_u32_u24 v6, 320, v5")
        p("v_add_u32 v6, v6, v3")
        p(f"v_lshl_add_u32 v{vRO}, v2, 11, v6")
        for t in range(1, 4):
            p(f"v_xor_b32 v{vRO+t}, {t*64}, v{vRO}")
        p(f"s_lshl_b32 s{sT1}, s{sT2}, {31 if o['aligned'] else 10}")
        p(f"s_and_b32 s{sT1}, s{sT1}, 0x400")
        p(f"v_add_u32 v{vPA}, s{sT1}, v{vLIN}")
        p(f"v_xor_b32 v{vPA+1}, 0x400, v{vPA}")
        p(f"s_lshl_b32 s{sT0}, s{sW}, 9")
        p(f"s_add_u32 s{sT0}, s{sT0}, 8192")
        p(f"v_lshl_add_u32 v{vIW}, v{vL}, 3, s{sT0}")
        for g in range(1, ng):
            p(f"s_cmp_eq_u32 s{sCLS}, {g}")
            p(f"s_cbranch_scc1 L_class{g}")
        p("s_branch L_class0")
        p("L_exit:")
        p("s_endpgm")
        p(SPLIT)
        p(f"L_class{self.tag}:")
        if o.get("split"):
            p(f"s_and_b32 s{sVX}, s{sH}, 1")
            p(f"s_lshl_b32 s{sVX}, s{sVX}, 16")
            p(f"s_or_b32 s{sW128}, s{sW128}, s{sVX}")
        else:
            p(f"s_mov_b32 s{sVX}, 0")
        p("s_barrier", after=self.xd)
        self.stamp()
        p(f"s_cmp_lg_u32 s{sH}, 15")
        p(f"s_cbranch_scc1 L_noset{self.tag}")
        p(f"s_lshl_b32 s3, s{sW}, 2")
        p(f"s_add_u32 s3, s3, s{sDO}")
        p("v_mov_b32 v2, 0")
        p("v_mov_b32 v3, 1")
        p("s_mov_b64 exec, 1")
        p(f"buffer_store_dword v3, v2, {srd(sDBG)}, s3 offen sc0 sc1", hidden=True)
        p("s_mov_b64 exec, -1")
        p(f"L_noset{self.tag}:")
        if o["kick"]:
            for f in self.all_dma():
                f()
        if o["codepf"] == "late":
            p("s_getpc_b64 s[6:7]")
            p(f"s_and_b32 s3, s{sB}, 6")
            p(f"s_and_b32 s4, s{sH}, 1")
            p("s_add_u32 s3, s3, s4")
            p("s_mulk_i32 s3, 20")
            p("v_min_u32 v5, 19, v0")
            p("v_add_u32 v5, s3, v5")
            p("v_min_u32 v5, 155, v5")
            p("v_lshlrev_b32 v5, 7, v5")
            p("global_load_dword v5, v5, s[6:7]")

    def store_setup(self):
        hm = self.o["headmajor"]
        if self.o["aligned"]:
            return self.lines(
                [f"s_mul_i32 s3, s{sGRP}, {GRP}", f"s_lshl_b32 s4, s{sH}, 11", "s_add_u32 s3, s3, s4",
                 f"s_lshl_b32 s4, s{sW}, 18", "s_add_u32 s3, s3, s4", f"s_add_u32 s{sPT}, s3, {PBASE}",
                 f"s_add_u32 s{sPT+1}, s{sPT}, {4*32768}", f"s_lshr_b32 s4, s{sW}, 1", f"s_and_b32 s4, s4, s{sW}",
                 "s_lshl_b32 s4, s4, 30", f"s_or_b32 s{sPT+1}, s{sPT+1}, s4",
                 f"s_lshl_b32 s4, s{sW}, 4", f"v_add_lshl_u32 v{vFL}, v{vL}, s4, 7"])
        L = [f"s_mul_i32 s3, s{sGRP}, {GRP}", f"s_mul_i32 s4, s{sH}, {57344 if hm else 2048}", "s_add_u32 s3, s3, s4",
             f"s_add_u32 s3, s3, {PBASE}", f"s_lshr_b32 s4, s{sW}, 1", "s_mul_i32 s4, s4, 7",
             f"s_mul_i32 s5, s{sT2}, 3", "s_add_u32 s4, s4, s5", f"s_lshl_b32 s7, s{sT2}, 1",
             f"v_mov_b32 v{vFL}, 0"]
        for t in range(4):
            L += [f"s_add_u32 s5, s{sT2}, {t}", "s_and_b32 s5, s5, 3", "s_add_u32 s5, s5, s4",
                  "s_lshr_b32 s6, s5, 1", "s_lshl_b32 s6, s6, 2", "s_and_b32 s5, s5, 1",
                  "s_add_u32 s5, s5, s6", "s_add_u32 s5, s5, s7"]
            for qi in range(2 if t < 3 else 1):
                if qi:
                    L.append("s_xor_b32 s5, s5, 2")
                L += [f"s_lshl_b32 s6, s5, {11 if hm else 15}", f"s_add_u32 s{sPT + 2*t + qi}, s6, s3", "s_lshl_b32 s6, s5, 8",
                      f"v_writelane_b32 v{vFL}, s6, {2*(2*t+qi)}", "s_add_u32 s6, s6, 128",
                      f"v_writelane_b32 v{vFL}, s6, {2*(2*t+qi)+1}"]
        return self.lines(L)

    def softmax_tile(self, t, packed=False):
        seq = []
        for qt in range(2):
            s = ACC + (t * 2 + qt) * 16
            m, l = vMC + t * 2 + qt, vLS + t * 2 + qt
            seq.append(f"v_max3_f32 v{m}, v{s}, v{s+1}, v{s+2}")
            for k in range(3, 15, 2):
                seq.append(f"v_max3_f32 v{m}, v{m}, v{s+k}, v{s+k+1}")
            seq.append(f"v_max_f32 v{m}, v{m}, v{s+15}")
            seq.append(f"v_mul_f32 v{m}, s{sC}, v{m}")
            if packed:
                for k in range(0, 16, 2):
                    seq.append(f"v_pk_fma_f32 {vr(s+k,2)}, {vr(s+k,2)}, s[{sC}:{sC+1}], {vr(m & ~1, 2)} "
                               f"op_sel:[0,0,{m & 1}] op_sel_hi:[1,0,{m & 1}] neg_lo:[0,0,1] neg_hi:[0,0,1]")
                for k in range(16):
                    seq.append(f"v_exp_f32 v{s+k}, v{s+k}")
                    if k == 4:
                        seq.append(f"v_pk_add_f32 v[2:3], {vr(s,2)}, {vr(s+2,2)}")
                    elif k > 4 and k % 2 == 0:
                        seq.append(f"v_pk_add_f32 v[2:3], v[2:3], {vr(s+k-2,2)}")
                seq.append(f"v_pk_add_f32 v[2:3], v[2:3], {vr(s+14,2)}")
                seq.append(f"v_add_f32 v{l}, v2, v3")
            else:
                for k in range(16):
                    seq.append(f"v_fma_f32 v{s+k}, v{s+k}, s{sC}, -v{m}")
                for k in range(16):
                    seq.append(f"v_exp_f32 v{s+k}, v{s+k}")
                    if k == 2:
                        seq.append(f"v_add_f32 v{l}, v{s}, v{s+1}")
                    elif k > 2:
                        seq.append(f"v_add_f32 v{l}, v{l}, v{s+k-1}")
                seq.append(f"v_add_f32 v{l}, v{l}, v{s+15}")
        return self.lines(seq)

    def softmax_combine(self):
        p = self.p
        T = 64
        L = []
        q = lambda t: L.append(lambda: p(t))
        w1 = []
        for qt in range(2):
            m = [vMC + t * 2 + qt for t in range(4)]
            q(f"v_max3_f32 v{T+qt}, v{m[0]}, v{m[1]}, v{m[2]}")
            q(f"v_max_f32 v{T+qt}, v{T+qt}, v{m[3]}")
        for k in range(8):
            q(f"v_sub_f32 v{T+4+k}, v{vMC+k}, v{T + k % 2}")
        for k in range(8):
            q(f"v_exp_f32 v{T+4+k}, v{T+4+k}")
        q(f"v_pk_mul_f32 {vr(T+2,2)}, {vr(vLS,2)}, {vr(T+4,2)}")
        for t in range(1, 4):
            q(f"v_pk_fma_f32 {vr(T+2,2)}, {vr(vLS+2*t,2)}, {vr(T+4+2*t,2)}, {vr(T+2,2)}")
        q(f"v_permlane32_swap_b32 v{T}, v{T+1}")
        q(f"v_permlane32_swap_b32 v{T+2}, v{T+3}")
        q(f"v_max_f32 v{T+8}, v{T}, v{T+1}")
        q(f"v_sub_f32 v{T+4}, v{T}, v{T+8}")
        q(f"v_sub_f32 v{T+5}, v{T+1}, v{T+8}")
        q(f"v_exp_f32 v{T+4}, v{T+4}")
        q(f"v_exp_f32 v{T+5}, v{T+5}")
        q(f"v_mul_f32 v{T+9}, v{T+2}, v{T+4}")
        q(f"v_fmac_f32 v{T+9}, v{T+3}, v{T+5}")
        for r in range(4):
            L.append(lambda r=r: w1.append(p(f"ds_write_b64 v{vIW}, {vr(T+8,2)} offset:{r*16384}")))
        L.append(lambda: p("s_barrier", after=w1))
        for r in range(4):
            q(f"ds_read_b64 {vr(T+10+2*r,2)}, v{vIR} offset:{r*512}")
        q(f"v_max3_f32 v{T}, v{T+10}, v{T+12}, v{T+14}")
        q(f"v_max_f32 v{T}, v{T}, v{T+16}")
        for r in range(4):
            q(f"v_sub_f32 v{T+4+r}, v{T+10+2*r}, v{T}")
        for r in range(4):
            q(f"v_exp_f32 v{T+4+r}, v{T+4+r}")
        q(f"v_mul_f32 v{T+1}, v{T+11}, v{T+4}")
        for r in range(1, 4):
            q(f"v_fmac_f32 v{T+1}, v{T+11+2*r}, v{T+4+r}")
        q(f"v_log_f32 v{T+1}, v{T+1}")
        q(f"v_add_f32 v{T}, v{T}, v{T+1}")
        q(f"v_mov_b32 v{T+1}, v{T}")
        q(f"v_permlane32_swap_b32 v{T}, v{T+1}")
        for k in range(8):
            q(f"v_sub_f32 v{vMC+k}, v{vMC+k}, v{T + k % 2}")
        for k in range(8):
            q(f"v_exp_f32 v{vMC+k}, v{vMC+k}")
        return L

    def publish_p(self, t, w, packed):
        p = self.p
        L = []
        for qt in range(2):
            s, f = ACC + (t * 2 + qt) * 16, vMC + t * 2 + qt
            for ks in range(2):
                b = s + ks * 8
                if packed:
                    L += self.lines([f"v_pk_mul_f32 {vr(b+k,2)}, {vr(b+k,2)}, {vr(f & ~1, 2)} "
                                     f"op_sel:[0,{f & 1}] op_sel_hi:[1,{f & 1}]" for k in range(0, 8, 2)])
                else:
                    L += self.lines([f"v_mul_f32 v{b+k}, v{b+k}, v{f}" for k in range(8)])
                L += self.lines([f"v_cvt_pk_bf16_f32 v{b+k}, v{b+2*k}, v{b+2*k+1}" for k in range(4)])
                x = f"ds_write_b128 v{vWR}, {vr(b,4)} offset:{((t*2+ks)*2+qt)*1024}"
                L.append(lambda x=x: w.append(p(x)))
        return L

    def out_proj(self, wq, ow, extra):
        p, o = self.p, self.o
        ks = o["ksplit"]
        assert 8 <= ks <= 16
        units = [(0, 0), (1, 0), (2, 0), (3, 0), (0, 1), (1, 1), (2, 1)]
        other = 160 - self.own

        nown = 4 if o["ownfirst"] else 0
        obar = o["obar"] if nown else -1

        def oreg(s, qi):
            if s < nown:
                b = self.own + s * 8
            elif s < ks:
                b = 240 + (s % 2) * 8
            else:
                b = other + (s - ks) * 8 if s - ks < 4 else self.own + (s - ks - 4) * 8
            return b + qi * 4

        def oread(s):
            if not nown:
                return self.lines([f"ds_read_b128 {vr(oreg(s, qi), 4)}, v{vPA+qi} "
                                   f"offset:{(s // 4)*16384 + (s % 4)*2048}" for qi in range(2)])
            return self.lines([f"ds_read_b128 {vr(oreg(s, qi), 4)}, v{(vQB if qi else vQA) + s // 4 - 1} "
                               f"offset:{(s % 4)*2048}" for qi in range(2)])

        def mfma(k, s):
            t, qi = units[k]
            acc = vr(ACC + 16 * k, 16)
            return f"{MF} {acc}, {ar(self.wreg(s) + t*4, 4)}, {vr(oreg(s, qi), 4)}, {'0' if s == 0 else acc}"

        def finish(k):
            t, qi = units[k]
            acc, d = ACC + 16 * k, (48, 56, 32)[k % 3]
            L = []
            for half in range(2):
                for j in range(4):
                    L.append(f"v_cvt_pk_bf16_f32 v{d+half*4+j}, v{acc+half*8+2*j}, v{acc+half*8+2*j+1}")
                off = " offset:1024" if half else ""
                if o.get("fakehalf") and half:
                    continue
                L.append(f"buffer_store_dwordx4 {vr(d+half*4,4)}, v{vLIN}, {srd(sWS)}, s{sPT+2*t+qi} "
                         f"offen{off}{fl(o['st_fl'])}")
            return L
        tail = list(range(ks, 16))
        wq = list(wq)
        if not nown:
            p("s_barrier", after=ow)
            for f in oread(0):
                f()
        for s in range(ks):
            late = []
            if s == obar:
                late.append(lambda: p("s_barrier", after=ow))
            if s + 1 >= nown and s + 1 < ks:
                late += oread(s + 1)
            if s >= obar:
                for _ in range((len(tail) + ks - s - 1) // (ks - s)):
                    if tail[0] - ks < 4 or s > tail[0] - ks - 4:
                        late += oread(tail.pop(0))
            early, rel = self.all_dma(), []
            for _ in range((len(wq) + ks - s - 1) // (ks - s) if len(wq) >= ks - s else min(1, len(wq))):
                u = wq.pop(0)
                assert int(u[1:]) > s
                if not self.unit.get(u, (0, []))[1]:
                    for f in early + self.all_dma(NSLOT):
                        f()
                    early = []
                it, d = self.unit_reads(u, 0)
                late += it
                rel.append((u, d))
            fill, extra = extra[:8], extra[8:]
            self.window([mfma(k, s) for k in range(7)], early, late, fill)
            for u, d in rel:
                self.release(u, d)
        assert not wq and not self.issue_q and not tail
        for f in extra:
            f()
        prev = []
        for k in range(7):
            chain = [mfma(k, s) for s in range(ks, 16)]
            for i, m in enumerate(chain):
                p(m)
                if i >= 1:
                    n = (len(prev) + len(chain) - i - 1) // (len(chain) - i)
                    for t in prev[:n]:
                        p(t)
                    prev = prev[n:]
            for t in prev:
                p(t)
            prev = finish(k)
        for t in prev:
            p(t)

    def out_proj8(self, wq, ow, extra):
        p, o = self.p, self.o
        ks = o["ksplit"]
        assert 8 <= ks <= 16
        units = [(t, q) for t in range(4) for q in range(2)]
        other = 160 - self.own
        nown = 4 if o["ownfirst"] else 0

        def oreg(s, q):
            return (self.own if (s // 4) % 2 == 0 else other) + (s % 4) * 8 + q * 4

        def oread(s):
            if nown:
                return self.lines([f"ds_read_b128 {vr(oreg(s, q), 4)}, v{(vQB if q else vQA) + s // 4 - 1} "
                                   f"offset:{(s % 4)*2048}" for q in range(2)])
            return self.lines([f"ds_read_b128 {vr(oreg(s, q), 4)}, v{vPA+q} "
                               f"offset:{(s // 4)*16384 + (s % 4)*2048}" for q in range(2)])

        def mfma(k, s):
            t, q = units[k]
            acc = vr(ACC + 16 * k, 16)
            return f"{MF} {acc}, {ar(self.wreg(s) + t*4, 4)}, {vr(oreg(s, q), 4)}, {'0' if s == 0 else acc}"

        def finish(k):
            t, q = units[k]
            acc, d = ACC + 16 * k, (48, 56, 32)[k % 3]
            L = [f"s_add_u32 s{sSO}, s{sPT + t // 2}, {(q*2 + t % 2)*32768}"]
            for half in range(2):
                for j in range(4):
                    L.append(f"v_cvt_pk_bf16_f32 v{d+half*4+j}, v{acc+half*8+2*j}, v{acc+half*8+2*j+1}")
                off = " offset:1024" if half else ""
                L.append(f"buffer_store_dwordx4 {vr(d+half*4,4)}, v{vLIN}, {srd(sWS)}, s{sSO} "
                         f"offen{off}{fl(o['st_fl'])}")
            return L
        todo = list(range(nown, 16))
        obar = o["obar"] if nown else -1
        wq = list(wq)
        if not nown:
            p("s_barrier", after=ow)
            for f in oread(todo.pop(0)):
                f()
        for s in range(ks):
            late = []
            if s == obar:
                late.append(lambda: p("s_barrier", after=ow))
            if s >= obar:
                for _ in range(2):
                    if todo and todo[0] - 8 < s:
                        late += oread(todo.pop(0))
            assert not todo or todo[0] > s + 1
            early, rel = self.all_dma(), []
            for _ in range((len(wq) + ks - s - 1) // (ks - s) if len(wq) >= ks - s else min(1, len(wq))):
                u = wq.pop(0)
                assert int(u[1:]) > s
                if not self.unit.get(u, (0, []))[1]:
                    for f in early + self.all_dma(NSLOT):
                        f()
                    early = []
                it, d = self.unit_reads(u, 0)
                late += it
                rel.append((u, d))
            fill, extra = extra[:8], extra[8:]
            self.window([mfma(k, s) for k in range(8)], early, late, fill)
            for u, d in rel:
                self.release(u, d)
        assert not wq and not self.issue_q
        for s in todo:
            for f in oread(s):
                f()
        for f in extra:
            f()
        prev = []
        for k in range(8):
            chain = [mfma(k, s) for s in range(ks, 16)]
            for i, m in enumerate(chain):
                p(m)
                if i >= 1:
                    n = (len(prev) + len(chain) - i - 1) // (len(chain) - i)
                    for t in prev[:n]:
                        p(t)
                    prev = prev[n:]
            for t in prev:
                p(t)
            prev = finish(k)
        for t in prev:
            p(t)

    def tail_setup(self):
        return self.lines([
            f"s_lshl_b32 s{sJ}, s{sGRP}, 1", f"s_add_u32 s{sJ}, s{sJ}, s{sH}", f"s_and_b32 s{sJ}, s{sJ}, 15",
            f"s_lshl_b32 s3, s{sGRP}, 13", f"s_add_u32 s3, s3, {FBASE}",
            f"s_lshl_b32 s5, s{sJ}, 2", f"s_add_u32 s5, s5, s{sW}", "s_lshl_b32 s4, s5, 7",
            f"s_add_u32 s{sINB}, s3, s4", "v_mov_b32 v5, 1", "v_mov_b32 v7, 0",
            f"v_lshlrev_b32 v5, {'s%d' % sH if self.o['early'] else 0}, v5",
            f"v_and_b32 v{vRDY}, v{vRDY}, v{vRDY+1}", f"v_and_b32 v{vRDY+2}, v{vRDY+2}, v{vRDY+3}",
            f"v_and_b32 v{vRDY}, v{vRDY}, v{vRDY+2}",
            f"s_mul_i32 s6, s{sGRP}, {GRP}", "s_lshr_b32 s4, s5, 1",
            f"s_lshl_b32 s4, s4, {11 if self.o['headmajor'] else 15}", "s_add_u32 s6, s6, s4",
            f"s_lshl_b32 s4, s{sT2}, 10", "s_add_u32 s6, s6, s4", f"s_add_u32 s6, s6, {PBASE}",
            f"s_lshl_b32 s7, s{sB}, 1", f"s_and_b32 s4, s{sJ}, 1", "s_add_u32 s7, s7, s4",
            f"s_mul_i32 s7, s7, {32*1792}", f"s_mul_i32 s4, s{sBR}, 896", "s_add_u32 s7, s7, s4",
            f"s_lshr_b32 s4, s{sJ}, 1", "s_lshl_b32 s4, s4, 7", "s_add_u32 s7, s7, s4",
            f"s_lshl_b32 s4, s{sW}, 5", "s_add_u32 s7, s7, s4",
            f"v_and_b32 v2, 31, v{vL}", "v_mul_u32_u24 v2, 1792, v2", f"v_lshrrev_b32 v3, 5, v{vL}",
            "v_lshl_add_u32 v2, v3, 4, v2"] + (self.select_setup() if self.o["msum"] else []))

    @staticmethod
    def select_setup():
        L = [f"v_bfe_u32 v9, v{vL}, 2, 1", "v_xor_b32 v9, v9, v3", f"v_bfe_u32 v10, v{vL}, 4, 1",
             "v_or_b32 v9, v9, v10", "v_lshlrev_b32 v9, 2, v9", f"v_bfe_u32 v10, v{vL}, 3, 1",
             "v_lshl_add_u32 v9, v10, 1, v9", f"v_bfe_u32 v10, v{vL}, 1, 1", "v_add_u32 v9, v9, v10",
             f"v_and_b32 v10, 1, v{vL}", "v_lshlrev_b32 v10, 4, v10", "v_mov_b32 v11, 0x3f80",
             "v_lshlrev_b32 v10, v10, v11"]
        for k in range(4):
            L += [f"v_cmp_eq_u32 vcc, {k}, v9", f"v_cndmask_b32 v{vSEL+k}, 0, v10, vcc"]
        return L

    def handoff(self):
        p, g = self.p, self.tag
        p(f"v_cmp_eq_u32 vcc, 1, v{vRDY}")
        p("s_mov_b32 s5, 100000")
        p("s_mov_b32 s4, 0xffff")
        p("s_waitcnt vmcnt(0)")
        p(f"s_cbranch_vccnz L_go{g}")
        p(f"L_ready{g}:")
        p(f"buffer_load_dwordx4 {vr(vRDY,4)}, v7, {srd(sDBG)}, s{sDO} offen sc0 sc1")
        p("s_sub_u32 s5, s5, 1")
        p("s_cmp_eq_u32 s5, 0")
        p("s_waitcnt vmcnt(0)")
        p(f"s_cbranch_scc1 L_go{g}")
        p(f"v_and_b32 v{vRDY}, v{vRDY}, v{vRDY+1}")
        p(f"v_and_b32 v{vRDY+2}, v{vRDY+2}, v{vRDY+3}")
        p(f"v_and_b32 v{vRDY}, v{vRDY}, v{vRDY+2}")
        p(f"v_cmp_eq_u32 vcc, 1, v{vRDY}")
        p(f"s_cbranch_vccz L_ready{g}")
        p(f"L_go{g}:")
        if self.o["aligned"]:
            p(f"s_cmp_eq_u32 s{sW}, 3")
            p("s_cselect_b32 exec_lo, 0xff, s4")
            p("s_mov_b32 exec_hi, 0")
        else:
            p("s_mov_b64 exec, 0x3fff")
        p(f"buffer_atomic_add v5, v{vFL}, {srd(sWS)}, s3 offen sc1")
        p("s_mov_b64 exec, -1")

    def poll(self):
        p, g, d = self.p, self.tag, self.o["poll_depth"]
        if self.o.get("spoll"):
            p(f"s_add_u32 s{sT0}, s{sWS}, s{sINB}")
            p(f"s_addc_u32 s{sT1}, s{sWS+1}, 0")
            p("s_mov_b32 s5, 20000")
            p(f"L_poll{g}:")
            p("s_mov_b32 s4, 0")
            p(f"s_atomic_add s4, s[{sT0}:{sT1}], 0 glc")
            p("s_sub_u32 s5, s5, 1")
            p("s_cmp_eq_u32 s5, 0")
            p("s_waitcnt lgkmcnt(0)")
            p(f"s_cbranch_scc1 L_polled{g}")
            p("s_cmp_lg_u32 s4, 16")
            p(f"s_cbranch_scc1 L_poll{g}")
            p(f"L_polled{g}:")
            return
        regs = (3, 9, 10, 11)[:d]
        p("s_mov_b32 s5, 100000")
        p("s_mov_b64 exec, 1")

        def ask(r):
            p(f"v_mov_b32 v{r}, 0")
            p(f"buffer_atomic_add v{r}, v7, {srd(sWS)}, s{sINB} offen sc0 sc1", hidden=True)
        for r in regs[1:]:
            ask(r)
            for _ in range(self.o["poll_gap"]):
                p("s_nop 15")
        p(f"L_poll{g}:")
        for k in range(d):
            ask(regs[k])
            p(f"s_waitcnt vmcnt({d-1})")
            p(f"v_cmp_eq_u32 vcc, 16, v{regs[(k + 1) % d]}")
            p(f"s_cbranch_vccnz L_polled{g}")
        p("s_sub_u32 s5, s5, 1")
        p("s_cmp_lg_u32 s5, 0")
        p(f"s_cbranch_scc1 L_poll{g}")
        p(f"L_polled{g}:")
        p("s_mov_b64 exec, -1")

    def gather(self):
        p, g = self.p, self.tag
        p("s_mov_b32 s5, 100000")
        p(f"s_mov_b32 s{sT0}, 0")
        p(f"s_mov_b32 s{sSO}, {self.o['early']}")
        p(f"L_poll{g}:")
        p("s_mov_b64 exec, 1")
        p("v_mov_b32 v3, 0")
        p(f"buffer_atomic_add v3, v7, {srd(sWS)}, s{sINB} offen sc0 sc1", hidden=True)
        p("s_mov_b64 exec, -1")
        p("s_sub_u32 s5, s5, 1")
        p("s_cmp_eq_u32 s5, 0")
        p("s_waitcnt vmcnt(0)")
        p(f"s_cbranch_scc1 L_polled{g}")
        p("v_readfirstlane_b32 s4, v3")
        p("s_cmp_eq_u32 s4, 0xffff")
        p(f"s_cbranch_scc1 L_take{g}")
        p(f"s_cmp_eq_u32 s{sSO}, 0")
        p(f"s_cbranch_scc1 L_poll{g}")
        p(f"s_andn2_b32 s{sT1}, s4, s{sT0}")
        p(f"s_bcnt1_i32_b32 s{sT1}, s{sT1}")
        p(f"s_cmp_lt_u32 s{sT1}, {self.o['early_min']}")
        p(f"s_cbranch_scc1 L_poll{g}")
        p(f"s_sub_u32 s{sSO}, s{sSO}, 1")
        p(f"L_take{g}:")
        p(f"s_andn2_b32 s{sT1}, s4, s{sT0}")
        p(f"s_mov_b32 s{sT0}, s4")
        for i in range(16):
            p(f"s_bitcmp0_b32 s{sT1}, {i}")
            p(f"s_cbranch_scc1 L_skip{g}_{i}")
            p(f"s_add_u32 s4, s6, {2048*i}")
            p(f"buffer_load_dwordx4 {vr(64+4*i,4)}, v{vLIN}, {srd(sWS)}, s4 offen{fl(self.o['ld_fl'])}", hidden=True)
            p(f"L_skip{g}_{i}:")
        p(f"s_cmp_lg_u32 s{sT0}, 0xffff")
        p(f"s_cbranch_scc1 L_poll{g}")
        p(f"L_polled{g}:")
        p("s_waitcnt vmcnt(0)")

    def reduce(self):
        p = self.p
        D, A, T = 64, 48, 56
        if self.o.get("fakehalf"):
            p("s_bitset0_b32 s6, 10")
            p(f"s_lshl_b32 s4, s{sT2}, 14")
            p("s_add_u32 s6, s6, s4")
        for i in range(0 if self.o["early"] else 8 if self.o.get("fakehalf") else 16):
            if self.o["headmajor"]:
                p(f"buffer_load_dwordx4 {vr(D+4*i,4)}, v{vLIN}, {srd(sWS)}, s6 offen{fl(self.o['ld_fl'])}")
                p("s_add_u32 s6, s6, 57344")
                continue
            off = " offset:2048" if i % 2 else ""
            p(f"buffer_load_dwordx4 {vr(D+4*i,4)}, v{vLIN}, {srd(sWS)}, s6 offen{off}{fl(self.o['ld_fl'])}")
            if i % 2 and i < 15:
                p("s_addk_i32 s6, 4096")
        if self.o["msum"]:
            for i in range(16):
                p(f"{MF} {vr(ACC,16)}, {vr(vSEL,4)}, {vr(D+4*i,4)}, {vr(ACC,16) if i else 0}")
            for j in range(4):
                p(f"v_cvt_pk_bf16_f32 v{T+j}, v{ACC+2*j}, v{ACC+2*j+1}")
            p(f"buffer_store_dwordx4 {vr(T,4)}, v2, {srd(sOUT)}, s7 offen{fl(self.o.get('out_fl', ''))}")
            return
        p("s_mov_b32 s4, 0xffff0000")
        for i in range(8 if self.o.get("fakehalf") else 16):
            for j in range(4):
                dst = A + 2 * j if i == 0 else T + 2 * j
                p(f"v_lshlrev_b32 v{dst}, 16, v{D+4*i+j}")
                p(f"v_and_b32 v{dst+1}, s4, v{D+4*i+j}")
            if i:
                for j in range(4):
                    p(f"v_pk_add_f32 {vr(A+2*j,2)}, {vr(A+2*j,2)}, {vr(T+2*j,2)}")
        for j in range(4):
            p(f"v_cvt_pk_bf16_f32 v{T+j}, v{A+2*j}, v{A+2*j+1}")
        p(f"buffer_store_dwordx4 {vr(T,4)}, v2, {srd(sOUT)}, s7 offen")

    def dump_stamps(self):
        p = self.p
        if not self.o["stamps"]:
            return
        p("s_waitcnt vmcnt(0)")
        self.stamp("end")
        p("s_lshl_b32 s3, s2, 2")
        p(f"s_add_u32 s3, s3, s{sW}")
        if self.o.get("trace"):
            p("s_lshl_b32 s4, s3, 8")
            p("s_add_u32 s4, s4, 0x40000")
            p(f"v_lshlrev_b32 v2, 2, v{vL}")
            p(f"buffer_store_dword v0, v2, {srd(sWS)}, s4 offen")
        p("s_lshl_b32 s3, s3, 6")
        p("v_mov_b32 v2, 0")
        p("s_mov_b64 exec, 1")
        for k in range(self.nstamp):
            p(f"v_mov_b32 v3, s{sST + k}")
            p(f"buffer_store_dword v3, v2, {srd(sWS)}, s3 offen offset:{4*k}")

    def body(self):
        p, o, sc, g = self.p, self.o, self.sc, self.tag
        las = o["la"] if isinstance(o["la"], (tuple, list)) else (o["la"],) * 4
        o["la"] = las[0]
        self.prologue()
        p("; phase 1")
        pend = self.run_phase(sc["ph1"], self.store_setup(), 8,
                              before=lambda u: [lambda: p("s_barrier")] if u == "Q9" else [])
        assert not self.fillq
        qw = self.last_window(pend, self.all_dma(min(o["la"], o["kcap2"])), lambda j, q: (vWR, (j * 2 + q) * 1024))
        self.stamp()
        p("; phase 2")
        o["la"] = las[1]
        cur = 160 - self.own
        self.bufs, self.buf = (cur, cur + 16), 0
        left = {t: 4 for t in range(4)}
        have = {0}
        more = [self.one_more() for _ in range(o["more1"])]

        def need_q(u):
            if u[0] == "W":
                return []
            i = int(u[1:]) % 4
            if i in have:
                return []
            L = []
            if len(have) == 1:
                L.append(lambda: p("s_barrier", after=qw))
            have.add(i)
            L += self.lines([f"ds_read_b128 {ar((i*8 + k)*4, 4)}, v{vQA+i-1} offset:{k*1024}" for k in range(8)])
            return L

        def tile_done(u):
            if u[0] == "W":
                return []
            t = int(u[1:]) // 4
            left[t] -= 1
            return self.softmax_tile(t) if left[t] == 0 else []
        pend = self.run_phase(sc["ph2"], (), o["fill_per"], after=tile_done, before=need_q)
        take, rest = self.fillq[:o["fill_per"]], self.fillq[o["fill_per"]:]
        self.window(pend, self.all_dma(), [], take)
        self.stamp()
        last = [t for t in left if left[t] == 1]
        assert len(last) == 1
        pw = []
        L = rest + self.softmax_tile(last[0], True) + self.softmax_combine() + \
            self.publish_p(0, pw, True) + self.publish_p(1, pw, True)
        self.spread(L, [self.stage(u) for u in sc["mid2"]] + [self.one_more() for _ in range(o["more2"])])
        p("s_barrier", after=pw)
        self.stamp()
        p("; phase 3")
        o["la"] = las[2]
        self.bufs, self.buf = (64, 96), 0
        pw = []
        setup = ["v_mov_b32 v2, 0", f"buffer_load_dwordx4 {vr(vRDY,4)}, v2, {srd(sDBG)}, s{sDO} offen{fl(o['rdy_fl'])}",
                 f"s_mul_i32 s3, s{sT2}, {0 if o['aligned'] else 1024}", f"v_add_u32 v{vWA}, s3, v{vWR}", f"v_xor_b32 v{vWB}, 0x400, v{vWA}"]
        if o.get("tlb"):
            setup += [f"s_mul_i32 s4, s{sB}, {64*1792}", f"buffer_load_dword v3, v2, {srd(sOUT)}, s4 offen{fl(o['tlb'] if o['tlb'] != True else '')}",
                      f"s_mul_i32 s4, s{sGRP}, {GRP}", f"s_add_u32 s4, s4, {PBASE - 128}",
                      f"buffer_load_dword v5, v2, {srd(sWS)}, s4 offen nt",
                      f"s_add_u32 s4, s4, {GRP}", f"buffer_load_dword v7, v2, {srd(sWS)}, s4 offen nt"]
        for j in range(3 if o["ownfirst"] else 0):
            setup += [f"v_add_u32 v{vQA+j}, s3, v{vQA+j}", f"v_xor_b32 v{vQB+j}, 0x400, v{vQA+j}"]
        fill = self.publish_p(2, pw, False) + self.publish_p(3, pw, False) + self.lines(setup)

        def p_ready(u):
            if u != "V8":
                return []
            L, self.fillq = self.fillq, []
            return L + [lambda: p("s_barrier", after=pw + self.side["V7"])]
        pend = self.run_phase(sc["ph3"], fill, o["fill3"], before=p_ready)
        o["la"] = las[3]
        self.stamp()
        ow = self.last_window(pend, self.all_dma(o["lastla"]), lambda j, q: (vWB if q else vWA, j * 2048))
        for f in self.all_dma(o["lastla2"]):
            f()
        self.stamp()
        p("; phase 4")
        (self.out_proj8 if o["aligned"] else self.out_proj)(sc["ph4"], ow, self.tail_setup())
        self.stamp()
        self.handoff()
        self.stamp()
        if o["stamps"]:
            p(f"s_mov_b32 s{sST + self.nstamp}, s100")
        p(f"s_cmp_ge_u32 s{sJ}, 14")
        p(f"s_cbranch_scc1 L_fin{g}")
        if o["early"]:
            self.gather()
        else:
            self.poll()
        self.stamp()
        self.reduce()
        p(f"L_fin{g}:")
        self.dump_stamps()
        p("s_endpgm")
        if o.get("fake16"):
            out, cnt, ph = [], {}, 0
            for i in self.p.ins:
                if i.text.startswith("; phase"):
                    ph = i.text.split()[-1]
                if i.kind == "mfma" and ph in o["fake16"]:
                    m = re.match(r"\S+ v\[(\d+):\d+\], (\S+), (\S+), (\S+)", i.text)
                    a0 = int(m.group(1))
                    if m.group(4) == "0":
                        cnt[a0] = 0
                    for h in range(2):
                        n = cnt[a0]
                        a = a0 + 4 * (n % 4)
                        x, y = (m.group(2), m.group(3)) if h == 0 else (m.group(3), m.group(2))
                        out.append(Ins(f"v_mfma_f32_16x16x32_bf16 {vr(a,4)}, {x}, {y}, {'0' if n < 4 else vr(a,4)}"))
                        cnt[a0] += 1
                else:
                    out.append(i)
            self.p.ins = out
        if o.get("drop"):
            out, ph, n = [], "0", 0
            for i in self.p.ins:
                if i.text.startswith("; phase"):
                    ph = i.text.split()[-1]
                d = o["drop"]
                if i.kind == "dma" and d in ("W", "Q", "X") and srd({"W": sO, "Q": sQ, "X": sX}[d]) in i.text:
                    continue
                if i.kind == "dma" and d == "W3" and srd(sO) in i.text and "offset:3072" in i.text:
                    continue
                if i.kind == "mfma" and d.startswith("M") and ph in d:
                    n += 1
                    if "h" not in d or n % 2:
                        continue
                out.append(i)
            self.p.ins = out
        if o.get("fake"):
            self.p.ins = [i for i in self.p.ins if i.kind != {"nodma": "dma", "nomfma": "mfma"}[o["fake"]]]
        return p.finalize()


DOC = """
;
; One workgroup (4 waves, 512 registers each) per (branch, batch, head); id = branch*128 + batch*16 + (head&1)*8 + head/2.
;   phase 4  partial^T = Wo^T O^T    bf16 partial sums go to d_ws; 14 workgroups per (branch, batch) add the 16 heads
"""
NSTAMP = 0
ORDERS = []


def build(**kw):
    global NSTAMP
    ORDERS.clear()
    ref = open(f"cdna_kernels/{NAME}.s.ref").read().splitlines() if kw.pop("header", True) else []
    head = [l for l in ref if l.startswith(";") and "@launch" not in l and "Override" not in l
            and "grid=ceil" not in l]
    o = dict(DEFAULT, **kw)
    k1 = NAME + "_kernel"
    common, body = None, ""
    for i, spec in enumerate(o["groups"]):
        kc = dict(kw)
        if not isinstance(spec, str):
            kc.update(spec[1])
            spec = spec[0]
        g = Gen(schedule(spec, o["nmid"], kc.get("tper", o["tper"])), str(i), **kc)
        pre, post = g.body().split("    " + SPLIT + "\n")
        assert common in (None, pre)
        common = pre
        body += ".p2align 6\n" + post
        NSTAMP = g.nstamp if o["stamps"] else 0
        ORDERS.append(g.order)
    head.append("; @launch grid=(256,1,1) block=(256,1,1) lds=163840")
    head += DOC.strip().splitlines()
    return "\n".join(head) + f"""
.amdgcn_target "amdgcn-amd-amdhsa--gfx950"
.text
.globl {k1}
.p2align 8
.type {k1},@function
{k1}:
{common}{body}L_codeend:
.section .rodata,"a"
.p2align 6
.amdhsa_kernel {k1}
  .amdhsa_next_free_vgpr 512
  .amdhsa_next_free_sgpr 102
  .amdhsa_accum_offset 256
  .amdhsa_group_segment_fixed_size 0
  .amdhsa_kernarg_size 104
  .amdhsa_user_sgpr_count 2
  .amdhsa_user_sgpr_kernarg_segment_ptr 1
  .amdhsa_system_sgpr_workgroup_id_x 1
.end_amdhsa_kernel
"""


if __name__ == "__main__":
    kw = {}
    out = sys.argv[1]
    for a in sys.argv[2:]:
        k, v = a.split("=", 1)
        try:
            kw[k] = eval(v)
        except (NameError, SyntaxError):
            kw[k] = v
    open(out, "w").write(build(**kw))
```

```python
import ast, math, re, struct, sys
from asmlib import Prog, Ins

NAME = "concat_heads__gqa_block_cached__mha_block_cached__near_ridge"
SH, RING, RSZ, NSLOT = 0, 65536, 24576, 6
XPOS = (0, 2, 4, 6, 1, 3, 5)
PBASE = 0x100000
FBASE = 0x10000
GRP = 917504

sX, sK, sV, sQ, sO, sWS, sOUT, sDBG = 8, 12, 16, 20, 24, 28, 32, 36
sW, sBR, sH, sB, sRING, sSO, sC, sGRP, sT0, sT1, sT2, sJ = 40, 41, 42, 43, 44, 45, 46, 47, 48, 49, 50, 51
sPT = 52
sINB, sDO, sXW = 59, 60, 61
sROT = 62
sW128, sCLS = 69, 84
sST = 70
vL, vFL, vIW, vIR = 1, 4, 6, 8
vDX, vDQ, vDK, vDV, vDO = 8, 9, 13, 17, 21
vRX, vRQ, vRK, vRV, vRO = 25, 29, 31, 35, 37
vLIN, vWR, vPA, vQA = 41, 42, 43, 45
vQB, vWA, vWB = 13, 16, 12
vMC, vLS = 48, 56
vRDY, vSEL = 28, 16
ACC = 128
MF = "v_mfma_f32_32x32x16_bf16"
SPLIT = "; class code"


def f32(x):
    return "0x%08x" % struct.unpack("<I", struct.pack("<f", x))[0]


def vr(a, n):
    return f"v[{a}:{a+n-1}]" if n > 1 else f"v{a}"


def ar(a, n):
    return f"a[{a}:{a+n-1}]" if n > 1 else f"a{a}"


def srd(b):
    return f"s[{b}:{b+3}]"


def fl(x):
    return f" {x}" if x else ""


def R(c, lo, hi):
    return [f"{c}{i}" for i in range(lo, hi)]


def cls(k, w, v, **kw):
    head = "Q14 K16" if k == 0 else f"Q2 K{k} Q12 K{16-k}"
    mid = f"W{w} V16" if (v == 0 or w == 2) else f"W2 V{v} W{w-2} V{16-v}"
    tail = f" W{16-w}" if w < 16 else ""
    return (f"{head} {mid}{tail}", dict(dict(ksplit=max(8, 16 - w)), **kw))


DEFAULT = dict(
    nt_kv="nt", nt_w="", nt_x="", stamps=False, st_fl="sc0 sc1", ld_fl="sc0 sc1",
    groups=(cls(0, 5, 0), cls(7, 8, 8), cls(4, 5, 0), cls(10, 8, 0)), gsel="bbr",
    fill_per=40, fill3=14, nmid=12, la=(4, 4, 4, 4), ksplit=8, more1=2, more2=1,
    poll_sleep=0, codepf=True, tper=2, hold=3, win=(0, 8, 1, 7), xrot=False, obar=2, xorder='cb', xsplit=13, kick=True, ownfirst=False, headmajor=False, rdy_fl='sc1', msum=True, early=0, early_min=6, kcap=9, kcap2=9, xcdrot=0, poll_depth=1, poll_gap=0, lastla=1, lastla2=3,
)


def schedule(spec, nmid, tper):
    issue = []
    cnt = dict(Q=0, K=0, V=0, W=0)
    for tok in spec.split():
        c, n = tok[0], int(tok[1:])
        issue += R(c, cnt[c], cnt[c] + n)
        cnt[c] += n
    assert cnt == dict(Q=14, K=16, V=16, W=16), cnt
    assert issue[:2] == ["Q0", "Q1"]
    iq, ik = issue.index("Q13"), issue.index("K15")
    ph1 = issue[:iq + 1]
    assert all(u[0] in "QK" for u in ph1)
    npre = sum(u[0] == "K" for u in ph1)
    assert npre <= 14
    rest = issue[iq + 1:ik + 1]
    assert all(u[0] in "KW" for u in rest)
    T = R("T", 0, npre)
    ph2 = [u for u in ("T0", "T4") if u in T]
    if npre > 10:
        ph2 += ["T1", "T2", "T3"]
    T = [u for u in T if u not in ph2]
    shift = 4 if npre > 10 else 0
    for u in rest:
        if u[0] == "W":
            assert int(u[1:]) < 8
            while T and int(T[0][1:]) <= int(u[1:]) + shift + 1:
                ph2.append(T.pop(0))
            assert not ph2 or ph2[-1] != f"T{int(u[1:]) + shift}"
            ph2.append(u)
        else:
            ph2 += [u] + T[:tper]
            T = T[tper:]
    ph2 += T
    after = issue[ik + 1:]
    mid2, held = [], 0
    for u in after:
        if u[0] == "V":
            held += 1
            if held > NSLOT - 4:
                break
        elif len(mid2) < nmid:
            mid2.append(u)
    ph3 = [u for u in after if u not in mid2]
    iv = ph3.index("V15")
    ph3, ph4 = ph3[:iv + 1], ph3[iv + 1:]
    return dict(issue=issue, ph1=ph1, ph2=ph2, mid2=mid2, ph3=ph3, ph4=ph4, npre=npre)


class Gen:
    def __init__(self, sched, tag, **kw):
        self.o = dict(DEFAULT)
        self.o.update(kw)
        self.p = Prog()
        self.sc = sched
        self.tag = tag
        self.issue_q = list(sched["issue"])
        self.free = [(s, []) for s in range(NSLOT)]
        self.unit = {}
        self.side = {}
        self.eaten, self.started = set(), set()
        self.order = []
        self.nstamp = 1
        self.bufs, self.buf = (64, 96), 0

    def lines(self, texts):
        return [(lambda t=t: self.p(t)) for t in texts]

    def stamp(self, name=""):
        if self.o["stamps"] and (self.o["stamps"] != "ends" or name == "end"):
            self.p(("s_memtime" if self.o["stamps"] == "cyc" else "s_memrealtime") + " s[100:101]")
            self.p("s_waitcnt lgkmcnt(0)")
            self.p(f"s_mov_b32 s{sST + self.nstamp}, s100")
            self.nstamp += 1
            assert self.nstamp <= 14

    def dma_items(self):
        name = self.issue_q.pop(0)
        slot, reads = self.free.pop(0)
        kind, u = name[0], int(name[1:])
        r, v, nt = {"Q": (sQ, vDQ, self.o["nt_w"]), "K": (sK, vDK, self.o["nt_kv"]),
                    "V": (sV, vDV, self.o["nt_kv"]), "W": (sO, vDO, self.o["nt_w"])}[kind]
        dm = []
        self.unit[name] = (slot, dm)
        p = self.p

        def head():
            p(f"s_add_u32 m0, s{sRING}, {slot*4096}")
            if kind == "Q":
                p(f"s_lshl_b32 s{sSO}, s{sROT + u // 2}, 12")
                if u % 2:
                    p(f"s_bitset1_b32 s{sSO}, 18")
            elif kind == "W":
                p(f"s_xor_b32 s{sSO}, s{sXW}, {u}")
                p(f"s_mulk_i32 s{sSO}, {16*896}")
            elif kind == "K":
                p(f"s_xor_b32 s{sSO}, s{sW128}, {(u // 4) * 65536 + (u % 4) * 128}")
            else:
                p(f"s_mov_b32 s{sSO}, {u * 16384}")

        def piece(j):
            def f():
                if j == 0:
                    head()
                off = f" offset:{1024*j}" if j else ""
                dm.append(p(f"buffer_load_dwordx4 v{v+j}, {srd(r)}, s{sSO} offen{off}{fl(nt)} lds",
                            after=reads if j == 0 else ()))
            return f
        return [piece(j) for j in range(4)]

    def all_dma(self, la=None):
        la = min(la or self.o["la"], NSLOT)
        out = []
        while self.issue_q and NSLOT - len(self.free) < la:
            out += self.dma_items()
        return out

    def one_more(self):
        def f():
            if self.issue_q and self.free:
                for g in self.dma_items():
                    g()
        return f

    def kreg(self, u, j):
        if self.sc["npre"] > 10:
            if u < 4:
                return vr(192 + 16 * u + 4 * j, 4)
            u -= 4
        return ar(self.wreg(u) + 4 * j, 4)

    @staticmethod
    def wreg(u):
        return 128 + 16 * u if u < 8 else 16 * (u - 8)

    def unit_reads(self, name, base):
        kind, u = name[0], int(name[1:])
        p = self.p
        items, done = [], []
        if kind == "T":
            return items, done
        slot, dm = self.unit[name]
        so = slot * 4096
        sd = self.side.setdefault(name, [])

        def ring(text, pieces):
            items.append(lambda: done.append(p(text, after=[dm[j] for j in pieces])))

        def side(text):
            items.append(lambda: sd.append(p(text)))
        if self.o.get("trace"):
            def mark():
                p("s_nop 0", after=list(dm))
                p("s_memrealtime s[100:101]")
                p("s_waitcnt lgkmcnt(0)")
                p(f"v_writelane_b32 v0, s100, {len(self.order)}")
                self.order.append(name)
            items.append(mark)
        if kind in "QV":
            for ks in range(2):
                for mt in range(2):
                    for part in range(2):
                        d = base + (ks * 2 + mt) * 4 + part * 2
                        if kind == "Q":
                            ring(f"ds_read_b64_tr_b16 {vr(d,2)}, v{vRQ+mt} offset:{so + ks*2048 + part*512}",
                                 (2 * ks, 2 * ks + 1))
                        else:
                            ring(f"ds_read_b64_tr_b16 {vr(d,2)}, v{vRV+mt} offset:{so + ks*2048 + part*1024}",
                                 (2 * ks + part,))
                    qt = mt
                    d = base + 16 + (ks * 2 + qt) * 4
                    if kind == "Q":
                        s = 2 * u + ks
                        side(f"ds_read_b128 {vr(d,4)}, v{vRX + s % 4} offset:{XPOS[s // 4]*8192 + qt*4096}")
                    else:
                        side(f"ds_read_b128 {vr(d,4)}, v{vPA+qt} offset:{(u % 4)*16384 + ((u // 4)*2 + ks)*2048}")
        elif kind == "K":
            for j in range(4):
                d = self.kreg(u, j) if u < self.sc["npre"] else vr(base + 4 * j, 4)
                ring(f"ds_read_b128 {d}, v{vRK+j} offset:{so}", range(4))
        elif kind == "W":
            for part in range(2):
                for t in range(4):
                    ring(f"ds_read_b64_tr_b16 {ar(self.wreg(u) + t*4 + part*2, 2)}, v{vRO+t} "
                         f"offset:{so + part*1024}", (part, 2 + part))
        return items, done

    def unit_mfmas(self, name, base):
        kind, u = name[0], int(name[1:])
        out = []
        if kind in "QV":
            order = [(ks, mt, qt) for ks in range(2) for mt, qt in ((0, 0), (1, 0), (0, 1), (1, 1))]
            if name in ("Q13", "V15"):
                order = [(ks, mt, qt) for mt in range(2) for qt in range(2) for ks in range(2)]
            for ks, mt, qt in order:
                acc = vr(ACC + (mt * 2 + qt) * 16, 16)
                c = "0" if (u == 0 and ks == 0) else acc
                out.append(f"{MF} {acc}, {vr(base + (ks*2+mt)*4, 4)}, {vr(base + 16 + (ks*2+qt)*4, 4)}, {c}")
        elif kind == "T" or (kind == "K" and u >= self.sc["npre"]):
            t, i = u // 4, u % 4
            first = t not in self.started
            self.started.add(t)
            for j in range(4):
                a = self.kreg(u, j) if kind == "T" else vr(base + 4 * j, 4)
                for qt in range(2):
                    acc = vr(ACC + (t * 2 + qt) * 16, 16)
                    b = vr(self.own + (j * 2 + qt) * 4, 4) if i == 0 else ar(((i * 4 + j) * 2 + qt) * 4, 4)
                    out.append(f"{MF} {acc}, {a}, {b}, {'0' if (first and j == 0) else acc}")
        return out

    def window(self, mfmas, early, late, fill):
        p = self.p
        n = len(mfmas)
        if n == 0:
            for f in fill + late + early:
                f()
            return
        gaps = [[] for _ in range(n)]
        e0, e1, l0, l1 = self.o["win"]
        e1, l1 = min(e1, n), min(l1, n - 1)
        for k, f in enumerate(early):
            gaps[e0 + k * (e1 - e0) // len(early)].append(f)
        for k, f in enumerate(late):
            gaps[l0 + k * (l1 - l0) // len(late)].append(f)
        for k, f in enumerate(fill):
            gaps[k * n // len(fill)].append(f)
        for m, g in zip(mfmas, gaps):
            p(m)
            for f in g:
                f()

    def release(self, nme, done):
        if nme[0] != "T":
            self.eaten.add(nme)
            self.free.append((self.unit[nme][0], done))

    def run_phase(self, units, fillq=(), per=0, after=None, before=None):
        pend, prev = [], None
        self.fillq = list(fillq)
        for nme in units:
            base = self.bufs[self.buf]
            mf = self.unit_mfmas(nme, base)
            if mf and nme[0] != "T":
                self.buf ^= 1
            la = self.o["la"] + (0 if pend else 1)
            if nme[0] == "V" and "V15" in self.unit:
                la = min(la, self.o["hold"])
            if nme[0] == "Q" and "Q13" in self.unit:
                la = min(la, 14 - int(nme[1:]) + self.o["kcap"])
            early = self.all_dma(la)
            if nme[0] != "T" and not self.unit[nme][1]:
                for f in early:
                    f()
                early = []
            late, done = self.unit_reads(nme, base)
            if before:
                late = before(nme) + late
            take, self.fillq = self.fillq[:per], self.fillq[per:]
            self.window(pend, early, late, take)
            if after and prev:
                self.fillq += after(prev)
            self.release(nme, done)
            pend, prev = mf, nme
        return pend

    def stage(self, nme):
        def f():
            held = sum(u[0] == "V" and u not in self.eaten for u in self.unit)
            early = self.all_dma(min(NSLOT, self.o["la"] + 1 + held))
            if not self.unit[nme][1]:
                for g in early:
                    g()
                early = []
            it, d = self.unit_reads(nme, 0)
            for g in it + early:
                g()
            self.release(nme, d)
        return f

    @staticmethod
    def spread(items, stages):
        n, k = len(stages), 0
        for i, f in enumerate(items):
            while k < n and (k + 0.5) * len(items) / n <= i:
                stages[k]()
                k += 1
            f()
        for g in stages[k:]:
            g()

    def last_window(self, mfmas, early, addr):
        p = self.p
        self.own = self.bufs[self.buf]
        w = []

        def pack(a):
            mt, q = a // 2, a % 2
            for ks in range(2):
                src = ACC + a * 16 + ks * 8
                d = self.own + ((2 * mt + ks) * 2 + q) * 4
                for k in range(4):
                    p(f"v_cvt_pk_bf16_f32 v{d+k}, v{src+2*k}, v{src+2*k+1}")
                reg, off = addr(2 * mt + ks, q)
                w.append(p(f"ds_write_b128 v{reg}, {vr(d,4)} offset:{off}"))
        early = list(early)
        for i, m in enumerate(mfmas):
            p(m)
            if i < 4:
                for f in early[i * len(early) // 4:(i + 1) * len(early) // 4]:
                    f()
            if i in (4, 6):
                pack((i - 4) // 2)
        pack(2)
        pack(3)
        return w

    def prologue(self):
        p, o = self.p, self.o
        ng = len(o["groups"])
        p("s_cmp_ge_u32 s2, 256")
        p("s_cbranch_scc1 L_exit")
        if o["stamps"]:
            p(("s_memtime" if o["stamps"] == "cyc" else "s_memrealtime") + f" s[{sST}:{sST+1}]")
        p(f"s_lshr_b32 s{sBR}, s2, 7")
        p(f"s_mul_i32 s5, s{sBR}, 40")
        p("s_add_u32 s6, s0, s5")
        p("s_addc_u32 s7, s1, 0")
        p("s_load_dwordx8 s[88:95], s[6:7], 0")
        p("s_load_dwordx2 s[86:87], s[6:7], 32")
        p(f"s_load_dwordx2 s[{sWS}:{sWS+1}], s[0:1], 96")
        p("s_load_dwordx4 s[96:99], s[0:1], 80")
        if o.get("headpf"):
            p("s_getpc_b64 s[10:11]")
            p("v_min_u32 v5, 12, v0")
            p("v_lshlrev_b32 v5, 7, v5")
            p("global_load_dword v254, v5, s[10:11]", hidden=True)
        p("v_lshrrev_b32 v7, 6, v0")
        p(f"v_and_b32 v{vL}, 63, v0")
        p(f"v_readfirstlane_b32 s{sW}, v7")
        p(f"v_lshrrev_b32 v2, 3, v{vL}")
        p(f"v_and_b32 v3, 7, v{vL}")
        p(f"v_lshrrev_b32 v4, 4, v{vL}")
        p(f"s_bfe_u32 s{sB}, s2, 0x30004")
        p("s_bfe_u32 s4, s2, 0x10003")
        p(f"s_and_b32 s{sT2}, s{sW}, 1")
        p(f"s_cmp_eq_u32 s{sB}, 7")
        p(f"s_cselect_b32 s{sROT}, 3, s{sB}")
        if o["xcdrot"]:
            p("s_and_b32 s3, s2, 7")
            if o["xcdrot"] > 1:
                p(f"s_mul_i32 s3, s3, {o['xcdrot']}")
            p(f"s_add_u32 s{sROT}, s{sROT}, s3")
            p(f"s_mul_i32 s3, s{sROT}, 37")
            p("s_lshr_b32 s3, s3, 8")
            p("s_mul_i32 s3, s3, 7")
            p(f"s_sub_u32 s{sROT}, s{sROT}, s3")
        p(f"s_lshl_b32 s{sROT}, s{sROT}, 7")
        p(f"s_lshl_b32 s{sT0}, s{sT2}, 2")
        p(f"v_add_u32 v5, s{sT0}, v4")
        p("v_xor_b32 v5, v5, v3")
        p(f"s_lshl_b32 s5, s4, {2 if o['xrot'] else 31}")
        p("s_and_b32 s5, s5, 4")
        p(f"s_add_u32 s5, s5, s{sW}")
        p(f"s_lshl_b32 s{sT0}, s5, 3")
        p(f"v_add_u32 v6, s{sT0}, v2")
        p("v_xor_b32 v7, 32, v6")
        p("v_mul_u32_u24 v6, 896, v6")
        p("v_mul_u32_u24 v7, 896, v7")
        p(f"v_lshl_add_u32 v{vDX}, v5, 4, v6")
        p("v_lshl_add_u32 v7, v5, 4, v7")
        p(f"s_lshl_b32 s{sT1}, s5, 10")
        p(f"s_mul_i32 s{sT0}, s{sB}, 57344")
        p(f"s_mov_b32 s{sX+2}, 57344")
        p(f"s_mov_b32 s{sX+3}, 0x20000")
        p("s_waitcnt lgkmcnt(0)")
        p(f"s_add_u32 s{sX}, s88, s{sT0}")
        p(f"s_addc_u32 s{sX+1}, s89, 0")
        self.xd = []
        p(f"s_xor_b32 s5, s{sT1}, 0x1000")
        seq = [(h, cb) for h in range(2) for cb in range(7)] if o["xorder"] == "half" else \
            [(h, cb) for cb in range(7) for h in range(2)]
        for n, (half, cb) in enumerate(seq):
            if True:
                p(f"s_add_u32 m0, s{5 if half else sT1}, {SH + XPOS[cb]*8192}")
                if half == 0 and cb:
                    p(f"s_add_u32 s{sROT+cb}, s{sROT+cb-1}, 128")
                    p(f"s_cmp_eq_u32 s{sROT+cb}, 896")
                    p(f"s_cselect_b32 s{sROT+cb}, 0, s{sROT+cb}")
                self.xd.append(p(f"buffer_load_dwordx4 v{7 if half else vDX}, {srd(sX)}, s{sROT+cb} "
                                 f"offen{fl(o['nt_x'])} lds"))
            if n == o["xsplit"]:
                p("s_and_b32 s3, s2, 7")
                p("s_lshl_b32 s3, s3, 1")
                p(f"s_add_u32 s{sH}, s3, s4")
                if ng > 1:
                    if o["gsel"] == "b":
                        p(f"s_and_b32 s{sCLS}, s{sB}, {ng-1}")
                    elif o["gsel"] == "br":
                        p(f"s_mov_b32 s{sCLS}, s{sBR}")
                    else:
                        p(f"s_and_b32 s{sCLS}, s{sB}, {ng//2-1}")
                        p(f"s_lshl_b32 s{sCLS}, s{sCLS}, 1")
                        p(f"s_add_u32 s{sCLS}, s{sCLS}, s{sBR}")
                if o["codepf"] and o["codepf"] != "late":
                    p("s_getpc_b64 s[6:7]")
                    p("L_pc:")
                    p("s_mov_b32 s3, L_class0-L_pc")
                    for g in range(1, ng):
                        p(f"s_cmp_eq_u32 s{sCLS}, {g}")
                        p(f"s_cselect_b32 s3, L_class{g}-L_pc, s3")
                    p("s_add_u32 s6, s6, s3")
                    p("s_addc_u32 s7, s7, 0")
                    if o["codepf"] == "full":
                        p(f"v_min_u32 v5, (L_codeend-L_class{ng-1})/128-1, v0")
                        p("v_lshlrev_b32 v5, 7, v5")
                    else:
                        p(f"s_and_b32 s3, s{sB}, 6")
                        p("s_add_u32 s3, s3, s4")
                        p("s_mulk_i32 s3, 20")
                        p("v_min_u32 v5, 19, v0")
                        p("v_add_u32 v5, s3, v5")
                        p(f"v_min_u32 v5, (L_codeend-L_class{ng-1})/128-1, v5")
                        p("v_lshlrev_b32 v5, 7, v5")
                    p("global_load_dword v255, v5, s[6:7]", hidden=True)
                p(f"s_mul_i32 s{sRING}, s{sW}, {RSZ}")
                p(f"s_add_u32 s{sRING}, s{sRING}, {RING}")
                p("v_and_b32 v5, 1, v4")
                p("v_lshlrev_b32 v5, 2, v5")
                p("v_xor_b32 v5, v5, v3")
                p(f"s_lshl_b32 s{sW128}, s{sW}, 7")
                p(f"v_lshl_add_u32 v5, v5, 4, s{sW128}")
                if o.get("fakek"):
                    p(f"s_mov_b32 s{sW128}, 0")
                p(f"v_lshl_add_u32 v{vDQ}, v2, 13, v5")
                p(f"s_lshl_b32 s{sT0}, s{sB}, 6")
                p(f"v_xor_b32 v5, s{sT0}, v5")
                p(f"v_lshl_add_u32 v{vDV}, v2, 9, v5")
                for j in range(1, 4):
                    p(f"v_add_u32 v{vDQ+j}, {j*(65536-1024)}, v{vDQ}")
                p(f"s_lshl_b32 s{sT0}, s{sH}, 9")
                p(f"s_add_u32 s{sQ}, s94, s{sT0}")
                p(f"s_addc_u32 s{sQ+1}, s95, 0")
                p(f"s_sub_u32 s{sQ+2}, 3670016, s{sT0}")
                p(f"s_mov_b32 s{sQ+3}, 0x20000")
                p(f"s_lshl_b32 s{sGRP}, s{sBR}, 3")
                p(f"s_add_u32 s{sGRP}, s{sGRP}, s{sB}")
                p(f"s_mov_b32 s{sWS+2}, {PBASE + 16 * GRP}")
                p(f"s_mov_b32 s{sWS+3}, 0x20000")
                p(f"v_lshlrev_b32 v{vLIN}, 4, v{vL}")
        p(f"s_cmp_lg_u32 s{sH}, 15")
        p("s_cbranch_scc1 L_noclr")
        p(f"s_lshl_b32 s3, s{sGRP}, 2")
        p(f"s_add_u32 s3, s3, s{sW}")
        p("s_lshl_b32 s3, s3, 11")
        p(f"s_add_u32 s3, s3, {FBASE}")
        p(f"v_lshrrev_b32 v5, 2, v{vL}")
        p(f"v_and_b32 v6, 48, v{vLIN}")
        p("v_lshl_add_u32 v5, v5, 7, v6")
        for k in range(4):
            p(f"v_mov_b32 v{64+k}, 0")
        p(f"buffer_store_dwordx4 v[64:67], v5, {srd(sWS)}, s3 offen sc0 sc1", hidden=True)
        p("L_noclr:")
        for f in self.all_dma(2):
            f()
        p(f"s_lshl_b32 s{sT0}, s{sB}, 4")
        p(f"s_add_u32 s{sT0}, s{sT0}, s{sH}")
        p(f"s_xor_b32 s{sT1}, s{sBR}, 1")
        p(f"s_lshr_b32 s{sT0}, s{sT0}, s{sT1}")
        p(f"s_lshl_b32 s{sT0}, s{sT0}, 18")
        for r, src in ((sK, 90), (sV, 92)):
            p(f"s_add_u32 s{r}, s{src}, s{sT0}")
            p(f"s_addc_u32 s{r+1}, s{src+1}, 0")
            p(f"s_mov_b32 s{r+2}, 262144")
            p(f"s_mov_b32 s{r+3}, 0x20000")
        p(f"s_mul_i32 s{sT0}, s{sH}, 229376")
        p(f"s_add_u32 s{sO}, s86, s{sT0}")
        p(f"s_addc_u32 s{sO+1}, s87, 0")
        p(f"s_mov_b32 s{sO+2}, 229376")
        p(f"s_mov_b32 s{sO+3}, 0x20000")
        for r, src, n in ((sOUT, 96, 917504), (sDBG, 98, 256)):
            p(f"s_mov_b32 s{r}, s{src}")
            p(f"s_mov_b32 s{r+1}, s{src+1}")
            p(f"s_mov_b32 s{r+2}, {n}")
            p(f"s_mov_b32 s{r+3}, 0x20000")
        p(f"s_lshl_b32 s{sDO}, s{sGRP}, 4")
        if o.get("tlb0"):
            p("v_mov_b32 v5, 0")
            for r in (sK, sV, sO):
                p(f"buffer_load_dword v254, v5, {srd(r)}, 0 offen nt", hidden=True)
        p(f"s_lshl_b32 s{sXW}, s{sW}, {1 if o['ownfirst'] and not o.get('fakew') else 31}")
        p(f"s_xor_b32 s{sXW}, s{sXW}, s{sB}")
        p(f"s_lshl_b32 s{sXW}, s{sXW}, 1")
        p(f"s_mov_b32 s{sC}, {f32(math.log2(math.e) / 16)}")
        p("v_xor_b32 v5, v3, v4")
        p(f"s_lshl_b32 s{sT0}, s{sW}, 14")
        p(f"v_lshl_add_u32 v5, v5, 4, s{sT0}")
        p(f"v_lshl_add_u32 v{vDK}, v2, 9, v5")
        p(f"v_xor_b32 v5, 64, v{vDK}")
        p(f"v_add_u32 v{vDK+1}, 3072, v5")
        p(f"v_add_u32 v{vDK+2}, 6144, v{vDK}")
        p(f"v_add_u32 v{vDK+3}, 9216, v5")
        for j in range(1, 4):
            p(f"v_add_u32 v{vDV+j}, {j*3072}, v{vDV}")
        p(f"v_add_u32 v{vWR}, s{sT0}, v{vLIN}")
        for j in range(1, 4):
            p(f"v_xor_b32 v{vQA+j-1}, {j*16384}, v{vWR}")
        p(f"s_add_u32 s{sT0}, s{sT0}, 8192")
        p(f"v_lshl_add_u32 v{vIR}, v{vL}, 3, s{sT0}")
        p(f"v_bfe_u32 v5, v{vL}, 2, 2")
        p("v_xor_b32 v5, v5, v4")
        p(f"v_add_u32 v5, s{sT2}, v5")
        p("v_and_b32 v5, 3, v5")
        p(f"v_and_b32 v6, 48, v{vLIN}")
        p("v_lshl_add_u32 v5, v5, 6, v6")
        p("v_mul_u32_u24 v6, 896, v4")
        p(f"s_mul_i32 s{sT0}, s{sW}, 224")
        p(f"s_lshl_b32 s{sT1}, s{sT2}, 5")
        p(f"s_sub_u32 s{sT0}, s{sT0}, s{sT1}")
        p(f"v_add3_u32 v{vDO}, v5, v6, s{sT0}")
        for j in range(1, 4):
            p(f"v_add_u32 v{vDO+j}, {j*(3584-1024)}, v{vDO}")
        p(f"v_lshrrev_b32 v2, 5, v{vL}")
        p(f"v_bfe_u32 v3, v{vL}, 1, 3")
        p("v_xor_b32 v3, v3, v2")
        p(f"v_and_b32 v5, 31, v{vL}")
        p("v_lshlrev_b32 v5, 7, v5")
        p(f"v_lshl_add_u32 v{vRX}, v3, 4, v5")
        for j in range(1, 4):
            p(f"v_xor_b32 v{vRX+j}, {j*32}, v{vRX}")
        for j in range(4):
            p(f"v_add_u32 v{vRK+j}, s{sRING}, v{vRX+j}")
        p(f"v_and_b32 v3, 16, v{vLIN}")
        p(f"v_bfe_u32 v5, v{vL}, 1, 1")
        p("v_lshl_add_u32 v3, v5, 3, v3")
        p("v_and_b32 v5, 1, v4")
        p("v_lshl_add_u32 v3, v5, 5, v3")
        p(f"v_add_u32 v3, s{sRING}, v3")
        p(f"v_bfe_u32 v5, v{vL}, 2, 2")
        p(f"v_bfe_u32 v6, v{vL}, 3, 1")
        p("v_lshl_add_u32 v6, v6, 6, v3")
        p("v_lshl_add_u32 v6, v5, 7, v6")
        p(f"v_lshl_add_u32 v{vRQ}, v2, 10, v6")
        p(f"v_lshl_add_u32 v{vRV}, v2, 9, v6")
        p(f"v_xor_b32 v{vRQ+1}, 64, v{vRQ}")
        p(f"v_xor_b32 v{vRV+1}, 64, v{vRV}")
        p("v_mul_u32_u24 v6, 320, v5")
        p("v_add_u32 v6, v6, v3")
        p(f"v_lshl_add_u32 v{vRO}, v2, 11, v6")
        for t in range(1, 4):
            p(f"v_xor_b32 v{vRO+t}, {t*64}, v{vRO}")
        p(f"s_lshl_b32 s{sT1}, s{sT2}, 10")
        p(f"v_add_u32 v{vPA}, s{sT1}, v{vLIN}")
        p(f"v_xor_b32 v{vPA+1}, 0x400, v{vPA}")
        p(f"s_lshl_b32 s{sT0}, s{sW}, 9")
        p(f"s_add_u32 s{sT0}, s{sT0}, 8192")
        p(f"v_lshl_add_u32 v{vIW}, v{vL}, 3, s{sT0}")
        for g in range(1, ng):
            p(f"s_cmp_eq_u32 s{sCLS}, {g}")
            p(f"s_cbranch_scc1 L_class{g}")
        p("s_branch L_class0")
        p("L_exit:")
        p("s_endpgm")
        p(SPLIT)
        p(f"L_class{self.tag}:")
        p("s_barrier", after=self.xd)
        self.stamp()
        p(f"s_cmp_lg_u32 s{sH}, 15")
        p(f"s_cbranch_scc1 L_noset{self.tag}")
        p(f"s_lshl_b32 s3, s{sW}, 2")
        p(f"s_add_u32 s3, s3, s{sDO}")
        p("v_mov_b32 v2, 0")
        p("v_mov_b32 v3, 1")
        p("s_mov_b64 exec, 1")
        p(f"buffer_store_dword v3, v2, {srd(sDBG)}, s3 offen sc0 sc1", hidden=True)
        p("s_mov_b64 exec, -1")
        p(f"L_noset{self.tag}:")
        if o["kick"]:
            for f in self.all_dma():
                f()
        if o["codepf"] == "late":
            p("s_getpc_b64 s[6:7]")
            p(f"s_and_b32 s3, s{sB}, 6")
            p(f"s_and_b32 s4, s{sH}, 1")
            p("s_add_u32 s3, s3, s4")
            p("s_mulk_i32 s3, 20")
            p("v_min_u32 v5, 19, v0")
            p("v_add_u32 v5, s3, v5")
            p("v_min_u32 v5, 155, v5")
            p("v_lshlrev_b32 v5, 7, v5")
            p("global_load_dword v5, v5, s[6:7]")

    def store_setup(self):
        hm = self.o["headmajor"]
        L = [f"s_mul_i32 s3, s{sGRP}, {GRP}", f"s_mul_i32 s4, s{sH}, {57344 if hm else 2048}", "s_add_u32 s3, s3, s4",
             f"s_add_u32 s3, s3, {PBASE}", f"s_lshr_b32 s4, s{sW}, 1", "s_mul_i32 s4, s4, 7",
             f"s_mul_i32 s5, s{sT2}, 3", "s_add_u32 s4, s4, s5", f"s_lshl_b32 s7, s{sT2}, 1",
             f"v_mov_b32 v{vFL}, 0"]
        for t in range(4):
            L += [f"s_add_u32 s5, s{sT2}, {t}", "s_and_b32 s5, s5, 3", "s_add_u32 s5, s5, s4",
                  "s_lshr_b32 s6, s5, 1", "s_lshl_b32 s6, s6, 2", "s_and_b32 s5, s5, 1",
                  "s_add_u32 s5, s5, s6", "s_add_u32 s5, s5, s7"]
            for qi in range(2 if t < 3 else 1):
                if qi:
                    L.append("s_xor_b32 s5, s5, 2")
                L += [f"s_lshl_b32 s6, s5, {11 if hm else 15}", f"s_add_u32 s{sPT + 2*t + qi}, s6, s3", "s_lshl_b32 s6, s5, 8",
                      f"v_writelane_b32 v{vFL}, s6, {2*(2*t+qi)}", "s_add_u32 s6, s6, 128",
                      f"v_writelane_b32 v{vFL}, s6, {2*(2*t+qi)+1}"]
        return self.lines(L)

    def softmax_tile(self, t, packed=False):
        seq = []
        for qt in range(2):
            s = ACC + (t * 2 + qt) * 16
            m, l = vMC + t * 2 + qt, vLS + t * 2 + qt
            seq.append(f"v_max3_f32 v{m}, v{s}, v{s+1}, v{s+2}")
            for k in range(3, 15, 2):
                seq.append(f"v_max3_f32 v{m}, v{m}, v{s+k}, v{s+k+1}")
            seq.append(f"v_max_f32 v{m}, v{m}, v{s+15}")
            seq.append(f"v_mul_f32 v{m}, s{sC}, v{m}")
            if packed:
                for k in range(0, 16, 2):
                    seq.append(f"v_pk_fma_f32 {vr(s+k,2)}, {vr(s+k,2)}, s[{sC}:{sC+1}], {vr(m & ~1, 2)} "
                               f"op_sel:[0,0,{m & 1}] op_sel_hi:[1,0,{m & 1}] neg_lo:[0,0,1] neg_hi:[0,0,1]")
                for k in range(16):
                    seq.append(f"v_exp_f32 v{s+k}, v{s+k}")
                    if k == 4:
                        seq.append(f"v_pk_add_f32 v[2:3], {vr(s,2)}, {vr(s+2,2)}")
                    elif k > 4 and k % 2 == 0:
                        seq.append(f"v_pk_add_f32 v[2:3], v[2:3], {vr(s+k-2,2)}")
                seq.append(f"v_pk_add_f32 v[2:3], v[2:3], {vr(s+14,2)}")
                seq.append(f"v_add_f32 v{l}, v2, v3")
            else:
                for k in range(16):
                    seq.append(f"v_fma_f32 v{s+k}, v{s+k}, s{sC}, -v{m}")
                for k in range(16):
                    seq.append(f"v_exp_f32 v{s+k}, v{s+k}")
                    if k == 2:
                        seq.append(f"v_add_f32 v{l}, v{s}, v{s+1}")
                    elif k > 2:
                        seq.append(f"v_add_f32 v{l}, v{l}, v{s+k-1}")
                seq.append(f"v_add_f32 v{l}, v{l}, v{s+15}")
        return self.lines(seq)

    def softmax_combine(self):
        p = self.p
        T = 64
        L = []
        q = lambda t: L.append(lambda: p(t))
        w1 = []
        for qt in range(2):
            m = [vMC + t * 2 + qt for t in range(4)]
            q(f"v_max3_f32 v{T+qt}, v{m[0]}, v{m[1]}, v{m[2]}")
            q(f"v_max_f32 v{T+qt}, v{T+qt}, v{m[3]}")
        for k in range(8):
            q(f"v_sub_f32 v{T+4+k}, v{vMC+k}, v{T + k % 2}")
        for k in range(8):
            q(f"v_exp_f32 v{T+4+k}, v{T+4+k}")
        q(f"v_pk_mul_f32 {vr(T+2,2)}, {vr(vLS,2)}, {vr(T+4,2)}")
        for t in range(1, 4):
            q(f"v_pk_fma_f32 {vr(T+2,2)}, {vr(vLS+2*t,2)}, {vr(T+4+2*t,2)}, {vr(T+2,2)}")
        q(f"v_permlane32_swap_b32 v{T}, v{T+1}")
        q(f"v_permlane32_swap_b32 v{T+2}, v{T+3}")
        q(f"v_max_f32 v{T+8}, v{T}, v{T+1}")
        q(f"v_sub_f32 v{T+4}, v{T}, v{T+8}")
        q(f"v_sub_f32 v{T+5}, v{T+1}, v{T+8}")
        q(f"v_exp_f32 v{T+4}, v{T+4}")
        q(f"v_exp_f32 v{T+5}, v{T+5}")
        q(f"v_mul_f32 v{T+9}, v{T+2}, v{T+4}")
        q(f"v_fmac_f32 v{T+9}, v{T+3}, v{T+5}")
        for r in range(4):
            L.append(lambda r=r: w1.append(p(f"ds_write_b64 v{vIW}, {vr(T+8,2)} offset:{r*16384}")))
        L.append(lambda: p("s_barrier", after=w1))
        for r in range(4):
            q(f"ds_read_b64 {vr(T+10+2*r,2)}, v{vIR} offset:{r*512}")
        q(f"v_max3_f32 v{T}, v{T+10}, v{T+12}, v{T+14}")
        q(f"v_max_f32 v{T}, v{T}, v{T+16}")
        for r in range(4):
            q(f"v_sub_f32 v{T+4+r}, v{T+10+2*r}, v{T}")
        for r in range(4):
            q(f"v_exp_f32 v{T+4+r}, v{T+4+r}")
        q(f"v_mul_f32 v{T+1}, v{T+11}, v{T+4}")
        for r in range(1, 4):
            q(f"v_fmac_f32 v{T+1}, v{T+11+2*r}, v{T+4+r}")
        q(f"v_log_f32 v{T+1}, v{T+1}")
        q(f"v_add_f32 v{T}, v{T}, v{T+1}")
        q(f"v_mov_b32 v{T+1}, v{T}")
        q(f"v_permlane32_swap_b32 v{T}, v{T+1}")
        for k in range(8):
            q(f"v_sub_f32 v{vMC+k}, v{vMC+k}, v{T + k % 2}")
        for k in range(8):
            q(f"v_exp_f32 v{vMC+k}, v{vMC+k}")
        return L

    def publish_p(self, t, w, packed):
        p = self.p
        L = []
        for qt in range(2):
            s, f = ACC + (t * 2 + qt) * 16, vMC + t * 2 + qt
            for ks in range(2):
                b = s + ks * 8
                if packed:
                    L += self.lines([f"v_pk_mul_f32 {vr(b+k,2)}, {vr(b+k,2)}, {vr(f & ~1, 2)} "
                                     f"op_sel:[0,{f & 1}] op_sel_hi:[1,{f & 1}]" for k in range(0, 8, 2)])
                else:
                    L += self.lines([f"v_mul_f32 v{b+k}, v{b+k}, v{f}" for k in range(8)])
                L += self.lines([f"v_cvt_pk_bf16_f32 v{b+k}, v{b+2*k}, v{b+2*k+1}" for k in range(4)])
                x = f"ds_write_b128 v{vWR}, {vr(b,4)} offset:{((t*2+ks)*2+qt)*1024}"
                L.append(lambda x=x: w.append(p(x)))
        return L

    def out_proj(self, wq, ow, extra):
        p, o = self.p, self.o
        ks = o["ksplit"]
        assert 8 <= ks <= 16
        units = [(0, 0), (1, 0), (2, 0), (3, 0), (0, 1), (1, 1), (2, 1)]
        other = 160 - self.own

        nown = 4 if o["ownfirst"] else 0
        obar = o["obar"] if nown else -1

        def oreg(s, qi):
            if s < nown:
                b = self.own + s * 8
            elif s < ks:
                b = 240 + (s % 2) * 8
            else:
                b = other + (s - ks) * 8 if s - ks < 4 else self.own + (s - ks - 4) * 8
            return b + qi * 4

        def oread(s):
            if not nown:
                return self.lines([f"ds_read_b128 {vr(oreg(s, qi), 4)}, v{vPA+qi} "
                                   f"offset:{(s // 4)*16384 + (s % 4)*2048}" for qi in range(2)])
            return self.lines([f"ds_read_b128 {vr(oreg(s, qi), 4)}, v{(vQB if qi else vQA) + s // 4 - 1} "
                               f"offset:{(s % 4)*2048}" for qi in range(2)])

        def mfma(k, s):
            t, qi = units[k]
            acc = vr(ACC + 16 * k, 16)
            return f"{MF} {acc}, {ar(self.wreg(s) + t*4, 4)}, {vr(oreg(s, qi), 4)}, {'0' if s == 0 else acc}"

        def finish(k):
            t, qi = units[k]
            acc, d = ACC + 16 * k, (48, 56, 32)[k % 3]
            L = []
            for half in range(2):
                for j in range(4):
                    L.append(f"v_cvt_pk_bf16_f32 v{d+half*4+j}, v{acc+half*8+2*j}, v{acc+half*8+2*j+1}")
                off = " offset:1024" if half else ""
                if o.get("fakehalf") and half:
                    continue
                L.append(f"buffer_store_dwordx4 {vr(d+half*4,4)}, v{vLIN}, {srd(sWS)}, s{sPT+2*t+qi} "
                         f"offen{off}{fl(o['st_fl'])}")
            return L
        tail = list(range(ks, 16))
        wq = list(wq)
        if not nown:
            p("s_barrier", after=ow)
            for f in oread(0):
                f()
        for s in range(ks):
            late = []
            if s == obar:
                late.append(lambda: p("s_barrier", after=ow))
            if s + 1 >= nown and s + 1 < ks:
                late += oread(s + 1)
            if s >= obar:
                for _ in range((len(tail) + ks - s - 1) // (ks - s)):
                    if tail[0] - ks < 4 or s > tail[0] - ks - 4:
                        late += oread(tail.pop(0))
            early, rel = self.all_dma(), []
            for _ in range((len(wq) + ks - s - 1) // (ks - s) if len(wq) >= ks - s else min(1, len(wq))):
                u = wq.pop(0)
                assert int(u[1:]) > s
                if not self.unit.get(u, (0, []))[1]:
                    for f in early + self.all_dma(NSLOT):
                        f()
                    early = []
                it, d = self.unit_reads(u, 0)
                late += it
                rel.append((u, d))
            fill, extra = extra[:8], extra[8:]
            self.window([mfma(k, s) for k in range(7)], early, late, fill)
            for u, d in rel:
                self.release(u, d)
        assert not wq and not self.issue_q and not tail
        for f in extra:
            f()
        prev = []
        for k in range(7):
            chain = [mfma(k, s) for s in range(ks, 16)]
            for i, m in enumerate(chain):
                p(m)
                if i >= 1:
                    n = (len(prev) + len(chain) - i - 1) // (len(chain) - i)
                    for t in prev[:n]:
                        p(t)
                    prev = prev[n:]
            for t in prev:
                p(t)
            prev = finish(k)
        for t in prev:
            p(t)

    def tail_setup(self):
        return self.lines([
            f"s_lshl_b32 s{sJ}, s{sGRP}, 1", f"s_add_u32 s{sJ}, s{sJ}, s{sH}", f"s_and_b32 s{sJ}, s{sJ}, 15",
            f"s_lshl_b32 s3, s{sGRP}, 13", f"s_add_u32 s3, s3, {FBASE}",
            f"s_lshl_b32 s5, s{sJ}, 2", f"s_add_u32 s5, s5, s{sW}", "s_lshl_b32 s4, s5, 7",
            f"s_add_u32 s{sINB}, s3, s4", "v_mov_b32 v5, 1", "v_mov_b32 v7, 0",
            f"v_lshlrev_b32 v5, {'s%d' % sH if self.o['early'] else 0}, v5",
            f"v_and_b32 v{vRDY}, v{vRDY}, v{vRDY+1}", f"v_and_b32 v{vRDY+2}, v{vRDY+2}, v{vRDY+3}",
            f"v_and_b32 v{vRDY}, v{vRDY}, v{vRDY+2}",
            f"s_mul_i32 s6, s{sGRP}, {GRP}", "s_lshr_b32 s4, s5, 1",
            f"s_lshl_b32 s4, s4, {11 if self.o['headmajor'] else 15}", "s_add_u32 s6, s6, s4",
            f"s_lshl_b32 s4, s{sT2}, 10", "s_add_u32 s6, s6, s4", f"s_add_u32 s6, s6, {PBASE}",
            f"s_lshl_b32 s7, s{sB}, 1", f"s_and_b32 s4, s{sJ}, 1", "s_add_u32 s7, s7, s4",
            f"s_mul_i32 s7, s7, {32*1792}", f"s_mul_i32 s4, s{sBR}, 896", "s_add_u32 s7, s7, s4",
            f"s_lshr_b32 s4, s{sJ}, 1", "s_lshl_b32 s4, s4, 7", "s_add_u32 s7, s7, s4",
            f"s_lshl_b32 s4, s{sW}, 5", "s_add_u32 s7, s7, s4",
            f"v_and_b32 v2, 31, v{vL}", "v_mul_u32_u24 v2, 1792, v2", f"v_lshrrev_b32 v3, 5, v{vL}",
            "v_lshl_add_u32 v2, v3, 4, v2"] + (self.select_setup() if self.o["msum"] else []))

    @staticmethod
    def select_setup():
        L = [f"v_bfe_u32 v9, v{vL}, 2, 1", "v_xor_b32 v9, v9, v3", f"v_bfe_u32 v10, v{vL}, 4, 1",
             "v_or_b32 v9, v9, v10", "v_lshlrev_b32 v9, 2, v9", f"v_bfe_u32 v10, v{vL}, 3, 1",
             "v_lshl_add_u32 v9, v10, 1, v9", f"v_bfe_u32 v10, v{vL}, 1, 1", "v_add_u32 v9, v9, v10",
             f"v_and_b32 v10, 1, v{vL}", "v_lshlrev_b32 v10, 4, v10", "v_mov_b32 v11, 0x3f80",
             "v_lshlrev_b32 v10, v10, v11"]
        for k in range(4):
            L += [f"v_cmp_eq_u32 vcc, {k}, v9", f"v_cndmask_b32 v{vSEL+k}, 0, v10, vcc"]
        return L

    def handoff(self):
        p, g = self.p, self.tag
        p(f"v_cmp_eq_u32 vcc, 1, v{vRDY}")
        p("s_mov_b32 s5, 100000")
        p("s_waitcnt vmcnt(0)")
        p(f"s_cbranch_vccnz L_go{g}")
        p(f"L_ready{g}:")
        p(f"buffer_load_dwordx4 {vr(vRDY,4)}, v7, {srd(sDBG)}, s{sDO} offen sc0 sc1")
        p("s_sub_u32 s5, s5, 1")
        p("s_cmp_eq_u32 s5, 0")
        p("s_waitcnt vmcnt(0)")
        p(f"s_cbranch_scc1 L_go{g}")
        p(f"v_and_b32 v{vRDY}, v{vRDY}, v{vRDY+1}")
        p(f"v_and_b32 v{vRDY+2}, v{vRDY+2}, v{vRDY+3}")
        p(f"v_and_b32 v{vRDY}, v{vRDY}, v{vRDY+2}")
        p(f"v_cmp_eq_u32 vcc, 1, v{vRDY}")
        p(f"s_cbranch_vccz L_ready{g}")
        p(f"L_go{g}:")
        p("s_mov_b64 exec, 0x3fff")
        p(f"buffer_atomic_add v5, v{vFL}, {srd(sWS)}, s3 offen sc1")
        p("s_mov_b64 exec, -1")

    def poll(self):
        p, g, d = self.p, self.tag, self.o["poll_depth"]
        regs = (3, 9, 10, 11)[:d]
        p("s_mov_b32 s5, 100000")
        p("s_mov_b64 exec, 1")

        def ask(r):
            p(f"v_mov_b32 v{r}, 0")
            p(f"buffer_atomic_add v{r}, v7, {srd(sWS)}, s{sINB} offen sc0 sc1", hidden=True)
        for r in regs[1:]:
            ask(r)
            for _ in range(self.o["poll_gap"]):
                p("s_nop 15")
        p(f"L_poll{g}:")
        for k in range(d):
            ask(regs[k])
            p(f"s_waitcnt vmcnt({d-1})")
            p(f"v_cmp_eq_u32 vcc, 16, v{regs[(k + 1) % d]}")
            p(f"s_cbranch_vccnz L_polled{g}")
        p("s_sub_u32 s5, s5, 1")
        p("s_cmp_lg_u32 s5, 0")
        p(f"s_cbranch_scc1 L_poll{g}")
        p(f"L_polled{g}:")
        p("s_mov_b64 exec, -1")

    def gather(self):
        p, g = self.p, self.tag
        p("s_mov_b32 s5, 100000")
        p(f"s_mov_b32 s{sT0}, 0")
        p(f"s_mov_b32 s{sSO}, {self.o['early']}")
        p(f"L_poll{g}:")
        p("s_mov_b64 exec, 1")
        p("v_mov_b32 v3, 0")
        p(f"buffer_atomic_add v3, v7, {srd(sWS)}, s{sINB} offen sc0 sc1", hidden=True)
        p("s_mov_b64 exec, -1")
        p("s_sub_u32 s5, s5, 1")
        p("s_cmp_eq_u32 s5, 0")
        p("s_waitcnt vmcnt(0)")
        p(f"s_cbranch_scc1 L_polled{g}")
        p("v_readfirstlane_b32 s4, v3")
        p("s_cmp_eq_u32 s4, 0xffff")
        p(f"s_cbranch_scc1 L_take{g}")
        p(f"s_cmp_eq_u32 s{sSO}, 0")
        p(f"s_cbranch_scc1 L_poll{g}")
        p(f"s_andn2_b32 s{sT1}, s4, s{sT0}")
        p(f"s_bcnt1_i32_b32 s{sT1}, s{sT1}")
        p(f"s_cmp_lt_u32 s{sT1}, {self.o['early_min']}")
        p(f"s_cbranch_scc1 L_poll{g}")
        p(f"s_sub_u32 s{sSO}, s{sSO}, 1")
        p(f"L_take{g}:")
        p(f"s_andn2_b32 s{sT1}, s4, s{sT0}")
        p(f"s_mov_b32 s{sT0}, s4")
        for i in range(16):
            p(f"s_bitcmp0_b32 s{sT1}, {i}")
            p(f"s_cbranch_scc1 L_skip{g}_{i}")
            p(f"s_add_u32 s4, s6, {2048*i}")
            p(f"buffer_load_dwordx4 {vr(64+4*i,4)}, v{vLIN}, {srd(sWS)}, s4 offen{fl(self.o['ld_fl'])}", hidden=True)
            p(f"L_skip{g}_{i}:")
        p(f"s_cmp_lg_u32 s{sT0}, 0xffff")
        p(f"s_cbranch_scc1 L_poll{g}")
        p(f"L_polled{g}:")
        p("s_waitcnt vmcnt(0)")

    def reduce(self):
        p = self.p
        D, A, T = 64, 48, 56
        if self.o.get("fakehalf"):
            p("s_bitset0_b32 s6, 10")
            p(f"s_lshl_b32 s4, s{sT2}, 14")
            p("s_add_u32 s6, s6, s4")
        for i in range(0 if self.o["early"] else 8 if self.o.get("fakehalf") else 16):
            if self.o["headmajor"]:
                p(f"buffer_load_dwordx4 {vr(D+4*i,4)}, v{vLIN}, {srd(sWS)}, s6 offen{fl(self.o['ld_fl'])}")
                p("s_add_u32 s6, s6, 57344")
                continue
            off = " offset:2048" if i % 2 else ""
            p(f"buffer_load_dwordx4 {vr(D+4*i,4)}, v{vLIN}, {srd(sWS)}, s6 offen{off}{fl(self.o['ld_fl'])}")
            if i % 2 and i < 15:
                p("s_addk_i32 s6, 4096")
        if self.o["msum"]:
            for i in range(16):
                p(f"{MF} {vr(ACC,16)}, {vr(vSEL,4)}, {vr(D+4*i,4)}, {vr(ACC,16) if i else 0}")
            for j in range(4):
                p(f"v_cvt_pk_bf16_f32 v{T+j}, v{ACC+2*j}, v{ACC+2*j+1}")
            p(f"buffer_store_dwordx4 {vr(T,4)}, v2, {srd(sOUT)}, s7 offen")
            return
        p("s_mov_b32 s4, 0xffff0000")
        for i in range(8 if self.o.get("fakehalf") else 16):
            for j in range(4):
                dst = A + 2 * j if i == 0 else T + 2 * j
                p(f"v_lshlrev_b32 v{dst}, 16, v{D+4*i+j}")
                p(f"v_and_b32 v{dst+1}, s4, v{D+4*i+j}")
            if i:
                for j in range(4):
                    p(f"v_pk_add_f32 {vr(A+2*j,2)}, {vr(A+2*j,2)}, {vr(T+2*j,2)}")
        for j in range(4):
            p(f"v_cvt_pk_bf16_f32 v{T+j}, v{A+2*j}, v{A+2*j+1}")
        p(f"buffer_store_dwordx4 {vr(T,4)}, v2, {srd(sOUT)}, s7 offen")

    def dump_stamps(self):
        p = self.p
        if not self.o["stamps"]:
            return
        p("s_waitcnt vmcnt(0)")
        self.stamp("end")
        p("s_lshl_b32 s3, s2, 2")
        p(f"s_add_u32 s3, s3, s{sW}")
        if self.o.get("trace"):
            p("s_lshl_b32 s4, s3, 8")
            p("s_add_u32 s4, s4, 0x40000")
            p(f"v_lshlrev_b32 v2, 2, v{vL}")
            p(f"buffer_store_dword v0, v2, {srd(sWS)}, s4 offen")
        p("s_lshl_b32 s3, s3, 6")
        p("v_mov_b32 v2, 0")
        p("s_mov_b64 exec, 1")
        for k in range(self.nstamp):
            p(f"v_mov_b32 v3, s{sST + k}")
            p(f"buffer_store_dword v3, v2, {srd(sWS)}, s3 offen offset:{4*k}")

    def body(self):
        p, o, sc, g = self.p, self.o, self.sc, self.tag
        las = o["la"] if isinstance(o["la"], (tuple, list)) else (o["la"],) * 4
        o["la"] = las[0]
        self.prologue()
        p("; phase 1")
        pend = self.run_phase(sc["ph1"], self.store_setup(), 8,
                              before=lambda u: [lambda: p("s_barrier")] if u == "Q9" else [])
        assert not self.fillq
        qw = self.last_window(pend, self.all_dma(min(o["la"], o["kcap2"])), lambda j, q: (vWR, (j * 2 + q) * 1024))
        self.stamp()
        p("; phase 2")
        o["la"] = las[1]
        cur = 160 - self.own
        self.bufs, self.buf = (cur, cur + 16), 0
        left = {t: 4 for t in range(4)}
        have = {0}
        more = [self.one_more() for _ in range(o["more1"])]

        def need_q(u):
            if u[0] == "W":
                return []
            i = int(u[1:]) % 4
            if i in have:
                return []
            L = []
            if len(have) == 1:
                L.append(lambda: p("s_barrier", after=qw))
            have.add(i)
            L += self.lines([f"ds_read_b128 {ar((i*8 + k)*4, 4)}, v{vQA+i-1} offset:{k*1024}" for k in range(8)])
            return L

        def tile_done(u):
            if u[0] == "W":
                return []
            t = int(u[1:]) // 4
            left[t] -= 1
            return self.softmax_tile(t) if left[t] == 0 else []
        pend = self.run_phase(sc["ph2"], (), o["fill_per"], after=tile_done, before=need_q)
        take, rest = self.fillq[:o["fill_per"]], self.fillq[o["fill_per"]:]
        self.window(pend, self.all_dma(), [], take)
        self.stamp()
        last = [t for t in left if left[t] == 1]
        assert len(last) == 1
        pw = []
        L = rest + self.softmax_tile(last[0], True) + self.softmax_combine() + \
            self.publish_p(0, pw, True) + self.publish_p(1, pw, True)
        self.spread(L, [self.stage(u) for u in sc["mid2"]] + [self.one_more() for _ in range(o["more2"])])
        p("s_barrier", after=pw)
        self.stamp()
        p("; phase 3")
        o["la"] = las[2]
        self.bufs, self.buf = (64, 96), 0
        pw = []
        setup = ["v_mov_b32 v2, 0", f"buffer_load_dwordx4 {vr(vRDY,4)}, v2, {srd(sDBG)}, s{sDO} offen{fl(o['rdy_fl'])}",
                 f"s_lshl_b32 s3, s{sT2}, 10", f"v_add_u32 v{vWA}, s3, v{vWR}", f"v_xor_b32 v{vWB}, 0x400, v{vWA}"]
        if o.get("tlb"):
            setup += [f"s_mul_i32 s4, s{sB}, {64*1792}", f"buffer_load_dword v3, v2, {srd(sOUT)}, s4 offen{fl(o['tlb'] if o['tlb'] != True else '')}",
                      f"s_mul_i32 s4, s{sGRP}, {GRP}", f"s_add_u32 s4, s4, {PBASE - 128}",
                      f"buffer_load_dword v5, v2, {srd(sWS)}, s4 offen nt",
                      f"s_add_u32 s4, s4, {GRP}", f"buffer_load_dword v7, v2, {srd(sWS)}, s4 offen nt"]
        for j in range(3 if o["ownfirst"] else 0):
            setup += [f"v_add_u32 v{vQA+j}, s3, v{vQA+j}", f"v_xor_b32 v{vQB+j}, 0x400, v{vQA+j}"]
        fill = self.publish_p(2, pw, False) + self.publish_p(3, pw, False) + self.lines(setup)

        def p_ready(u):
            if u != "V8":
                return []
            L, self.fillq = self.fillq, []
            return L + [lambda: p("s_barrier", after=pw + self.side["V7"])]
        pend = self.run_phase(sc["ph3"], fill, o["fill3"], before=p_ready)
        o["la"] = las[3]
        self.stamp()
        ow = self.last_window(pend, self.all_dma(o["lastla"]), lambda j, q: (vWB if q else vWA, j * 2048))
        for f in self.all_dma(o["lastla2"]):
            f()
        self.stamp()
        p("; phase 4")
        self.out_proj(sc["ph4"], ow, self.tail_setup())
        self.stamp()
        self.handoff()
        self.stamp()
        if o["stamps"]:
            p(f"s_mov_b32 s{sST + self.nstamp}, s100")
        p(f"s_cmp_ge_u32 s{sJ}, 14")
        p(f"s_cbranch_scc1 L_fin{g}")
        if o["early"]:
            self.gather()
        else:
            self.poll()
        self.stamp()
        self.reduce()
        p(f"L_fin{g}:")
        self.dump_stamps()
        p("s_endpgm")
        if o.get("fake16"):
            out, cnt, ph = [], {}, 0
            for i in self.p.ins:
                if i.text.startswith("; phase"):
                    ph = i.text.split()[-1]
                if i.kind == "mfma" and ph in o["fake16"]:
                    m = re.match(r"\S+ v\[(\d+):\d+\], (\S+), (\S+), (\S+)", i.text)
                    a0 = int(m.group(1))
                    if m.group(4) == "0":
                        cnt[a0] = 0
                    for h in range(2):
                        n = cnt[a0]
                        a = a0 + 4 * (n % 4)
                        x, y = (m.group(2), m.group(3)) if h == 0 else (m.group(3), m.group(2))
                        out.append(Ins(f"v_mfma_f32_16x16x32_bf16 {vr(a,4)}, {x}, {y}, {'0' if n < 4 else vr(a,4)}"))
                        cnt[a0] += 1
                else:
                    out.append(i)
            self.p.ins = out
        if o.get("fake"):
            self.p.ins = [i for i in self.p.ins if i.kind != {"nodma": "dma", "nomfma": "mfma"}[o["fake"]]]
        return p.finalize()


DOC = """
;
; One workgroup (4 waves, 512 registers each) per (branch, batch, head); id = branch*128 + batch*16 + (head&1)*8 + head/2.
;   phase 4  partial^T = Wo^T O^T    bf16 partial sums go to d_ws; 14 workgroups per (branch, batch) add the 16 heads
"""
NSTAMP = 0
ORDERS = []


def build(**kw):
    global NSTAMP
    ORDERS.clear()
    ref = open(f"cdna_kernels/{NAME}.s.ref").read().splitlines() if kw.pop("header", True) else []
    head = [l for l in ref if l.startswith(";") and "@launch" not in l and "Override" not in l
            and "grid=ceil" not in l]
    o = dict(DEFAULT, **kw)
    k1 = NAME + "_kernel"
    common, body = None, ""
    for i, spec in enumerate(o["groups"]):
        kc = dict(kw)
        if not isinstance(spec, str):
            kc.update(spec[1])
            spec = spec[0]
        g = Gen(schedule(spec, o["nmid"], kc.get("tper", o["tper"])), str(i), **kc)
        pre, post = g.body().split("    " + SPLIT + "\n")
        assert common in (None, pre)
        common = pre
        body += ".p2align 6\n" + post
        NSTAMP = g.nstamp if o["stamps"] else 0
        ORDERS.append(g.order)
    head.append("; @launch grid=(256,1,1) block=(256,1,1) lds=163840")
    head += DOC.strip().splitlines()
    return "\n".join(head) + f"""
.amdgcn_target "amdgcn-amd-amdhsa--gfx950"
.text
.globl {k1}
.p2align 8
.type {k1},@function
{k1}:
{common}{body}L_codeend:
.section .rodata,"a"
.p2align 6
.amdhsa_kernel {k1}
  .amdhsa_next_free_vgpr 512
  .amdhsa_next_free_sgpr 102
  .amdhsa_accum_offset 256
  .amdhsa_group_segment_fixed_size 0
  .amdhsa_kernarg_size 104
  .amdhsa_user_sgpr_count 2
  .amdhsa_user_sgpr_kernarg_segment_ptr 1
  .amdhsa_system_sgpr_workgroup_id_x 1
.end_amdhsa_kernel
"""


if __name__ == "__main__":
    kw = {}
    out = sys.argv[1]
    for a in sys.argv[2:]:
        k, v = a.split("=", 1)
        try:
            kw[k] = eval(v)
        except (NameError, SyntaxError):
            kw[k] = v
    open(out, "w").write(build(**kw))
```

```python
import ast, math, re, struct, sys
from asmlib import Prog, Ins

NAME = "concat_heads__gqa_block_cached__mha_block_cached__near_ridge"
SH, RING, RSZ, NSLOT = 0, 65536, 24576, 6
XPOS = (0, 2, 4, 6, 1, 3, 5)
PBASE = 0x100000
FBASE = 0x10000
GRP = 917504

sX, sK, sV, sQ, sO, sWS, sOUT, sDBG = 8, 12, 16, 20, 24, 28, 32, 36
sW, sBR, sH, sB, sRING, sSO, sC, sGRP, sT0, sT1, sT2, sJ = 40, 41, 42, 43, 44, 45, 46, 47, 48, 49, 50, 51
sPT = 52
sINB, sDO, sXW = 59, 60, 61
sROT = 62
sW128, sCLS, sVX = 69, 84, 85
sST = 70
vL, vFL, vIW, vIR = 1, 4, 6, 8
vDX, vDQ, vDK, vDV, vDO = 8, 9, 13, 17, 21
vRX, vRQ, vRK, vRV, vRO = 25, 29, 31, 35, 37
vLIN, vWR, vPA, vQA = 41, 42, 43, 45
vQB, vWA, vWB = 13, 16, 12
vMC, vLS = 48, 56
vRDY, vSEL = 28, 16
ACC = 128
MF = "v_mfma_f32_32x32x16_bf16"
SPLIT = "; class code"


def f32(x):
    return "0x%08x" % struct.unpack("<I", struct.pack("<f", x))[0]


def vr(a, n):
    return f"v[{a}:{a+n-1}]" if n > 1 else f"v{a}"


def ar(a, n):
    return f"a[{a}:{a+n-1}]" if n > 1 else f"a{a}"


def srd(b):
    return f"s[{b}:{b+3}]"


def fl(x):
    return f" {x}" if x else ""


def R(c, lo, hi):
    return [f"{c}{i}" for i in range(lo, hi)]


def cls(k, w, v, **kw):
    head = "Q14 K16" if k == 0 else f"Q2 K{k} Q12 K{16-k}"
    mid = f"W{w} V16" if (v == 0 or w == 2) else f"W2 V{v} W{w-2} V{16-v}"
    tail = f" W{16-w}" if w < 16 else ""
    return (f"{head} {mid}{tail}", dict(dict(ksplit=max(8, 16 - w)), **kw))


DEFAULT = dict(
    nt_kv="nt", nt_w="", nt_x="", stamps=False, st_fl="sc0 sc1", ld_fl="sc0 sc1",
    groups=(cls(0, 3, 0), cls(7, 6, 9), cls(4, 3, 0), cls(11, 6, 0)), gsel="bbr",
    fill_per=40, fill3=14, nmid=12, la=(4, 4, 4, 4), ksplit=8, more1=2, more2=1,
    poll_sleep=0, codepf=True, tper=2, hold=3, win=(0, 8, 1, 7), xrot=False, obar=2, xorder='cb', xsplit=13, kick=True, ownfirst=False, headmajor=False, rdy_fl='sc1', msum=True, aligned=False, pfpos='top', touch='', touch_fl='', early=0, early_min=6, kcap=9, kcap2=9, xcdrot=0, poll_depth=1, poll_gap=0, lastla=1, lastla2=3,
)


def schedule(spec, nmid, tper):
    issue = []
    cnt = dict(Q=0, K=0, V=0, W=0)
    for tok in spec.split():
        c, n = tok[0], int(tok[1:])
        issue += R(c, cnt[c], cnt[c] + n)
        cnt[c] += n
    assert cnt == dict(Q=14, K=16, V=16, W=16), cnt
    assert issue[:2] == ["Q0", "Q1"]
    iq, ik = issue.index("Q13"), issue.index("K15")
    ph1 = issue[:iq + 1]
    assert all(u[0] in "QK" for u in ph1)
    npre = sum(u[0] == "K" for u in ph1)
    assert npre <= 14
    rest = issue[iq + 1:ik + 1]
    assert all(u[0] in "KW" for u in rest)
    T = R("T", 0, npre)
    ph2 = [u for u in ("T0", "T4") if u in T]
    if npre > 10:
        ph2 += ["T1", "T2", "T3"]
    T = [u for u in T if u not in ph2]
    shift = 4 if npre > 10 else 0
    for u in rest:
        if u[0] == "W":
            assert int(u[1:]) < 8
            while T and int(T[0][1:]) <= int(u[1:]) + shift + 1:
                ph2.append(T.pop(0))
            assert not ph2 or ph2[-1] != f"T{int(u[1:]) + shift}"
            ph2.append(u)
        else:
            ph2 += [u] + T[:tper]
            T = T[tper:]
    ph2 += T
    after = issue[ik + 1:]
    mid2, held = [], 0
    for u in after:
        if u[0] == "V":
            held += 1
            if held > NSLOT - 4:
                break
        elif len(mid2) < nmid:
            mid2.append(u)
    ph3 = [u for u in after if u not in mid2]
    iv = ph3.index("V15")
    ph3, ph4 = ph3[:iv + 1], ph3[iv + 1:]
    return dict(issue=issue, ph1=ph1, ph2=ph2, mid2=mid2, ph3=ph3, ph4=ph4, npre=npre)


class Gen:
    def __init__(self, sched, tag, **kw):
        self.o = dict(DEFAULT)
        self.o.update(kw)
        self.p = Prog()
        self.sc = sched
        self.tag = tag
        self.issue_q = list(sched["issue"])
        self.free = [(s, []) for s in range(NSLOT)]
        self.unit = {}
        self.side = {}
        self.eaten, self.started = set(), set()
        self.order = []
        self.nstamp = 1
        self.bufs, self.buf = (64, 96), 0

    def lines(self, texts):
        return [(lambda t=t: self.p(t)) for t in texts]

    def stamp(self, name=""):
        if self.o["stamps"] and (self.o["stamps"] != "ends" or name == "end"):
            self.p(("s_memtime" if self.o["stamps"] == "cyc" else "s_memrealtime") + " s[100:101]")
            self.p("s_waitcnt lgkmcnt(0)")
            self.p(f"s_mov_b32 s{sST + self.nstamp}, s100")
            self.nstamp += 1
            assert self.nstamp <= 14

    def dma_items(self):
        name = self.issue_q.pop(0)
        slot, reads = self.free.pop(0)
        kind, u = name[0], int(name[1:])
        r, v, nt = {"Q": (sQ, vDQ, self.o["nt_w"]), "K": (sK, vDK, self.o.get("nt_k", self.o["nt_kv"])),
                    "V": (sV, vDV, self.o.get("nt_v", self.o["nt_kv"])), "W": (sO, vDO, self.o["nt_w"])}[kind]
        if self.o.get("split") and kind in self.o["split"]:
            nt = "" if (u // 4) % 2 == 0 else self.o.get("split_nt", "nt")
        dm = []
        self.unit[name] = (slot, dm)
        p = self.p

        def head():
            p(f"s_add_u32 m0, s{sRING}, {slot*4096}")
            if kind == "Q":
                p(f"s_lshl_b32 s{sSO}, s{sROT + u // 2}, 12")
                if u % 2:
                    p(f"s_bitset1_b32 s{sSO}, 18")
            elif kind == "W":
                p(f"s_xor_b32 s{sSO}, s{sXW}, {u}")
                p(f"s_mulk_i32 s{sSO}, {16*896}")
            elif kind == "K":
                p(f"s_xor_b32 s{sSO}, s{sW128}, {(u // 4) * 65536 + (u % 4) * 128}")
            else:
                p(f"s_xor_b32 s{sSO}, s{sVX}, {u * 16384}")

        def piece(j):
            def f():
                if j == 0:
                    head()
                off = f" offset:{1024*j}" if j else ""
                dm.append(p(f"buffer_load_dwordx4 v{v+j}, {srd(r)}, s{sSO} offen{off}{fl(nt)} lds",
                            after=reads if j == 0 else ()))
            return f
        return [piece(j) for j in range(4)]

    def all_dma(self, la=None):
        la = min(la or self.o["la"], NSLOT)
        out = []
        while self.issue_q and NSLOT - len(self.free) < la:
            out += self.dma_items()
        return out

    def one_more(self):
        def f():
            if self.issue_q and self.free:
                for g in self.dma_items():
                    g()
        return f

    def kreg(self, u, j):
        if self.sc["npre"] > 10:
            if u < 4:
                return vr(192 + 16 * u + 4 * j, 4)
            u -= 4
        return ar(self.wreg(u) + 4 * j, 4)

    @staticmethod
    def wreg(u):
        return 128 + 16 * u if u < 8 else 16 * (u - 8)

    def unit_reads(self, name, base):
        kind, u = name[0], int(name[1:])
        p = self.p
        items, done = [], []
        if kind == "T":
            return items, done
        slot, dm = self.unit[name]
        so = slot * 4096
        sd = self.side.setdefault(name, [])

        def ring(text, pieces):
            items.append(lambda: done.append(p(text, after=[dm[j] for j in pieces])))

        def side(text):
            items.append(lambda: sd.append(p(text)))
        if self.o.get("trace"):
            def mark():
                p("s_nop 0", after=list(dm))
                p("s_memrealtime s[100:101]")
                p("s_waitcnt lgkmcnt(0)")
                p(f"v_writelane_b32 v0, s100, {len(self.order)}")
                self.order.append(name)
            items.append(mark)
        if kind in "QV":
            for ks in range(2):
                for mt in range(2):
                    for part in range(2):
                        d = base + (ks * 2 + mt) * 4 + part * 2
                        if kind == "Q":
                            ring(f"ds_read_b64_tr_b16 {vr(d,2)}, v{vRQ+mt} offset:{so + ks*2048 + part*512}",
                                 (2 * ks, 2 * ks + 1))
                        else:
                            ring(f"ds_read_b64_tr_b16 {vr(d,2)}, v{vRV+mt} offset:{so + ks*2048 + part*1024}",
                                 (2 * ks + part,))
                    qt = mt
                    d = base + 16 + (ks * 2 + qt) * 4
                    if kind == "Q":
                        s = 2 * u + ks
                        side(f"ds_read_b128 {vr(d,4)}, v{vRX + s % 4} offset:{XPOS[s // 4]*8192 + qt*4096}")
                    else:
                        side(f"ds_read_b128 {vr(d,4)}, v{vPA+qt} offset:{(u % 4)*16384 + ((u // 4)*2 + ks)*2048}")
        elif kind == "K":
            for j in range(4):
                d = self.kreg(u, j) if u < self.sc["npre"] else vr(base + 4 * j, 4)
                ring(f"ds_read_b128 {d}, v{vRK+j} offset:{so}", range(4))
        elif kind == "W":
            for part in range(2):
                for t in range(4):
                    ring(f"ds_read_b64_tr_b16 {ar(self.wreg(u) + t*4 + part*2, 2)}, v{vRO+t} "
                         f"offset:{so + part*1024}", (part, 2 + part))
        return items, done

    def unit_mfmas(self, name, base):
        kind, u = name[0], int(name[1:])
        out = []
        if kind in "QV":
            order = [(ks, mt, qt) for ks in range(2) for mt, qt in ((0, 0), (1, 0), (0, 1), (1, 1))]
            if name in ("Q13", "V15"):
                order = [(ks, mt, qt) for mt in range(2) for qt in range(2) for ks in range(2)]
            for ks, mt, qt in order:
                acc = vr(ACC + (mt * 2 + qt) * 16, 16)
                c = "0" if (u == 0 and ks == 0) else acc
                out.append(f"{MF} {acc}, {vr(base + (ks*2+mt)*4, 4)}, {vr(base + 16 + (ks*2+qt)*4, 4)}, {c}")
        elif kind == "T" or (kind == "K" and u >= self.sc["npre"]):
            t, i = u // 4, u % 4
            first = t not in self.started
            self.started.add(t)
            for j in range(4):
                a = self.kreg(u, j) if kind == "T" else vr(base + 4 * j, 4)
                for qt in range(2):
                    acc = vr(ACC + (t * 2 + qt) * 16, 16)
                    b = vr(self.own + (j * 2 + qt) * 4, 4) if i == 0 else ar(((i * 4 + j) * 2 + qt) * 4, 4)
                    out.append(f"{MF} {acc}, {a}, {b}, {'0' if (first and j == 0) else acc}")
        return out

    def window(self, mfmas, early, late, fill):
        p = self.p
        n = len(mfmas)
        if n == 0:
            for f in fill + late + early:
                f()
            return
        gaps = [[] for _ in range(n)]
        e0, e1, l0, l1 = self.o["win"]
        e1, l1 = min(e1, n), min(l1, n - 1)
        for k, f in enumerate(early):
            gaps[e0 + k * (e1 - e0) // len(early)].append(f)
        for k, f in enumerate(late):
            gaps[l0 + k * (l1 - l0) // len(late)].append(f)
        for k, f in enumerate(fill):
            gaps[k * n // len(fill)].append(f)
        for m, g in zip(mfmas, gaps):
            p(m)
            for f in g:
                f()

    def release(self, nme, done):
        if nme[0] != "T":
            self.eaten.add(nme)
            self.free.append((self.unit[nme][0], done))

    def run_phase(self, units, fillq=(), per=0, after=None, before=None):
        pend, prev = [], None
        self.fillq = list(fillq)
        for nme in units:
            base = self.bufs[self.buf]
            mf = self.unit_mfmas(nme, base)
            if mf and nme[0] != "T":
                self.buf ^= 1
            la = self.o["la"] + (0 if pend else 1)
            if nme[0] == "V" and "V15" in self.unit:
                la = min(la, self.o["hold"])
            if nme[0] == "Q" and "Q13" in self.unit:
                la = min(la, 14 - int(nme[1:]) + self.o["kcap"])
            early = self.all_dma(la)
            if nme[0] != "T" and not self.unit[nme][1]:
                for f in early:
                    f()
                early = []
            late, done = self.unit_reads(nme, base)
            if before:
                late = before(nme) + late
            take, self.fillq = self.fillq[:per], self.fillq[per:]
            self.window(pend, early, late, take)
            if after and prev:
                self.fillq += after(prev)
            self.release(nme, done)
            pend, prev = mf, nme
        return pend

    def stage(self, nme):
        def f():
            held = sum(u[0] == "V" and u not in self.eaten for u in self.unit)
            early = self.all_dma(min(NSLOT, self.o["la"] + 1 + held))
            if not self.unit[nme][1]:
                for g in early:
                    g()
                early = []
            it, d = self.unit_reads(nme, 0)
            for g in it + early:
                g()
            self.release(nme, d)
        return f

    @staticmethod
    def spread(items, stages):
        n, k = len(stages), 0
        for i, f in enumerate(items):
            while k < n and (k + 0.5) * len(items) / n <= i:
                stages[k]()
                k += 1
            f()
        for g in stages[k:]:
            g()

    def last_window(self, mfmas, early, addr):
        p = self.p
        self.own = self.bufs[self.buf]
        w = []

        def pack(a):
            mt, q = a // 2, a % 2
            for ks in range(2):
                src = ACC + a * 16 + ks * 8
                d = self.own + ((2 * mt + ks) * 2 + q) * 4
                for k in range(4):
                    p(f"v_cvt_pk_bf16_f32 v{d+k}, v{src+2*k}, v{src+2*k+1}")
                reg, off = addr(2 * mt + ks, q)
                w.append(p(f"ds_write_b128 v{reg}, {vr(d,4)} offset:{off}"))
        early = list(early)
        for i, m in enumerate(mfmas):
            p(m)
            if i < 4:
                for f in early[i * len(early) // 4:(i + 1) * len(early) // 4]:
                    f()
            if i in (4, 6):
                pack((i - 4) // 2)
        pack(2)
        pack(3)
        return w

    def prologue(self):
        p, o = self.p, self.o
        ng = len(o["groups"])
        p("s_cmp_ge_u32 s2, 256")
        p("s_cbranch_scc1 L_exit")
        if o["stamps"]:
            p(("s_memtime" if o["stamps"] == "cyc" else "s_memrealtime") + f" s[{sST}:{sST+1}]")
        p(f"s_lshr_b32 s{sBR}, s2, 7")
        p(f"s_mul_i32 s5, s{sBR}, 40")
        p("s_add_u32 s6, s0, s5")
        p("s_addc_u32 s7, s1, 0")
        p("s_load_dwordx8 s[88:95], s[6:7], 0")
        p("s_load_dwordx2 s[86:87], s[6:7], 32")
        p(f"s_load_dwordx2 s[{sWS}:{sWS+1}], s[0:1], 96")
        p("s_load_dwordx4 s[96:99], s[0:1], 80")
        if o.get("headpf"):
            p("s_getpc_b64 s[10:11]")
            p("v_min_u32 v5, 12, v0")
            p("v_lshlrev_b32 v5, 7, v5")
            p("global_load_dword v254, v5, s[10:11]", hidden=True)
        p("v_lshrrev_b32 v7, 6, v0")
        p(f"v_and_b32 v{vL}, 63, v0")
        p(f"v_readfirstlane_b32 s{sW}, v7")
        p(f"v_lshrrev_b32 v2, 3, v{vL}")
        p(f"v_and_b32 v3, 7, v{vL}")
        p(f"v_lshrrev_b32 v4, 4, v{vL}")
        p(f"s_bfe_u32 s{sB}, s2, 0x30004")
        p("s_bfe_u32 s4, s2, 0x10003")
        if o["pfpos"] == "top":
            self.class_prefetch()
        p(f"s_and_b32 s{sT2}, s{sW}, 1")
        p(f"s_cmp_eq_u32 s{sB}, 7")
        p(f"s_cselect_b32 s{sROT}, 3, s{sB}")
        if o["xcdrot"]:
            p("s_and_b32 s3, s2, 7")
            if o["xcdrot"] > 1:
                p(f"s_mul_i32 s3, s3, {o['xcdrot']}")
            p(f"s_add_u32 s{sROT}, s{sROT}, s3")
            p(f"s_mul_i32 s3, s{sROT}, 37")
            p("s_lshr_b32 s3, s3, 8")
            p("s_mul_i32 s3, s3, 7")
            p(f"s_sub_u32 s{sROT}, s{sROT}, s3")
        p(f"s_lshl_b32 s{sROT}, s{sROT}, 7")
        p(f"s_lshl_b32 s{sT0}, s{sT2}, 2")
        p(f"v_add_u32 v5, s{sT0}, v4")
        p("v_xor_b32 v5, v5, v3")
        p(f"s_lshl_b32 s5, s4, {2 if o['xrot'] else 31}")
        p("s_and_b32 s5, s5, 4")
        p(f"s_add_u32 s5, s5, s{sW}")
        p(f"s_lshl_b32 s{sT0}, s5, 3")
        p(f"v_add_u32 v6, s{sT0}, v2")
        p("v_xor_b32 v7, 32, v6")
        p("v_mul_u32_u24 v6, 896, v6")
        p("v_mul_u32_u24 v7, 896, v7")
        p(f"v_lshl_add_u32 v{vDX}, v5, 4, v6")
        p("v_lshl_add_u32 v7, v5, 4, v7")
        p(f"s_lshl_b32 s{sT1}, s5, 10")
        p(f"s_mul_i32 s{sT0}, s{sB}, 57344")
        p(f"s_mov_b32 s{sX+2}, 57344")
        p(f"s_mov_b32 s{sX+3}, 0x20000")
        p("s_waitcnt lgkmcnt(0)")
        if o.get("fine"):
            self.stamp()
        p(f"s_add_u32 s{sX}, s88, s{sT0}")
        p(f"s_addc_u32 s{sX+1}, s89, 0")
        self.xd = []
        p(f"s_xor_b32 s5, s{sT1}, 0x1000")
        seq = [(h, cb) for h in range(2) for cb in range(7)] if o["xorder"] == "half" else \
            [(h, cb) for cb in range(7) for h in range(2)]
        for n, (half, cb) in enumerate(seq):
            if True:
                p(f"s_add_u32 m0, s{5 if half else sT1}, {SH + XPOS[cb]*8192}")
                if half == 0 and cb:
                    p(f"s_add_u32 s{sROT+cb}, s{sROT+cb-1}, 128")
                    p(f"s_cmp_eq_u32 s{sROT+cb}, 896")
                    p(f"s_cselect_b32 s{sROT+cb}, 0, s{sROT+cb}")
                self.xd.append(p(f"buffer_load_dwordx4 v{7 if half else vDX}, {srd(sX)}, s{sROT+cb} "
                                 f"offen{fl(o['nt_x'])} lds"))
            if n == o["xsplit"]:
                p("s_and_b32 s3, s2, 7")
                p("s_lshl_b32 s3, s3, 1")
                p(f"s_add_u32 s{sH}, s3, s4")
                if o["pfpos"] != "top":
                    self.class_prefetch()
                p(f"s_mul_i32 s{sRING}, s{sW}, {RSZ}")
                p(f"s_add_u32 s{sRING}, s{sRING}, {RING}")
                p("v_and_b32 v5, 1, v4")
                p("v_lshlrev_b32 v5, 2, v5")
                p("v_xor_b32 v5, v5, v3")
                p(f"s_lshl_b32 s{sW128}, s{sW}, 7")
                p(f"v_lshl_add_u32 v5, v5, 4, s{sW128}")
                if o.get("fakek"):
                    p(f"s_mov_b32 s{sW128}, 0")
                p(f"v_lshl_add_u32 v{vDQ}, v2, 13, v5")
                p(f"s_lshl_b32 s{sT0}, s{sB}, 6")
                p(f"v_xor_b32 v5, s{sT0}, v5")
                p(f"v_lshl_add_u32 v{vDV}, v2, 9, v5")
                for j in range(1, 4):
                    p(f"v_add_u32 v{vDQ+j}, {j*(65536-1024)}, v{vDQ}")
                p(f"s_lshl_b32 s{sT0}, s{sH}, 9")
                p(f"s_add_u32 s{sQ}, s94, s{sT0}")
                p(f"s_addc_u32 s{sQ+1}, s95, 0")
                p(f"s_sub_u32 s{sQ+2}, 3670016, s{sT0}")
                p(f"s_mov_b32 s{sQ+3}, 0x20000")
                p(f"s_lshl_b32 s{sGRP}, s{sBR}, 3")
                p(f"s_add_u32 s{sGRP}, s{sGRP}, s{sB}")
                p(f"s_mov_b32 s{sWS+2}, {PBASE + 16 * GRP}")
                p(f"s_mov_b32 s{sWS+3}, 0x20000")
                p(f"v_lshlrev_b32 v{vLIN}, 4, v{vL}")
                if o["touch"]:
                    p(f"s_mov_b32 s7, s{sT1}")
                    self.touch()
                    p(f"s_mov_b32 s{sT1}, s7")
        p(f"s_cmp_lg_u32 s{sH}, 15")
        p("s_cbranch_scc1 L_noclr")
        p(f"s_lshl_b32 s3, s{sGRP}, 2")
        p(f"s_add_u32 s3, s3, s{sW}")
        p("s_lshl_b32 s3, s3, 11")
        p(f"s_add_u32 s3, s3, {FBASE}")
        p(f"v_lshrrev_b32 v5, 2, v{vL}")
        p(f"v_and_b32 v6, 48, v{vLIN}")
        p("v_lshl_add_u32 v5, v5, 7, v6")
        for k in range(4):
            p(f"v_mov_b32 v{64+k}, 0")
        p(f"buffer_store_dwordx4 v[64:67], v5, {srd(sWS)}, s3 offen sc0 sc1", hidden=True)
        p("L_noclr:")
        for f in self.all_dma(2):
            f()
        if not o["touch"]:
            self.descriptors()
        p(f"s_lshl_b32 s{sDO}, s{sGRP}, 4")
        if o.get("tlb0"):
            p("v_mov_b32 v5, 0")
            for r in (sK, sV, sO):
                p(f"buffer_load_dword v254, v5, {srd(r)}, 0 offen nt", hidden=True)
        p(f"s_lshl_b32 s{sXW}, s{sW}, {1 if o['ownfirst'] and not o.get('fakew') else 31}")
        p(f"s_xor_b32 s{sXW}, s{sXW}, s{sB}")
        p(f"s_lshl_b32 s{sXW}, s{sXW}, 1")
        p(f"s_mov_b32 s{sC}, {f32(math.log2(math.e) / 16)}")
        p("v_xor_b32 v5, v3, v4")
        p(f"s_lshl_b32 s{sT0}, s{sW}, 14")
        p(f"v_lshl_add_u32 v5, v5, 4, s{sT0}")
        p(f"v_lshl_add_u32 v{vDK}, v2, 9, v5")
        p(f"v_xor_b32 v5, 64, v{vDK}")
        p(f"v_add_u32 v{vDK+1}, 3072, v5")
        p(f"v_add_u32 v{vDK+2}, 6144, v{vDK}")
        p(f"v_add_u32 v{vDK+3}, 9216, v5")
        for j in range(1, 4):
            p(f"v_add_u32 v{vDV+j}, {j*3072}, v{vDV}")
        p(f"v_add_u32 v{vWR}, s{sT0}, v{vLIN}")
        for j in range(1, 4):
            p(f"v_xor_b32 v{vQA+j-1}, {j*16384}, v{vWR}")
        p(f"s_add_u32 s{sT0}, s{sT0}, 8192")
        p(f"v_lshl_add_u32 v{vIR}, v{vL}, 3, s{sT0}")
        if o["aligned"]:
            p(f"v_bfe_u32 v5, v{vL}, 2, 2")
            p("v_xor_b32 v5, v5, v4")
            p(f"v_and_b32 v6, 48, v{vLIN}")
            p("v_lshl_add_u32 v6, v5, 6, v6")
            p(f"s_cmp_eq_u32 s{sW}, 3")
            p(f"s_cselect_b32 s{sT1}, 2, 0")
            p(f"v_and_b32 v5, s{sT1}, v5")
            p("v_lshl_add_u32 v5, v5, 29, v6")
            p("v_mul_u32_u24 v6, 896, v4")
            p(f"s_lshl_b32 s{sT0}, s{sW}, 8")
            p(f"v_add3_u32 v{vDO}, v5, v6, s{sT0}")
        else:
            p(f"v_bfe_u32 v5, v{vL}, 2, 2")
            p("v_xor_b32 v5, v5, v4")
            p(f"v_add_u32 v5, s{sT2}, v5")
            p("v_and_b32 v5, 3, v5")
            p(f"v_and_b32 v6, 48, v{vLIN}")
            p("v_lshl_add_u32 v5, v5, 6, v6")
            p("v_mul_u32_u24 v6, 896, v4")
            p(f"s_mul_i32 s{sT0}, s{sW}, 224")
            p(f"s_lshl_b32 s{sT1}, s{sT2}, 5")
            p(f"s_sub_u32 s{sT0}, s{sT0}, s{sT1}")
            p(f"v_add3_u32 v{vDO}, v5, v6, s{sT0}")
        for j in range(1, 4):
            p(f"v_add_u32 v{vDO+j}, {j*(3584-1024)}, v{vDO}")
        p(f"v_lshrrev_b32 v2, 5, v{vL}")
        p(f"v_bfe_u32 v3, v{vL}, 1, 3")
        p("v_xor_b32 v3, v3, v2")
        p(f"v_and_b32 v5, 31, v{vL}")
        p("v_lshlrev_b32 v5, 7, v5")
        p(f"v_lshl_add_u32 v{vRX}, v3, 4, v5")
        for j in range(1, 4):
            p(f"v_xor_b32 v{vRX+j}, {j*32}, v{vRX}")
        for j in range(4):
            p(f"v_add_u32 v{vRK+j}, s{sRING}, v{vRX+j}")
        p(f"v_and_b32 v3, 16, v{vLIN}")
        p(f"v_bfe_u32 v5, v{vL}, 1, 1")
        p("v_lshl_add_u32 v3, v5, 3, v3")
        p("v_and_b32 v5, 1, v4")
        p("v_lshl_add_u32 v3, v5, 5, v3")
        p(f"v_add_u32 v3, s{sRING}, v3")
        p(f"v_bfe_u32 v5, v{vL}, 2, 2")
        p(f"v_bfe_u32 v6, v{vL}, 3, 1")
        p("v_lshl_add_u32 v6, v6, 6, v3")
        p("v_lshl_add_u32 v6, v5, 7, v6")
        p(f"v_lshl_add_u32 v{vRQ}, v2, 10, v6")
        p(f"v_lshl_add_u32 v{vRV}, v2, 9, v6")
        p(f"v_xor_b32 v{vRQ+1}, 64, v{vRQ}")
        p(f"v_xor_b32 v{vRV+1}, 64, v{vRV}")
        p("v_mul_u32_u24 v6, 320, v5")
        p("v_add_u32 v6, v6, v3")
        p(f"v_lshl_add_u32 v{vRO}, v2, 11, v6")
        for t in range(1, 4):
            p(f"v_xor_b32 v{vRO+t}, {t*64}, v{vRO}")
        p(f"s_lshl_b32 s{sT1}, s{sT2}, {31 if o['aligned'] else 10}")
        p(f"s_and_b32 s{sT1}, s{sT1}, 0x400")
        p(f"v_add_u32 v{vPA}, s{sT1}, v{vLIN}")
        p(f"v_xor_b32 v{vPA+1}, 0x400, v{vPA}")
        p(f"s_lshl_b32 s{sT0}, s{sW}, 9")
        p(f"s_add_u32 s{sT0}, s{sT0}, 8192")
        p(f"v_lshl_add_u32 v{vIW}, v{vL}, 3, s{sT0}")
        for g in range(1, ng):
            p(f"s_cmp_eq_u32 s{sCLS}, {g}")
            p(f"s_cbranch_scc1 L_class{g}")
        p("s_branch L_class0")
        p("L_exit:")
        p("s_endpgm")
        p(SPLIT)
        p(f"L_class{self.tag}:")
        if o.get("split"):
            p(f"s_and_b32 s{sVX}, s{sH}, 1")
            p(f"s_lshl_b32 s{sVX}, s{sVX}, 16")
            p(f"s_or_b32 s{sW128}, s{sW128}, s{sVX}")
        else:
            p(f"s_mov_b32 s{sVX}, 0")
        p("s_barrier", after=self.xd)
        self.stamp()
        p(f"s_cmp_lg_u32 s{sH}, 15")
        p(f"s_cbranch_scc1 L_noset{self.tag}")
        p(f"s_lshl_b32 s3, s{sW}, 2")
        p(f"s_add_u32 s3, s3, s{sDO}")
        p("v_mov_b32 v2, 0")
        p("v_mov_b32 v3, 1")
        p("s_mov_b64 exec, 1")
        p(f"buffer_store_dword v3, v2, {srd(sDBG)}, s3 offen sc0 sc1", hidden=True)
        p("s_mov_b64 exec, -1")
        p(f"L_noset{self.tag}:")
        if o["kick"]:
            for f in self.all_dma():
                f()
        if o["codepf"] == "late":
            p("s_getpc_b64 s[6:7]")
            p(f"s_and_b32 s3, s{sB}, 6")
            p(f"s_and_b32 s4, s{sH}, 1")
            p("s_add_u32 s3, s3, s4")
            p("s_mulk_i32 s3, 20")
            p("v_min_u32 v5, 19, v0")
            p("v_add_u32 v5, s3, v5")
            p("v_min_u32 v5, 155, v5")
            p("v_lshlrev_b32 v5, 7, v5")
            p("global_load_dword v5, v5, s[6:7]")

    def descriptors(self):
        p, o = self.p, self.o
        p(f"s_lshl_b32 s{sT0}, s{sB}, 4")
        p(f"s_add_u32 s{sT0}, s{sT0}, s{sH}")
        p(f"s_xor_b32 s{sT1}, s{sBR}, 1")
        p(f"s_lshr_b32 s{sT0}, s{sT0}, s{sT1}")
        p(f"s_lshl_b32 s{sT0}, s{sT0}, 18")
        for r, src in ((sK, 90), (sV, 92)):
            p(f"s_add_u32 s{r}, s{src}, s{sT0}")
            p(f"s_addc_u32 s{r+1}, s{src+1}, 0")
            p(f"s_mov_b32 s{r+2}, 262144")
            p(f"s_mov_b32 s{r+3}, 0x20000")
        p(f"s_mul_i32 s{sT0}, s{sH}, 229376")
        p(f"s_add_u32 s{sO}, s86, s{sT0}")
        p(f"s_addc_u32 s{sO+1}, s87, 0")
        p(f"s_mov_b32 s{sO+2}, 229376")
        p(f"s_mov_b32 s{sO+3}, 0x20000")
        for r, src, n in ((sOUT, 96, 917504), (sDBG, 98, 256)):
            p(f"s_mov_b32 s{r}, s{src}")
            p(f"s_mov_b32 s{r+1}, s{src+1}")
            p(f"s_mov_b32 s{r+2}, {n}")
            p(f"s_mov_b32 s{r+3}, 0x20000")

    def touch(self):
        p, o = self.p, self.o
        self.descriptors()
        p("v_mov_b32 v5, 0")
        p("s_mov_b64 exec, 1")
        for ch in o["touch"]:
            r, so = {"k": (sK, "0"), "v": (sV, "0"), "w": (sO, "0"), "q": (sQ, "s3"), "o": (sOUT, "s3"),
                     "p": (sWS, "s3"), "d": (sDBG, "0"), "f": (sWS, "s3")}[ch]
            if ch == "q":
                p("s_mov_b32 s3, 0x300000")
            elif ch == "o":
                p(f"s_mul_i32 s3, s{sB}, {64*1792}")
            elif ch == "p":
                p(f"s_mul_i32 s3, s{sGRP}, {GRP}")
                p(f"s_add_u32 s3, s3, {PBASE + GRP // 2}")
            elif ch == "f":
                p(f"s_mov_b32 s3, {FBASE - 128}")
            p(f"buffer_load_dword v253, v5, {srd(r)}, {so} offen{fl(o['touch_fl'])}", hidden=True)
        p("s_mov_b64 exec, -1")

    def class_prefetch(self):
        p, o = self.p, self.o
        ng = len(o["groups"])
        if ng > 1:
            if o["gsel"] == "b":
                p(f"s_and_b32 s{sCLS}, s{sB}, {ng-1}")
            elif o["gsel"] == "br":
                p(f"s_mov_b32 s{sCLS}, s{sBR}")
            else:
                p(f"s_and_b32 s{sCLS}, s{sB}, {ng//2-1}")
                p(f"s_lshl_b32 s{sCLS}, s{sCLS}, 1")
                p(f"s_add_u32 s{sCLS}, s{sCLS}, s{sBR}")
        if o["codepf"] and o["codepf"] != "late":
            p("s_getpc_b64 s[14:15]")
            p("L_pc:")
            p("s_mov_b32 s3, L_class0-L_pc")
            for g in range(1, ng):
                p(f"s_cmp_eq_u32 s{sCLS}, {g}")
                p(f"s_cselect_b32 s3, L_class{g}-L_pc, s3")
            p("s_add_u32 s14, s14, s3")
            p("s_addc_u32 s15, s15, 0")
            if o["codepf"] == "full":
                p(f"v_min_u32 v5, (L_codeend-L_class{ng-1})/128-1, v0")
                p("v_lshlrev_b32 v5, 7, v5")
            else:
                p(f"s_and_b32 s3, s{sB}, 6")
                p("s_add_u32 s3, s3, s4")
                p("s_mulk_i32 s3, 20")
                p("v_min_u32 v5, 19, v0")
                p("v_add_u32 v5, s3, v5")
                p(f"v_min_u32 v5, (L_codeend-L_class{ng-1})/128-1, v5")
                p("v_lshlrev_b32 v5, 7, v5")
            p("global_load_dword v255, v5, s[14:15]", hidden=True)

    def store_setup(self):
        hm = self.o["headmajor"]
        if self.o["aligned"]:
            return self.lines(
                [f"s_mul_i32 s3, s{sGRP}, {GRP}", f"s_lshl_b32 s4, s{sH}, 11", "s_add_u32 s3, s3, s4",
                 f"s_lshl_b32 s4, s{sW}, 18", "s_add_u32 s3, s3, s4", f"s_add_u32 s{sPT}, s3, {PBASE}",
                 f"s_add_u32 s{sPT+1}, s{sPT}, {4*32768}", f"s_lshr_b32 s4, s{sW}, 1", f"s_and_b32 s4, s4, s{sW}",
                 "s_lshl_b32 s4, s4, 30", f"s_or_b32 s{sPT+1}, s{sPT+1}, s4",
                 f"s_lshl_b32 s4, s{sW}, 4", f"v_add_lshl_u32 v{vFL}, v{vL}, s4, 7"])
        L = [f"s_mul_i32 s3, s{sGRP}, {GRP}", f"s_mul_i32 s4, s{sH}, {57344 if hm else 2048}", "s_add_u32 s3, s3, s4",
             f"s_add_u32 s3, s3, {PBASE}", f"s_lshr_b32 s4, s{sW}, 1", "s_mul_i32 s4, s4, 7",
             f"s_mul_i32 s5, s{sT2}, 3", "s_add_u32 s4, s4, s5", f"s_lshl_b32 s7, s{sT2}, 1",
             f"v_mov_b32 v{vFL}, 0"]
        for t in range(4):
            L += [f"s_add_u32 s5, s{sT2}, {t}", "s_and_b32 s5, s5, 3", "s_add_u32 s5, s5, s4",
                  "s_lshr_b32 s6, s5, 1", "s_lshl_b32 s6, s6, 2", "s_and_b32 s5, s5, 1",
                  "s_add_u32 s5, s5, s6", "s_add_u32 s5, s5, s7"]
            for qi in range(2 if t < 3 else 1):
                if qi:
                    L.append("s_xor_b32 s5, s5, 2")
                L += [f"s_lshl_b32 s6, s5, {11 if hm else 15}", f"s_add_u32 s{sPT + 2*t + qi}, s6, s3", "s_lshl_b32 s6, s5, 8",
                      f"v_writelane_b32 v{vFL}, s6, {2*(2*t+qi)}", "s_add_u32 s6, s6, 128",
                      f"v_writelane_b32 v{vFL}, s6, {2*(2*t+qi)+1}"]
        return self.lines(L)

    def softmax_tile(self, t, packed=False):
        seq = []
        for qt in range(2):
            s = ACC + (t * 2 + qt) * 16
            m, l = vMC + t * 2 + qt, vLS + t * 2 + qt
            seq.append(f"v_max3_f32 v{m}, v{s}, v{s+1}, v{s+2}")
            for k in range(3, 15, 2):
                seq.append(f"v_max3_f32 v{m}, v{m}, v{s+k}, v{s+k+1}")
            seq.append(f"v_max_f32 v{m}, v{m}, v{s+15}")
            seq.append(f"v_mul_f32 v{m}, s{sC}, v{m}")
            if packed:
                for k in range(0, 16, 2):
                    seq.append(f"v_pk_fma_f32 {vr(s+k,2)}, {vr(s+k,2)}, s[{sC}:{sC+1}], {vr(m & ~1, 2)} "
                               f"op_sel:[0,0,{m & 1}] op_sel_hi:[1,0,{m & 1}] neg_lo:[0,0,1] neg_hi:[0,0,1]")
                for k in range(16):
                    seq.append(f"v_exp_f32 v{s+k}, v{s+k}")
                    if k == 4:
                        seq.append(f"v_pk_add_f32 v[2:3], {vr(s,2)}, {vr(s+2,2)}")
                    elif k > 4 and k % 2 == 0:
                        seq.append(f"v_pk_add_f32 v[2:3], v[2:3], {vr(s+k-2,2)}")
                seq.append(f"v_pk_add_f32 v[2:3], v[2:3], {vr(s+14,2)}")
                seq.append(f"v_add_f32 v{l}, v2, v3")
            else:
                for k in range(16):
                    seq.append(f"v_fma_f32 v{s+k}, v{s+k}, s{sC}, -v{m}")
                for k in range(16):
                    seq.append(f"v_exp_f32 v{s+k}, v{s+k}")
                    if k == 2:
                        seq.append(f"v_add_f32 v{l}, v{s}, v{s+1}")
                    elif k > 2:
                        seq.append(f"v_add_f32 v{l}, v{l}, v{s+k-1}")
                seq.append(f"v_add_f32 v{l}, v{l}, v{s+15}")
        return self.lines(seq)

    def softmax_combine(self):
        p = self.p
        T = 64
        L = []
        q = lambda t: L.append(lambda: p(t))
        w1 = []
        for qt in range(2):
            m = [vMC + t * 2 + qt for t in range(4)]
            q(f"v_max3_f32 v{T+qt}, v{m[0]}, v{m[1]}, v{m[2]}")
            q(f"v_max_f32 v{T+qt}, v{T+qt}, v{m[3]}")
        for k in range(8):
            q(f"v_sub_f32 v{T+4+k}, v{vMC+k}, v{T + k % 2}")
        for k in range(8):
            q(f"v_exp_f32 v{T+4+k}, v{T+4+k}")
        q(f"v_pk_mul_f32 {vr(T+2,2)}, {vr(vLS,2)}, {vr(T+4,2)}")
        for t in range(1, 4):
            q(f"v_pk_fma_f32 {vr(T+2,2)}, {vr(vLS+2*t,2)}, {vr(T+4+2*t,2)}, {vr(T+2,2)}")
        q(f"v_permlane32_swap_b32 v{T}, v{T+1}")
        q(f"v_permlane32_swap_b32 v{T+2}, v{T+3}")
        q(f"v_max_f32 v{T+8}, v{T}, v{T+1}")
        q(f"v_sub_f32 v{T+4}, v{T}, v{T+8}")
        q(f"v_sub_f32 v{T+5}, v{T+1}, v{T+8}")
        q(f"v_exp_f32 v{T+4}, v{T+4}")
        q(f"v_exp_f32 v{T+5}, v{T+5}")
        q(f"v_mul_f32 v{T+9}, v{T+2}, v{T+4}")
        q(f"v_fmac_f32 v{T+9}, v{T+3}, v{T+5}")
        for r in range(4):
            L.append(lambda r=r: w1.append(p(f"ds_write_b64 v{vIW}, {vr(T+8,2)} offset:{r*16384}")))
        L.append(lambda: p("s_barrier", after=w1))
        for r in range(4):
            q(f"ds_read_b64 {vr(T+10+2*r,2)}, v{vIR} offset:{r*512}")
        q(f"v_max3_f32 v{T}, v{T+10}, v{T+12}, v{T+14}")
        q(f"v_max_f32 v{T}, v{T}, v{T+16}")
        for r in range(4):
            q(f"v_sub_f32 v{T+4+r}, v{T+10+2*r}, v{T}")
        for r in range(4):
            q(f"v_exp_f32 v{T+4+r}, v{T+4+r}")
        q(f"v_mul_f32 v{T+1}, v{T+11}, v{T+4}")
        for r in range(1, 4):
            q(f"v_fmac_f32 v{T+1}, v{T+11+2*r}, v{T+4+r}")
        q(f"v_log_f32 v{T+1}, v{T+1}")
        q(f"v_add_f32 v{T}, v{T}, v{T+1}")
        q(f"v_mov_b32 v{T+1}, v{T}")
        q(f"v_permlane32_swap_b32 v{T}, v{T+1}")
        for k in range(8):
            q(f"v_sub_f32 v{vMC+k}, v{vMC+k}, v{T + k % 2}")
        for k in range(8):
            q(f"v_exp_f32 v{vMC+k}, v{vMC+k}")
        return L

    def publish_p(self, t, w, packed):
        p = self.p
        L = []
        for qt in range(2):
            s, f = ACC + (t * 2 + qt) * 16, vMC + t * 2 + qt
            for ks in range(2):
                b = s + ks * 8
                if packed:
                    L += self.lines([f"v_pk_mul_f32 {vr(b+k,2)}, {vr(b+k,2)}, {vr(f & ~1, 2)} "
                                     f"op_sel:[0,{f & 1}] op_sel_hi:[1,{f & 1}]" for k in range(0, 8, 2)])
                else:
                    L += self.lines([f"v_mul_f32 v{b+k}, v{b+k}, v{f}" for k in range(8)])
                L += self.lines([f"v_cvt_pk_bf16_f32 v{b+k}, v{b+2*k}, v{b+2*k+1}" for k in range(4)])
                x = f"ds_write_b128 v{vWR}, {vr(b,4)} offset:{((t*2+ks)*2+qt)*1024}"
                L.append(lambda x=x: w.append(p(x)))
        return L

    def out_proj(self, wq, ow, extra):
        p, o = self.p, self.o
        ks = o["ksplit"]
        assert 8 <= ks <= 16
        units = [(0, 0), (1, 0), (2, 0), (3, 0), (0, 1), (1, 1), (2, 1)]
        other = 160 - self.own

        nown = 4 if o["ownfirst"] else 0
        obar = o["obar"] if nown else -1

        def oreg(s, qi):
            if s < nown:
                b = self.own + s * 8
            elif s < ks:
                b = 240 + (s % 2) * 8
            else:
                b = other + (s - ks) * 8 if s - ks < 4 else self.own + (s - ks - 4) * 8
            return b + qi * 4

        def oread(s):
            if not nown:
                return self.lines([f"ds_read_b128 {vr(oreg(s, qi), 4)}, v{vPA+qi} "
                                   f"offset:{(s // 4)*16384 + (s % 4)*2048}" for qi in range(2)])
            return self.lines([f"ds_read_b128 {vr(oreg(s, qi), 4)}, v{(vQB if qi else vQA) + s // 4 - 1} "
                               f"offset:{(s % 4)*2048}" for qi in range(2)])

        def mfma(k, s):
            t, qi = units[k]
            acc = vr(ACC + 16 * k, 16)
            return f"{MF} {acc}, {ar(self.wreg(s) + t*4, 4)}, {vr(oreg(s, qi), 4)}, {'0' if s == 0 else acc}"

        def finish(k):
            t, qi = units[k]
            acc, d = ACC + 16 * k, (48, 56, 32)[k % 3]
            L = []
            for half in range(2):
                for j in range(4):
                    L.append(f"v_cvt_pk_bf16_f32 v{d+half*4+j}, v{acc+half*8+2*j}, v{acc+half*8+2*j+1}")
                off = " offset:1024" if half else ""
                if o.get("fakehalf") and half:
                    continue
                L.append(f"buffer_store_dwordx4 {vr(d+half*4,4)}, v{vLIN}, {srd(sWS)}, s{sPT+2*t+qi} "
                         f"offen{off}{fl(o['st_fl'])}")
            return L
        tail = list(range(ks, 16))
        wq = list(wq)
        if not nown:
            p("s_barrier", after=ow)
            for f in oread(0):
                f()
        for s in range(ks):
            late = []
            if s == obar:
                late.append(lambda: p("s_barrier", after=ow))
            if s + 1 >= nown and s + 1 < ks:
                late += oread(s + 1)
            if s >= obar:
                for _ in range((len(tail) + ks - s - 1) // (ks - s)):
                    if tail[0] - ks < 4 or s > tail[0] - ks - 4:
                        late += oread(tail.pop(0))
            early, rel = self.all_dma(), []
            for _ in range((len(wq) + ks - s - 1) // (ks - s) if len(wq) >= ks - s else min(1, len(wq))):
                u = wq.pop(0)
                assert int(u[1:]) > s
                if not self.unit.get(u, (0, []))[1]:
                    for f in early + self.all_dma(NSLOT):
                        f()
                    early = []
                it, d = self.unit_reads(u, 0)
                late += it
                rel.append((u, d))
            fill, extra = extra[:8], extra[8:]
            self.window([mfma(k, s) for k in range(7)], early, late, fill)
            for u, d in rel:
                self.release(u, d)
        assert not wq and not self.issue_q and not tail
        for f in extra:
            f()
        prev = []
        for k in range(7):
            chain = [mfma(k, s) for s in range(ks, 16)]
            for i, m in enumerate(chain):
                p(m)
                if i >= 1:
                    n = (len(prev) + len(chain) - i - 1) // (len(chain) - i)
                    for t in prev[:n]:
                        p(t)
                    prev = prev[n:]
            for t in prev:
                p(t)
            prev = finish(k)
        for t in prev:
            p(t)

    def out_proj8(self, wq, ow, extra):
        p, o = self.p, self.o
        ks = o["ksplit"]
        assert 8 <= ks <= 16
        units = [(t, q) for t in range(4) for q in range(2)]
        other = 160 - self.own
        nown = 4 if o["ownfirst"] else 0

        def oreg(s, q):
            return (self.own if (s // 4) % 2 == 0 else other) + (s % 4) * 8 + q * 4

        def oread(s):
            if nown:
                return self.lines([f"ds_read_b128 {vr(oreg(s, q), 4)}, v{(vQB if q else vQA) + s // 4 - 1} "
                                   f"offset:{(s % 4)*2048}" for q in range(2)])
            return self.lines([f"ds_read_b128 {vr(oreg(s, q), 4)}, v{vPA+q} "
                               f"offset:{(s // 4)*16384 + (s % 4)*2048}" for q in range(2)])

        def mfma(k, s):
            t, q = units[k]
            acc = vr(ACC + 16 * k, 16)
            return f"{MF} {acc}, {ar(self.wreg(s) + t*4, 4)}, {vr(oreg(s, q), 4)}, {'0' if s == 0 else acc}"

        def finish(k):
            t, q = units[k]
            acc, d = ACC + 16 * k, (48, 56, 32)[k % 3]
            L = [f"s_add_u32 s{sSO}, s{sPT + t // 2}, {(q*2 + t % 2)*32768}"]
            for half in range(2):
                for j in range(4):
                    L.append(f"v_cvt_pk_bf16_f32 v{d+half*4+j}, v{acc+half*8+2*j}, v{acc+half*8+2*j+1}")
                off = " offset:1024" if half else ""
                L.append(f"buffer_store_dwordx4 {vr(d+half*4,4)}, v{vLIN}, {srd(sWS)}, s{sSO} "
                         f"offen{off}{fl(o['st_fl'])}")
            return L
        todo = list(range(nown, 16))
        obar = o["obar"] if nown else -1
        wq = list(wq)
        if not nown:
            p("s_barrier", after=ow)
            for f in oread(todo.pop(0)):
                f()
        for s in range(ks):
            late = []
            if s == obar:
                late.append(lambda: p("s_barrier", after=ow))
            if s >= obar:
                for _ in range(2):
                    if todo and todo[0] - 8 < s:
                        late += oread(todo.pop(0))
            assert not todo or todo[0] > s + 1
            early, rel = self.all_dma(), []
            for _ in range((len(wq) + ks - s - 1) // (ks - s) if len(wq) >= ks - s else min(1, len(wq))):
                u = wq.pop(0)
                assert int(u[1:]) > s
                if not self.unit.get(u, (0, []))[1]:
                    for f in early + self.all_dma(NSLOT):
                        f()
                    early = []
                it, d = self.unit_reads(u, 0)
                late += it
                rel.append((u, d))
            fill, extra = extra[:8], extra[8:]
            self.window([mfma(k, s) for k in range(8)], early, late, fill)
            for u, d in rel:
                self.release(u, d)
        assert not wq and not self.issue_q
        for s in todo:
            for f in oread(s):
                f()
        for f in extra:
            f()
        prev = []
        for k in range(8):
            chain = [mfma(k, s) for s in range(ks, 16)]
            for i, m in enumerate(chain):
                p(m)
                if i >= 1:
                    n = (len(prev) + len(chain) - i - 1) // (len(chain) - i)
                    for t in prev[:n]:
                        p(t)
                    prev = prev[n:]
            for t in prev:
                p(t)
            prev = finish(k)
        for t in prev:
            p(t)

    def tail_setup(self):
        return self.lines([
            f"s_lshl_b32 s{sJ}, s{sGRP}, 1", f"s_add_u32 s{sJ}, s{sJ}, s{sH}", f"s_and_b32 s{sJ}, s{sJ}, 15",
            f"s_lshl_b32 s3, s{sGRP}, 13", f"s_add_u32 s3, s3, {FBASE}",
            f"s_lshl_b32 s5, s{sJ}, 2", f"s_add_u32 s5, s5, s{sW}", "s_lshl_b32 s4, s5, 7",
            f"s_add_u32 s{sINB}, s3, s4", "v_mov_b32 v5, 1", "v_mov_b32 v7, 0",
            f"v_lshlrev_b32 v5, {'s%d' % sH if self.o['early'] else 0}, v5",
            f"v_and_b32 v{vRDY}, v{vRDY}, v{vRDY+1}", f"v_and_b32 v{vRDY+2}, v{vRDY+2}, v{vRDY+3}",
            f"v_and_b32 v{vRDY}, v{vRDY}, v{vRDY+2}",
            f"s_mul_i32 s6, s{sGRP}, {GRP}", "s_lshr_b32 s4, s5, 1",
            f"s_lshl_b32 s4, s4, {11 if self.o['headmajor'] else 15}", "s_add_u32 s6, s6, s4",
            f"s_lshl_b32 s4, s{sT2}, 10", "s_add_u32 s6, s6, s4", f"s_add_u32 s6, s6, {PBASE}",
            f"s_lshl_b32 s7, s{sB}, 1", f"s_and_b32 s4, s{sJ}, 1", "s_add_u32 s7, s7, s4",
            f"s_mul_i32 s7, s7, {32*1792}", f"s_mul_i32 s4, s{sBR}, 896", "s_add_u32 s7, s7, s4",
            f"s_lshr_b32 s4, s{sJ}, 1", "s_lshl_b32 s4, s4, 7", "s_add_u32 s7, s7, s4",
            f"s_lshl_b32 s4, s{sW}, 5", "s_add_u32 s7, s7, s4",
            f"v_and_b32 v2, 31, v{vL}", "v_mul_u32_u24 v2, 1792, v2", f"v_lshrrev_b32 v3, 5, v{vL}",
            "v_lshl_add_u32 v2, v3, 4, v2"] + (self.select_setup() if self.o["msum"] else []))

    @staticmethod
    def select_setup():
        L = [f"v_bfe_u32 v9, v{vL}, 2, 1", "v_xor_b32 v9, v9, v3", f"v_bfe_u32 v10, v{vL}, 4, 1",
             "v_or_b32 v9, v9, v10", "v_lshlrev_b32 v9, 2, v9", f"v_bfe_u32 v10, v{vL}, 3, 1",
             "v_lshl_add_u32 v9, v10, 1, v9", f"v_bfe_u32 v10, v{vL}, 1, 1", "v_add_u32 v9, v9, v10",
             f"v_and_b32 v10, 1, v{vL}", "v_lshlrev_b32 v10, 4, v10", "v_mov_b32 v11, 0x3f80",
             "v_lshlrev_b32 v10, v10, v11"]
        for k in range(4):
            L += [f"v_cmp_eq_u32 vcc, {k}, v9", f"v_cndmask_b32 v{vSEL+k}, 0, v10, vcc"]
        return L

    def handoff(self):
        p, g = self.p, self.tag
        p(f"v_cmp_eq_u32 vcc, 1, v{vRDY}")
        p("s_mov_b32 s5, 100000")
        p("s_mov_b32 s4, 0xffff")
        p("s_waitcnt vmcnt(0)")
        p(f"s_cbranch_vccnz L_go{g}")
        p(f"L_ready{g}:")
        p(f"buffer_load_dwordx4 {vr(vRDY,4)}, v7, {srd(sDBG)}, s{sDO} offen sc0 sc1")
        p("s_sub_u32 s5, s5, 1")
        p("s_cmp_eq_u32 s5, 0")
        p("s_waitcnt vmcnt(0)")
        p(f"s_cbranch_scc1 L_go{g}")
        p(f"v_and_b32 v{vRDY}, v{vRDY}, v{vRDY+1}")
        p(f"v_and_b32 v{vRDY+2}, v{vRDY+2}, v{vRDY+3}")
        p(f"v_and_b32 v{vRDY}, v{vRDY}, v{vRDY+2}")
        p(f"v_cmp_eq_u32 vcc, 1, v{vRDY}")
        p(f"s_cbranch_vccz L_ready{g}")
        p(f"L_go{g}:")
        if self.o["aligned"]:
            p(f"s_cmp_eq_u32 s{sW}, 3")
            p("s_cselect_b32 exec_lo, 0xff, s4")
            p("s_mov_b32 exec_hi, 0")
        else:
            p("s_mov_b64 exec, 0x3fff")
        p(f"buffer_atomic_add v5, v{vFL}, {srd(sWS)}, s3 offen sc1")
        p("s_mov_b64 exec, -1")

    def poll(self):
        p, g, d = self.p, self.tag, self.o["poll_depth"]
        if self.o.get("spoll"):
            p(f"s_add_u32 s{sT0}, s{sWS}, s{sINB}")
            p(f"s_addc_u32 s{sT1}, s{sWS+1}, 0")
            p("s_mov_b32 s5, 20000")
            p(f"L_poll{g}:")
            p("s_mov_b32 s4, 0")
            p(f"s_atomic_add s4, s[{sT0}:{sT1}], 0 glc")
            p("s_sub_u32 s5, s5, 1")
            p("s_cmp_eq_u32 s5, 0")
            p("s_waitcnt lgkmcnt(0)")
            p(f"s_cbranch_scc1 L_polled{g}")
            p("s_cmp_lg_u32 s4, 16")
            p(f"s_cbranch_scc1 L_poll{g}")
            p(f"L_polled{g}:")
            return
        regs = (3, 9, 10, 11)[:d]
        p("s_mov_b32 s5, 100000")
        p("s_mov_b64 exec, 1")

        def ask(r):
            p(f"v_mov_b32 v{r}, 0")
            p(f"buffer_atomic_add v{r}, v7, {srd(sWS)}, s{sINB} offen sc0 sc1", hidden=True)
        for r in regs[1:]:
            ask(r)
            for _ in range(self.o["poll_gap"]):
                p("s_nop 15")
        p(f"L_poll{g}:")
        for k in range(d):
            ask(regs[k])
            p(f"s_waitcnt vmcnt({d-1})")
            p(f"v_cmp_eq_u32 vcc, 16, v{regs[(k + 1) % d]}")
            p(f"s_cbranch_vccnz L_polled{g}")
        p("s_sub_u32 s5, s5, 1")
        p("s_cmp_lg_u32 s5, 0")
        p(f"s_cbranch_scc1 L_poll{g}")
        p(f"L_polled{g}:")
        p("s_mov_b64 exec, -1")

    def gather(self):
        p, g = self.p, self.tag
        p("s_mov_b32 s5, 100000")
        p(f"s_mov_b32 s{sT0}, 0")
        p(f"s_mov_b32 s{sSO}, {self.o['early']}")
        p(f"L_poll{g}:")
        p("s_mov_b64 exec, 1")
        p("v_mov_b32 v3, 0")
        p(f"buffer_atomic_add v3, v7, {srd(sWS)}, s{sINB} offen sc0 sc1", hidden=True)
        p("s_mov_b64 exec, -1")
        p("s_sub_u32 s5, s5, 1")
        p("s_cmp_eq_u32 s5, 0")
        p("s_waitcnt vmcnt(0)")
        p(f"s_cbranch_scc1 L_polled{g}")
        p("v_readfirstlane_b32 s4, v3")
        p("s_cmp_eq_u32 s4, 0xffff")
        p(f"s_cbranch_scc1 L_take{g}")
        p(f"s_cmp_eq_u32 s{sSO}, 0")
        p(f"s_cbranch_scc1 L_poll{g}")
        p(f"s_andn2_b32 s{sT1}, s4, s{sT0}")
        p(f"s_bcnt1_i32_b32 s{sT1}, s{sT1}")
        p(f"s_cmp_lt_u32 s{sT1}, {self.o['early_min']}")
        p(f"s_cbranch_scc1 L_poll{g}")
        p(f"s_sub_u32 s{sSO}, s{sSO}, 1")
        p(f"L_take{g}:")
        p(f"s_andn2_b32 s{sT1}, s4, s{sT0}")
        p(f"s_mov_b32 s{sT0}, s4")
        for i in range(16):
            p(f"s_bitcmp0_b32 s{sT1}, {i}")
            p(f"s_cbranch_scc1 L_skip{g}_{i}")
            p(f"s_add_u32 s4, s6, {2048*i}")
            p(f"buffer_load_dwordx4 {vr(64+4*i,4)}, v{vLIN}, {srd(sWS)}, s4 offen{fl(self.o['ld_fl'])}", hidden=True)
            p(f"L_skip{g}_{i}:")
        p(f"s_cmp_lg_u32 s{sT0}, 0xffff")
        p(f"s_cbranch_scc1 L_poll{g}")
        p(f"L_polled{g}:")
        p("s_waitcnt vmcnt(0)")

    def reduce(self):
        p = self.p
        D, A, T = 64, 48, 56
        if self.o.get("fakehalf"):
            p("s_bitset0_b32 s6, 10")
            p(f"s_lshl_b32 s4, s{sT2}, 14")
            p("s_add_u32 s6, s6, s4")
        for i in range(0 if self.o["early"] else 8 if self.o.get("fakehalf") else 16):
            if self.o["headmajor"]:
                p(f"buffer_load_dwordx4 {vr(D+4*i,4)}, v{vLIN}, {srd(sWS)}, s6 offen{fl(self.o['ld_fl'])}")
                p("s_add_u32 s6, s6, 57344")
                continue
            off = " offset:2048" if i % 2 else ""
            p(f"buffer_load_dwordx4 {vr(D+4*i,4)}, v{vLIN}, {srd(sWS)}, s6 offen{off}{fl(self.o['ld_fl'])}")
            if i % 2 and i < 15:
                p("s_addk_i32 s6, 4096")
        if self.o["msum"]:
            for i in range(16):
                p(f"{MF} {vr(ACC,16)}, {vr(vSEL,4)}, {vr(D+4*i,4)}, {vr(ACC,16) if i else 0}")
            for j in range(4):
                p(f"v_cvt_pk_bf16_f32 v{T+j}, v{ACC+2*j}, v{ACC+2*j+1}")
            p(f"buffer_store_dwordx4 {vr(T,4)}, v2, {srd(sOUT)}, s7 offen{fl(self.o.get('out_fl', ''))}")
            return
        p("s_mov_b32 s4, 0xffff0000")
        for i in range(8 if self.o.get("fakehalf") else 16):
            for j in range(4):
                dst = A + 2 * j if i == 0 else T + 2 * j
                p(f"v_lshlrev_b32 v{dst}, 16, v{D+4*i+j}")
                p(f"v_and_b32 v{dst+1}, s4, v{D+4*i+j}")
            if i:
                for j in range(4):
                    p(f"v_pk_add_f32 {vr(A+2*j,2)}, {vr(A+2*j,2)}, {vr(T+2*j,2)}")
        for j in range(4):
            p(f"v_cvt_pk_bf16_f32 v{T+j}, v{A+2*j}, v{A+2*j+1}")
        p(f"buffer_store_dwordx4 {vr(T,4)}, v2, {srd(sOUT)}, s7 offen")

    def dump_stamps(self):
        p = self.p
        if not self.o["stamps"]:
            return
        p("s_waitcnt vmcnt(0)")
        self.stamp("end")
        p("s_lshl_b32 s3, s2, 2")
        p(f"s_add_u32 s3, s3, s{sW}")
        if self.o.get("trace"):
            p("s_lshl_b32 s4, s3, 8")
            p("s_add_u32 s4, s4, 0x40000")
            p(f"v_lshlrev_b32 v2, 2, v{vL}")
            p(f"buffer_store_dword v0, v2, {srd(sWS)}, s4 offen")
        p("s_lshl_b32 s3, s3, 6")
        p("v_mov_b32 v2, 0")
        p("s_mov_b64 exec, 1")
        for k in range(self.nstamp):
            p(f"v_mov_b32 v3, s{sST + k}")
            p(f"buffer_store_dword v3, v2, {srd(sWS)}, s3 offen offset:{4*k}")

    def body(self):
        p, o, sc, g = self.p, self.o, self.sc, self.tag
        las = o["la"] if isinstance(o["la"], (tuple, list)) else (o["la"],) * 4
        o["la"] = las[0]
        self.prologue()
        p("; phase 1")
        pend = self.run_phase(sc["ph1"], self.store_setup(), 8,
                              before=lambda u: [lambda: p("s_barrier")] if u == "Q9" else [])
        assert not self.fillq
        qw = self.last_window(pend, self.all_dma(min(o["la"], o["kcap2"])), lambda j, q: (vWR, (j * 2 + q) * 1024))
        self.stamp()
        p("; phase 2")
        o["la"] = las[1]
        cur = 160 - self.own
        self.bufs, self.buf = (cur, cur + 16), 0
        left = {t: 4 for t in range(4)}
        have = {0}
        more = [self.one_more() for _ in range(o["more1"])]

        def need_q(u):
            if u[0] == "W":
                return []
            i = int(u[1:]) % 4
            if i in have:
                return []
            L = []
            if len(have) == 1:
                L.append(lambda: p("s_barrier", after=qw))
            have.add(i)
            L += self.lines([f"ds_read_b128 {ar((i*8 + k)*4, 4)}, v{vQA+i-1} offset:{k*1024}" for k in range(8)])
            return L

        def tile_done(u):
            if u[0] == "W":
                return []
            t = int(u[1:]) // 4
            left[t] -= 1
            return self.softmax_tile(t) if left[t] == 0 else []
        pend = self.run_phase(sc["ph2"], (), o["fill_per"], after=tile_done, before=need_q)
        take, rest = self.fillq[:o["fill_per"]], self.fillq[o["fill_per"]:]
        self.window(pend, self.all_dma(), [], take)
        self.stamp()
        last = [t for t in left if left[t] == 1]
        assert len(last) == 1
        pw = []
        L = rest + self.softmax_tile(last[0], True) + self.softmax_combine() + \
            self.publish_p(0, pw, True) + self.publish_p(1, pw, True)
        self.spread(L, [self.stage(u) for u in sc["mid2"]] + [self.one_more() for _ in range(o["more2"])])
        p("s_barrier", after=pw)
        self.stamp()
        p("; phase 3")
        o["la"] = las[2]
        self.bufs, self.buf = (64, 96), 0
        pw = []
        setup = ["v_mov_b32 v2, 0", f"buffer_load_dwordx4 {vr(vRDY,4)}, v2, {srd(sDBG)}, s{sDO} offen{fl(o['rdy_fl'])}",
                 f"s_mul_i32 s3, s{sT2}, {0 if o['aligned'] else 1024}", f"v_add_u32 v{vWA}, s3, v{vWR}", f"v_xor_b32 v{vWB}, 0x400, v{vWA}"]
        if o.get("tlb"):
            setup += [f"s_mul_i32 s4, s{sB}, {64*1792}", f"buffer_load_dword v3, v2, {srd(sOUT)}, s4 offen{fl(o['tlb'] if o['tlb'] != True else '')}",
                      f"s_mul_i32 s4, s{sGRP}, {GRP}", f"s_add_u32 s4, s4, {PBASE - 128}",
                      f"buffer_load_dword v5, v2, {srd(sWS)}, s4 offen nt",
                      f"s_add_u32 s4, s4, {GRP}", f"buffer_load_dword v7, v2, {srd(sWS)}, s4 offen nt"]
        for j in range(3 if o["ownfirst"] else 0):
            setup += [f"v_add_u32 v{vQA+j}, s3, v{vQA+j}", f"v_xor_b32 v{vQB+j}, 0x400, v{vQA+j}"]
        fill = self.publish_p(2, pw, False) + self.publish_p(3, pw, False) + self.lines(setup)

        def p_ready(u):
            if u != "V8":
                return []
            L, self.fillq = self.fillq, []
            return L + [lambda: p("s_barrier", after=pw + self.side["V7"])]
        pend = self.run_phase(sc["ph3"], fill, o["fill3"], before=p_ready)
        o["la"] = las[3]
        self.stamp()
        ow = self.last_window(pend, self.all_dma(o["lastla"]), lambda j, q: (vWB if q else vWA, j * 2048))
        for f in self.all_dma(o["lastla2"]):
            f()
        self.stamp()
        p("; phase 4")
        (self.out_proj8 if o["aligned"] else self.out_proj)(sc["ph4"], ow, self.tail_setup())
        self.stamp()
        self.handoff()
        self.stamp()
        if o["stamps"]:
            p(f"s_mov_b32 s{sST + self.nstamp}, s100")
        p(f"s_cmp_ge_u32 s{sJ}, 14")
        p(f"s_cbranch_scc1 L_fin{g}")
        if o["early"]:
            self.gather()
        else:
            self.poll()
        self.stamp()
        self.reduce()
        p(f"L_fin{g}:")
        self.dump_stamps()
        if o.get("probe"):
            wg, k, gain = o["probe"]
            p(f"s_cmp_lg_u32 s2, {wg}")
            p(f"s_cbranch_scc1 L_out{g}")
            p(f"s_sub_u32 s3, s{sST + k}, s{sST}")
            p(f"s_mul_i32 s3, s3, {gain}")
            p("s_add_u32 s3, s3, 10000")
            p("s_min_u32 s3, s3, 100000")
            p(f"L_probe{g}:")
            p("s_memrealtime s[4:5]")
            p("s_waitcnt lgkmcnt(0)")
            p(f"s_sub_u32 s4, s4, s{sST}")
            p("s_cmp_lt_u32 s4, s3")
            p(f"s_cbranch_scc1 L_probe{g}")
            p(f"L_out{g}:")
        p("s_endpgm")
        if o.get("fake16"):
            out, cnt, ph = [], {}, 0
            for i in self.p.ins:
                if i.text.startswith("; phase"):
                    ph = i.text.split()[-1]
                if i.kind == "mfma" and ph in o["fake16"]:
                    m = re.match(r"\S+ v\[(\d+):\d+\], (\S+), (\S+), (\S+)", i.text)
                    a0 = int(m.group(1))
                    if m.group(4) == "0":
                        cnt[a0] = 0
                    for h in range(2):
                        n = cnt[a0]
                        a = a0 + 4 * (n % 4)
                        x, y = (m.group(2), m.group(3)) if h == 0 else (m.group(3), m.group(2))
                        out.append(Ins(f"v_mfma_f32_16x16x32_bf16 {vr(a,4)}, {x}, {y}, {'0' if n < 4 else vr(a,4)}"))
                        cnt[a0] += 1
                else:
                    out.append(i)
            self.p.ins = out
        if o.get("drop"):
            out, ph, n = [], "0", 0
            for i in self.p.ins:
                if i.text.startswith("; phase"):
                    ph = i.text.split()[-1]
                d = o["drop"]
                if i.kind == "dma" and d in ("W", "Q", "X") and srd({"W": sO, "Q": sQ, "X": sX}[d]) in i.text:
                    continue
                if i.kind == "dma" and d == "W3" and srd(sO) in i.text and "offset:3072" in i.text:
                    continue
                if i.kind == "mfma" and d.startswith("M") and ph in d:
                    n += 1
                    if "h" not in d or n % 2:
                        continue
                out.append(i)
            self.p.ins = out
        if o.get("fake"):
            self.p.ins = [i for i in self.p.ins if i.kind != {"nodma": "dma", "nomfma": "mfma"}[o["fake"]]]
        return p.finalize()


DOC = """
;
; One workgroup (4 waves, 512 registers each) per (branch, batch, head); id = branch*128 + batch*16 + (head&1)*8 + head/2.
;   phase 4  partial^T = Wo^T O^T    bf16 partial sums go to d_ws; 14 workgroups per (branch, batch) add the 16 heads
"""
NSTAMP = 0
ORDERS = []


def build(**kw):
    global NSTAMP
    ORDERS.clear()
    ref = open(f"cdna_kernels/{NAME}.s.ref").read().splitlines() if kw.pop("header", True) else []
    head = [l for l in ref if l.startswith(";") and "@launch" not in l and "Override" not in l
            and "grid=ceil" not in l]
    o = dict(DEFAULT, **kw)
    k1 = NAME + "_kernel"
    common, body = None, ""
    for i, spec in enumerate(o["groups"]):
        kc = dict(kw)
        if not isinstance(spec, str):
            kc.update(spec[1])
            spec = spec[0]
        g = Gen(schedule(spec, o["nmid"], kc.get("tper", o["tper"])), str(i), **kc)
        pre, post = g.body().split("    " + SPLIT + "\n")
        assert common in (None, pre)
        common = pre
        body += ".p2align 6\n" + post
        NSTAMP = g.nstamp if o["stamps"] else 0
        ORDERS.append(g.order)
    head.append("; @launch grid=(256,1,1) block=(256,1,1) lds=163840")
    head += DOC.strip().splitlines()
    return "\n".join(head) + f"""
.amdgcn_target "amdgcn-amd-amdhsa--gfx950"
.text
.globl {k1}
.p2align 8
.type {k1},@function
{k1}:
{common}{body}L_codeend:
.section .rodata,"a"
.p2align 6
.amdhsa_kernel {k1}
  .amdhsa_next_free_vgpr 512
  .amdhsa_next_free_sgpr 102
  .amdhsa_accum_offset 256
  .amdhsa_group_segment_fixed_size 0
  .amdhsa_kernarg_size 104
  .amdhsa_user_sgpr_count 2
  .amdhsa_user_sgpr_kernarg_segment_ptr 1
  .amdhsa_system_sgpr_workgroup_id_x 1
.end_amdhsa_kernel
"""


if __name__ == "__main__":
    kw = {}
    out = sys.argv[1]
    for a in sys.argv[2:]:
        k, v = a.split("=", 1)
        try:
            kw[k] = eval(v)
        except (NameError, SyntaxError):
            kw[k] = v
    open(out, "w").write(build(**kw))
```

```python
import ast, math, re, struct, sys
from asmlib import Prog, Ins

NAME = "concat_heads__gqa_block_cached__mha_block_cached__near_ridge"
SH, RING, RSZ, NSLOT = 0, 65536, 24576, 6
XPOS = (0, 2, 4, 6, 1, 3, 5)
PBASE = 0x100000
FBASE = 0x10000
GRP = 917504

sX, sK, sV, sQ, sO, sWS, sOUT, sDBG = 8, 12, 16, 20, 24, 28, 32, 36
sW, sBR, sH, sB, sRING, sSO, sC, sGRP, sT0, sT1, sT2, sJ = 40, 41, 42, 43, 44, 45, 46, 47, 48, 49, 50, 51
sPT = 52
sINB, sDO, sXW = 59, 60, 61
sROT = 62
sW128, sCLS, sVX = 69, 84, 85
sST = 70
vL, vFL, vIW, vIR = 1, 4, 6, 8
vDX, vDQ, vDK, vDV, vDO = 8, 9, 13, 17, 21
vRX, vRQ, vRK, vRV, vRO = 25, 29, 31, 35, 37
vLIN, vWR, vPA, vQA = 41, 42, 43, 45
vQB, vWA, vWB = 13, 16, 12
vMC, vLS = 48, 56
vRDY, vSEL = 28, 16
ACC = 128
MF = "v_mfma_f32_32x32x16_bf16"
SPLIT = "; class code"


def f32(x):
    return "0x%08x" % struct.unpack("<I", struct.pack("<f", x))[0]


def vr(a, n):
    return f"v[{a}:{a+n-1}]" if n > 1 else f"v{a}"


def ar(a, n):
    return f"a[{a}:{a+n-1}]" if n > 1 else f"a{a}"


def srd(b):
    return f"s[{b}:{b+3}]"


def fl(x):
    return f" {x}" if x else ""


def R(c, lo, hi):
    return [f"{c}{i}" for i in range(lo, hi)]


def cls(k, w, v, **kw):
    head = "Q14 K16" if k == 0 else f"Q2 K{k} Q12 K{16-k}"
    mid = f"W{w} V16" if (v == 0 or w == 2) else f"W2 V{v} W{w-2} V{16-v}"
    tail = f" W{16-w}" if w < 16 else ""
    return (f"{head} {mid}{tail}", dict(dict(ksplit=max(8, 16 - w)), **kw))


DEFAULT = dict(
    nt_kv="nt", nt_w="", nt_x="", stamps=False, st_fl="sc0 sc1", ld_fl="sc0 sc1",
    groups=(cls(0, 3, 0), cls(7, 6, 9), cls(4, 3, 0), cls(11, 6, 0)), gsel="bbr",
    fill_per=40, fill3=14, nmid=12, la=(4, 4, 4, 4), ksplit=8, more1=2, more2=1,
    poll_sleep=0, codepf=True, tper=2, hold=3, win=(0, 8, 1, 7), xrot=False, obar=2, xorder='cb', xsplit=13, kick=True, ownfirst=False, headmajor=False, rdy_fl='sc1', msum=True, aligned=False, pfpos='top', touch='', touch_fl='', early=0, early_min=6, kcap=9, kcap2=9, xcdrot=0, poll_depth=1, poll_gap=0, lastla=1, lastla2=3,
)


def schedule(spec, nmid, tper):
    issue = []
    cnt = dict(Q=0, K=0, V=0, W=0)
    for tok in spec.split():
        c, n = tok[0], int(tok[1:])
        issue += R(c, cnt[c], cnt[c] + n)
        cnt[c] += n
    assert cnt == dict(Q=14, K=16, V=16, W=16), cnt
    assert issue[:2] == ["Q0", "Q1"]
    iq, ik = issue.index("Q13"), issue.index("K15")
    ph1 = issue[:iq + 1]
    assert all(u[0] in "QK" for u in ph1)
    npre = sum(u[0] == "K" for u in ph1)
    assert npre <= 14
    rest = issue[iq + 1:ik + 1]
    assert all(u[0] in "KW" for u in rest)
    T = R("T", 0, npre)
    ph2 = [u for u in ("T0", "T4") if u in T]
    if npre > 10:
        ph2 += ["T1", "T2", "T3"]
    T = [u for u in T if u not in ph2]
    shift = 4 if npre > 10 else 0
    for u in rest:
        if u[0] == "W":
            assert int(u[1:]) < 8
            while T and int(T[0][1:]) <= int(u[1:]) + shift + 1:
                ph2.append(T.pop(0))
            assert not ph2 or ph2[-1] != f"T{int(u[1:]) + shift}"
            ph2.append(u)
        else:
            ph2 += [u] + T[:tper]
            T = T[tper:]
    ph2 += T
    after = issue[ik + 1:]
    mid2, held = [], 0
    for u in after:
        if u[0] == "V":
            held += 1
            if held > NSLOT - 4:
                break
        elif len(mid2) < nmid:
            mid2.append(u)
    ph3 = [u for u in after if u not in mid2]
    iv = ph3.index("V15")
    ph3, ph4 = ph3[:iv + 1], ph3[iv + 1:]
    return dict(issue=issue, ph1=ph1, ph2=ph2, mid2=mid2, ph3=ph3, ph4=ph4, npre=npre)


class Gen:
    def __init__(self, sched, tag, **kw):
        self.o = dict(DEFAULT)
        self.o.update(kw)
        self.p = Prog()
        self.sc = sched
        self.tag = tag
        self.issue_q = list(sched["issue"])
        self.free = [(s, []) for s in range(NSLOT)]
        self.unit = {}
        self.side = {}
        self.eaten, self.started = set(), set()
        self.order = []
        self.nstamp = 1
        self.bufs, self.buf = (64, 96), 0

    def lines(self, texts):
        return [(lambda t=t: self.p(t)) for t in texts]

    def stamp(self, name=""):
        if self.o["stamps"] and (self.o["stamps"] != "ends" or name == "end"):
            self.p(("s_memtime" if self.o["stamps"] == "cyc" else "s_memrealtime") + " s[100:101]")
            self.p("s_waitcnt lgkmcnt(0)")
            self.p(f"s_mov_b32 s{sST + self.nstamp}, s100")
            self.nstamp += 1
            assert self.nstamp <= 14

    def dma_items(self):
        name = self.issue_q.pop(0)
        slot, reads = self.free.pop(0)
        kind, u = name[0], int(name[1:])
        r, v, nt = {"Q": (sQ, vDQ, self.o["nt_w"]), "K": (sK, vDK, self.o.get("nt_k", self.o["nt_kv"])),
                    "V": (sV, vDV, self.o.get("nt_v", self.o["nt_kv"])), "W": (sO, vDO, self.o["nt_w"])}[kind]
        if self.o.get("split") and kind in self.o["split"]:
            nt = "" if (u // 4) % 2 == 0 else self.o.get("split_nt", "nt")
        dm = []
        self.unit[name] = (slot, dm)
        p = self.p

        def head():
            p(f"s_add_u32 m0, s{sRING}, {slot*4096}")
            if kind == "Q":
                p(f"s_lshl_b32 s{sSO}, s{sROT + u // 2}, 12")
                if u % 2:
                    p(f"s_bitset1_b32 s{sSO}, 18")
            elif kind == "W":
                p(f"s_xor_b32 s{sSO}, s{sXW}, {u}")
                p(f"s_mulk_i32 s{sSO}, {16*896}")
            elif kind == "K":
                p(f"s_xor_b32 s{sSO}, s{sW128}, {(u // 4) * 65536 + (u % 4) * 128}")
            else:
                p(f"s_xor_b32 s{sSO}, s{sVX}, {u * 16384}")

        def piece(j):
            def f():
                if j == 0:
                    head()
                off = f" offset:{1024*j}" if j else ""
                dm.append(p(f"buffer_load_dwordx4 v{v+j}, {srd(r)}, s{sSO} offen{off}{fl(nt)} lds",
                            after=reads if j == 0 else ()))
            return f
        return [piece(j) for j in range(4)]

    def all_dma(self, la=None):
        la = min(la or self.o["la"], NSLOT)
        out = []
        while self.issue_q and NSLOT - len(self.free) < la:
            out += self.dma_items()
        return out

    def one_more(self):
        def f():
            if self.issue_q and self.free:
                for g in self.dma_items():
                    g()
        return f

    def kreg(self, u, j):
        if self.sc["npre"] > 10:
            if u < 4:
                return vr(192 + 16 * u + 4 * j, 4)
            u -= 4
        return ar(self.wreg(u) + 4 * j, 4)

    @staticmethod
    def wreg(u):
        return 128 + 16 * u if u < 8 else 16 * (u - 8)

    def unit_reads(self, name, base):
        kind, u = name[0], int(name[1:])
        p = self.p
        items, done = [], []
        if kind == "T":
            return items, done
        slot, dm = self.unit[name]
        so = slot * 4096
        sd = self.side.setdefault(name, [])

        def ring(text, pieces):
            items.append(lambda: done.append(p(text, after=[dm[j] for j in pieces])))

        def side(text):
            items.append(lambda: sd.append(p(text)))
        if self.o.get("trace"):
            def mark():
                p("s_nop 0", after=list(dm))
                p("s_memrealtime s[100:101]")
                p("s_waitcnt lgkmcnt(0)")
                p(f"v_writelane_b32 v0, s100, {len(self.order)}")
                self.order.append(name)
            items.append(mark)
        if kind in "QV":
            for ks in range(2):
                for mt in range(2):
                    for part in range(2):
                        d = base + (ks * 2 + mt) * 4 + part * 2
                        if kind == "Q":
                            ring(f"ds_read_b64_tr_b16 {vr(d,2)}, v{vRQ+mt} offset:{so + ks*2048 + part*512}",
                                 (2 * ks, 2 * ks + 1))
                        else:
                            ring(f"ds_read_b64_tr_b16 {vr(d,2)}, v{vRV+mt} offset:{so + ks*2048 + part*1024}",
                                 (2 * ks + part,))
                    qt = mt
                    d = base + 16 + (ks * 2 + qt) * 4
                    if kind == "Q":
                        s = 2 * u + ks
                        side(f"ds_read_b128 {vr(d,4)}, v{vRX + s % 4} offset:{XPOS[s // 4]*8192 + qt*4096}")
                    else:
                        side(f"ds_read_b128 {vr(d,4)}, v{vPA+qt} offset:{(u % 4)*16384 + ((u // 4)*2 + ks)*2048}")
        elif kind == "K":
            for j in range(4):
                d = self.kreg(u, j) if u < self.sc["npre"] else vr(base + 4 * j, 4)
                ring(f"ds_read_b128 {d}, v{vRK+j} offset:{so}", range(4))
        elif kind == "W":
            for part in range(2):
                for t in range(4):
                    ring(f"ds_read_b64_tr_b16 {ar(self.wreg(u) + t*4 + part*2, 2)}, v{vRO+t} "
                         f"offset:{so + part*1024}", (part, 2 + part))
        return items, done

    def unit_mfmas(self, name, base):
        kind, u = name[0], int(name[1:])
        out = []
        if kind in "QV":
            order = [(ks, mt, qt) for ks in range(2) for mt, qt in ((0, 0), (1, 0), (0, 1), (1, 1))]
            if name in ("Q13", "V15"):
                order = [(ks, mt, qt) for mt in range(2) for qt in range(2) for ks in range(2)]
            for ks, mt, qt in order:
                acc = vr(ACC + (mt * 2 + qt) * 16, 16)
                c = "0" if (u == 0 and ks == 0) else acc
                out.append(f"{MF} {acc}, {vr(base + (ks*2+mt)*4, 4)}, {vr(base + 16 + (ks*2+qt)*4, 4)}, {c}")
        elif kind == "T" or (kind == "K" and u >= self.sc["npre"]):
            t, i = u // 4, u % 4
            first = t not in self.started
            self.started.add(t)
            for j in range(4):
                a = self.kreg(u, j) if kind == "T" else vr(base + 4 * j, 4)
                for qt in range(2):
                    acc = vr(ACC + (t * 2 + qt) * 16, 16)
                    b = vr(self.own + (j * 2 + qt) * 4, 4) if i == 0 else ar(((i * 4 + j) * 2 + qt) * 4, 4)
                    out.append(f"{MF} {acc}, {a}, {b}, {'0' if (first and j == 0) else acc}")
        return out

    def window(self, mfmas, early, late, fill):
        p = self.p
        n = len(mfmas)
        if n == 0:
            for f in fill + late + early:
                f()
            return
        gaps = [[] for _ in range(n)]
        e0, e1, l0, l1 = self.o["win"]
        e1, l1 = min(e1, n), min(l1, n - 1)
        for k, f in enumerate(early):
            gaps[e0 + k * (e1 - e0) // len(early)].append(f)
        for k, f in enumerate(late):
            gaps[l0 + k * (l1 - l0) // len(late)].append(f)
        for k, f in enumerate(fill):
            gaps[k * n // len(fill)].append(f)
        for m, g in zip(mfmas, gaps):
            p(m)
            for f in g:
                f()

    def release(self, nme, done):
        if nme[0] != "T":
            self.eaten.add(nme)
            self.free.append((self.unit[nme][0], done))

    def run_phase(self, units, fillq=(), per=0, after=None, before=None):
        pend, prev = [], None
        self.fillq = list(fillq)
        for nme in units:
            base = self.bufs[self.buf]
            mf = self.unit_mfmas(nme, base)
            if mf and nme[0] != "T":
                self.buf ^= 1
            la = self.o["la"] + (0 if pend else 1)
            if nme[0] == "V" and "V15" in self.unit:
                la = min(la, self.o["hold"])
            if nme[0] == "Q" and "Q13" in self.unit:
                la = min(la, 14 - int(nme[1:]) + self.o["kcap"])
            early = self.all_dma(la)
            if nme[0] != "T" and not self.unit[nme][1]:
                for f in early:
                    f()
                early = []
            late, done = self.unit_reads(nme, base)
            if before:
                late = before(nme) + late
            take, self.fillq = self.fillq[:per], self.fillq[per:]
            self.window(pend, early, late, take)
            if after and prev:
                self.fillq += after(prev)
            self.release(nme, done)
            pend, prev = mf, nme
        return pend

    def stage(self, nme):
        def f():
            held = sum(u[0] == "V" and u not in self.eaten for u in self.unit)
            early = self.all_dma(min(NSLOT, self.o["la"] + 1 + held))
            if not self.unit[nme][1]:
                for g in early:
                    g()
                early = []
            it, d = self.unit_reads(nme, 0)
            for g in it + early:
                g()
            self.release(nme, d)
        return f

    @staticmethod
    def spread(items, stages):
        n, k = len(stages), 0
        for i, f in enumerate(items):
            while k < n and (k + 0.5) * len(items) / n <= i:
                stages[k]()
                k += 1
            f()
        for g in stages[k:]:
            g()

    def last_window(self, mfmas, early, addr):
        p = self.p
        self.own = self.bufs[self.buf]
        w = []

        def pack(a):
            mt, q = a // 2, a % 2
            for ks in range(2):
                src = ACC + a * 16 + ks * 8
                d = self.own + ((2 * mt + ks) * 2 + q) * 4
                for k in range(4):
                    p(f"v_cvt_pk_bf16_f32 v{d+k}, v{src+2*k}, v{src+2*k+1}")
                reg, off = addr(2 * mt + ks, q)
                w.append(p(f"ds_write_b128 v{reg}, {vr(d,4)} offset:{off}"))
        early = list(early)
        for i, m in enumerate(mfmas):
            p(m)
            if i < 4:
                for f in early[i * len(early) // 4:(i + 1) * len(early) // 4]:
                    f()
            if i in (4, 6):
                pack((i - 4) // 2)
        pack(2)
        pack(3)
        return w

    def prologue(self):
        p, o = self.p, self.o
        ng = len(o["groups"])
        p("s_cmp_ge_u32 s2, 256")
        p("s_cbranch_scc1 L_exit")
        if o["stamps"]:
            p(("s_memtime" if o["stamps"] == "cyc" else "s_memrealtime") + f" s[{sST}:{sST+1}]")
        p(f"s_lshr_b32 s{sBR}, s2, 7")
        p(f"s_mul_i32 s5, s{sBR}, 40")
        p("s_add_u32 s6, s0, s5")
        p("s_addc_u32 s7, s1, 0")
        p("s_load_dwordx8 s[88:95], s[6:7], 0")
        p("s_load_dwordx2 s[86:87], s[6:7], 32")
        p(f"s_load_dwordx2 s[{sWS}:{sWS+1}], s[0:1], 96")
        p("s_load_dwordx4 s[96:99], s[0:1], 80")
        if o.get("headpf"):
            p("s_getpc_b64 s[10:11]")
            p("v_min_u32 v5, 12, v0")
            p("v_lshlrev_b32 v5, 7, v5")
            p("global_load_dword v254, v5, s[10:11]", hidden=True)
        p("v_lshrrev_b32 v7, 6, v0")
        p(f"v_and_b32 v{vL}, 63, v0")
        p(f"v_readfirstlane_b32 s{sW}, v7")
        p(f"v_lshrrev_b32 v2, 3, v{vL}")
        p(f"v_and_b32 v3, 7, v{vL}")
        p(f"v_lshrrev_b32 v4, 4, v{vL}")
        p(f"s_bfe_u32 s{sB}, s2, 0x30004")
        p("s_bfe_u32 s4, s2, 0x10003")
        if o["pfpos"] == "top":
            self.class_prefetch()
        p(f"s_and_b32 s{sT2}, s{sW}, 1")
        p(f"s_cmp_eq_u32 s{sB}, 7")
        p(f"s_cselect_b32 s{sROT}, 3, s{sB}")
        if o["xcdrot"]:
            p("s_and_b32 s3, s2, 7")
            if o["xcdrot"] > 1:
                p(f"s_mul_i32 s3, s3, {o['xcdrot']}")
            p(f"s_add_u32 s{sROT}, s{sROT}, s3")
            p(f"s_mul_i32 s3, s{sROT}, 37")
            p("s_lshr_b32 s3, s3, 8")
            p("s_mul_i32 s3, s3, 7")
            p(f"s_sub_u32 s{sROT}, s{sROT}, s3")
        p(f"s_lshl_b32 s{sROT}, s{sROT}, 7")
        p(f"s_lshl_b32 s{sT0}, s{sT2}, 2")
        p(f"v_add_u32 v5, s{sT0}, v4")
        p("v_xor_b32 v5, v5, v3")
        p(f"s_lshl_b32 s5, s4, {2 if o['xrot'] else 31}")
        p("s_and_b32 s5, s5, 4")
        p(f"s_add_u32 s5, s5, s{sW}")
        p(f"s_lshl_b32 s{sT0}, s5, 3")
        p(f"v_add_u32 v6, s{sT0}, v2")
        p("v_xor_b32 v7, 32, v6")
        p("v_mul_u32_u24 v6, 896, v6")
        p("v_mul_u32_u24 v7, 896, v7")
        p(f"v_lshl_add_u32 v{vDX}, v5, 4, v6")
        p("v_lshl_add_u32 v7, v5, 4, v7")
        p(f"s_lshl_b32 s{sT1}, s5, 10")
        p(f"s_mul_i32 s{sT0}, s{sB}, 57344")
        p(f"s_mov_b32 s{sX+2}, 57344")
        p(f"s_mov_b32 s{sX+3}, 0x20000")
        p("s_waitcnt lgkmcnt(0)")
        p(f"s_add_u32 s{sX}, s88, s{sT0}")
        p(f"s_addc_u32 s{sX+1}, s89, 0")
        self.xd = []
        p(f"s_xor_b32 s5, s{sT1}, 0x1000")
        seq = [(h, cb) for h in range(2) for cb in range(7)] if o["xorder"] == "half" else \
            [(h, cb) for cb in range(7) for h in range(2)]
        for n, (half, cb) in enumerate(seq):
            if True:
                p(f"s_add_u32 m0, s{5 if half else sT1}, {SH + XPOS[cb]*8192}")
                if half == 0 and cb:
                    p(f"s_add_u32 s{sROT+cb}, s{sROT+cb-1}, 128")
                    p(f"s_cmp_eq_u32 s{sROT+cb}, 896")
                    p(f"s_cselect_b32 s{sROT+cb}, 0, s{sROT+cb}")
                self.xd.append(p(f"buffer_load_dwordx4 v{7 if half else vDX}, {srd(sX)}, s{sROT+cb} "
                                 f"offen{fl(o['nt_x'])} lds"))
            if n == o["xsplit"]:
                p("s_and_b32 s3, s2, 7")
                p("s_lshl_b32 s3, s3, 1")
                p(f"s_add_u32 s{sH}, s3, s4")
                if o["pfpos"] != "top":
                    self.class_prefetch()
                p(f"s_mul_i32 s{sRING}, s{sW}, {RSZ}")
                p(f"s_add_u32 s{sRING}, s{sRING}, {RING}")
                p("v_and_b32 v5, 1, v4")
                p("v_lshlrev_b32 v5, 2, v5")
                p("v_xor_b32 v5, v5, v3")
                p(f"s_lshl_b32 s{sW128}, s{sW}, 7")
                p(f"v_lshl_add_u32 v5, v5, 4, s{sW128}")
                if o.get("fakek"):
                    p(f"s_mov_b32 s{sW128}, 0")
                p(f"v_lshl_add_u32 v{vDQ}, v2, 13, v5")
                p(f"s_lshl_b32 s{sT0}, s{sB}, 6")
                p(f"v_xor_b32 v5, s{sT0}, v5")
                p(f"v_lshl_add_u32 v{vDV}, v2, 9, v5")
                for j in range(1, 4):
                    p(f"v_add_u32 v{vDQ+j}, {j*(65536-1024)}, v{vDQ}")
                p(f"s_lshl_b32 s{sT0}, s{sH}, 9")
                p(f"s_add_u32 s{sQ}, s94, s{sT0}")
                p(f"s_addc_u32 s{sQ+1}, s95, 0")
                p(f"s_sub_u32 s{sQ+2}, 3670016, s{sT0}")
                p(f"s_mov_b32 s{sQ+3}, 0x20000")
                p(f"s_lshl_b32 s{sGRP}, s{sBR}, 3")
                p(f"s_add_u32 s{sGRP}, s{sGRP}, s{sB}")
                p(f"s_mov_b32 s{sWS+2}, {PBASE + 16 * GRP}")
                p(f"s_mov_b32 s{sWS+3}, 0x20000")
                p(f"v_lshlrev_b32 v{vLIN}, 4, v{vL}")
                if o["touch"]:
                    p(f"s_mov_b32 s7, s{sT1}")
                    self.touch()
                    p(f"s_mov_b32 s{sT1}, s7")
        p(f"s_cmp_lg_u32 s{sH}, 15")
        p("s_cbranch_scc1 L_noclr")
        p(f"s_lshl_b32 s3, s{sGRP}, 2")
        p(f"s_add_u32 s3, s3, s{sW}")
        p("s_lshl_b32 s3, s3, 11")
        p(f"s_add_u32 s3, s3, {FBASE}")
        p(f"v_lshrrev_b32 v5, 2, v{vL}")
        p(f"v_and_b32 v6, 48, v{vLIN}")
        p("v_lshl_add_u32 v5, v5, 7, v6")
        for k in range(4):
            p(f"v_mov_b32 v{64+k}, 0")
        p(f"buffer_store_dwordx4 v[64:67], v5, {srd(sWS)}, s3 offen sc0 sc1", hidden=True)
        p("L_noclr:")
        for f in self.all_dma(2):
            f()
        if not o["touch"]:
            self.descriptors()
        p(f"s_lshl_b32 s{sDO}, s{sGRP}, 4")
        if o.get("tlb0"):
            p("v_mov_b32 v5, 0")
            for r in (sK, sV, sO):
                p(f"buffer_load_dword v254, v5, {srd(r)}, 0 offen nt", hidden=True)
        p(f"s_lshl_b32 s{sXW}, s{sW}, {1 if o['ownfirst'] and not o.get('fakew') else 31}")
        p(f"s_xor_b32 s{sXW}, s{sXW}, s{sB}")
        p(f"s_lshl_b32 s{sXW}, s{sXW}, 1")
        p(f"s_mov_b32 s{sC}, {f32(math.log2(math.e) / 16)}")
        p("v_xor_b32 v5, v3, v4")
        p(f"s_lshl_b32 s{sT0}, s{sW}, 14")
        p(f"v_lshl_add_u32 v5, v5, 4, s{sT0}")
        p(f"v_lshl_add_u32 v{vDK}, v2, 9, v5")
        p(f"v_xor_b32 v5, 64, v{vDK}")
        p(f"v_add_u32 v{vDK+1}, 3072, v5")
        p(f"v_add_u32 v{vDK+2}, 6144, v{vDK}")
        p(f"v_add_u32 v{vDK+3}, 9216, v5")
        for j in range(1, 4):
            p(f"v_add_u32 v{vDV+j}, {j*3072}, v{vDV}")
        p(f"v_add_u32 v{vWR}, s{sT0}, v{vLIN}")
        for j in range(1, 4):
            p(f"v_xor_b32 v{vQA+j-1}, {j*16384}, v{vWR}")
        p(f"s_add_u32 s{sT0}, s{sT0}, 8192")
        p(f"v_lshl_add_u32 v{vIR}, v{vL}, 3, s{sT0}")
        if o["aligned"]:
            p(f"v_bfe_u32 v5, v{vL}, 2, 2")
            p("v_xor_b32 v5, v5, v4")
            p(f"v_and_b32 v6, 48, v{vLIN}")
            p("v_lshl_add_u32 v6, v5, 6, v6")
            p(f"s_cmp_eq_u32 s{sW}, 3")
            p(f"s_cselect_b32 s{sT1}, 2, 0")
            p(f"v_and_b32 v5, s{sT1}, v5")
            p("v_lshl_add_u32 v5, v5, 29, v6")
            p("v_mul_u32_u24 v6, 896, v4")
            p(f"s_lshl_b32 s{sT0}, s{sW}, 8")
            p(f"v_add3_u32 v{vDO}, v5, v6, s{sT0}")
        else:
            p(f"v_bfe_u32 v5, v{vL}, 2, 2")
            p("v_xor_b32 v5, v5, v4")
            p(f"v_add_u32 v5, s{sT2}, v5")
            p("v_and_b32 v5, 3, v5")
            p(f"v_and_b32 v6, 48, v{vLIN}")
            p("v_lshl_add_u32 v5, v5, 6, v6")
            p("v_mul_u32_u24 v6, 896, v4")
            p(f"s_mul_i32 s{sT0}, s{sW}, 224")
            p(f"s_lshl_b32 s{sT1}, s{sT2}, 5")
            p(f"s_sub_u32 s{sT0}, s{sT0}, s{sT1}")
            p(f"v_add3_u32 v{vDO}, v5, v6, s{sT0}")
        for j in range(1, 4):
            p(f"v_add_u32 v{vDO+j}, {j*(3584-1024)}, v{vDO}")
        p(f"v_lshrrev_b32 v2, 5, v{vL}")
        p(f"v_bfe_u32 v3, v{vL}, 1, 3")
        p("v_xor_b32 v3, v3, v2")
        p(f"v_and_b32 v5, 31, v{vL}")
        p("v_lshlrev_b32 v5, 7, v5")
        p(f"v_lshl_add_u32 v{vRX}, v3, 4, v5")
        for j in range(1, 4):
            p(f"v_xor_b32 v{vRX+j}, {j*32}, v{vRX}")
        for j in range(4):
            p(f"v_add_u32 v{vRK+j}, s{sRING}, v{vRX+j}")
        p(f"v_and_b32 v3, 16, v{vLIN}")
        p(f"v_bfe_u32 v5, v{vL}, 1, 1")
        p("v_lshl_add_u32 v3, v5, 3, v3")
        p("v_and_b32 v5, 1, v4")
        p("v_lshl_add_u32 v3, v5, 5, v3")
        p(f"v_add_u32 v3, s{sRING}, v3")
        p(f"v_bfe_u32 v5, v{vL}, 2, 2")
        p(f"v_bfe_u32 v6, v{vL}, 3, 1")
        p("v_lshl_add_u32 v6, v6, 6, v3")
        p("v_lshl_add_u32 v6, v5, 7, v6")
        p(f"v_lshl_add_u32 v{vRQ}, v2, 10, v6")
        p(f"v_lshl_add_u32 v{vRV}, v2, 9, v6")
        p(f"v_xor_b32 v{vRQ+1}, 64, v{vRQ}")
        p(f"v_xor_b32 v{vRV+1}, 64, v{vRV}")
        p("v_mul_u32_u24 v6, 320, v5")
        p("v_add_u32 v6, v6, v3")
        p(f"v_lshl_add_u32 v{vRO}, v2, 11, v6")
        for t in range(1, 4):
            p(f"v_xor_b32 v{vRO+t}, {t*64}, v{vRO}")
        p(f"s_lshl_b32 s{sT1}, s{sT2}, {31 if o['aligned'] else 10}")
        p(f"s_and_b32 s{sT1}, s{sT1}, 0x400")
        p(f"v_add_u32 v{vPA}, s{sT1}, v{vLIN}")
        p(f"v_xor_b32 v{vPA+1}, 0x400, v{vPA}")
        p(f"s_lshl_b32 s{sT0}, s{sW}, 9")
        p(f"s_add_u32 s{sT0}, s{sT0}, 8192")
        p(f"v_lshl_add_u32 v{vIW}, v{vL}, 3, s{sT0}")
        for g in range(1, ng):
            p(f"s_cmp_eq_u32 s{sCLS}, {g}")
            p(f"s_cbranch_scc1 L_class{g}")
        p("s_branch L_class0")
        p("L_exit:")
        p("s_endpgm")
        p(SPLIT)
        p(f"L_class{self.tag}:")
        if o.get("split"):
            p(f"s_and_b32 s{sVX}, s{sH}, 1")
            p(f"s_lshl_b32 s{sVX}, s{sVX}, 16")
            p(f"s_or_b32 s{sW128}, s{sW128}, s{sVX}")
        else:
            p(f"s_mov_b32 s{sVX}, 0")
        p("s_barrier", after=self.xd)
        self.stamp()
        p(f"s_cmp_lg_u32 s{sH}, 15")
        p(f"s_cbranch_scc1 L_noset{self.tag}")
        p(f"s_lshl_b32 s3, s{sW}, 2")
        p(f"s_add_u32 s3, s3, s{sDO}")
        p("v_mov_b32 v2, 0")
        p("v_mov_b32 v3, 1")
        p("s_mov_b64 exec, 1")
        p(f"buffer_store_dword v3, v2, {srd(sDBG)}, s3 offen sc0 sc1", hidden=True)
        p("s_mov_b64 exec, -1")
        p(f"L_noset{self.tag}:")
        if o["kick"]:
            for f in self.all_dma():
                f()
        if o["codepf"] == "late":
            p("s_getpc_b64 s[6:7]")
            p(f"s_and_b32 s3, s{sB}, 6")
            p(f"s_and_b32 s4, s{sH}, 1")
            p("s_add_u32 s3, s3, s4")
            p("s_mulk_i32 s3, 20")
            p("v_min_u32 v5, 19, v0")
            p("v_add_u32 v5, s3, v5")
            p("v_min_u32 v5, 155, v5")
            p("v_lshlrev_b32 v5, 7, v5")
            p("global_load_dword v5, v5, s[6:7]")

    def descriptors(self):
        p, o = self.p, self.o
        p(f"s_lshl_b32 s{sT0}, s{sB}, 4")
        p(f"s_add_u32 s{sT0}, s{sT0}, s{sH}")
        p(f"s_xor_b32 s{sT1}, s{sBR}, 1")
        p(f"s_lshr_b32 s{sT0}, s{sT0}, s{sT1}")
        p(f"s_lshl_b32 s{sT0}, s{sT0}, 18")
        for r, src in ((sK, 90), (sV, 92)):
            p(f"s_add_u32 s{r}, s{src}, s{sT0}")
            p(f"s_addc_u32 s{r+1}, s{src+1}, 0")
            p(f"s_mov_b32 s{r+2}, 262144")
            p(f"s_mov_b32 s{r+3}, 0x20000")
        p(f"s_mul_i32 s{sT0}, s{sH}, 229376")
        p(f"s_add_u32 s{sO}, s86, s{sT0}")
        p(f"s_addc_u32 s{sO+1}, s87, 0")
        p(f"s_mov_b32 s{sO+2}, 229376")
        p(f"s_mov_b32 s{sO+3}, 0x20000")
        for r, src, n in ((sOUT, 96, 917504), (sDBG, 98, 256)):
            p(f"s_mov_b32 s{r}, s{src}")
            p(f"s_mov_b32 s{r+1}, s{src+1}")
            p(f"s_mov_b32 s{r+2}, {n}")
            p(f"s_mov_b32 s{r+3}, 0x20000")

    def touch(self):
        p, o = self.p, self.o
        self.descriptors()
        p("v_mov_b32 v5, 0")
        p("s_mov_b64 exec, 1")
        for ch in o["touch"]:
            r, so = {"k": (sK, "0"), "v": (sV, "0"), "w": (sO, "0"), "q": (sQ, "s3"), "o": (sOUT, "s3"),
                     "p": (sWS, "s3"), "d": (sDBG, "0"), "f": (sWS, "s3")}[ch]
            if ch == "q":
                p("s_mov_b32 s3, 0x300000")
            elif ch == "o":
                p(f"s_mul_i32 s3, s{sB}, {64*1792}")
            elif ch == "p":
                p(f"s_mul_i32 s3, s{sGRP}, {GRP}")
                p(f"s_add_u32 s3, s3, {PBASE + GRP // 2}")
            elif ch == "f":
                p(f"s_mov_b32 s3, {FBASE - 128}")
            p(f"buffer_load_dword v253, v5, {srd(r)}, {so} offen{fl(o['touch_fl'])}", hidden=True)
        p("s_mov_b64 exec, -1")

    def class_prefetch(self):
        p, o = self.p, self.o
        ng = len(o["groups"])
        if ng > 1:
            if o["gsel"] == "b":
                p(f"s_and_b32 s{sCLS}, s{sB}, {ng-1}")
            elif o["gsel"] == "br":
                p(f"s_mov_b32 s{sCLS}, s{sBR}")
            else:
                p(f"s_and_b32 s{sCLS}, s{sB}, {ng//2-1}")
                p(f"s_lshl_b32 s{sCLS}, s{sCLS}, 1")
                p(f"s_add_u32 s{sCLS}, s{sCLS}, s{sBR}")
        if o["codepf"] and o["codepf"] != "late":
            p("s_getpc_b64 s[14:15]")
            p("L_pc:")
            p("s_mov_b32 s3, L_class0-L_pc")
            for g in range(1, ng):
                p(f"s_cmp_eq_u32 s{sCLS}, {g}")
                p(f"s_cselect_b32 s3, L_class{g}-L_pc, s3")
            p("s_add_u32 s14, s14, s3")
            p("s_addc_u32 s15, s15, 0")
            if o["codepf"] == "full":
                p(f"v_min_u32 v5, (L_codeend-L_class{ng-1})/128-1, v0")
                p("v_lshlrev_b32 v5, 7, v5")
            else:
                p(f"s_and_b32 s3, s{sB}, 6")
                p("s_add_u32 s3, s3, s4")
                p("s_mulk_i32 s3, 20")
                p("v_min_u32 v5, 19, v0")
                p("v_add_u32 v5, s3, v5")
                p(f"v_min_u32 v5, (L_codeend-L_class{ng-1})/128-1, v5")
                p("v_lshlrev_b32 v5, 7, v5")
            p("global_load_dword v255, v5, s[14:15]", hidden=True)

    def store_setup(self):
        hm = self.o["headmajor"]
        if self.o["aligned"]:
            return self.lines(
                [f"s_mul_i32 s3, s{sGRP}, {GRP}", f"s_lshl_b32 s4, s{sH}, 11", "s_add_u32 s3, s3, s4",
                 f"s_lshl_b32 s4, s{sW}, 18", "s_add_u32 s3, s3, s4", f"s_add_u32 s{sPT}, s3, {PBASE}",
                 f"s_add_u32 s{sPT+1}, s{sPT}, {4*32768}", f"s_lshr_b32 s4, s{sW}, 1", f"s_and_b32 s4, s4, s{sW}",
                 "s_lshl_b32 s4, s4, 30", f"s_or_b32 s{sPT+1}, s{sPT+1}, s4",
                 f"s_lshl_b32 s4, s{sW}, 4", f"v_add_lshl_u32 v{vFL}, v{vL}, s4, 7"])
        L = [f"s_mul_i32 s3, s{sGRP}, {GRP}", f"s_mul_i32 s4, s{sH}, {57344 if hm else 2048}", "s_add_u32 s3, s3, s4",
             f"s_add_u32 s3, s3, {PBASE}", f"s_lshr_b32 s4, s{sW}, 1", "s_mul_i32 s4, s4, 7",
             f"s_mul_i32 s5, s{sT2}, 3", "s_add_u32 s4, s4, s5", f"s_lshl_b32 s7, s{sT2}, 1",
             f"v_mov_b32 v{vFL}, 0"]
        for t in range(4):
            L += [f"s_add_u32 s5, s{sT2}, {t}", "s_and_b32 s5, s5, 3", "s_add_u32 s5, s5, s4",
                  "s_lshr_b32 s6, s5, 1", "s_lshl_b32 s6, s6, 2", "s_and_b32 s5, s5, 1",
                  "s_add_u32 s5, s5, s6", "s_add_u32 s5, s5, s7"]
            for qi in range(2 if t < 3 else 1):
                if qi:
                    L.append("s_xor_b32 s5, s5, 2")
                L += [f"s_lshl_b32 s6, s5, {11 if hm else 15}", f"s_add_u32 s{sPT + 2*t + qi}, s6, s3", "s_lshl_b32 s6, s5, 8",
                      f"v_writelane_b32 v{vFL}, s6, {2*(2*t+qi)}", "s_add_u32 s6, s6, 128",
                      f"v_writelane_b32 v{vFL}, s6, {2*(2*t+qi)+1}"]
        return self.lines(L)

    def softmax_tile(self, t, packed=False):
        seq = []
        for qt in range(2):
            s = ACC + (t * 2 + qt) * 16
            m, l = vMC + t * 2 + qt, vLS + t * 2 + qt
            seq.append(f"v_max3_f32 v{m}, v{s}, v{s+1}, v{s+2}")
            for k in range(3, 15, 2):
                seq.append(f"v_max3_f32 v{m}, v{m}, v{s+k}, v{s+k+1}")
            seq.append(f"v_max_f32 v{m}, v{m}, v{s+15}")
            seq.append(f"v_mul_f32 v{m}, s{sC}, v{m}")
            if packed:
                for k in range(0, 16, 2):
                    seq.append(f"v_pk_fma_f32 {vr(s+k,2)}, {vr(s+k,2)}, s[{sC}:{sC+1}], {vr(m & ~1, 2)} "
                               f"op_sel:[0,0,{m & 1}] op_sel_hi:[1,0,{m & 1}] neg_lo:[0,0,1] neg_hi:[0,0,1]")
                for k in range(16):
                    seq.append(f"v_exp_f32 v{s+k}, v{s+k}")
                    if k == 4:
                        seq.append(f"v_pk_add_f32 v[2:3], {vr(s,2)}, {vr(s+2,2)}")
                    elif k > 4 and k % 2 == 0:
                        seq.append(f"v_pk_add_f32 v[2:3], v[2:3], {vr(s+k-2,2)}")
                seq.append(f"v_pk_add_f32 v[2:3], v[2:3], {vr(s+14,2)}")
                seq.append(f"v_add_f32 v{l}, v2, v3")
            else:
                for k in range(16):
                    seq.append(f"v_fma_f32 v{s+k}, v{s+k}, s{sC}, -v{m}")
                for k in range(16):
                    seq.append(f"v_exp_f32 v{s+k}, v{s+k}")
                    if k == 2:
                        seq.append(f"v_add_f32 v{l}, v{s}, v{s+1}")
                    elif k > 2:
                        seq.append(f"v_add_f32 v{l}, v{l}, v{s+k-1}")
                seq.append(f"v_add_f32 v{l}, v{l}, v{s+15}")
        return self.lines(seq)

    def softmax_combine(self):
        p = self.p
        T = 64
        L = []
        q = lambda t: L.append(lambda: p(t))
        w1 = []
        for qt in range(2):
            m = [vMC + t * 2 + qt for t in range(4)]
            q(f"v_max3_f32 v{T+qt}, v{m[0]}, v{m[1]}, v{m[2]}")
            q(f"v_max_f32 v{T+qt}, v{T+qt}, v{m[3]}")
        for k in range(8):
            q(f"v_sub_f32 v{T+4+k}, v{vMC+k}, v{T + k % 2}")
        for k in range(8):
            q(f"v_exp_f32 v{T+4+k}, v{T+4+k}")
        q(f"v_pk_mul_f32 {vr(T+2,2)}, {vr(vLS,2)}, {vr(T+4,2)}")
        for t in range(1, 4):
            q(f"v_pk_fma_f32 {vr(T+2,2)}, {vr(vLS+2*t,2)}, {vr(T+4+2*t,2)}, {vr(T+2,2)}")
        q(f"v_permlane32_swap_b32 v{T}, v{T+1}")
        q(f"v_permlane32_swap_b32 v{T+2}, v{T+3}")
        q(f"v_max_f32 v{T+8}, v{T}, v{T+1}")
        q(f"v_sub_f32 v{T+4}, v{T}, v{T+8}")
        q(f"v_sub_f32 v{T+5}, v{T+1}, v{T+8}")
        q(f"v_exp_f32 v{T+4}, v{T+4}")
        q(f"v_exp_f32 v{T+5}, v{T+5}")
        q(f"v_mul_f32 v{T+9}, v{T+2}, v{T+4}")
        q(f"v_fmac_f32 v{T+9}, v{T+3}, v{T+5}")
        for r in range(4):
            L.append(lambda r=r: w1.append(p(f"ds_write_b64 v{vIW}, {vr(T+8,2)} offset:{r*16384}")))
        L.append(lambda: p("s_barrier", after=w1))
        for r in range(4):
            q(f"ds_read_b64 {vr(T+10+2*r,2)}, v{vIR} offset:{r*512}")
        q(f"v_max3_f32 v{T}, v{T+10}, v{T+12}, v{T+14}")
        q(f"v_max_f32 v{T}, v{T}, v{T+16}")
        for r in range(4):
            q(f"v_sub_f32 v{T+4+r}, v{T+10+2*r}, v{T}")
        for r in range(4):
            q(f"v_exp_f32 v{T+4+r}, v{T+4+r}")
        q(f"v_mul_f32 v{T+1}, v{T+11}, v{T+4}")
        for r in range(1, 4):
            q(f"v_fmac_f32 v{T+1}, v{T+11+2*r}, v{T+4+r}")
        q(f"v_log_f32 v{T+1}, v{T+1}")
        q(f"v_add_f32 v{T}, v{T}, v{T+1}")
        q(f"v_mov_b32 v{T+1}, v{T}")
        q(f"v_permlane32_swap_b32 v{T}, v{T+1}")
        for k in range(8):
            q(f"v_sub_f32 v{vMC+k}, v{vMC+k}, v{T + k % 2}")
        for k in range(8):
            q(f"v_exp_f32 v{vMC+k}, v{vMC+k}")
        return L

    def publish_p(self, t, w, packed):
        p = self.p
        L = []
        for qt in range(2):
            s, f = ACC + (t * 2 + qt) * 16, vMC + t * 2 + qt
            for ks in range(2):
                b = s + ks * 8
                if packed:
                    L += self.lines([f"v_pk_mul_f32 {vr(b+k,2)}, {vr(b+k,2)}, {vr(f & ~1, 2)} "
                                     f"op_sel:[0,{f & 1}] op_sel_hi:[1,{f & 1}]" for k in range(0, 8, 2)])
                else:
                    L += self.lines([f"v_mul_f32 v{b+k}, v{b+k}, v{f}" for k in range(8)])
                L += self.lines([f"v_cvt_pk_bf16_f32 v{b+k}, v{b+2*k}, v{b+2*k+1}" for k in range(4)])
                x = f"ds_write_b128 v{vWR}, {vr(b,4)} offset:{((t*2+ks)*2+qt)*1024}"
                L.append(lambda x=x: w.append(p(x)))
        return L

    def out_proj(self, wq, ow, extra):
        p, o = self.p, self.o
        ks = o["ksplit"]
        assert 8 <= ks <= 16
        units = [(0, 0), (1, 0), (2, 0), (3, 0), (0, 1), (1, 1), (2, 1)]
        other = 160 - self.own

        nown = 4 if o["ownfirst"] else 0
        obar = o["obar"] if nown else -1

        def oreg(s, qi):
            if s < nown:
                b = self.own + s * 8
            elif s < ks:
                b = 240 + (s % 2) * 8
            else:
                b = other + (s - ks) * 8 if s - ks < 4 else self.own + (s - ks - 4) * 8
            return b + qi * 4

        def oread(s):
            if not nown:
                return self.lines([f"ds_read_b128 {vr(oreg(s, qi), 4)}, v{vPA+qi} "
                                   f"offset:{(s // 4)*16384 + (s % 4)*2048}" for qi in range(2)])
            return self.lines([f"ds_read_b128 {vr(oreg(s, qi), 4)}, v{(vQB if qi else vQA) + s // 4 - 1} "
                               f"offset:{(s % 4)*2048}" for qi in range(2)])

        def mfma(k, s):
            t, qi = units[k]
            acc = vr(ACC + 16 * k, 16)
            return f"{MF} {acc}, {ar(self.wreg(s) + t*4, 4)}, {vr(oreg(s, qi), 4)}, {'0' if s == 0 else acc}"

        def finish(k):
            t, qi = units[k]
            acc, d = ACC + 16 * k, (48, 56, 32)[k % 3]
            L = []
            for half in range(2):
                for j in range(4):
                    L.append(f"v_cvt_pk_bf16_f32 v{d+half*4+j}, v{acc+half*8+2*j}, v{acc+half*8+2*j+1}")
                off = " offset:1024" if half else ""
                if o.get("fakehalf") and half:
                    continue
                L.append(f"buffer_store_dwordx4 {vr(d+half*4,4)}, v{vLIN}, {srd(sWS)}, s{sPT+2*t+qi} "
                         f"offen{off}{fl(o['st_fl'])}")
            return L
        tail = list(range(ks, 16))
        wq = list(wq)
        if not nown:
            p("s_barrier", after=ow)
            for f in oread(0):
                f()
        for s in range(ks):
            late = []
            if s == obar:
                late.append(lambda: p("s_barrier", after=ow))
            if s + 1 >= nown and s + 1 < ks:
                late += oread(s + 1)
            if s >= obar:
                for _ in range((len(tail) + ks - s - 1) // (ks - s)):
                    if tail[0] - ks < 4 or s > tail[0] - ks - 4:
                        late += oread(tail.pop(0))
            early, rel = self.all_dma(), []
            for _ in range((len(wq) + ks - s - 1) // (ks - s) if len(wq) >= ks - s else min(1, len(wq))):
                u = wq.pop(0)
                assert int(u[1:]) > s
                if not self.unit.get(u, (0, []))[1]:
                    for f in early + self.all_dma(NSLOT):
                        f()
                    early = []
                it, d = self.unit_reads(u, 0)
                late += it
                rel.append((u, d))
            fill, extra = extra[:8], extra[8:]
            self.window([mfma(k, s) for k in range(7)], early, late, fill)
            for u, d in rel:
                self.release(u, d)
        assert not wq and not self.issue_q and not tail
        for f in extra:
            f()
        prev = []
        for k in range(7):
            chain = [mfma(k, s) for s in range(ks, 16)]
            for i, m in enumerate(chain):
                p(m)
                if i >= 1:
                    n = (len(prev) + len(chain) - i - 1) // (len(chain) - i)
                    for t in prev[:n]:
                        p(t)
                    prev = prev[n:]
            for t in prev:
                p(t)
            prev = finish(k)
        for t in prev:
            p(t)

    def out_proj8(self, wq, ow, extra):
        p, o = self.p, self.o
        ks = o["ksplit"]
        assert 8 <= ks <= 16
        units = [(t, q) for t in range(4) for q in range(2)]
        other = 160 - self.own
        nown = 4 if o["ownfirst"] else 0

        def oreg(s, q):
            return (self.own if (s // 4) % 2 == 0 else other) + (s % 4) * 8 + q * 4

        def oread(s):
            if nown:
                return self.lines([f"ds_read_b128 {vr(oreg(s, q), 4)}, v{(vQB if q else vQA) + s // 4 - 1} "
                                   f"offset:{(s % 4)*2048}" for q in range(2)])
            return self.lines([f"ds_read_b128 {vr(oreg(s, q), 4)}, v{vPA+q} "
                               f"offset:{(s // 4)*16384 + (s % 4)*2048}" for q in range(2)])

        def mfma(k, s):
            t, q = units[k]
            acc = vr(ACC + 16 * k, 16)
            return f"{MF} {acc}, {ar(self.wreg(s) + t*4, 4)}, {vr(oreg(s, q), 4)}, {'0' if s == 0 else acc}"

        def finish(k):
            t, q = units[k]
            acc, d = ACC + 16 * k, (48, 56, 32)[k % 3]
            L = [f"s_add_u32 s{sSO}, s{sPT + t // 2}, {(q*2 + t % 2)*32768}"]
            for half in range(2):
                for j in range(4):
                    L.append(f"v_cvt_pk_bf16_f32 v{d+half*4+j}, v{acc+half*8+2*j}, v{acc+half*8+2*j+1}")
                off = " offset:1024" if half else ""
                L.append(f"buffer_store_dwordx4 {vr(d+half*4,4)}, v{vLIN}, {srd(sWS)}, s{sSO} "
                         f"offen{off}{fl(o['st_fl'])}")
            return L
        todo = list(range(nown, 16))
        obar = o["obar"] if nown else -1
        wq = list(wq)
        if not nown:
            p("s_barrier", after=ow)
            for f in oread(todo.pop(0)):
                f()
        for s in range(ks):
            late = []
            if s == obar:
                late.append(lambda: p("s_barrier", after=ow))
            if s >= obar:
                for _ in range(2):
                    if todo and todo[0] - 8 < s:
                        late += oread(todo.pop(0))
            assert not todo or todo[0] > s + 1
            early, rel = self.all_dma(), []
            for _ in range((len(wq) + ks - s - 1) // (ks - s) if len(wq) >= ks - s else min(1, len(wq))):
                u = wq.pop(0)
                assert int(u[1:]) > s
                if not self.unit.get(u, (0, []))[1]:
                    for f in early + self.all_dma(NSLOT):
                        f()
                    early = []
                it, d = self.unit_reads(u, 0)
                late += it
                rel.append((u, d))
            fill, extra = extra[:8], extra[8:]
            self.window([mfma(k, s) for k in range(8)], early, late, fill)
            for u, d in rel:
                self.release(u, d)
        assert not wq and not self.issue_q
        for s in todo:
            for f in oread(s):
                f()
        for f in extra:
            f()
        prev = []
        for k in range(8):
            chain = [mfma(k, s) for s in range(ks, 16)]
            for i, m in enumerate(chain):
                p(m)
                if i >= 1:
                    n = (len(prev) + len(chain) - i - 1) // (len(chain) - i)
                    for t in prev[:n]:
                        p(t)
                    prev = prev[n:]
            for t in prev:
                p(t)
            prev = finish(k)
        for t in prev:
            p(t)

    def tail_setup(self):
        return self.lines([
            f"s_lshl_b32 s{sJ}, s{sGRP}, 1", f"s_add_u32 s{sJ}, s{sJ}, s{sH}", f"s_and_b32 s{sJ}, s{sJ}, 15",
            f"s_lshl_b32 s3, s{sGRP}, 13", f"s_add_u32 s3, s3, {FBASE}",
            f"s_lshl_b32 s5, s{sJ}, 2", f"s_add_u32 s5, s5, s{sW}", "s_lshl_b32 s4, s5, 7",
            f"s_add_u32 s{sINB}, s3, s4", "v_mov_b32 v5, 1", "v_mov_b32 v7, 0",
            f"v_lshlrev_b32 v5, {'s%d' % sH if self.o['early'] else 0}, v5",
            f"v_and_b32 v{vRDY}, v{vRDY}, v{vRDY+1}", f"v_and_b32 v{vRDY+2}, v{vRDY+2}, v{vRDY+3}",
            f"v_and_b32 v{vRDY}, v{vRDY}, v{vRDY+2}",
            f"s_mul_i32 s6, s{sGRP}, {GRP}", "s_lshr_b32 s4, s5, 1",
            f"s_lshl_b32 s4, s4, {11 if self.o['headmajor'] else 15}", "s_add_u32 s6, s6, s4",
            f"s_lshl_b32 s4, s{sT2}, 10", "s_add_u32 s6, s6, s4", f"s_add_u32 s6, s6, {PBASE}",
            f"s_lshl_b32 s7, s{sB}, 1", f"s_and_b32 s4, s{sJ}, 1", "s_add_u32 s7, s7, s4",
            f"s_mul_i32 s7, s7, {32*1792}", f"s_mul_i32 s4, s{sBR}, 896", "s_add_u32 s7, s7, s4",
            f"s_lshr_b32 s4, s{sJ}, 1", "s_lshl_b32 s4, s4, 7", "s_add_u32 s7, s7, s4",
            f"s_lshl_b32 s4, s{sW}, 5", "s_add_u32 s7, s7, s4",
            f"v_and_b32 v2, 31, v{vL}", "v_mul_u32_u24 v2, 1792, v2", f"v_lshrrev_b32 v3, 5, v{vL}",
            "v_lshl_add_u32 v2, v3, 4, v2"] + (self.select_setup() if self.o["msum"] else []))

    @staticmethod
    def select_setup():
        L = [f"v_bfe_u32 v9, v{vL}, 2, 1", "v_xor_b32 v9, v9, v3", f"v_bfe_u32 v10, v{vL}, 4, 1",
             "v_or_b32 v9, v9, v10", "v_lshlrev_b32 v9, 2, v9", f"v_bfe_u32 v10, v{vL}, 3, 1",
             "v_lshl_add_u32 v9, v10, 1, v9", f"v_bfe_u32 v10, v{vL}, 1, 1", "v_add_u32 v9, v9, v10",
             f"v_and_b32 v10, 1, v{vL}", "v_lshlrev_b32 v10, 4, v10", "v_mov_b32 v11, 0x3f80",
             "v_lshlrev_b32 v10, v10, v11"]
        for k in range(4):
            L += [f"v_cmp_eq_u32 vcc, {k}, v9", f"v_cndmask_b32 v{vSEL+k}, 0, v10, vcc"]
        return L

    def handoff(self):
        p, g = self.p, self.tag
        p(f"v_cmp_eq_u32 vcc, 1, v{vRDY}")
        p("s_mov_b32 s5, 100000")
        p("s_mov_b32 s4, 0xffff")
        p("s_waitcnt vmcnt(0)")
        p(f"s_cbranch_vccnz L_go{g}")
        p(f"L_ready{g}:")
        p(f"buffer_load_dwordx4 {vr(vRDY,4)}, v7, {srd(sDBG)}, s{sDO} offen sc0 sc1")
        p("s_sub_u32 s5, s5, 1")
        p("s_cmp_eq_u32 s5, 0")
        p("s_waitcnt vmcnt(0)")
        p(f"s_cbranch_scc1 L_go{g}")
        p(f"v_and_b32 v{vRDY}, v{vRDY}, v{vRDY+1}")
        p(f"v_and_b32 v{vRDY+2}, v{vRDY+2}, v{vRDY+3}")
        p(f"v_and_b32 v{vRDY}, v{vRDY}, v{vRDY+2}")
        p(f"v_cmp_eq_u32 vcc, 1, v{vRDY}")
        p(f"s_cbranch_vccz L_ready{g}")
        p(f"L_go{g}:")
        if self.o["aligned"]:
            p(f"s_cmp_eq_u32 s{sW}, 3")
            p("s_cselect_b32 exec_lo, 0xff, s4")
            p("s_mov_b32 exec_hi, 0")
        else:
            p("s_mov_b64 exec, 0x3fff")
        p(f"buffer_atomic_add v5, v{vFL}, {srd(sWS)}, s3 offen sc1")
        p("s_mov_b64 exec, -1")

    def poll(self):
        p, g, d = self.p, self.tag, self.o["poll_depth"]
        if self.o.get("spoll"):
            p(f"s_add_u32 s{sT0}, s{sWS}, s{sINB}")
            p(f"s_addc_u32 s{sT1}, s{sWS+1}, 0")
            p("s_mov_b32 s5, 20000")
            p(f"L_poll{g}:")
            p("s_mov_b32 s4, 0")
            p(f"s_atomic_add s4, s[{sT0}:{sT1}], 0 glc")
            p("s_sub_u32 s5, s5, 1")
            p("s_cmp_eq_u32 s5, 0")
            p("s_waitcnt lgkmcnt(0)")
            p(f"s_cbranch_scc1 L_polled{g}")
            p("s_cmp_lg_u32 s4, 16")
            p(f"s_cbranch_scc1 L_poll{g}")
            p(f"L_polled{g}:")
            return
        regs = (3, 9, 10, 11)[:d]
        p("s_mov_b32 s5, 100000")
        p("s_mov_b64 exec, 1")

        def ask(r):
            p(f"v_mov_b32 v{r}, 0")
            p(f"buffer_atomic_add v{r}, v7, {srd(sWS)}, s{sINB} offen sc0 sc1", hidden=True)
        for r in regs[1:]:
            ask(r)
            for _ in range(self.o["poll_gap"]):
                p("s_nop 15")
        p(f"L_poll{g}:")
        for k in range(d):
            ask(regs[k])
            p(f"s_waitcnt vmcnt({d-1})")
            p(f"v_cmp_eq_u32 vcc, 16, v{regs[(k + 1) % d]}")
            p(f"s_cbranch_vccnz L_polled{g}")
        p("s_sub_u32 s5, s5, 1")
        p("s_cmp_lg_u32 s5, 0")
        p(f"s_cbranch_scc1 L_poll{g}")
        p(f"L_polled{g}:")
        p("s_mov_b64 exec, -1")

    def gather(self):
        p, g = self.p, self.tag
        p("s_mov_b32 s5, 100000")
        p(f"s_mov_b32 s{sT0}, 0")
        p(f"s_mov_b32 s{sSO}, {self.o['early']}")
        p(f"L_poll{g}:")
        p("s_mov_b64 exec, 1")
        p("v_mov_b32 v3, 0")
        p(f"buffer_atomic_add v3, v7, {srd(sWS)}, s{sINB} offen sc0 sc1", hidden=True)
        p("s_mov_b64 exec, -1")
        p("s_sub_u32 s5, s5, 1")
        p("s_cmp_eq_u32 s5, 0")
        p("s_waitcnt vmcnt(0)")
        p(f"s_cbranch_scc1 L_polled{g}")
        p("v_readfirstlane_b32 s4, v3")
        p("s_cmp_eq_u32 s4, 0xffff")
        p(f"s_cbranch_scc1 L_take{g}")
        p(f"s_cmp_eq_u32 s{sSO}, 0")
        p(f"s_cbranch_scc1 L_poll{g}")
        p(f"s_andn2_b32 s{sT1}, s4, s{sT0}")
        p(f"s_bcnt1_i32_b32 s{sT1}, s{sT1}")
        p(f"s_cmp_lt_u32 s{sT1}, {self.o['early_min']}")
        p(f"s_cbranch_scc1 L_poll{g}")
        p(f"s_sub_u32 s{sSO}, s{sSO}, 1")
        p(f"L_take{g}:")
        p(f"s_andn2_b32 s{sT1}, s4, s{sT0}")
        p(f"s_mov_b32 s{sT0}, s4")
        for i in range(16):
            p(f"s_bitcmp0_b32 s{sT1}, {i}")
            p(f"s_cbranch_scc1 L_skip{g}_{i}")
            p(f"s_add_u32 s4, s6, {2048*i}")
            p(f"buffer_load_dwordx4 {vr(64+4*i,4)}, v{vLIN}, {srd(sWS)}, s4 offen{fl(self.o['ld_fl'])}", hidden=True)
            p(f"L_skip{g}_{i}:")
        p(f"s_cmp_lg_u32 s{sT0}, 0xffff")
        p(f"s_cbranch_scc1 L_poll{g}")
        p(f"L_polled{g}:")
        p("s_waitcnt vmcnt(0)")

    def reduce(self):
        p = self.p
        D, A, T = 64, 48, 56
        if self.o.get("fakehalf"):
            p("s_bitset0_b32 s6, 10")
            p(f"s_lshl_b32 s4, s{sT2}, 14")
            p("s_add_u32 s6, s6, s4")
        for i in range(0 if self.o["early"] else 8 if self.o.get("fakehalf") else 16):
            if self.o["headmajor"]:
                p(f"buffer_load_dwordx4 {vr(D+4*i,4)}, v{vLIN}, {srd(sWS)}, s6 offen{fl(self.o['ld_fl'])}")
                p("s_add_u32 s6, s6, 57344")
                continue
            off = " offset:2048" if i % 2 else ""
            p(f"buffer_load_dwordx4 {vr(D+4*i,4)}, v{vLIN}, {srd(sWS)}, s6 offen{off}{fl(self.o['ld_fl'])}")
            if i % 2 and i < 15:
                p("s_addk_i32 s6, 4096")
        if self.o["msum"]:
            for i in range(16):
                p(f"{MF} {vr(ACC,16)}, {vr(vSEL,4)}, {vr(D+4*i,4)}, {vr(ACC,16) if i else 0}")
            for j in range(4):
                p(f"v_cvt_pk_bf16_f32 v{T+j}, v{ACC+2*j}, v{ACC+2*j+1}")
            p(f"buffer_store_dwordx4 {vr(T,4)}, v2, {srd(sOUT)}, s7 offen{fl(self.o.get('out_fl', ''))}")
            return
        p("s_mov_b32 s4, 0xffff0000")
        for i in range(8 if self.o.get("fakehalf") else 16):
            for j in range(4):
                dst = A + 2 * j if i == 0 else T + 2 * j
                p(f"v_lshlrev_b32 v{dst}, 16, v{D+4*i+j}")
                p(f"v_and_b32 v{dst+1}, s4, v{D+4*i+j}")
            if i:
                for j in range(4):
                    p(f"v_pk_add_f32 {vr(A+2*j,2)}, {vr(A+2*j,2)}, {vr(T+2*j,2)}")
        for j in range(4):
            p(f"v_cvt_pk_bf16_f32 v{T+j}, v{A+2*j}, v{A+2*j+1}")
        p(f"buffer_store_dwordx4 {vr(T,4)}, v2, {srd(sOUT)}, s7 offen")

    def dump_stamps(self):
        p = self.p
        if not self.o["stamps"]:
            return
        p("s_waitcnt vmcnt(0)")
        self.stamp("end")
        p("s_lshl_b32 s3, s2, 2")
        p(f"s_add_u32 s3, s3, s{sW}")
        if self.o.get("trace"):
            p("s_lshl_b32 s4, s3, 8")
            p("s_add_u32 s4, s4, 0x40000")
            p(f"v_lshlrev_b32 v2, 2, v{vL}")
            p(f"buffer_store_dword v0, v2, {srd(sWS)}, s4 offen")
        p("s_lshl_b32 s3, s3, 6")
        p("v_mov_b32 v2, 0")
        p("s_mov_b64 exec, 1")
        for k in range(self.nstamp):
            p(f"v_mov_b32 v3, s{sST + k}")
            p(f"buffer_store_dword v3, v2, {srd(sWS)}, s3 offen offset:{4*k}")

    def body(self):
        p, o, sc, g = self.p, self.o, self.sc, self.tag
        las = o["la"] if isinstance(o["la"], (tuple, list)) else (o["la"],) * 4
        o["la"] = las[0]
        self.prologue()
        p("; phase 1")
        pend = self.run_phase(sc["ph1"], self.store_setup(), 8,
                              before=lambda u: [lambda: p("s_barrier")] if u == "Q9" else [])
        assert not self.fillq
        qw = self.last_window(pend, self.all_dma(min(o["la"], o["kcap2"])), lambda j, q: (vWR, (j * 2 + q) * 1024))
        self.stamp()
        p("; phase 2")
        o["la"] = las[1]
        cur = 160 - self.own
        self.bufs, self.buf = (cur, cur + 16), 0
        left = {t: 4 for t in range(4)}
        have = {0}
        more = [self.one_more() for _ in range(o["more1"])]

        def need_q(u):
            if u[0] == "W":
                return []
            i = int(u[1:]) % 4
            if i in have:
                return []
            L = []
            if len(have) == 1:
                L.append(lambda: p("s_barrier", after=qw))
            have.add(i)
            L += self.lines([f"ds_read_b128 {ar((i*8 + k)*4, 4)}, v{vQA+i-1} offset:{k*1024}" for k in range(8)])
            return L

        def tile_done(u):
            if u[0] == "W":
                return []
            t = int(u[1:]) // 4
            left[t] -= 1
            return self.softmax_tile(t) if left[t] == 0 else []
        pend = self.run_phase(sc["ph2"], (), o["fill_per"], after=tile_done, before=need_q)
        take, rest = self.fillq[:o["fill_per"]], self.fillq[o["fill_per"]:]
        self.window(pend, self.all_dma(), [], take)
        self.stamp()
        last = [t for t in left if left[t] == 1]
        assert len(last) == 1
        pw = []
        L = rest + self.softmax_tile(last[0], True) + self.softmax_combine() + \
            self.publish_p(0, pw, True) + self.publish_p(1, pw, True)
        self.spread(L, [self.stage(u) for u in sc["mid2"]] + [self.one_more() for _ in range(o["more2"])])
        p("s_barrier", after=pw)
        self.stamp()
        p("; phase 3")
        o["la"] = las[2]
        self.bufs, self.buf = (64, 96), 0
        pw = []
        setup = ["v_mov_b32 v2, 0", f"buffer_load_dwordx4 {vr(vRDY,4)}, v2, {srd(sDBG)}, s{sDO} offen{fl(o['rdy_fl'])}",
                 f"s_mul_i32 s3, s{sT2}, {0 if o['aligned'] else 1024}", f"v_add_u32 v{vWA}, s3, v{vWR}", f"v_xor_b32 v{vWB}, 0x400, v{vWA}"]
        if o.get("tlb"):
            setup += [f"s_mul_i32 s4, s{sB}, {64*1792}", f"buffer_load_dword v3, v2, {srd(sOUT)}, s4 offen{fl(o['tlb'] if o['tlb'] != True else '')}",
                      f"s_mul_i32 s4, s{sGRP}, {GRP}", f"s_add_u32 s4, s4, {PBASE - 128}",
                      f"buffer_load_dword v5, v2, {srd(sWS)}, s4 offen nt",
                      f"s_add_u32 s4, s4, {GRP}", f"buffer_load_dword v7, v2, {srd(sWS)}, s4 offen nt"]
        for j in range(3 if o["ownfirst"] else 0):
            setup += [f"v_add_u32 v{vQA+j}, s3, v{vQA+j}", f"v_xor_b32 v{vQB+j}, 0x400, v{vQA+j}"]
        fill = self.publish_p(2, pw, False) + self.publish_p(3, pw, False) + self.lines(setup)

        def p_ready(u):
            if u != "V8":
                return []
            L, self.fillq = self.fillq, []
            return L + [lambda: p("s_barrier", after=pw + self.side["V7"])]
        pend = self.run_phase(sc["ph3"], fill, o["fill3"], before=p_ready)
        o["la"] = las[3]
        self.stamp()
        ow = self.last_window(pend, self.all_dma(o["lastla"]), lambda j, q: (vWB if q else vWA, j * 2048))
        for f in self.all_dma(o["lastla2"]):
            f()
        self.stamp()
        p("; phase 4")
        (self.out_proj8 if o["aligned"] else self.out_proj)(sc["ph4"], ow, self.tail_setup())
        self.stamp()
        self.handoff()
        self.stamp()
        if o["stamps"]:
            p(f"s_mov_b32 s{sST + self.nstamp}, s100")
        p(f"s_cmp_ge_u32 s{sJ}, 14")
        p(f"s_cbranch_scc1 L_fin{g}")
        if o["early"]:
            self.gather()
        else:
            self.poll()
        self.stamp()
        self.reduce()
        p(f"L_fin{g}:")
        self.dump_stamps()
        p("s_endpgm")
        if o.get("fake16"):
            out, cnt, ph = [], {}, 0
            for i in self.p.ins:
                if i.text.startswith("; phase"):
                    ph = i.text.split()[-1]
                if i.kind == "mfma" and ph in o["fake16"]:
                    m = re.match(r"\S+ v\[(\d+):\d+\], (\S+), (\S+), (\S+)", i.text)
                    a0 = int(m.group(1))
                    if m.group(4) == "0":
                        cnt[a0] = 0
                    for h in range(2):
                        n = cnt[a0]
                        a = a0 + 4 * (n % 4)
                        x, y = (m.group(2), m.group(3)) if h == 0 else (m.group(3), m.group(2))
                        out.append(Ins(f"v_mfma_f32_16x16x32_bf16 {vr(a,4)}, {x}, {y}, {'0' if n < 4 else vr(a,4)}"))
                        cnt[a0] += 1
                else:
                    out.append(i)
            self.p.ins = out
        if o.get("drop"):
            out, ph, n = [], "0", 0
            for i in self.p.ins:
                if i.text.startswith("; phase"):
                    ph = i.text.split()[-1]
                d = o["drop"]
                if i.kind == "dma" and d in ("W", "Q", "X") and srd({"W": sO, "Q": sQ, "X": sX}[d]) in i.text:
                    continue
                if i.kind == "dma" and d == "W3" and srd(sO) in i.text and "offset:3072" in i.text:
                    continue
                if i.kind == "mfma" and d.startswith("M") and ph in d:
                    n += 1
                    if "h" not in d or n % 2:
                        continue
                out.append(i)
            self.p.ins = out
        if o.get("fake"):
            self.p.ins = [i for i in self.p.ins if i.kind != {"nodma": "dma", "nomfma": "mfma"}[o["fake"]]]
        return p.finalize()


DOC = """
;
; One workgroup (4 waves, 512 registers each) per (branch, batch, head); id = branch*128 + batch*16 + (head&1)*8 + head/2.
;   phase 4  partial^T = Wo^T O^T    bf16 partial sums go to d_ws; 14 workgroups per (branch, batch) add the 16 heads
"""
NSTAMP = 0
ORDERS = []


def build(**kw):
    global NSTAMP
    ORDERS.clear()
    ref = open(f"cdna_kernels/{NAME}.s.ref").read().splitlines() if kw.pop("header", True) else []
    head = [l for l in ref if l.startswith(";") and "@launch" not in l and "Override" not in l
            and "grid=ceil" not in l]
    o = dict(DEFAULT, **kw)
    k1 = NAME + "_kernel"
    common, body = None, ""
    for i, spec in enumerate(o["groups"]):
        kc = dict(kw)
        if not isinstance(spec, str):
            kc.update(spec[1])
            spec = spec[0]
        g = Gen(schedule(spec, o["nmid"], kc.get("tper", o["tper"])), str(i), **kc)
        pre, post = g.body().split("    " + SPLIT + "\n")
        assert common in (None, pre)
        common = pre
        body += ".p2align 6\n" + post
        NSTAMP = g.nstamp if o["stamps"] else 0
        ORDERS.append(g.order)
    head.append("; @launch grid=(256,1,1) block=(256,1,1) lds=163840")
    head += DOC.strip().splitlines()
    return "\n".join(head) + f"""
.amdgcn_target "amdgcn-amd-amdhsa--gfx950"
.text
.globl {k1}
.p2align 8
.type {k1},@function
{k1}:
{common}{body}L_codeend:
.section .rodata,"a"
.p2align 6
.amdhsa_kernel {k1}
  .amdhsa_next_free_vgpr 512
  .amdhsa_next_free_sgpr 102
  .amdhsa_accum_offset 256
  .amdhsa_group_segment_fixed_size 0
  .amdhsa_kernarg_size 104
  .amdhsa_user_sgpr_count 2
  .amdhsa_user_sgpr_kernarg_segment_ptr 1
  .amdhsa_system_sgpr_workgroup_id_x 1
.end_amdhsa_kernel
"""


if __name__ == "__main__":
    kw = {}
    out = sys.argv[1]
    for a in sys.argv[2:]:
        k, v = a.split("=", 1)
        try:
            kw[k] = eval(v)
        except (NameError, SyntaxError):
            kw[k] = v
    open(out, "w").write(build(**kw))
```

```python
import ast, math, re, struct, sys
from asmlib import Prog, Ins

NAME = "concat_heads__gqa_block_cached__mha_block_cached__near_ridge"
SH, RING, RSZ, NSLOT = 0, 65536, 24576, 6
XPOS = (0, 2, 4, 6, 1, 3, 5)
PBASE = 0x100000
FBASE = 0x10000
GRP = 917504

sX, sK, sV, sQ, sO, sWS, sOUT, sDBG = 8, 12, 16, 20, 24, 28, 32, 36
sW, sBR, sH, sB, sRING, sSO, sC, sGRP, sT0, sT1, sT2, sJ = 40, 41, 42, 43, 44, 45, 46, 47, 48, 49, 50, 51
sPT = 52
sINB, sDO, sXW = 59, 60, 61
sROT = 62
sW128, sCLS, sVX = 69, 84, 85
sST = 70
vL, vFL, vIW, vIR = 1, 4, 6, 8
vDX, vDQ, vDK, vDV, vDO = 8, 9, 13, 17, 21
vRX, vRQ, vRK, vRV, vRO = 25, 29, 31, 35, 37
vLIN, vWR, vPA, vQA = 41, 42, 43, 45
vQB, vWA, vWB = 13, 16, 12
vMC, vLS = 48, 56
vRDY, vSEL, vKEEP = 28, 16, 20
ACC = 128
MF = "v_mfma_f32_32x32x16_bf16"
SPLIT = "; class code"


def f32(x):
    return "0x%08x" % struct.unpack("<I", struct.pack("<f", x))[0]


def vr(a, n):
    return f"v[{a}:{a+n-1}]" if n > 1 else f"v{a}"


def ar(a, n):
    return f"a[{a}:{a+n-1}]" if n > 1 else f"a{a}"


def srd(b):
    return f"s[{b}:{b+3}]"


def fl(x):
    return f" {x}" if x else ""


def R(c, lo, hi):
    return [f"{c}{i}" for i in range(lo, hi)]


def cls(k, w, v, **kw):
    head = "Q14 K16" if k == 0 else f"Q2 K{k} Q12 K{16-k}"
    mid = f"W{w} V16" if (v == 0 or w == 2) else f"W2 V{v} W{w-2} V{16-v}"
    tail = f" W{16-w}" if w < 16 else ""
    return (f"{head} {mid}{tail}", dict(dict(ksplit=max(8, 16 - w)), **kw))


DEFAULT = dict(
    nt_kv="nt", nt_w="", nt_x="", stamps=False, st_fl="sc0 sc1", ld_fl="sc0 sc1",
    groups=(cls(0, 3, 0), cls(7, 6, 9), cls(3, 3, 0), cls(11, 6, 0)), gsel="bbr",
    fill_per=40, fill3=14, nmid=12, la=(4, 4, 4, 4), ksplit=8, more1=2, more2=1,
    poll_sleep=0, codepf=True, tper=2, hold=3, win=(0, 8, 1, 7), xrot=False, obar=2, xorder='cb', xsplit=11, kick=True, ownfirst=False, headmajor=False, rdy_fl='sc1', msum=True, aligned=False, signal=(3, 5, 7), keep=False, fifo=0, splitnop=0, pfpos='top', touch='', touch_fl='', early=0, early_min=6, kcap=9, kcap2=9, xcdrot=0, poll_depth=1, poll_gap=0, lastla=1, lastla2=3,
)


def schedule(spec, nmid, tper):
    issue = []
    cnt = dict(Q=0, K=0, V=0, W=0)
    for tok in spec.split():
        c, n = tok[0], int(tok[1:])
        issue += R(c, cnt[c], cnt[c] + n)
        cnt[c] += n
    assert cnt == dict(Q=14, K=16, V=16, W=16), cnt
    assert issue[:2] == ["Q0", "Q1"]
    iq, ik = issue.index("Q13"), issue.index("K15")
    ph1 = issue[:iq + 1]
    assert all(u[0] in "QK" for u in ph1)
    npre = sum(u[0] == "K" for u in ph1)
    assert npre <= 14
    rest = issue[iq + 1:ik + 1]
    assert all(u[0] in "KW" for u in rest)
    T = R("T", 0, npre)
    ph2 = [u for u in ("T0", "T4") if u in T]
    if npre > 10:
        ph2 += ["T1", "T2", "T3"]
    T = [u for u in T if u not in ph2]
    shift = 4 if npre > 10 else 0
    for u in rest:
        if u[0] == "W":
            assert int(u[1:]) < 8
            while T and int(T[0][1:]) <= int(u[1:]) + shift + 1:
                ph2.append(T.pop(0))
            assert not ph2 or ph2[-1] != f"T{int(u[1:]) + shift}"
            ph2.append(u)
        else:
            ph2 += [u] + T[:tper]
            T = T[tper:]
    ph2 += T
    after = issue[ik + 1:]
    mid2, held = [], 0
    for u in after:
        if u[0] == "V":
            held += 1
            if held > NSLOT - 4:
                break
        elif len(mid2) < nmid:
            mid2.append(u)
    ph3 = [u for u in after if u not in mid2]
    iv = ph3.index("V15")
    ph3, ph4 = ph3[:iv + 1], ph3[iv + 1:]
    return dict(issue=issue, ph1=ph1, ph2=ph2, mid2=mid2, ph3=ph3, ph4=ph4, npre=npre)


class Gen:
    def __init__(self, sched, tag, **kw):
        self.o = dict(DEFAULT)
        self.o.update(kw)
        self.p = Prog()
        self.sc = sched
        self.tag = tag
        self.issue_q = list(sched["issue"])
        self.free = [(s, []) for s in range(NSLOT)]
        self.unit = {}
        self.side = {}
        self.eaten, self.started = set(), set()
        self.order = []
        self.nstamp = 1
        self.bufs, self.buf = (64, 96), 0

    def lines(self, texts):
        return [(lambda t=t: self.p(t)) for t in texts]

    def stamp(self, name=""):
        if self.o["stamps"] and (self.o["stamps"] != "ends" or name == "end"):
            self.p(("s_memtime" if self.o["stamps"] == "cyc" else "s_memrealtime") + " s[100:101]")
            self.p("s_waitcnt lgkmcnt(0)")
            self.p(f"s_mov_b32 s{sST + self.nstamp}, s100")
            self.nstamp += 1
            assert self.nstamp <= 14

    def dma_items(self):
        name = self.issue_q.pop(0)
        slot, reads = self.free.pop(0)
        kind, u = name[0], int(name[1:])
        r, v, nt = {"Q": (sQ, vDQ, self.o["nt_w"]), "K": (sK, vDK, self.o.get("nt_k", self.o["nt_kv"])),
                    "V": (sV, vDV, self.o.get("nt_v", self.o["nt_kv"])), "W": (sO, vDO, self.o["nt_w"])}[kind]
        if self.o.get("split") and kind in self.o["split"]:
            nt = "" if (u // 4) % 2 == 0 else self.o.get("split_nt", "nt")
        dm = []
        self.unit[name] = (slot, dm)
        p = self.p

        def head():
            p(f"s_add_u32 m0, s{sRING}, {slot*4096}")
            if kind == "Q":
                p(f"s_lshl_b32 s{sSO}, s{sROT + u // 2}, 12")
                if u % 2:
                    p(f"s_bitset1_b32 s{sSO}, 18")
            elif kind == "W":
                p(f"s_xor_b32 s{sSO}, s{sXW}, {u}")
                p(f"s_mulk_i32 s{sSO}, {16*896}")
            elif kind == "K":
                p(f"s_xor_b32 s{sSO}, s{sW128}, {(u // 4) * 65536 + (u % 4) * 128}")
            else:
                p(f"s_xor_b32 s{sSO}, s{sVX}, {u * 16384}")

        def piece(j):
            def f():
                if j == 0:
                    head()
                off = f" offset:{1024*j}" if j else ""
                dm.append(p(f"buffer_load_dwordx4 v{v+j}, {srd(r)}, s{sSO} offen{off}{fl(nt)} lds",
                            after=reads if j == 0 else ()))
            return f
        return [piece(j) for j in range(4)]

    def all_dma(self, la=None):
        la = min(la or self.o["la"], NSLOT)
        out = []
        while self.issue_q and NSLOT - len(self.free) < la:
            out += self.dma_items()
        return out

    def one_more(self):
        def f():
            if self.issue_q and self.free:
                for g in self.dma_items():
                    g()
        return f

    def kreg(self, u, j):
        if self.sc["npre"] > 10:
            if u < 4:
                return vr(192 + 16 * u + 4 * j, 4)
            u -= 4
        return ar(self.wreg(u) + 4 * j, 4)

    @staticmethod
    def wreg(u):
        return 128 + 16 * u if u < 8 else 16 * (u - 8)

    def unit_reads(self, name, base):
        kind, u = name[0], int(name[1:])
        p = self.p
        items, done = [], []
        if kind == "T":
            return items, done
        slot, dm = self.unit[name]
        so = slot * 4096
        sd = self.side.setdefault(name, [])

        def ring(text, pieces):
            items.append(lambda: done.append(p(text, after=[dm[j] for j in pieces])))

        def side(text):
            items.append(lambda: sd.append(p(text)))
        if self.o.get("trace"):
            def mark():
                p("s_nop 0", after=list(dm))
                p("s_memrealtime s[100:101]")
                p("s_waitcnt lgkmcnt(0)")
                p(f"v_writelane_b32 v0, s100, {len(self.order)}")
                self.order.append(name)
            items.append(mark)
        if kind in "QV":
            for ks in range(2):
                for mt in range(2):
                    for part in range(2):
                        d = base + (ks * 2 + mt) * 4 + part * 2
                        if kind == "Q":
                            ring(f"ds_read_b64_tr_b16 {vr(d,2)}, v{vRQ+mt} offset:{so + ks*2048 + part*512}",
                                 (2 * ks, 2 * ks + 1))
                        else:
                            ring(f"ds_read_b64_tr_b16 {vr(d,2)}, v{vRV+mt} offset:{so + ks*2048 + part*1024}",
                                 (2 * ks + part,))
                    qt = mt
                    d = base + 16 + (ks * 2 + qt) * 4
                    if kind == "Q":
                        s = 2 * u + ks
                        side(f"ds_read_b128 {vr(d,4)}, v{vRX + s % 4} offset:{XPOS[s // 4]*8192 + qt*4096}")
                    else:
                        side(f"ds_read_b128 {vr(d,4)}, v{vPA+qt} offset:{(u % 4)*16384 + ((u // 4)*2 + ks)*2048}")
        elif kind == "K":
            for j in range(4):
                d = self.kreg(u, j) if u < self.sc["npre"] else vr(base + 4 * j, 4)
                ring(f"ds_read_b128 {d}, v{vRK+j} offset:{so}", range(4))
        elif kind == "W":
            for part in range(2):
                for t in range(4):
                    ring(f"ds_read_b64_tr_b16 {ar(self.wreg(u) + t*4 + part*2, 2)}, v{vRO+t} "
                         f"offset:{so + part*1024}", (part, 2 + part))
        return items, done

    def unit_mfmas(self, name, base):
        kind, u = name[0], int(name[1:])
        out = []
        if kind in "QV":
            order = [(ks, mt, qt) for ks in range(2) for mt, qt in ((0, 0), (1, 0), (0, 1), (1, 1))]
            if name in ("Q13", "V15"):
                order = [(ks, mt, qt) for mt in range(2) for qt in range(2) for ks in range(2)]
            for ks, mt, qt in order:
                acc = vr(ACC + (mt * 2 + qt) * 16, 16)
                c = "0" if (u == 0 and ks == 0) else acc
                out.append(f"{MF} {acc}, {vr(base + (ks*2+mt)*4, 4)}, {vr(base + 16 + (ks*2+qt)*4, 4)}, {c}")
        elif kind == "T" or (kind == "K" and u >= self.sc["npre"]):
            t, i = u // 4, u % 4
            first = t not in self.started
            self.started.add(t)
            for j in range(4):
                a = self.kreg(u, j) if kind == "T" else vr(base + 4 * j, 4)
                for qt in range(2):
                    acc = vr(ACC + (t * 2 + qt) * 16, 16)
                    b = vr(self.own + (j * 2 + qt) * 4, 4) if i == 0 else ar(((i * 4 + j) * 2 + qt) * 4, 4)
                    out.append(f"{MF} {acc}, {a}, {b}, {'0' if (first and j == 0) else acc}")
        return out

    def window(self, mfmas, early, late, fill):
        p = self.p
        n = len(mfmas)
        if n == 0:
            for f in fill + late + early:
                f()
            return
        gaps = [[] for _ in range(n)]
        e0, e1, l0, l1 = self.o["win"]
        e1, l1 = min(e1, n), min(l1, n - 1)
        for k, f in enumerate(early):
            gaps[e0 + k * (e1 - e0) // len(early)].append(f)
        for k, f in enumerate(late):
            gaps[l0 + k * (l1 - l0) // len(late)].append(f)
        for k, f in enumerate(fill):
            gaps[k * n // len(fill)].append(f)
        for m, g in zip(mfmas, gaps):
            p(m)
            for f in g:
                f()

    def release(self, nme, done):
        if nme[0] != "T":
            self.eaten.add(nme)
            self.free.append((self.unit[nme][0], done))

    def run_phase(self, units, fillq=(), per=0, after=None, before=None):
        pend, prev = [], None
        self.fillq = list(fillq)
        for nme in units:
            base = self.bufs[self.buf]
            mf = self.unit_mfmas(nme, base)
            if mf and nme[0] != "T":
                self.buf ^= 1
            la = self.o["la"] + (0 if pend else 1)
            if nme[0] == "V" and "V15" in self.unit:
                la = min(la, self.o["hold"])
            if nme[0] == "Q" and "Q13" in self.unit:
                la = min(la, 14 - int(nme[1:]) + self.o["kcap"])
            early = self.all_dma(la)
            if nme[0] != "T" and not self.unit[nme][1]:
                for f in early:
                    f()
                early = []
            late, done = self.unit_reads(nme, base)
            if before:
                late = before(nme) + late
            take, self.fillq = self.fillq[:per], self.fillq[per:]
            self.window(pend, early, late, take)
            if after and prev:
                self.fillq += after(prev)
            self.release(nme, done)
            pend, prev = mf, nme
        return pend

    def stage(self, nme):
        def f():
            held = sum(u[0] == "V" and u not in self.eaten for u in self.unit)
            early = self.all_dma(min(NSLOT, self.o["la"] + 1 + held))
            if not self.unit[nme][1]:
                for g in early:
                    g()
                early = []
            it, d = self.unit_reads(nme, 0)
            for g in it + early:
                g()
            self.release(nme, d)
        return f

    @staticmethod
    def spread(items, stages):
        n, k = len(stages), 0
        for i, f in enumerate(items):
            while k < n and (k + 0.5) * len(items) / n <= i:
                stages[k]()
                k += 1
            f()
        for g in stages[k:]:
            g()

    def last_window(self, mfmas, early, addr):
        p = self.p
        self.own = self.bufs[self.buf]
        w = []

        def pack(a):
            mt, q = a // 2, a % 2
            for ks in range(2):
                src = ACC + a * 16 + ks * 8
                d = self.own + ((2 * mt + ks) * 2 + q) * 4
                for k in range(4):
                    p(f"v_cvt_pk_bf16_f32 v{d+k}, v{src+2*k}, v{src+2*k+1}")
                reg, off = addr(2 * mt + ks, q)
                w.append(p(f"ds_write_b128 v{reg}, {vr(d,4)} offset:{off}"))
        early = list(early)
        for i, m in enumerate(mfmas):
            p(m)
            if i < 4:
                for f in early[i * len(early) // 4:(i + 1) * len(early) // 4]:
                    f()
            if i in (4, 6):
                pack((i - 4) // 2)
        pack(2)
        pack(3)
        return w

    def prologue(self):
        p, o = self.p, self.o
        ng = len(o["groups"])
        p("s_cmp_ge_u32 s2, 256")
        p("s_cbranch_scc1 L_exit")
        if o["stamps"]:
            p(("s_memtime" if o["stamps"] == "cyc" else "s_memrealtime") + f" s[{sST}:{sST+1}]")
        p(f"s_lshr_b32 s{sBR}, s2, 7")
        p(f"s_mul_i32 s5, s{sBR}, 40")
        p("s_add_u32 s6, s0, s5")
        p("s_addc_u32 s7, s1, 0")
        p("s_load_dwordx8 s[88:95], s[6:7], 0")
        if o["codepf"]:
            p("s_getpc_b64 s[14:15]")
            p("L_pc:")
            p("s_lshr_b32 s3, s2, 3")
            per = 5 * ng + 1
            p(f"s_mulk_i32 s3, {per}")
            p(f"v_min_u32 v5, {per - 1}, v0")
            p("v_add_u32 v5, s3, v5")
            p("v_min_u32 v5, (L_codeend-L_pc)/128-1, v5")
            p("v_lshlrev_b32 v5, 7, v5")
            p("global_load_dword v255, v5, s[14:15]", hidden=True)
        p(f"v_readfirstlane_b32 s{sW}, v0")
        p("v_lshrrev_b32 v6, 3, v0")
        p("v_lshrrev_b32 v5, 4, v0")
        p("v_xor_b32 v5, v5, v0")
        p("v_and_b32 v5, 7, v5")
        p("v_mul_u32_u24 v6, 56, v6")
        p(f"v_add_lshl_u32 v{vDX}, v5, v6, 4")
        p(f"s_bfe_u32 s{sB}, s2, 0x30004")
        p(f"s_cmp_eq_u32 s{sB}, 7")
        p(f"s_cselect_b32 s{sROT}, 3, s{sB}")
        p(f"s_lshl_b32 s{sROT}, s{sROT}, 7")
        p(f"s_lshl_b32 s{sT1}, s{sW}, 4")
        p(f"s_mov_b32 s{sX+2}, 57344")
        p(f"s_mul_i32 s{sT0}, s{sB}, s{sX+2}")
        p(f"s_mov_b32 s{sX+3}, 0x20000")
        p(f"s_mov_b32 m0, s{sT1}")
        p("s_waitcnt lgkmcnt(0)")
        if o.get("fine"):
            self.stamp()
        p(f"s_add_u32 s{sX}, s88, s{sT0}")
        p(f"s_addc_u32 s{sX+1}, s89, 0")
        self.xd = []
        seq = [(h, cb) for cb in range(7) for h in range(2)]
        for n, (half, cb) in enumerate(seq):
            if n:
                p(f"s_add_u32 m0, s{sT1}, {SH + XPOS[cb]*8192 + half*4096}")
            if n == 1:
                p(f"v_add_u32 v7, {32*896}, v{vDX}")
            elif half == 0 and cb:
                p(f"s_cmpk_lg_u32 s{sROT+cb}, 896")
                p(f"s_cselect_b32 s{sROT+cb}, s{sROT+cb}, 0")
            if half == 1 and cb < 6:
                p(f"s_add_u32 s{sROT+cb+1}, s{sROT+cb}, 128")
            self.xd.append(p(f"buffer_load_dwordx4 v{7 if half else vDX}, {srd(sX)}, s{sROT+cb} "
                             f"offen{fl(o['nt_x'])} lds"))
            if n == 3:
                p("s_load_dwordx2 s[86:87], s[6:7], 32")
                p(f"s_load_dwordx2 s[{sWS}:{sWS+1}], s[0:1], 96")
                p("s_load_dwordx4 s[96:99], s[0:1], 80")
            if n == o["xsplit"]:
                p(f"s_lshr_b32 s{sW}, s{sW}, 6")
                p(f"v_and_b32 v{vL}, 63, v0")
                p(f"v_lshrrev_b32 v2, 3, v{vL}")
                p(f"v_and_b32 v3, 7, v{vL}")
                p(f"v_lshrrev_b32 v4, 4, v{vL}")
                p("s_bfe_u32 s4, s2, 0x10003")
                p(f"s_and_b32 s{sT2}, s{sW}, 1")
                p("s_and_b32 s3, s2, 7")
                p("s_lshl_b32 s3, s3, 1")
                p(f"s_add_u32 s{sH}, s3, s4")
                if ng > 1:
                    assert o["gsel"] == "bbr"
                    p(f"s_and_b32 s{sCLS}, s{sB}, {ng//2-1}")
                    p(f"s_lshl_b32 s{sCLS}, s{sCLS}, 1")
                    p(f"s_add_u32 s{sCLS}, s{sCLS}, s{sBR}")
                p(f"s_mul_i32 s{sRING}, s{sW}, {RSZ}")
                p(f"s_add_u32 s{sRING}, s{sRING}, {RING}")
                p("v_and_b32 v5, 1, v4")
                p("v_lshlrev_b32 v5, 2, v5")
                p("v_xor_b32 v5, v5, v3")
                p(f"s_lshl_b32 s{sW128}, s{sW}, 7")
                p(f"v_lshl_add_u32 v5, v5, 4, s{sW128}")
                if o.get("fakek"):
                    p(f"s_mov_b32 s{sW128}, 0")
                p(f"v_lshl_add_u32 v{vDQ}, v2, 13, v5")
                p(f"s_lshl_b32 s{sT0}, s{sB}, 6")
                p(f"v_xor_b32 v5, s{sT0}, v5")
                p(f"v_lshl_add_u32 v{vDV}, v2, 9, v5")
                for j in range(1, 4):
                    p(f"v_add_u32 v{vDQ+j}, {j*(65536-1024)}, v{vDQ}")
                p(f"s_lshl_b32 s{sT0}, s{sH}, 9")
                p(f"s_add_u32 s{sQ}, s94, s{sT0}")
                p(f"s_addc_u32 s{sQ+1}, s95, 0")
                p(f"s_sub_u32 s{sQ+2}, 3670016, s{sT0}")
                p(f"s_mov_b32 s{sQ+3}, 0x20000")
                p(f"s_lshl_b32 s{sGRP}, s{sBR}, 3")
                p(f"s_add_u32 s{sGRP}, s{sGRP}, s{sB}")
                p(f"s_mov_b32 s{sWS+2}, {PBASE + 16 * GRP}")
                p(f"s_mov_b32 s{sWS+3}, 0x20000")
                p(f"v_lshlrev_b32 v{vLIN}, 4, v{vL}")
                if o["touch"]:
                    p(f"s_mov_b32 s7, s{sT1}")
                    self.touch()
                    p(f"s_mov_b32 s{sT1}, s7")
        p("s_waitcnt lgkmcnt(0)")
        p(f"s_cmp_lg_u32 s{sH}, 15")
        p("s_cbranch_scc1 L_noclr")
        p(f"s_lshl_b32 s3, s{sGRP}, 2")
        p(f"s_add_u32 s3, s3, s{sW}")
        p("s_lshl_b32 s3, s3, 11")
        p(f"s_add_u32 s3, s3, {FBASE}")
        p(f"v_lshrrev_b32 v5, 2, v{vL}")
        p(f"v_and_b32 v6, 48, v{vLIN}")
        p("v_lshl_add_u32 v5, v5, 7, v6")
        for k in range(4):
            p(f"v_mov_b32 v{64+k}, 0")
        p(f"buffer_store_dwordx4 v[64:67], v5, {srd(sWS)}, s3 offen sc0 sc1", hidden=True)
        p("L_noclr:")
        for f in self.all_dma(2):
            f()
        if not o["touch"]:
            self.descriptors()
        p(f"s_lshl_b32 s{sDO}, s{sGRP}, 4")
        if o.get("tlb0"):
            p("v_mov_b32 v5, 0")
            for r in (sK, sV, sO):
                p(f"buffer_load_dword v254, v5, {srd(r)}, 0 offen nt", hidden=True)
        p(f"s_lshl_b32 s{sXW}, s{sW}, {1 if o['ownfirst'] and not o.get('fakew') else 31}")
        p(f"s_xor_b32 s{sXW}, s{sXW}, s{sB}")
        p(f"s_lshl_b32 s{sXW}, s{sXW}, 1")
        p(f"s_mov_b32 s{sC}, {f32(math.log2(math.e) / 16)}")
        p("v_xor_b32 v5, v3, v4")
        p(f"s_lshl_b32 s{sT0}, s{sW}, 14")
        p(f"v_lshl_add_u32 v5, v5, 4, s{sT0}")
        p(f"v_lshl_add_u32 v{vDK}, v2, 9, v5")
        p(f"v_xor_b32 v5, 64, v{vDK}")
        p(f"v_add_u32 v{vDK+1}, 3072, v5")
        p(f"v_add_u32 v{vDK+2}, 6144, v{vDK}")
        p(f"v_add_u32 v{vDK+3}, 9216, v5")
        for j in range(1, 4):
            p(f"v_add_u32 v{vDV+j}, {j*3072}, v{vDV}")
        p(f"v_add_u32 v{vWR}, s{sT0}, v{vLIN}")
        for j in range(1, 4):
            p(f"v_xor_b32 v{vQA+j-1}, {j*16384}, v{vWR}")
        p(f"s_add_u32 s{sT0}, s{sT0}, 8192")
        p(f"v_lshl_add_u32 v{vIR}, v{vL}, 3, s{sT0}")
        if o["aligned"]:
            p(f"v_bfe_u32 v5, v{vL}, 2, 2")
            p("v_xor_b32 v5, v5, v4")
            p(f"v_and_b32 v6, 48, v{vLIN}")
            p("v_lshl_add_u32 v6, v5, 6, v6")
            p(f"s_cmp_eq_u32 s{sW}, 3")
            p(f"s_cselect_b32 s{sT1}, 2, 0")
            p(f"v_and_b32 v5, s{sT1}, v5")
            p("v_lshl_add_u32 v5, v5, 29, v6")
            p("v_mul_u32_u24 v6, 896, v4")
            p(f"s_lshl_b32 s{sT0}, s{sW}, 8")
            p(f"v_add3_u32 v{vDO}, v5, v6, s{sT0}")
        else:
            p(f"v_bfe_u32 v5, v{vL}, 2, 2")
            p("v_xor_b32 v5, v5, v4")
            p(f"v_add_u32 v5, s{sT2}, v5")
            p("v_and_b32 v5, 3, v5")
            p(f"v_and_b32 v6, 48, v{vLIN}")
            p("v_lshl_add_u32 v5, v5, 6, v6")
            p("v_mul_u32_u24 v6, 896, v4")
            p(f"s_mul_i32 s{sT0}, s{sW}, 224")
            p(f"s_lshl_b32 s{sT1}, s{sT2}, 5")
            p(f"s_sub_u32 s{sT0}, s{sT0}, s{sT1}")
            p(f"v_add3_u32 v{vDO}, v5, v6, s{sT0}")
        for j in range(1, 4):
            p(f"v_add_u32 v{vDO+j}, {j*(3584-1024)}, v{vDO}")
        p(f"v_lshrrev_b32 v2, 5, v{vL}")
        p(f"v_bfe_u32 v3, v{vL}, 1, 3")
        p("v_xor_b32 v3, v3, v2")
        p(f"v_and_b32 v5, 31, v{vL}")
        p("v_lshlrev_b32 v5, 7, v5")
        p(f"v_lshl_add_u32 v{vRX}, v3, 4, v5")
        for j in range(1, 4):
            p(f"v_xor_b32 v{vRX+j}, {j*32}, v{vRX}")
        for j in range(4):
            p(f"v_add_u32 v{vRK+j}, s{sRING}, v{vRX+j}")
        p(f"v_and_b32 v3, 16, v{vLIN}")
        p(f"v_bfe_u32 v5, v{vL}, 1, 1")
        p("v_lshl_add_u32 v3, v5, 3, v3")
        p("v_and_b32 v5, 1, v4")
        p("v_lshl_add_u32 v3, v5, 5, v3")
        p(f"v_add_u32 v3, s{sRING}, v3")
        p(f"v_bfe_u32 v5, v{vL}, 2, 2")
        p(f"v_bfe_u32 v6, v{vL}, 3, 1")
        p("v_lshl_add_u32 v6, v6, 6, v3")
        p("v_lshl_add_u32 v6, v5, 7, v6")
        p(f"v_lshl_add_u32 v{vRQ}, v2, 10, v6")
        p(f"v_lshl_add_u32 v{vRV}, v2, 9, v6")
        p(f"v_xor_b32 v{vRQ+1}, 64, v{vRQ}")
        p(f"v_xor_b32 v{vRV+1}, 64, v{vRV}")
        p("v_mul_u32_u24 v6, 320, v5")
        p("v_add_u32 v6, v6, v3")
        p(f"v_lshl_add_u32 v{vRO}, v2, 11, v6")
        for t in range(1, 4):
            p(f"v_xor_b32 v{vRO+t}, {t*64}, v{vRO}")
        p(f"s_lshl_b32 s{sT1}, s{sT2}, {31 if o['aligned'] else 10}")
        p(f"s_and_b32 s{sT1}, s{sT1}, 0x400")
        p(f"v_add_u32 v{vPA}, s{sT1}, v{vLIN}")
        p(f"v_xor_b32 v{vPA+1}, 0x400, v{vPA}")
        p(f"s_lshl_b32 s{sT0}, s{sW}, 9")
        p(f"s_add_u32 s{sT0}, s{sT0}, 8192")
        p(f"v_lshl_add_u32 v{vIW}, v{vL}, 3, s{sT0}")
        for g in range(1, min(ng, 6)):
            p(f"s_cmp_eq_u32 s{sCLS}, {g}")
            p(f"s_cbranch_scc1 L_class{g}")
        if ng > 6:
            p(f"s_cmp_ge_u32 s{sCLS}, 6")
            p("s_cbranch_scc1 L_hop")
        p("s_branch L_class0")
        p("L_exit:")
        p("s_endpgm")
        p(SPLIT)
        p(f"L_class{self.tag}:")
        if o.get("split"):
            p(f"s_and_b32 s{sVX}, s{sH}, 1")
            p(f"s_lshl_b32 s{sVX}, s{sVX}, 16")
            p(f"s_or_b32 s{sW128}, s{sW128}, s{sVX}")
        else:
            p(f"s_mov_b32 s{sVX}, 0")
        p("s_barrier", after=self.xd)
        self.stamp()
        p(f"s_cmp_lg_u32 s{sH}, 15")
        p(f"s_cbranch_scc1 L_noset{self.tag}")
        p(f"s_lshl_b32 s3, s{sW}, 2")
        p(f"s_add_u32 s3, s3, s{sDO}")
        p("v_mov_b32 v2, 0")
        p("v_mov_b32 v3, 1")
        p("s_mov_b64 exec, 1")
        p(f"buffer_store_dword v3, v2, {srd(sDBG)}, s3 offen sc0 sc1", hidden=True)
        p("s_mov_b64 exec, -1")
        p(f"L_noset{self.tag}:")
        if o["kick"]:
            for f in self.all_dma():
                f()
        if o["codepf"] == "late":
            p("s_getpc_b64 s[6:7]")
            p(f"s_and_b32 s3, s{sB}, 6")
            p(f"s_and_b32 s4, s{sH}, 1")
            p("s_add_u32 s3, s3, s4")
            p("s_mulk_i32 s3, 20")
            p("v_min_u32 v5, 19, v0")
            p("v_add_u32 v5, s3, v5")
            p("v_min_u32 v5, 155, v5")
            p("v_lshlrev_b32 v5, 7, v5")
            p("global_load_dword v5, v5, s[6:7]")

    def descriptors(self):
        p, o = self.p, self.o
        p(f"s_lshl_b32 s{sT0}, s{sB}, 4")
        p(f"s_add_u32 s{sT0}, s{sT0}, s{sH}")
        p(f"s_xor_b32 s{sT1}, s{sBR}, 1")
        p(f"s_lshr_b32 s{sT0}, s{sT0}, s{sT1}")
        p(f"s_lshl_b32 s{sT0}, s{sT0}, 18")
        for r, src in ((sK, 90), (sV, 92)):
            p(f"s_add_u32 s{r}, s{src}, s{sT0}")
            p(f"s_addc_u32 s{r+1}, s{src+1}, 0")
            p(f"s_mov_b32 s{r+2}, 262144")
            p(f"s_mov_b32 s{r+3}, 0x20000")
        p(f"s_mul_i32 s{sT0}, s{sH}, 229376")
        p(f"s_add_u32 s{sO}, s86, s{sT0}")
        p(f"s_addc_u32 s{sO+1}, s87, 0")
        p(f"s_mov_b32 s{sO+2}, 229376")
        p(f"s_mov_b32 s{sO+3}, 0x20000")
        for r, src, n in ((sOUT, 96, 917504), (sDBG, 98, 256)):
            p(f"s_mov_b32 s{r}, s{src}")
            p(f"s_mov_b32 s{r+1}, s{src+1}")
            p(f"s_mov_b32 s{r+2}, {n}")
            p(f"s_mov_b32 s{r+3}, 0x20000")

    def touch(self):
        p, o = self.p, self.o
        self.descriptors()
        p("v_mov_b32 v5, 0")
        p("s_mov_b64 exec, 1")
        for ch in o["touch"]:
            r, so = {"k": (sK, "0"), "v": (sV, "0"), "w": (sO, "0"), "q": (sQ, "s3"), "o": (sOUT, "s3"),
                     "p": (sWS, "s3"), "d": (sDBG, "0"), "f": (sWS, "s3")}[ch]
            if ch == "q":
                p("s_mov_b32 s3, 0x300000")
            elif ch == "o":
                p(f"s_mul_i32 s3, s{sB}, {64*1792}")
            elif ch == "p":
                p(f"s_mul_i32 s3, s{sGRP}, {GRP}")
                p(f"s_add_u32 s3, s3, {PBASE + GRP // 2}")
            elif ch == "f":
                p(f"s_mov_b32 s3, {FBASE - 128}")
            p(f"buffer_load_dword v253, v5, {srd(r)}, {so} offen{fl(o['touch_fl'])}", hidden=True)
        p("s_mov_b64 exec, -1")

    def class_prefetch(self):
        p, o = self.p, self.o
        ng = len(o["groups"])
        if ng > 1:
            if o["gsel"] == "b":
                p(f"s_and_b32 s{sCLS}, s{sB}, {ng-1}")
            elif o["gsel"] == "br":
                p(f"s_mov_b32 s{sCLS}, s{sBR}")
            else:
                p(f"s_and_b32 s{sCLS}, s{sB}, {ng//2-1}")
                p(f"s_lshl_b32 s{sCLS}, s{sCLS}, 1")
                p(f"s_add_u32 s{sCLS}, s{sCLS}, s{sBR}")
        if o["codepf"] and o["codepf"] != "late":
            p("s_getpc_b64 s[14:15]")
            p("L_pc:")
            p("s_mov_b32 s3, L_class0-L_pc")
            for g in range(1, ng):
                p(f"s_cmp_eq_u32 s{sCLS}, {g}")
                p(f"s_cselect_b32 s3, L_class{g}-L_pc, s3")
            p("s_add_u32 s14, s14, s3")
            p("s_addc_u32 s15, s15, 0")
            if o["codepf"] == "full":
                p(f"v_min_u32 v5, (L_codeend-L_class{ng-1})/128-1, v0")
                p("v_lshlrev_b32 v5, 7, v5")
            else:
                p(f"s_and_b32 s3, s{sB}, 6")
                p("s_add_u32 s3, s3, s4")
                p("s_mulk_i32 s3, 20")
                p("v_min_u32 v5, 19, v0")
                p("v_add_u32 v5, s3, v5")
                p(f"v_min_u32 v5, (L_codeend-L_class{ng-1})/128-1, v5")
                p("v_lshlrev_b32 v5, 7, v5")
            p("global_load_dword v255, v5, s[14:15]", hidden=True)

    def store_setup(self):
        hm = self.o["headmajor"]
        if self.o["aligned"]:
            return self.lines(
                [f"s_mul_i32 s3, s{sGRP}, {GRP}", f"s_lshl_b32 s4, s{sH}, 11", "s_add_u32 s3, s3, s4",
                 f"s_lshl_b32 s4, s{sW}, 18", "s_add_u32 s3, s3, s4", f"s_add_u32 s{sPT}, s3, {PBASE}",
                 f"s_add_u32 s{sPT+1}, s{sPT}, {4*32768}", f"s_lshr_b32 s4, s{sW}, 1", f"s_and_b32 s4, s4, s{sW}",
                 "s_lshl_b32 s4, s4, 30", f"s_or_b32 s{sPT+1}, s{sPT+1}, s4",
                 f"s_lshl_b32 s4, s{sW}, 4", f"v_add_lshl_u32 v{vFL}, v{vL}, s4, 7"])
        L = [f"s_mul_i32 s3, s{sGRP}, {GRP}", f"s_mul_i32 s4, s{sH}, {57344 if hm else 2048}", "s_add_u32 s3, s3, s4",
             f"s_add_u32 s3, s3, {PBASE}", f"s_lshr_b32 s4, s{sW}, 1", "s_mul_i32 s4, s4, 7",
             f"s_mul_i32 s5, s{sT2}, 3", "s_add_u32 s4, s4, s5", f"s_lshl_b32 s7, s{sT2}, 1",
             f"v_mov_b32 v{vFL}, 0"]
        for t in range(4):
            L += [f"s_add_u32 s5, s{sT2}, {t}", "s_and_b32 s5, s5, 3", "s_add_u32 s5, s5, s4",
                  "s_lshr_b32 s6, s5, 1", "s_lshl_b32 s6, s6, 2", "s_and_b32 s5, s5, 1",
                  "s_add_u32 s5, s5, s6", "s_add_u32 s5, s5, s7"]
            for qi in range(2 if t < 3 else 1):
                if qi:
                    L.append("s_xor_b32 s5, s5, 2")
                L += [f"s_lshl_b32 s6, s5, {11 if hm else 15}", f"s_add_u32 s{sPT + 2*t + qi}, s6, s3", "s_lshl_b32 s6, s5, 8",
                      f"v_writelane_b32 v{vFL}, s6, {2*(2*t+qi)}", "s_add_u32 s6, s6, 128",
                      f"v_writelane_b32 v{vFL}, s6, {2*(2*t+qi)+1}"]
        return self.lines(L)

    def softmax_tile(self, t, packed=False):
        seq = []
        for qt in range(2):
            s = ACC + (t * 2 + qt) * 16
            m, l = vMC + t * 2 + qt, vLS + t * 2 + qt
            seq.append(f"v_max3_f32 v{m}, v{s}, v{s+1}, v{s+2}")
            for k in range(3, 15, 2):
                seq.append(f"v_max3_f32 v{m}, v{m}, v{s+k}, v{s+k+1}")
            seq.append(f"v_max_f32 v{m}, v{m}, v{s+15}")
            seq.append(f"v_mul_f32 v{m}, s{sC}, v{m}")
            if packed:
                for k in range(0, 16, 2):
                    seq.append(f"v_pk_fma_f32 {vr(s+k,2)}, {vr(s+k,2)}, s[{sC}:{sC+1}], {vr(m & ~1, 2)} "
                               f"op_sel:[0,0,{m & 1}] op_sel_hi:[1,0,{m & 1}] neg_lo:[0,0,1] neg_hi:[0,0,1]")
                for k in range(16):
                    seq.append(f"v_exp_f32 v{s+k}, v{s+k}")
                    if k == 4:
                        seq.append(f"v_pk_add_f32 v[2:3], {vr(s,2)}, {vr(s+2,2)}")
                    elif k > 4 and k % 2 == 0:
                        seq.append(f"v_pk_add_f32 v[2:3], v[2:3], {vr(s+k-2,2)}")
                seq.append(f"v_pk_add_f32 v[2:3], v[2:3], {vr(s+14,2)}")
                seq.append(f"v_add_f32 v{l}, v2, v3")
            else:
                for k in range(16):
                    seq.append(f"v_fma_f32 v{s+k}, v{s+k}, s{sC}, -v{m}")
                for k in range(16):
                    seq.append(f"v_exp_f32 v{s+k}, v{s+k}")
                    if k == 2:
                        seq.append(f"v_add_f32 v{l}, v{s}, v{s+1}")
                    elif k > 2:
                        seq.append(f"v_add_f32 v{l}, v{l}, v{s+k-1}")
                seq.append(f"v_add_f32 v{l}, v{l}, v{s+15}")
        return self.lines(seq)

    def softmax_combine(self):
        p = self.p
        T = 64
        L = []
        q = lambda t: L.append(lambda: p(t))
        w1 = []
        for qt in range(2):
            m = [vMC + t * 2 + qt for t in range(4)]
            q(f"v_max3_f32 v{T+qt}, v{m[0]}, v{m[1]}, v{m[2]}")
            q(f"v_max_f32 v{T+qt}, v{T+qt}, v{m[3]}")
        for k in range(8):
            q(f"v_sub_f32 v{T+4+k}, v{vMC+k}, v{T + k % 2}")
        for k in range(8):
            q(f"v_exp_f32 v{T+4+k}, v{T+4+k}")
        q(f"v_pk_mul_f32 {vr(T+2,2)}, {vr(vLS,2)}, {vr(T+4,2)}")
        for t in range(1, 4):
            q(f"v_pk_fma_f32 {vr(T+2,2)}, {vr(vLS+2*t,2)}, {vr(T+4+2*t,2)}, {vr(T+2,2)}")
        q(f"v_permlane32_swap_b32 v{T}, v{T+1}")
        q(f"v_permlane32_swap_b32 v{T+2}, v{T+3}")
        q(f"v_max_f32 v{T+8}, v{T}, v{T+1}")
        q(f"v_sub_f32 v{T+4}, v{T}, v{T+8}")
        q(f"v_sub_f32 v{T+5}, v{T+1}, v{T+8}")
        q(f"v_exp_f32 v{T+4}, v{T+4}")
        q(f"v_exp_f32 v{T+5}, v{T+5}")
        q(f"v_mul_f32 v{T+9}, v{T+2}, v{T+4}")
        q(f"v_fmac_f32 v{T+9}, v{T+3}, v{T+5}")
        for r in range(4):
            L.append(lambda r=r: w1.append(p(f"ds_write_b64 v{vIW}, {vr(T+8,2)} offset:{r*16384}")))
        L.append(lambda: p("s_barrier", after=w1))
        for r in range(4):
            q(f"ds_read_b64 {vr(T+10+2*r,2)}, v{vIR} offset:{r*512}")
        q(f"v_max3_f32 v{T}, v{T+10}, v{T+12}, v{T+14}")
        q(f"v_max_f32 v{T}, v{T}, v{T+16}")
        for r in range(4):
            q(f"v_sub_f32 v{T+4+r}, v{T+10+2*r}, v{T}")
        for r in range(4):
            q(f"v_exp_f32 v{T+4+r}, v{T+4+r}")
        q(f"v_mul_f32 v{T+1}, v{T+11}, v{T+4}")
        for r in range(1, 4):
            q(f"v_fmac_f32 v{T+1}, v{T+11+2*r}, v{T+4+r}")
        q(f"v_log_f32 v{T+1}, v{T+1}")
        q(f"v_add_f32 v{T}, v{T}, v{T+1}")
        q(f"v_mov_b32 v{T+1}, v{T}")
        q(f"v_permlane32_swap_b32 v{T}, v{T+1}")
        for k in range(8):
            q(f"v_sub_f32 v{vMC+k}, v{vMC+k}, v{T + k % 2}")
        for k in range(8):
            q(f"v_exp_f32 v{vMC+k}, v{vMC+k}")
        return L

    def publish_p(self, t, w, packed):
        p = self.p
        L = []
        for qt in range(2):
            s, f = ACC + (t * 2 + qt) * 16, vMC + t * 2 + qt
            for ks in range(2):
                b = s + ks * 8
                if packed:
                    L += self.lines([f"v_pk_mul_f32 {vr(b+k,2)}, {vr(b+k,2)}, {vr(f & ~1, 2)} "
                                     f"op_sel:[0,{f & 1}] op_sel_hi:[1,{f & 1}]" for k in range(0, 8, 2)])
                else:
                    L += self.lines([f"v_mul_f32 v{b+k}, v{b+k}, v{f}" for k in range(8)])
                L += self.lines([f"v_cvt_pk_bf16_f32 v{b+k}, v{b+2*k}, v{b+2*k+1}" for k in range(4)])
                x = f"ds_write_b128 v{vWR}, {vr(b,4)} offset:{((t*2+ks)*2+qt)*1024}"
                L.append(lambda x=x: w.append(p(x)))
        return L

    def out_proj(self, wq, ow, extra):
        p, o = self.p, self.o
        ks = o["ksplit"]
        assert 8 <= ks <= 16
        units = [(0, 0), (1, 0), (2, 0), (3, 0), (0, 1), (1, 1), (2, 1)]
        other = 160 - self.own

        nown = 4 if o["ownfirst"] else 0
        obar = o["obar"] if nown else -1

        def oreg(s, qi):
            if s < nown:
                b = self.own + s * 8
            elif s < ks:
                b = 240 + (s % 2) * 8
            else:
                b = other + (s - ks) * 8 if s - ks < 4 else self.own + (s - ks - 4) * 8
            return b + qi * 4

        def oread(s):
            if not nown:
                return self.lines([f"ds_read_b128 {vr(oreg(s, qi), 4)}, v{vPA+qi} "
                                   f"offset:{(s // 4)*16384 + (s % 4)*2048}" for qi in range(2)])
            return self.lines([f"ds_read_b128 {vr(oreg(s, qi), 4)}, v{(vQB if qi else vQA) + s // 4 - 1} "
                               f"offset:{(s % 4)*2048}" for qi in range(2)])

        def mfma(k, s):
            t, qi = units[k]
            acc = vr(ACC + 16 * k, 16)
            return f"{MF} {acc}, {ar(self.wreg(s) + t*4, 4)}, {vr(oreg(s, qi), 4)}, {'0' if s == 0 else acc}"

        def finish(k):
            t, qi = units[k]
            acc, d = ACC + 16 * k, (48, 56, 32)[k % 3]
            L = []
            for half in range(2):
                for j in range(4):
                    L.append(f"v_cvt_pk_bf16_f32 v{d+half*4+j}, v{acc+half*8+2*j}, v{acc+half*8+2*j+1}")
                off = " offset:1024" if half else ""
                if o.get("fakehalf") and half:
                    continue
                L.append(f"buffer_store_dwordx4 {vr(d+half*4,4)}, v{vLIN}, {srd(sWS)}, s{sPT+2*t+qi} "
                         f"offen{off}{fl(o['st_fl'])}")
            if o["keep"]:
                lab = f"L_keep{self.tag}_{k}"
                L.append("\n".join([f"s_bitcmp0_b32 s{sPT+2*t+qi}, 30", f"s_cbranch_scc1 {lab}",
                                    f"s_and_b32 s4, s{sPT+2*t+qi}, 0x8000", "s_lshr_b32 s4, s4, 4",
                                    f"v_add_u32 v9, s4, v{vKEEP}", f"ds_write_b128 v9, {vr(d,4)}",
                                    f"ds_write_b128 v9, {vr(d+4,4)} offset:1024", f"{lab}:"]))
            return L
        def emit(t):
            for n, x in enumerate(t.split("\n")):
                p(x, hidden=n >= 2)
        tail = list(range(ks, 16))
        wq = list(wq)
        if not nown:
            p("s_barrier", after=ow)
            for f in oread(0):
                f()
        for s in range(ks):
            late = []
            if s == obar:
                late.append(lambda: p("s_barrier", after=ow))
            if s + 1 >= nown and s + 1 < ks:
                late += oread(s + 1)
            if s >= obar:
                for _ in range((len(tail) + ks - s - 1) // (ks - s)):
                    if tail[0] - ks < 4 or s > tail[0] - ks - 4:
                        late += oread(tail.pop(0))
            early, rel = self.all_dma(), []
            for _ in range((len(wq) + ks - s - 1) // (ks - s) if len(wq) >= ks - s else min(1, len(wq))):
                u = wq.pop(0)
                assert int(u[1:]) > s
                if not self.unit.get(u, (0, []))[1]:
                    for f in early + self.all_dma(NSLOT):
                        f()
                    early = []
                it, d = self.unit_reads(u, 0)
                late += it
                rel.append((u, d))
            fill, extra = extra[:8], extra[8:]
            self.window([mfma(k, s) for k in range(7)], early, late, fill)
            for u, d in rel:
                self.release(u, d)
        assert not wq and not self.issue_q and not tail
        for f in extra:
            f()
        if o["fifo"]:
            fifo, n = [], 0
            for k in range(7):
                for s in range(ks, 16):
                    p(mfma(k, s))
                    n += 1
                    for _ in range(o["fifo"]):
                        if fifo and fifo[0][0] <= n:
                            emit(fifo.pop(0)[1])
                            n += 1
                fifo += [(n + 12, t) for t in finish(k)]
            for _, t in fifo:
                emit(t)
            return
        prev = []
        for k in range(7):
            chain = [mfma(k, s) for s in range(ks, 16)]
            first = 2 if o["splitnop"] and len(chain) >= o["splitnop"] else 1
            for i, m in enumerate(chain):
                p(m)
                if i < first and first == 2 and prev:
                    p("s_nop 4" if i == 0 else "s_nop 3")
                if i >= first:
                    n = (len(prev) + len(chain) - i - 1) // (len(chain) - i)
                    for t in prev[:n]:
                        emit(t)
                    prev = prev[n:]
            for t in prev:
                emit(t)
            prev = finish(k)
        for t in prev:
            emit(t)

    def out_proj8(self, wq, ow, extra):
        p, o = self.p, self.o
        ks = o["ksplit"]
        assert 8 <= ks <= 16
        units = [(t, q) for t in range(4) for q in range(2)]
        other = 160 - self.own
        nown = 4 if o["ownfirst"] else 0

        def oreg(s, q):
            return (self.own if (s // 4) % 2 == 0 else other) + (s % 4) * 8 + q * 4

        def oread(s):
            if nown:
                return self.lines([f"ds_read_b128 {vr(oreg(s, q), 4)}, v{(vQB if q else vQA) + s // 4 - 1} "
                                   f"offset:{(s % 4)*2048}" for q in range(2)])
            return self.lines([f"ds_read_b128 {vr(oreg(s, q), 4)}, v{vPA+q} "
                               f"offset:{(s // 4)*16384 + (s % 4)*2048}" for q in range(2)])

        def mfma(k, s):
            t, q = units[k]
            acc = vr(ACC + 16 * k, 16)
            return f"{MF} {acc}, {ar(self.wreg(s) + t*4, 4)}, {vr(oreg(s, q), 4)}, {'0' if s == 0 else acc}"

        def finish(k):
            t, q = units[k]
            acc, d = ACC + 16 * k, (48, 56, 32)[k % 3]
            L = [f"s_add_u32 s{sSO}, s{sPT + t // 2}, {(q*2 + t % 2)*32768}"]
            for half in range(2):
                for j in range(4):
                    L.append(f"v_cvt_pk_bf16_f32 v{d+half*4+j}, v{acc+half*8+2*j}, v{acc+half*8+2*j+1}")
                off = " offset:1024" if half else ""
                L.append(f"buffer_store_dwordx4 {vr(d+half*4,4)}, v{vLIN}, {srd(sWS)}, s{sSO} "
                         f"offen{off}{fl(o['st_fl'])}")
            return L
        todo = list(range(nown, 16))
        obar = o["obar"] if nown else -1
        wq = list(wq)
        if not nown:
            p("s_barrier", after=ow)
            for f in oread(todo.pop(0)):
                f()
        for s in range(ks):
            late = []
            if s == obar:
                late.append(lambda: p("s_barrier", after=ow))
            if s >= obar:
                for _ in range(2):
                    if todo and todo[0] - 8 < s:
                        late += oread(todo.pop(0))
            assert not todo or todo[0] > s + 1
            early, rel = self.all_dma(), []
            for _ in range((len(wq) + ks - s - 1) // (ks - s) if len(wq) >= ks - s else min(1, len(wq))):
                u = wq.pop(0)
                assert int(u[1:]) > s
                if not self.unit.get(u, (0, []))[1]:
                    for f in early + self.all_dma(NSLOT):
                        f()
                    early = []
                it, d = self.unit_reads(u, 0)
                late += it
                rel.append((u, d))
            fill, extra = extra[:8], extra[8:]
            self.window([mfma(k, s) for k in range(8)], early, late, fill)
            for u, d in rel:
                self.release(u, d)
        assert not wq and not self.issue_q
        for s in todo:
            for f in oread(s):
                f()
        for f in extra:
            f()
        prev = []
        for k in range(8):
            chain = [mfma(k, s) for s in range(ks, 16)]
            for i, m in enumerate(chain):
                p(m)
                if i >= 1:
                    n = (len(prev) + len(chain) - i - 1) // (len(chain) - i)
                    for t in prev[:n]:
                        p(t)
                    prev = prev[n:]
            for t in prev:
                p(t)
            prev = finish(k)
        for t in prev:
            p(t)

    def tail_setup(self):
        return self.lines([
            f"s_lshl_b32 s{sJ}, s{sGRP}, 1", f"s_add_u32 s{sJ}, s{sJ}, s{sH}", f"s_and_b32 s{sJ}, s{sJ}, 15",
            f"s_lshl_b32 s3, s{sGRP}, 13", f"s_add_u32 s3, s3, {FBASE}",
            f"s_lshl_b32 s5, s{sJ}, 2", f"s_add_u32 s5, s5, s{sW}", "s_lshl_b32 s4, s5, 7",
            f"s_add_u32 s{sINB}, s3, s4", "v_mov_b32 v5, 1", "v_mov_b32 v7, 0",
            f"v_lshlrev_b32 v5, {'s%d' % sH if self.o['early'] else 0}, v5",
            f"v_and_b32 v{vRDY}, v{vRDY}, v{vRDY+1}", f"v_and_b32 v{vRDY+2}, v{vRDY+2}, v{vRDY+3}",
            f"v_and_b32 v{vRDY}, v{vRDY}, v{vRDY+2}",
            f"s_mul_i32 s6, s{sGRP}, {GRP}", "s_lshr_b32 s4, s5, 1",
            f"s_lshl_b32 s4, s4, {11 if self.o['headmajor'] else 15}", "s_add_u32 s6, s6, s4",
            f"s_lshl_b32 s4, s{sT2}, 10", "s_add_u32 s6, s6, s4", f"s_add_u32 s6, s6, {PBASE}",
            f"s_lshl_b32 s7, s{sB}, 1", f"s_and_b32 s4, s{sJ}, 1", "s_add_u32 s7, s7, s4",
            f"s_mul_i32 s7, s7, {32*1792}", f"s_mul_i32 s4, s{sBR}, 896", "s_add_u32 s7, s7, s4",
            f"s_lshr_b32 s4, s{sJ}, 1", "s_lshl_b32 s4, s4, 7", "s_add_u32 s7, s7, s4",
            f"s_lshl_b32 s4, s{sW}, 5", "s_add_u32 s7, s7, s4",
            f"v_and_b32 v2, 31, v{vL}", "v_mul_u32_u24 v2, 1792, v2", f"v_lshrrev_b32 v3, 5, v{vL}",
            "v_lshl_add_u32 v2, v3, 4, v2"] + (self.select_setup() if self.o["msum"] else [])
            + (self.keep_setup() if self.o["keep"] else []))

    @staticmethod
    def keep_setup():
        L = [f"s_mul_i32 s4, s{sGRP}, {GRP}", f"s_add_u32 s4, s4, {PBASE}", f"s_lshr_b32 s4, s4, 16",
             f"s_add_u32 s4, s4, s{sJ}", f"v_add_u32 v{vKEEP}, 8192, v{vLIN}"]
        for k in range(7):
            L += [f"s_lshr_b32 s5, s{sPT+k}, 16", "s_sub_u32 s5, s5, s4", "s_min_u32 s5, s5, 1", "s_xor_b32 s5, s5, 1",
                  "s_lshl_b32 s5, s5, 30", f"s_or_b32 s{sPT+k}, s{sPT+k}, s5"]
        return L

    @staticmethod
    def select_setup():
        L = [f"v_bfe_u32 v9, v{vL}, 2, 1", "v_xor_b32 v9, v9, v3", f"v_bfe_u32 v10, v{vL}, 4, 1",
             "v_or_b32 v9, v9, v10", "v_lshlrev_b32 v9, 2, v9", f"v_bfe_u32 v10, v{vL}, 3, 1",
             "v_lshl_add_u32 v9, v10, 1, v9", f"v_bfe_u32 v10, v{vL}, 1, 1", "v_add_u32 v9, v9, v10",
             f"v_and_b32 v10, 1, v{vL}", "v_lshlrev_b32 v10, 4, v10", "v_mov_b32 v11, 0x3f80",
             "v_lshlrev_b32 v10, v10, v11"]
        for k in range(4):
            L += [f"v_cmp_eq_u32 vcc, {k}, v9", f"v_cndmask_b32 v{vSEL+k}, 0, v10, vcc"]
        return L

    def handoff(self):
        p, g = self.p, self.tag
        p(f"v_cmp_eq_u32 vcc, 1, v{vRDY}")
        p("s_mov_b32 s5, 100000")
        p(f"s_cbranch_vccnz L_go{g}")
        p(f"L_ready{g}:")
        p(f"buffer_load_dwordx4 {vr(vRDY,4)}, v7, {srd(sDBG)}, s{sDO} offen sc0 sc1", hidden=True)
        p("s_sub_u32 s5, s5, 1")
        p("s_cmp_eq_u32 s5, 0")
        p("s_waitcnt vmcnt(0)", hidden=True)
        p(f"s_cbranch_scc1 L_go{g}")
        p(f"v_and_b32 v{vRDY}, v{vRDY}, v{vRDY+1}")
        p(f"v_and_b32 v{vRDY+2}, v{vRDY+2}, v{vRDY+3}")
        p(f"v_and_b32 v{vRDY}, v{vRDY}, v{vRDY+2}")
        p(f"v_cmp_eq_u32 vcc, 1, v{vRDY}")
        p(f"s_cbranch_vccz L_ready{g}")
        p(f"L_go{g}:")
        lanes = [3 << (2 * (2 * t + qi)) for t, qi in ((0, 0), (1, 0), (2, 0), (3, 0), (0, 1), (1, 1), (2, 1))]
        done = 0
        for n, upto in enumerate(self.o["signal"]):
            p(f"s_mov_b64 exec, {hex(sum(lanes[done:upto]))}")
            p(f"s_waitcnt vmcnt({2 * (7 - upto) + n})")
            p(f"buffer_atomic_add v5, v{vFL}, {srd(sWS)}, s3 offen sc1")
            done = upto
        assert done == 7
        p("s_mov_b64 exec, -1")

    def poll(self):
        p, g, d = self.p, self.tag, self.o["poll_depth"]
        if self.o.get("spoll"):
            p(f"s_add_u32 s{sT0}, s{sWS}, s{sINB}")
            p(f"s_addc_u32 s{sT1}, s{sWS+1}, 0")
            p("s_mov_b32 s5, 20000")
            p(f"L_poll{g}:")
            p("s_mov_b32 s4, 0")
            p(f"s_atomic_add s4, s[{sT0}:{sT1}], 0 glc")
            p("s_sub_u32 s5, s5, 1")
            p("s_cmp_eq_u32 s5, 0")
            p("s_waitcnt lgkmcnt(0)")
            p(f"s_cbranch_scc1 L_polled{g}")
            p("s_cmp_lg_u32 s4, 16")
            p(f"s_cbranch_scc1 L_poll{g}")
            p(f"L_polled{g}:")
            return
        regs = (3, 9, 10, 11)[:d]
        p("s_mov_b32 s5, 100000")
        p("s_mov_b64 exec, 1")

        def ask(r):
            p(f"v_mov_b32 v{r}, 0")
            p(f"buffer_atomic_add v{r}, v7, {srd(sWS)}, s{sINB} offen sc0 sc1", hidden=True)
        for r in regs[1:]:
            ask(r)
            for _ in range(self.o["poll_gap"]):
                p("s_nop 15")
        p(f"L_poll{g}:")
        for k in range(d):
            ask(regs[k])
            p(f"s_waitcnt vmcnt({d-1})")
            p(f"v_cmp_eq_u32 vcc, 16, v{regs[(k + 1) % d]}")
            p(f"s_cbranch_vccnz L_polled{g}")
        p("s_sub_u32 s5, s5, 1")
        p("s_cmp_lg_u32 s5, 0")
        p(f"s_cbranch_scc1 L_poll{g}")
        p(f"L_polled{g}:")
        p("s_mov_b64 exec, -1")

    def gather(self):
        p, g = self.p, self.tag
        p("s_mov_b32 s5, 100000")
        p(f"s_mov_b32 s{sT0}, 0")
        p(f"s_mov_b32 s{sSO}, {self.o['early']}")
        p(f"L_poll{g}:")
        p("s_mov_b64 exec, 1")
        p("v_mov_b32 v3, 0")
        p(f"buffer_atomic_add v3, v7, {srd(sWS)}, s{sINB} offen sc0 sc1", hidden=True)
        p("s_mov_b64 exec, -1")
        p("s_sub_u32 s5, s5, 1")
        p("s_cmp_eq_u32 s5, 0")
        p("s_waitcnt vmcnt(0)")
        p(f"s_cbranch_scc1 L_polled{g}")
        p("v_readfirstlane_b32 s4, v3")
        p("s_cmp_eq_u32 s4, 0xffff")
        p(f"s_cbranch_scc1 L_take{g}")
        p(f"s_cmp_eq_u32 s{sSO}, 0")
        p(f"s_cbranch_scc1 L_poll{g}")
        p(f"s_andn2_b32 s{sT1}, s4, s{sT0}")
        p(f"s_bcnt1_i32_b32 s{sT1}, s{sT1}")
        p(f"s_cmp_lt_u32 s{sT1}, {self.o['early_min']}")
        p(f"s_cbranch_scc1 L_poll{g}")
        p(f"s_sub_u32 s{sSO}, s{sSO}, 1")
        p(f"L_take{g}:")
        p(f"s_andn2_b32 s{sT1}, s4, s{sT0}")
        p(f"s_mov_b32 s{sT0}, s4")
        for i in range(16):
            p(f"s_bitcmp0_b32 s{sT1}, {i}")
            p(f"s_cbranch_scc1 L_skip{g}_{i}")
            p(f"s_add_u32 s4, s6, {2048*i}")
            p(f"buffer_load_dwordx4 {vr(64+4*i,4)}, v{vLIN}, {srd(sWS)}, s4 offen{fl(self.o['ld_fl'])}", hidden=True)
            p(f"L_skip{g}_{i}:")
        p(f"s_cmp_lg_u32 s{sT0}, 0xffff")
        p(f"s_cbranch_scc1 L_poll{g}")
        p(f"L_polled{g}:")
        p("s_waitcnt vmcnt(0)")

    def reduce(self):
        p = self.p
        D, A, T = 64, 48, 56
        if self.o.get("fakehalf"):
            p("s_bitset0_b32 s6, 10")
            p(f"s_lshl_b32 s4, s{sT2}, 14")
            p("s_add_u32 s6, s6, s4")
        if self.o["keep"]:
            p(f"s_lshl_b32 s5, s{sH}, 11")
            for i in range(1, 16):
                p("s_addk_i32 s5, 2048")
                p("s_bitset0_b32 s5, 15")
                p("s_add_u32 s4, s5, s6")
                p(f"buffer_load_dwordx4 {vr(D+4*i,4)}, v{vLIN}, {srd(sWS)}, s4 offen{fl(self.o['ld_fl'])}")
        for i in range(0 if self.o["early"] or self.o["keep"] else 8 if self.o.get("fakehalf") else 16):
            if self.o["headmajor"]:
                p(f"buffer_load_dwordx4 {vr(D+4*i,4)}, v{vLIN}, {srd(sWS)}, s6 offen{fl(self.o['ld_fl'])}")
                p("s_add_u32 s6, s6, 57344")
                continue
            off = " offset:2048" if i % 2 else ""
            p(f"buffer_load_dwordx4 {vr(D+4*i,4)}, v{vLIN}, {srd(sWS)}, s6 offen{off}{fl(self.o['ld_fl'])}")
            if i % 2 and i < 15:
                p("s_addk_i32 s6, 4096")
        if self.o["msum"]:
            for i in range(16):
                p(f"{MF} {vr(ACC,16)}, {vr(vSEL,4)}, {vr(D+4*i,4)}, {vr(ACC,16) if i else 0}")
            for j in range(4):
                p(f"v_cvt_pk_bf16_f32 v{T+j}, v{ACC+2*j}, v{ACC+2*j+1}")
            p(f"buffer_store_dwordx4 {vr(T,4)}, v2, {srd(sOUT)}, s7 offen{fl(self.o.get('out_fl', ''))}")
            return
        p("s_mov_b32 s4, 0xffff0000")
        for i in range(8 if self.o.get("fakehalf") else 16):
            for j in range(4):
                dst = A + 2 * j if i == 0 else T + 2 * j
                p(f"v_lshlrev_b32 v{dst}, 16, v{D+4*i+j}")
                p(f"v_and_b32 v{dst+1}, s4, v{D+4*i+j}")
            if i:
                for j in range(4):
                    p(f"v_pk_add_f32 {vr(A+2*j,2)}, {vr(A+2*j,2)}, {vr(T+2*j,2)}")
        for j in range(4):
            p(f"v_cvt_pk_bf16_f32 v{T+j}, v{A+2*j}, v{A+2*j+1}")
        p(f"buffer_store_dwordx4 {vr(T,4)}, v2, {srd(sOUT)}, s7 offen")

    def dump_stamps(self):
        p = self.p
        if not self.o["stamps"]:
            return
        p("s_waitcnt vmcnt(0)")
        self.stamp("end")
        p("s_lshl_b32 s3, s2, 2")
        p(f"s_add_u32 s3, s3, s{sW}")
        if self.o.get("trace"):
            p("s_lshl_b32 s4, s3, 8")
            p("s_add_u32 s4, s4, 0x40000")
            p(f"v_lshlrev_b32 v2, 2, v{vL}")
            p(f"buffer_store_dword v0, v2, {srd(sWS)}, s4 offen")
        p("s_lshl_b32 s3, s3, 6")
        p("v_mov_b32 v2, 0")
        p("s_mov_b64 exec, 1")
        for k in range(self.nstamp):
            p(f"v_mov_b32 v3, s{sST + k}")
            p(f"buffer_store_dword v3, v2, {srd(sWS)}, s3 offen offset:{4*k}")

    def body(self):
        p, o, sc, g = self.p, self.o, self.sc, self.tag
        las = o["la"] if isinstance(o["la"], (tuple, list)) else (o["la"],) * 4
        o["la"] = las[0]
        self.prologue()
        p("; phase 1")
        pend = self.run_phase(sc["ph1"], self.store_setup(), 8,
                              before=lambda u: [lambda: p("s_barrier")] if u == "Q9" else [])
        assert not self.fillq
        qw = self.last_window(pend, self.all_dma(min(o["la"], o["kcap2"])), lambda j, q: (vWR, (j * 2 + q) * 1024))
        self.stamp()
        p("; phase 2")
        o["la"] = las[1]
        cur = 160 - self.own
        self.bufs, self.buf = (cur, cur + 16), 0
        left = {t: 4 for t in range(4)}
        have = {0}
        more = [self.one_more() for _ in range(o["more1"])]

        def need_q(u):
            if u[0] == "W":
                return []
            i = int(u[1:]) % 4
            if i in have:
                return []
            L = []
            if len(have) == 1:
                L.append(lambda: p("s_barrier", after=qw))
            have.add(i)
            L += self.lines([f"ds_read_b128 {ar((i*8 + k)*4, 4)}, v{vQA+i-1} offset:{k*1024}" for k in range(8)])
            return L

        def tile_done(u):
            if u[0] == "W":
                return []
            t = int(u[1:]) // 4
            left[t] -= 1
            return self.softmax_tile(t) if left[t] == 0 else []
        pend = self.run_phase(sc["ph2"], (), o["fill_per"], after=tile_done, before=need_q)
        take, rest = self.fillq[:o["fill_per"]], self.fillq[o["fill_per"]:]
        self.window(pend, self.all_dma(), [], take)
        self.stamp()
        last = [t for t in left if left[t] == 1]
        assert len(last) == 1
        pw = []
        L = rest + self.softmax_tile(last[0], True) + self.softmax_combine() + \
            self.publish_p(0, pw, True) + self.publish_p(1, pw, True)
        self.spread(L, [self.stage(u) for u in sc["mid2"]] + [self.one_more() for _ in range(o["more2"])])
        p("s_barrier", after=pw)
        self.stamp()
        p("; phase 3")
        o["la"] = las[2]
        self.bufs, self.buf = (64, 96), 0
        pw = []
        setup = ["v_mov_b32 v2, 0", f"buffer_load_dwordx4 {vr(vRDY,4)}, v2, {srd(sDBG)}, s{sDO} offen{fl(o['rdy_fl'])}",
                 f"s_mul_i32 s3, s{sT2}, {0 if o['aligned'] else 1024}", f"v_add_u32 v{vWA}, s3, v{vWR}", f"v_xor_b32 v{vWB}, 0x400, v{vWA}"]
        if o.get("tlb"):
            setup += [f"s_mul_i32 s4, s{sB}, {64*1792}", f"buffer_load_dword v3, v2, {srd(sOUT)}, s4 offen{fl(o['tlb'] if o['tlb'] != True else '')}",
                      f"s_mul_i32 s4, s{sGRP}, {GRP}", f"s_add_u32 s4, s4, {PBASE - 128}",
                      f"buffer_load_dword v5, v2, {srd(sWS)}, s4 offen nt",
                      f"s_add_u32 s4, s4, {GRP}", f"buffer_load_dword v7, v2, {srd(sWS)}, s4 offen nt"]
        for j in range(3 if o["ownfirst"] else 0):
            setup += [f"v_add_u32 v{vQA+j}, s3, v{vQA+j}", f"v_xor_b32 v{vQB+j}, 0x400, v{vQA+j}"]
        fill = self.publish_p(2, pw, False) + self.publish_p(3, pw, False) + self.lines(setup)

        def p_ready(u):
            if u != "V8":
                return []
            L, self.fillq = self.fillq, []
            return L + [lambda: p("s_barrier", after=pw + self.side["V7"])]
        pend = self.run_phase(sc["ph3"], fill, o["fill3"], before=p_ready)
        o["la"] = las[3]
        self.stamp()
        ow = self.last_window(pend, self.all_dma(o["lastla"]), lambda j, q: (vWB if q else vWA, j * 2048))
        for f in self.all_dma(o["lastla2"]):
            f()
        self.stamp()
        p("; phase 4")
        (self.out_proj8 if o["aligned"] else self.out_proj)(sc["ph4"], ow, self.tail_setup())
        self.stamp()
        self.handoff()
        self.stamp()
        if o["stamps"]:
            p(f"s_mov_b32 s{sST + self.nstamp}, s100")
        p(f"s_cmp_ge_u32 s{sJ}, 14")
        p(f"s_cbranch_scc1 L_fin{g}")
        if o["keep"]:
            p("s_waitcnt lgkmcnt(0)")
            p("s_barrier")
            p(f"s_lshl_b32 s4, s{sW}, 10")
            p(f"v_add_u32 v9, s4, v{vKEEP}")
            p("ds_read_b128 v[64:67], v9")
        if o["early"]:
            self.gather()
        else:
            self.poll()
        self.stamp()
        self.reduce()
        p(f"L_fin{g}:")
        self.dump_stamps()
        if o.get("probe"):
            wg, k, gain = o["probe"]
            p(f"s_cmp_lg_u32 s2, {wg}")
            p(f"s_cbranch_scc1 L_out{g}")
            p(f"s_sub_u32 s3, s{sST + k}, s{sST}")
            p(f"s_mul_i32 s3, s3, {gain}")
            p("s_add_u32 s3, s3, 10000")
            p("s_min_u32 s3, s3, 100000")
            p(f"L_probe{g}:")
            p("s_memrealtime s[4:5]")
            p("s_waitcnt lgkmcnt(0)")
            p(f"s_sub_u32 s4, s4, s{sST}")
            p("s_cmp_lt_u32 s4, s3")
            p(f"s_cbranch_scc1 L_probe{g}")
            p(f"L_out{g}:")
        p("s_endpgm")
        if o.get("fake16"):
            out, cnt, ph = [], {}, 0
            for i in self.p.ins:
                if i.text.startswith("; phase"):
                    ph = i.text.split()[-1]
                if i.kind == "mfma" and ph in o["fake16"]:
                    m = re.match(r"\S+ v\[(\d+):\d+\], (\S+), (\S+), (\S+)", i.text)
                    a0 = int(m.group(1))
                    if m.group(4) == "0":
                        cnt[a0] = 0
                    for h in range(2):
                        n = cnt[a0]
                        a = a0 + 4 * (n % 4)
                        x, y = (m.group(2), m.group(3)) if h == 0 else (m.group(3), m.group(2))
                        out.append(Ins(f"v_mfma_f32_16x16x32_bf16 {vr(a,4)}, {x}, {y}, {'0' if n < 4 else vr(a,4)}"))
                        cnt[a0] += 1
                else:
                    out.append(i)
            self.p.ins = out
        if o.get("drop"):
            out, ph, n = [], "0", 0
            for i in self.p.ins:
                if i.text.startswith("; phase"):
                    ph = i.text.split()[-1]
                d = o["drop"]
                if i.kind == "dma" and d in ("W", "Q", "X") and srd({"W": sO, "Q": sQ, "X": sX}[d]) in i.text:
                    continue
                if i.kind == "dma" and d == "W3" and srd(sO) in i.text and "offset:3072" in i.text:
                    continue
                if i.kind == "mfma" and d.startswith("M") and ph in d:
                    n += 1
                    if "h" not in d or n % 2:
                        continue
                out.append(i)
            self.p.ins = out
        if o.get("fake"):
            self.p.ins = [i for i in self.p.ins if i.kind != {"nodma": "dma", "nomfma": "mfma"}[o["fake"]]]
        return p.finalize()


DOC = """
;
; One workgroup (4 waves, 512 registers each) per (branch, batch, head); id = branch*128 + batch*16 + (head&1)*8 + head/2.
;   phase 4  partial^T = Wo^T O^T    bf16 partial sums go to d_ws; 14 workgroups per (branch, batch) add the 16 heads
; Four classes of workgroups run the same computation with different load orders so that memory demand stays even.
"""
NSTAMP = 0
ORDERS = []


def build(**kw):
    global NSTAMP
    ORDERS.clear()
    ref = open(f"cdna_kernels/{NAME}.s.ref").read().splitlines() if kw.pop("header", True) else []
    head = [l for l in ref if l.startswith(";") and "@launch" not in l and "Override" not in l
            and "grid=ceil" not in l]
    o = dict(DEFAULT, **kw)
    k1 = NAME + "_kernel"
    common, body = None, ""
    for i, spec in enumerate(o["groups"]):
        kc = dict(kw)
        if not isinstance(spec, str):
            kc.update(spec[1])
            spec = spec[0]
        g = Gen(schedule(spec, o["nmid"], kc.get("tper", o["tper"])), str(i), **kc)
        pre, post = g.body().split("    " + SPLIT + "\n")
        assert common in (None, pre)
        common = pre
        if i == 6:
            body += f"L_hop:\n    s_cmp_eq_u32 s{sCLS}, 7\n    s_cbranch_scc1 L_class7\n    s_branch L_class6\n"
        body += ".p2align 6\n" + post
        NSTAMP = g.nstamp if o["stamps"] else 0
        ORDERS.append(g.order)
    if len(o["groups"]) > 6:
        body = "\n".join(l.strip().replace(", ", ",") for l in body.splitlines()) + "\n"
    head.append("; @launch grid=(256,1,1) block=(256,1,1) lds=163840")
    head += DOC.strip().splitlines()
    return "\n".join(head) + f"""
.amdgcn_target "amdgcn-amd-amdhsa--gfx950"
.text
.globl {k1}
.p2align 8
.type {k1},@function
{k1}:
{common}{body}L_codeend:
.section .rodata,"a"
.p2align 6
.amdhsa_kernel {k1}
  .amdhsa_next_free_vgpr 512
  .amdhsa_next_free_sgpr 102
  .amdhsa_accum_offset 256
  .amdhsa_group_segment_fixed_size 0
  .amdhsa_kernarg_size 104
  .amdhsa_user_sgpr_count 2
  .amdhsa_user_sgpr_kernarg_segment_ptr 1
  .amdhsa_system_sgpr_workgroup_id_x 1
.end_amdhsa_kernel
"""


if __name__ == "__main__":
    kw = {}
    out = sys.argv[1]
    for a in sys.argv[2:]:
        k, v = a.split("=", 1)
        try:
            kw[k] = eval(v)
        except (NameError, SyntaxError):
            kw[k] = v
    open(out, "w").write(build(**kw))
```

```python
import ast, math, re, struct, sys
from asmlib import Prog, Ins

NAME = "concat_heads__gqa_block_cached__mha_block_cached__near_ridge"
SH, RING, RSZ, NSLOT = 0, 65536, 24576, 6
XPOS = (0, 2, 4, 6, 1, 3, 5)
PBASE = 0x100000
FBASE = 0x10000
GRP = 917504

sX, sK, sV, sQ, sO, sWS, sOUT, sDBG = 8, 12, 16, 20, 24, 28, 32, 36
sW, sBR, sH, sB, sRING, sSO, sC, sGRP, sT0, sT1, sT2, sJ = 40, 41, 42, 43, 44, 45, 46, 47, 48, 49, 50, 51
sPT = 52
sINB, sDO, sXW = 59, 60, 61
sROT = 62
sW128, sCLS = 69, 84
sST = 70
vL, vFL, vIW, vIR = 1, 4, 6, 8
vDX, vDQ, vDK, vDV, vDO = 8, 9, 13, 17, 21
vRX, vRQ, vRK, vRV, vRO = 25, 29, 31, 35, 37
vLIN, vWR, vPA, vQA = 41, 42, 43, 45
vWA, vWB = 16, 12
vMC, vLS = 48, 56
vRDY, vSEL = 28, 16
ACC = 128
MF = "v_mfma_f32_32x32x16_bf16"
SPLIT = "; class code"


def f32(x):
    return "0x%08x" % struct.unpack("<I", struct.pack("<f", x))[0]


def vr(a, n):
    return f"v[{a}:{a+n-1}]" if n > 1 else f"v{a}"


def ar(a, n):
    return f"a[{a}:{a+n-1}]" if n > 1 else f"a{a}"


def srd(b):
    return f"s[{b}:{b+3}]"


def fl(x):
    return f" {x}" if x else ""


def R(c, lo, hi):
    return [f"{c}{i}" for i in range(lo, hi)]


def cls(k, w, v, **kw):
    head = "Q14 K16" if k == 0 else f"Q2 K{k} Q12 K{16-k}"
    mid = f"W{w} V16" if (v == 0 or w == 2) else f"W2 V{v} W{w-2} V{16-v}"
    tail = f" W{16-w}" if w < 16 else ""
    return (f"{head} {mid}{tail}", dict(dict(ksplit=max(8, 16 - w)), **kw))


DEFAULT = dict(
    groups=(cls(0, 3, 0), cls(7, 6, 9), cls(3, 3, 0), cls(11, 6, 0)),
    la=4,
    hold=3,
    tper=2,
    fill2=40, fill3=14, more2=1, nmid=12, lastla=3, xsplit=11, win=(0, 8, 1, 7), signal=(3, 5, 7),
    stamps=False,
)


def schedule(spec, nmid, tper):
    issue = []
    cnt = dict(Q=0, K=0, V=0, W=0)
    for tok in spec.split():
        c, n = tok[0], int(tok[1:])
        issue += R(c, cnt[c], cnt[c] + n)
        cnt[c] += n
    assert cnt == dict(Q=14, K=16, V=16, W=16), cnt
    assert issue[:2] == ["Q0", "Q1"]
    iq, ik = issue.index("Q13"), issue.index("K15")
    ph1 = issue[:iq + 1]
    assert all(u[0] in "QK" for u in ph1)
    npre = sum(u[0] == "K" for u in ph1)
    assert npre <= 14
    rest = issue[iq + 1:ik + 1]
    assert all(u[0] in "KW" for u in rest)
    T = R("T", 0, npre)
    ph2 = [u for u in ("T0", "T4") if u in T]
    if npre > 10:
        ph2 += ["T1", "T2", "T3"]
    T = [u for u in T if u not in ph2]
    shift = 4 if npre > 10 else 0
    for u in rest:
        if u[0] == "W":
            assert int(u[1:]) < 8
            while T and int(T[0][1:]) <= int(u[1:]) + shift + 1:
                ph2.append(T.pop(0))
            assert not ph2 or ph2[-1] != f"T{int(u[1:]) + shift}"
            ph2.append(u)
        else:
            ph2 += [u] + T[:tper]
            T = T[tper:]
    ph2 += T
    after = issue[ik + 1:]
    mid2, held = [], 0
    for u in after:
        if u[0] == "V":
            held += 1
            if held > NSLOT - 4:
                break
        elif len(mid2) < nmid:
            mid2.append(u)
    ph3 = [u for u in after if u not in mid2]
    iv = ph3.index("V15")
    ph3, ph4 = ph3[:iv + 1], ph3[iv + 1:]
    return dict(issue=issue, ph1=ph1, ph2=ph2, mid2=mid2, ph3=ph3, ph4=ph4, npre=npre)


class Gen:
    def __init__(self, sched, tag, **kw):
        self.o = dict(DEFAULT)
        self.o.update(kw)
        self.p = Prog()
        self.sc = sched
        self.tag = tag
        self.issue_q = list(sched["issue"])
        self.free = [(s, []) for s in range(NSLOT)]
        self.unit = {}
        self.side = {}
        self.eaten, self.started = set(), set()
        self.order = []
        self.nstamp = 1
        self.bufs, self.buf = (64, 96), 0

    def lines(self, texts):
        return [(lambda t=t: self.p(t)) for t in texts]

    def stamp(self, name=""):
        if self.o["stamps"] and (self.o["stamps"] != "ends" or name == "end"):
            self.p(("s_memtime" if self.o["stamps"] == "cyc" else "s_memrealtime") + " s[100:101]")
            self.p("s_waitcnt lgkmcnt(0)")
            self.p(f"s_mov_b32 s{sST + self.nstamp}, s100")
            self.nstamp += 1
            assert self.nstamp <= 14

    def dma_items(self):
        name = self.issue_q.pop(0)
        slot, reads = self.free.pop(0)
        kind, u = name[0], int(name[1:])
        r, v, nt = {"Q": (sQ, vDQ, ""), "K": (sK, vDK, "nt"), "V": (sV, vDV, "nt"), "W": (sO, vDO, "")}[kind]
        dm = []
        self.unit[name] = (slot, dm)
        p = self.p

        def head():
            p(f"s_add_u32 m0, s{sRING}, {slot*4096}")
            if kind == "Q":
                p(f"s_lshl_b32 s{sSO}, s{sROT + u // 2}, 12")
                if u % 2:
                    p(f"s_bitset1_b32 s{sSO}, 18")
            elif kind == "W":
                p(f"s_xor_b32 s{sSO}, s{sXW}, {u}")
                p(f"s_mulk_i32 s{sSO}, {16*896}")
            elif kind == "K":
                p(f"s_xor_b32 s{sSO}, s{sW128}, {(u // 4) * 65536 + (u % 4) * 128}")
            else:
                p(f"s_mov_b32 s{sSO}, {u * 16384}")

        def piece(j):
            def f():
                if j == 0:
                    head()
                off = f" offset:{1024*j}" if j else ""
                dm.append(p(f"buffer_load_dwordx4 v{v+j}, {srd(r)}, s{sSO} offen{off}{fl(nt)} lds",
                            after=reads if j == 0 else ()))
            return f
        return [piece(j) for j in range(4)]

    def all_dma(self, la=None):
        la = min(la or self.o["la"], NSLOT)
        out = []
        while self.issue_q and NSLOT - len(self.free) < la:
            out += self.dma_items()
        return out

    def one_more(self):
        def f():
            if self.issue_q and self.free:
                for g in self.dma_items():
                    g()
        return f

    def kreg(self, u, j):
        if self.sc["npre"] > 10:
            if u < 4:
                return vr(192 + 16 * u + 4 * j, 4)
            u -= 4
        return ar(self.wreg(u) + 4 * j, 4)

    @staticmethod
    def wreg(u):
        return 128 + 16 * u if u < 8 else 16 * (u - 8)

    def unit_reads(self, name, base):
        kind, u = name[0], int(name[1:])
        p = self.p
        items, done = [], []
        if kind == "T":
            return items, done
        slot, dm = self.unit[name]
        so = slot * 4096
        sd = self.side.setdefault(name, [])

        def ring(text, pieces):
            items.append(lambda: done.append(p(text, after=[dm[j] for j in pieces])))

        def side(text):
            items.append(lambda: sd.append(p(text)))
        if kind in "QV":
            for ks in range(2):
                for mt in range(2):
                    for part in range(2):
                        d = base + (ks * 2 + mt) * 4 + part * 2
                        if kind == "Q":
                            ring(f"ds_read_b64_tr_b16 {vr(d,2)}, v{vRQ+mt} offset:{so + ks*2048 + part*512}",
                                 (2 * ks, 2 * ks + 1))
                        else:
                            ring(f"ds_read_b64_tr_b16 {vr(d,2)}, v{vRV+mt} offset:{so + ks*2048 + part*1024}",
                                 (2 * ks + part,))
                    qt = mt
                    d = base + 16 + (ks * 2 + qt) * 4
                    if kind == "Q":
                        s = 2 * u + ks
                        side(f"ds_read_b128 {vr(d,4)}, v{vRX + s % 4} offset:{XPOS[s // 4]*8192 + qt*4096}")
                    else:
                        side(f"ds_read_b128 {vr(d,4)}, v{vPA+qt} offset:{(u % 4)*16384 + ((u // 4)*2 + ks)*2048}")
        elif kind == "K":
            for j in range(4):
                d = self.kreg(u, j) if u < self.sc["npre"] else vr(base + 4 * j, 4)
                ring(f"ds_read_b128 {d}, v{vRK+j} offset:{so}", range(4))
        elif kind == "W":
            for part in range(2):
                for t in range(4):
                    ring(f"ds_read_b64_tr_b16 {ar(self.wreg(u) + t*4 + part*2, 2)}, v{vRO+t} "
                         f"offset:{so + part*1024}", (part, 2 + part))
        return items, done

    def unit_mfmas(self, name, base):
        kind, u = name[0], int(name[1:])
        out = []
        if kind in "QV":
            order = [(ks, mt, qt) for ks in range(2) for mt, qt in ((0, 0), (1, 0), (0, 1), (1, 1))]
            if name in ("Q13", "V15"):
                order = [(ks, mt, qt) for mt in range(2) for qt in range(2) for ks in range(2)]
            for ks, mt, qt in order:
                acc = vr(ACC + (mt * 2 + qt) * 16, 16)
                c = "0" if (u == 0 and ks == 0) else acc
                out.append(f"{MF} {acc}, {vr(base + (ks*2+mt)*4, 4)}, {vr(base + 16 + (ks*2+qt)*4, 4)}, {c}")
        elif kind == "T" or (kind == "K" and u >= self.sc["npre"]):
            t, i = u // 4, u % 4
            first = t not in self.started
            self.started.add(t)
            for j in range(4):
                a = self.kreg(u, j) if kind == "T" else vr(base + 4 * j, 4)
                for qt in range(2):
                    acc = vr(ACC + (t * 2 + qt) * 16, 16)
                    b = vr(self.own + (j * 2 + qt) * 4, 4) if i == 0 else ar(((i * 4 + j) * 2 + qt) * 4, 4)
                    out.append(f"{MF} {acc}, {a}, {b}, {'0' if (first and j == 0) else acc}")
        return out

    def window(self, mfmas, early, late, fill):
        p = self.p
        n = len(mfmas)
        if n == 0:
            for f in fill + late + early:
                f()
            return
        gaps = [[] for _ in range(n)]
        e0, e1, l0, l1 = self.o["win"]
        e1, l1 = min(e1, n), min(l1, n - 1)
        for k, f in enumerate(early):
            gaps[e0 + k * (e1 - e0) // len(early)].append(f)
        for k, f in enumerate(late):
            gaps[l0 + k * (l1 - l0) // len(late)].append(f)
        for k, f in enumerate(fill):
            gaps[k * n // len(fill)].append(f)
        for m, g in zip(mfmas, gaps):
            p(m)
            for f in g:
                f()

    def release(self, nme, done):
        if nme[0] != "T":
            self.eaten.add(nme)
            self.free.append((self.unit[nme][0], done))

    def run_phase(self, units, fillq=(), per=0, after=None, before=None):
        pend, prev = [], None
        self.fillq = list(fillq)
        for nme in units:
            base = self.bufs[self.buf]
            mf = self.unit_mfmas(nme, base)
            if mf and nme[0] != "T":
                self.buf ^= 1
            la = self.o["la"] + (0 if pend else 1)
            if nme[0] == "V" and "V15" in self.unit:
                la = min(la, self.o["hold"])
            early = self.all_dma(la)
            if nme[0] != "T" and not self.unit[nme][1]:
                for f in early:
                    f()
                early = []
            late, done = self.unit_reads(nme, base)
            if before:
                late = before(nme) + late
            take, self.fillq = self.fillq[:per], self.fillq[per:]
            self.window(pend, early, late, take)
            if after and prev:
                self.fillq += after(prev)
            self.release(nme, done)
            pend, prev = mf, nme
        return pend

    def stage(self, nme):
        def f():
            held = sum(u[0] == "V" and u not in self.eaten for u in self.unit)
            early = self.all_dma(min(NSLOT, self.o["la"] + 1 + held))
            if not self.unit[nme][1]:
                for g in early:
                    g()
                early = []
            it, d = self.unit_reads(nme, 0)
            for g in it + early:
                g()
            self.release(nme, d)
        return f

    @staticmethod
    def spread(items, stages):
        n, k = len(stages), 0
        for i, f in enumerate(items):
            while k < n and (k + 0.5) * len(items) / n <= i:
                stages[k]()
                k += 1
            f()
        for g in stages[k:]:
            g()

    def last_window(self, mfmas, early, addr):
        p = self.p
        self.own = self.bufs[self.buf]
        w = []

        def pack(a):
            mt, q = a // 2, a % 2
            for ks in range(2):
                src = ACC + a * 16 + ks * 8
                d = self.own + ((2 * mt + ks) * 2 + q) * 4
                for k in range(4):
                    p(f"v_cvt_pk_bf16_f32 v{d+k}, v{src+2*k}, v{src+2*k+1}")
                reg, off = addr(2 * mt + ks, q)
                w.append(p(f"ds_write_b128 v{reg}, {vr(d,4)} offset:{off}"))
        early = list(early)
        for i, m in enumerate(mfmas):
            p(m)
            if i < 4:
                for f in early[i * len(early) // 4:(i + 1) * len(early) // 4]:
                    f()
            if i in (4, 6):
                pack((i - 4) // 2)
        pack(2)
        pack(3)
        return w

    def prologue(self):
        p, o = self.p, self.o
        ng = len(o["groups"])
        p("s_cmp_ge_u32 s2, 256")
        p("s_cbranch_scc1 L_exit")
        if o["stamps"]:
            p(("s_memtime" if o["stamps"] == "cyc" else "s_memrealtime") + f" s[{sST}:{sST+1}]")
        p(f"s_lshr_b32 s{sBR}, s2, 7")
        p(f"s_mul_i32 s5, s{sBR}, 40")
        p("s_add_u32 s6, s0, s5")
        p("s_addc_u32 s7, s1, 0")
        p("s_load_dwordx8 s[88:95], s[6:7], 0")
        if True:
            p("s_getpc_b64 s[14:15]")
            p("L_pc:")
            p("s_lshr_b32 s3, s2, 3")
            per = 5 * ng + 1
            p(f"s_mulk_i32 s3, {per}")
            p(f"v_min_u32 v5, {per - 1}, v0")
            p("v_add_u32 v5, s3, v5")
            p("v_min_u32 v5, (L_codeend-L_pc)/128-1, v5")
            p("v_lshlrev_b32 v5, 7, v5")
            p("global_load_dword v255, v5, s[14:15]", hidden=True)
        p(f"v_readfirstlane_b32 s{sW}, v0")
        p("v_lshrrev_b32 v6, 3, v0")
        p("v_lshrrev_b32 v5, 4, v0")
        p("v_xor_b32 v5, v5, v0")
        p("v_and_b32 v5, 7, v5")
        p("v_mul_u32_u24 v6, 56, v6")
        p(f"v_add_lshl_u32 v{vDX}, v5, v6, 4")
        p(f"s_bfe_u32 s{sB}, s2, 0x30004")
        p(f"s_cmp_eq_u32 s{sB}, 7")
        p(f"s_cselect_b32 s{sROT}, 3, s{sB}")
        p(f"s_lshl_b32 s{sROT}, s{sROT}, 7")
        p(f"s_lshl_b32 s{sT1}, s{sW}, 4")
        p(f"s_mov_b32 s{sX+2}, 57344")
        p(f"s_mul_i32 s{sT0}, s{sB}, s{sX+2}")
        p(f"s_mov_b32 s{sX+3}, 0x20000")
        p(f"s_mov_b32 m0, s{sT1}")
        p("s_waitcnt lgkmcnt(0)")
        p(f"s_add_u32 s{sX}, s88, s{sT0}")
        p(f"s_addc_u32 s{sX+1}, s89, 0")
        self.xd = []
        seq = [(h, cb) for cb in range(7) for h in range(2)]
        for n, (half, cb) in enumerate(seq):
            if n:
                p(f"s_add_u32 m0, s{sT1}, {SH + XPOS[cb]*8192 + half*4096}")
            if n == 1:
                p(f"v_add_u32 v7, {32*896}, v{vDX}")
            elif half == 0 and cb:
                p(f"s_cmpk_lg_u32 s{sROT+cb}, 896")
                p(f"s_cselect_b32 s{sROT+cb}, s{sROT+cb}, 0")
            if half == 1 and cb < 6:
                p(f"s_add_u32 s{sROT+cb+1}, s{sROT+cb}, 128")
            self.xd.append(p(f"buffer_load_dwordx4 v{7 if half else vDX}, {srd(sX)}, s{sROT+cb} "
                             f"offen lds"))
            if n == 3:
                p("s_load_dwordx2 s[86:87], s[6:7], 32")
                p(f"s_load_dwordx2 s[{sWS}:{sWS+1}], s[0:1], 96")
                p("s_load_dwordx4 s[96:99], s[0:1], 80")
            if n == o["xsplit"]:
                p(f"s_lshr_b32 s{sW}, s{sW}, 6")
                p(f"v_and_b32 v{vL}, 63, v0")
                p(f"v_lshrrev_b32 v2, 3, v{vL}")
                p(f"v_and_b32 v3, 7, v{vL}")
                p(f"v_lshrrev_b32 v4, 4, v{vL}")
                p("s_bfe_u32 s4, s2, 0x10003")
                p(f"s_and_b32 s{sT2}, s{sW}, 1")
                p("s_and_b32 s3, s2, 7")
                p("s_lshl_b32 s3, s3, 1")
                p(f"s_add_u32 s{sH}, s3, s4")
                if ng > 1:
                    p(f"s_and_b32 s{sCLS}, s{sB}, {ng//2-1}")
                    p(f"s_lshl_b32 s{sCLS}, s{sCLS}, 1")
                    p(f"s_add_u32 s{sCLS}, s{sCLS}, s{sBR}")
                p(f"s_mul_i32 s{sRING}, s{sW}, {RSZ}")
                p(f"s_add_u32 s{sRING}, s{sRING}, {RING}")
                p("v_and_b32 v5, 1, v4")
                p("v_lshlrev_b32 v5, 2, v5")
                p("v_xor_b32 v5, v5, v3")
                p(f"s_lshl_b32 s{sW128}, s{sW}, 7")
                p(f"v_lshl_add_u32 v5, v5, 4, s{sW128}")
                p(f"v_lshl_add_u32 v{vDQ}, v2, 13, v5")
                p(f"s_lshl_b32 s{sT0}, s{sB}, 6")
                p(f"v_xor_b32 v5, s{sT0}, v5")
                p(f"v_lshl_add_u32 v{vDV}, v2, 9, v5")
                for j in range(1, 4):
                    p(f"v_add_u32 v{vDQ+j}, {j*(65536-1024)}, v{vDQ}")
                p(f"s_lshl_b32 s{sT0}, s{sH}, 9")
                p(f"s_add_u32 s{sQ}, s94, s{sT0}")
                p(f"s_addc_u32 s{sQ+1}, s95, 0")
                p(f"s_sub_u32 s{sQ+2}, 3670016, s{sT0}")
                p(f"s_mov_b32 s{sQ+3}, 0x20000")
                p(f"s_lshl_b32 s{sGRP}, s{sBR}, 3")
                p(f"s_add_u32 s{sGRP}, s{sGRP}, s{sB}")
                p(f"s_mov_b32 s{sWS+2}, {PBASE + 16 * GRP}")
                p(f"s_mov_b32 s{sWS+3}, 0x20000")
                p(f"v_lshlrev_b32 v{vLIN}, 4, v{vL}")
        p("s_waitcnt lgkmcnt(0)")
        p(f"s_cmp_lg_u32 s{sH}, 15")
        p("s_cbranch_scc1 L_noclr")
        p(f"s_lshl_b32 s3, s{sGRP}, 2")
        p(f"s_add_u32 s3, s3, s{sW}")
        p("s_lshl_b32 s3, s3, 11")
        p(f"s_add_u32 s3, s3, {FBASE}")
        p(f"v_lshrrev_b32 v5, 2, v{vL}")
        p(f"v_and_b32 v6, 48, v{vLIN}")
        p("v_lshl_add_u32 v5, v5, 7, v6")
        for k in range(4):
            p(f"v_mov_b32 v{64+k}, 0")
        p(f"buffer_store_dwordx4 v[64:67], v5, {srd(sWS)}, s3 offen sc0 sc1", hidden=True)
        p("L_noclr:")
        for f in self.all_dma(2):
            f()
        self.descriptors()
        p(f"s_lshl_b32 s{sDO}, s{sGRP}, 4")
        p(f"s_lshl_b32 s{sXW}, s{sB}, 1")
        p(f"s_mov_b32 s{sC}, {f32(math.log2(math.e) / 16)}")
        p("v_xor_b32 v5, v3, v4")
        p(f"s_lshl_b32 s{sT0}, s{sW}, 14")
        p(f"v_lshl_add_u32 v5, v5, 4, s{sT0}")
        p(f"v_lshl_add_u32 v{vDK}, v2, 9, v5")
        p(f"v_xor_b32 v5, 64, v{vDK}")
        p(f"v_add_u32 v{vDK+1}, 3072, v5")
        p(f"v_add_u32 v{vDK+2}, 6144, v{vDK}")
        p(f"v_add_u32 v{vDK+3}, 9216, v5")
        for j in range(1, 4):
            p(f"v_add_u32 v{vDV+j}, {j*3072}, v{vDV}")
        p(f"v_add_u32 v{vWR}, s{sT0}, v{vLIN}")
        for j in range(1, 4):
            p(f"v_xor_b32 v{vQA+j-1}, {j*16384}, v{vWR}")
        p(f"s_add_u32 s{sT0}, s{sT0}, 8192")
        p(f"v_lshl_add_u32 v{vIR}, v{vL}, 3, s{sT0}")
        p(f"v_bfe_u32 v5, v{vL}, 2, 2")
        p("v_xor_b32 v5, v5, v4")
        p(f"v_add_u32 v5, s{sT2}, v5")
        p("v_and_b32 v5, 3, v5")
        p(f"v_and_b32 v6, 48, v{vLIN}")
        p("v_lshl_add_u32 v5, v5, 6, v6")
        p("v_mul_u32_u24 v6, 896, v4")
        p(f"s_mul_i32 s{sT0}, s{sW}, 224")
        p(f"s_lshl_b32 s{sT1}, s{sT2}, 5")
        p(f"s_sub_u32 s{sT0}, s{sT0}, s{sT1}")
        p(f"v_add3_u32 v{vDO}, v5, v6, s{sT0}")
        for j in range(1, 4):
            p(f"v_add_u32 v{vDO+j}, {j*(3584-1024)}, v{vDO}")
        p(f"v_lshrrev_b32 v2, 5, v{vL}")
        p(f"v_bfe_u32 v3, v{vL}, 1, 3")
        p("v_xor_b32 v3, v3, v2")
        p(f"v_and_b32 v5, 31, v{vL}")
        p("v_lshlrev_b32 v5, 7, v5")
        p(f"v_lshl_add_u32 v{vRX}, v3, 4, v5")
        for j in range(1, 4):
            p(f"v_xor_b32 v{vRX+j}, {j*32}, v{vRX}")
        for j in range(4):
            p(f"v_add_u32 v{vRK+j}, s{sRING}, v{vRX+j}")
        p(f"v_and_b32 v3, 16, v{vLIN}")
        p(f"v_bfe_u32 v5, v{vL}, 1, 1")
        p("v_lshl_add_u32 v3, v5, 3, v3")
        p("v_and_b32 v5, 1, v4")
        p("v_lshl_add_u32 v3, v5, 5, v3")
        p(f"v_add_u32 v3, s{sRING}, v3")
        p(f"v_bfe_u32 v5, v{vL}, 2, 2")
        p(f"v_bfe_u32 v6, v{vL}, 3, 1")
        p("v_lshl_add_u32 v6, v6, 6, v3")
        p("v_lshl_add_u32 v6, v5, 7, v6")
        p(f"v_lshl_add_u32 v{vRQ}, v2, 10, v6")
        p(f"v_lshl_add_u32 v{vRV}, v2, 9, v6")
        p(f"v_xor_b32 v{vRQ+1}, 64, v{vRQ}")
        p(f"v_xor_b32 v{vRV+1}, 64, v{vRV}")
        p("v_mul_u32_u24 v6, 320, v5")
        p("v_add_u32 v6, v6, v3")
        p(f"v_lshl_add_u32 v{vRO}, v2, 11, v6")
        for t in range(1, 4):
            p(f"v_xor_b32 v{vRO+t}, {t*64}, v{vRO}")
        p(f"s_lshl_b32 s{sT1}, s{sT2}, 10")
        p(f"v_add_u32 v{vPA}, s{sT1}, v{vLIN}")
        p(f"v_xor_b32 v{vPA+1}, 0x400, v{vPA}")
        p(f"s_lshl_b32 s{sT0}, s{sW}, 9")
        p(f"s_add_u32 s{sT0}, s{sT0}, 8192")
        p(f"v_lshl_add_u32 v{vIW}, v{vL}, 3, s{sT0}")
        for g in range(1, ng):
            p(f"s_cmp_eq_u32 s{sCLS}, {g}")
            p(f"s_cbranch_scc1 L_class{g}")
        p("s_branch L_class0")
        p("L_exit:")
        p("s_endpgm")
        p(SPLIT)
        p(f"L_class{self.tag}:")
        p("s_barrier", after=self.xd)
        self.stamp()
        p(f"s_cmp_lg_u32 s{sH}, 15")
        p(f"s_cbranch_scc1 L_noset{self.tag}")
        p(f"s_lshl_b32 s3, s{sW}, 2")
        p(f"s_add_u32 s3, s3, s{sDO}")
        p("v_mov_b32 v2, 0")
        p("v_mov_b32 v3, 1")
        p("s_mov_b64 exec, 1")
        p(f"buffer_store_dword v3, v2, {srd(sDBG)}, s3 offen sc0 sc1", hidden=True)
        p("s_mov_b64 exec, -1")
        p(f"L_noset{self.tag}:")
        for f in self.all_dma():
            f()

    def descriptors(self):
        p, o = self.p, self.o
        p(f"s_lshl_b32 s{sT0}, s{sB}, 4")
        p(f"s_add_u32 s{sT0}, s{sT0}, s{sH}")
        p(f"s_xor_b32 s{sT1}, s{sBR}, 1")
        p(f"s_lshr_b32 s{sT0}, s{sT0}, s{sT1}")
        p(f"s_lshl_b32 s{sT0}, s{sT0}, 18")
        for r, src in ((sK, 90), (sV, 92)):
            p(f"s_add_u32 s{r}, s{src}, s{sT0}")
            p(f"s_addc_u32 s{r+1}, s{src+1}, 0")
            p(f"s_mov_b32 s{r+2}, 262144")
            p(f"s_mov_b32 s{r+3}, 0x20000")
        p(f"s_mul_i32 s{sT0}, s{sH}, 229376")
        p(f"s_add_u32 s{sO}, s86, s{sT0}")
        p(f"s_addc_u32 s{sO+1}, s87, 0")
        p(f"s_mov_b32 s{sO+2}, 229376")
        p(f"s_mov_b32 s{sO+3}, 0x20000")
        for r, src, n in ((sOUT, 96, 917504), (sDBG, 98, 256)):
            p(f"s_mov_b32 s{r}, s{src}")
            p(f"s_mov_b32 s{r+1}, s{src+1}")
            p(f"s_mov_b32 s{r+2}, {n}")
            p(f"s_mov_b32 s{r+3}, 0x20000")

    def store_setup(self):
        L = [f"s_mul_i32 s3, s{sGRP}, {GRP}", f"s_mul_i32 s4, s{sH}, 2048", "s_add_u32 s3, s3, s4",
             f"s_add_u32 s3, s3, {PBASE}", f"s_lshr_b32 s4, s{sW}, 1", "s_mul_i32 s4, s4, 7",
             f"s_mul_i32 s5, s{sT2}, 3", "s_add_u32 s4, s4, s5", f"s_lshl_b32 s7, s{sT2}, 1",
             f"v_mov_b32 v{vFL}, 0"]
        for t in range(4):
            L += [f"s_add_u32 s5, s{sT2}, {t}", "s_and_b32 s5, s5, 3", "s_add_u32 s5, s5, s4",
                  "s_lshr_b32 s6, s5, 1", "s_lshl_b32 s6, s6, 2", "s_and_b32 s5, s5, 1",
                  "s_add_u32 s5, s5, s6", "s_add_u32 s5, s5, s7"]
            for qi in range(2 if t < 3 else 1):
                if qi:
                    L.append("s_xor_b32 s5, s5, 2")
                L += ["s_lshl_b32 s6, s5, 15", f"s_add_u32 s{sPT + 2*t + qi}, s6, s3", "s_lshl_b32 s6, s5, 8",
                      f"v_writelane_b32 v{vFL}, s6, {2*(2*t+qi)}", "s_add_u32 s6, s6, 128",
                      f"v_writelane_b32 v{vFL}, s6, {2*(2*t+qi)+1}"]
        return self.lines(L)

    def softmax_tile(self, t, packed=False):
        seq = []
        for qt in range(2):
            s = ACC + (t * 2 + qt) * 16
            m, l = vMC + t * 2 + qt, vLS + t * 2 + qt
            seq.append(f"v_max3_f32 v{m}, v{s}, v{s+1}, v{s+2}")
            for k in range(3, 15, 2):
                seq.append(f"v_max3_f32 v{m}, v{m}, v{s+k}, v{s+k+1}")
            seq.append(f"v_max_f32 v{m}, v{m}, v{s+15}")
            seq.append(f"v_mul_f32 v{m}, s{sC}, v{m}")
            if packed:
                for k in range(0, 16, 2):
                    seq.append(f"v_pk_fma_f32 {vr(s+k,2)}, {vr(s+k,2)}, s[{sC}:{sC+1}], {vr(m & ~1, 2)} "
                               f"op_sel:[0,0,{m & 1}] op_sel_hi:[1,0,{m & 1}] neg_lo:[0,0,1] neg_hi:[0,0,1]")
                for k in range(16):
                    seq.append(f"v_exp_f32 v{s+k}, v{s+k}")
                    if k == 4:
                        seq.append(f"v_pk_add_f32 v[2:3], {vr(s,2)}, {vr(s+2,2)}")
                    elif k > 4 and k % 2 == 0:
                        seq.append(f"v_pk_add_f32 v[2:3], v[2:3], {vr(s+k-2,2)}")
                seq.append(f"v_pk_add_f32 v[2:3], v[2:3], {vr(s+14,2)}")
                seq.append(f"v_add_f32 v{l}, v2, v3")
            else:
                for k in range(16):
                    seq.append(f"v_fma_f32 v{s+k}, v{s+k}, s{sC}, -v{m}")
                for k in range(16):
                    seq.append(f"v_exp_f32 v{s+k}, v{s+k}")
                    if k == 2:
                        seq.append(f"v_add_f32 v{l}, v{s}, v{s+1}")
                    elif k > 2:
                        seq.append(f"v_add_f32 v{l}, v{l}, v{s+k-1}")
                seq.append(f"v_add_f32 v{l}, v{l}, v{s+15}")
        return self.lines(seq)

    def softmax_combine(self):
        p = self.p
        T = 64
        L = []
        q = lambda t: L.append(lambda: p(t))
        w1 = []
        for qt in range(2):
            m = [vMC + t * 2 + qt for t in range(4)]
            q(f"v_max3_f32 v{T+qt}, v{m[0]}, v{m[1]}, v{m[2]}")
            q(f"v_max_f32 v{T+qt}, v{T+qt}, v{m[3]}")
        for k in range(8):
            q(f"v_sub_f32 v{T+4+k}, v{vMC+k}, v{T + k % 2}")
        for k in range(8):
            q(f"v_exp_f32 v{T+4+k}, v{T+4+k}")
        q(f"v_pk_mul_f32 {vr(T+2,2)}, {vr(vLS,2)}, {vr(T+4,2)}")
        for t in range(1, 4):
            q(f"v_pk_fma_f32 {vr(T+2,2)}, {vr(vLS+2*t,2)}, {vr(T+4+2*t,2)}, {vr(T+2,2)}")
        q(f"v_permlane32_swap_b32 v{T}, v{T+1}")
        q(f"v_permlane32_swap_b32 v{T+2}, v{T+3}")
        q(f"v_max_f32 v{T+8}, v{T}, v{T+1}")
        q(f"v_sub_f32 v{T+4}, v{T}, v{T+8}")
        q(f"v_sub_f32 v{T+5}, v{T+1}, v{T+8}")
        q(f"v_exp_f32 v{T+4}, v{T+4}")
        q(f"v_exp_f32 v{T+5}, v{T+5}")
        q(f"v_mul_f32 v{T+9}, v{T+2}, v{T+4}")
        q(f"v_fmac_f32 v{T+9}, v{T+3}, v{T+5}")
        for r in range(4):
            L.append(lambda r=r: w1.append(p(f"ds_write_b64 v{vIW}, {vr(T+8,2)} offset:{r*16384}")))
        L.append(lambda: p("s_barrier", after=w1))
        for r in range(4):
            q(f"ds_read_b64 {vr(T+10+2*r,2)}, v{vIR} offset:{r*512}")
        q(f"v_max3_f32 v{T}, v{T+10}, v{T+12}, v{T+14}")
        q(f"v_max_f32 v{T}, v{T}, v{T+16}")
        for r in range(4):
            q(f"v_sub_f32 v{T+4+r}, v{T+10+2*r}, v{T}")
        for r in range(4):
            q(f"v_exp_f32 v{T+4+r}, v{T+4+r}")
        q(f"v_mul_f32 v{T+1}, v{T+11}, v{T+4}")
        for r in range(1, 4):
            q(f"v_fmac_f32 v{T+1}, v{T+11+2*r}, v{T+4+r}")
        q(f"v_log_f32 v{T+1}, v{T+1}")
        q(f"v_add_f32 v{T}, v{T}, v{T+1}")
        q(f"v_mov_b32 v{T+1}, v{T}")
        q(f"v_permlane32_swap_b32 v{T}, v{T+1}")
        for k in range(8):
            q(f"v_sub_f32 v{vMC+k}, v{vMC+k}, v{T + k % 2}")
        for k in range(8):
            q(f"v_exp_f32 v{vMC+k}, v{vMC+k}")
        return L

    def publish_p(self, t, w, packed):
        p = self.p
        L = []
        for qt in range(2):
            s, f = ACC + (t * 2 + qt) * 16, vMC + t * 2 + qt
            for ks in range(2):
                b = s + ks * 8
                if packed:
                    L += self.lines([f"v_pk_mul_f32 {vr(b+k,2)}, {vr(b+k,2)}, {vr(f & ~1, 2)} "
                                     f"op_sel:[0,{f & 1}] op_sel_hi:[1,{f & 1}]" for k in range(0, 8, 2)])
                else:
                    L += self.lines([f"v_mul_f32 v{b+k}, v{b+k}, v{f}" for k in range(8)])
                L += self.lines([f"v_cvt_pk_bf16_f32 v{b+k}, v{b+2*k}, v{b+2*k+1}" for k in range(4)])
                x = f"ds_write_b128 v{vWR}, {vr(b,4)} offset:{((t*2+ks)*2+qt)*1024}"
                L.append(lambda x=x: w.append(p(x)))
        return L

    def out_proj(self, wq, ow, extra):
        p, o = self.p, self.o
        ks = o["ksplit"]
        assert 8 <= ks <= 16
        units = [(0, 0), (1, 0), (2, 0), (3, 0), (0, 1), (1, 1), (2, 1)]
        other = 160 - self.own

        def oreg(s, qi):
            if s < ks:
                b = 240 + (s % 2) * 8
            else:
                b = other + (s - ks) * 8 if s - ks < 4 else self.own + (s - ks - 4) * 8
            return b + qi * 4

        def oread(s):
            return self.lines([f"ds_read_b128 {vr(oreg(s, qi), 4)}, v{vPA+qi} "
                               f"offset:{(s // 4)*16384 + (s % 4)*2048}" for qi in range(2)])

        def mfma(k, s):
            t, qi = units[k]
            acc = vr(ACC + 16 * k, 16)
            return f"{MF} {acc}, {ar(self.wreg(s) + t*4, 4)}, {vr(oreg(s, qi), 4)}, {'0' if s == 0 else acc}"

        def finish(k):
            t, qi = units[k]
            acc, d = ACC + 16 * k, (48, 56, 32)[k % 3]
            L = []
            for half in range(2):
                for j in range(4):
                    L.append(f"v_cvt_pk_bf16_f32 v{d+half*4+j}, v{acc+half*8+2*j}, v{acc+half*8+2*j+1}")
                off = " offset:1024" if half else ""
                L.append(f"buffer_store_dwordx4 {vr(d+half*4,4)}, v{vLIN}, {srd(sWS)}, s{sPT+2*t+qi} "
                         f"offen{off} sc0 sc1")
            return L
        tail = list(range(ks, 16))
        wq = list(wq)
        p("s_barrier", after=ow)
        for f in oread(0):
            f()
        for s in range(ks):
            late = oread(s + 1) if s + 1 < ks else []
            for _ in range((len(tail) + ks - s - 1) // (ks - s)):
                if tail[0] - ks < 4 or s > tail[0] - ks - 4:
                    late += oread(tail.pop(0))
            early, rel = self.all_dma(), []
            for _ in range((len(wq) + ks - s - 1) // (ks - s) if len(wq) >= ks - s else min(1, len(wq))):
                u = wq.pop(0)
                assert int(u[1:]) > s
                if not self.unit.get(u, (0, []))[1]:
                    for f in early + self.all_dma(NSLOT):
                        f()
                    early = []
                it, d = self.unit_reads(u, 0)
                late += it
                rel.append((u, d))
            fill, extra = extra[:8], extra[8:]
            self.window([mfma(k, s) for k in range(7)], early, late, fill)
            for u, d in rel:
                self.release(u, d)
        assert not wq and not self.issue_q and not tail
        for f in extra:
            f()
        prev = []
        for k in range(7):
            chain = [mfma(k, s) for s in range(ks, 16)]
            for i, m in enumerate(chain):
                p(m)
                if i >= 1:
                    n = (len(prev) + len(chain) - i - 1) // (len(chain) - i)
                    for t in prev[:n]:
                        p(t)
                    prev = prev[n:]
            for t in prev:
                p(t)
            prev = finish(k)
        for t in prev:
            p(t)

    def tail_setup(self):
        return self.lines([
            f"s_lshl_b32 s{sJ}, s{sGRP}, 1", f"s_add_u32 s{sJ}, s{sJ}, s{sH}", f"s_and_b32 s{sJ}, s{sJ}, 15",
            f"s_lshl_b32 s3, s{sGRP}, 13", f"s_add_u32 s3, s3, {FBASE}",
            f"s_lshl_b32 s5, s{sJ}, 2", f"s_add_u32 s5, s5, s{sW}", "s_lshl_b32 s4, s5, 7",
            f"s_add_u32 s{sINB}, s3, s4", "v_mov_b32 v5, 1", "v_mov_b32 v7, 0",
            f"v_and_b32 v{vRDY}, v{vRDY}, v{vRDY+1}", f"v_and_b32 v{vRDY+2}, v{vRDY+2}, v{vRDY+3}",
            f"v_and_b32 v{vRDY}, v{vRDY}, v{vRDY+2}",
            f"s_mul_i32 s6, s{sGRP}, {GRP}", "s_lshr_b32 s4, s5, 1",
            "s_lshl_b32 s4, s4, 15", "s_add_u32 s6, s6, s4",
            f"s_lshl_b32 s4, s{sT2}, 10", "s_add_u32 s6, s6, s4", f"s_add_u32 s6, s6, {PBASE}",
            f"s_lshl_b32 s7, s{sB}, 1", f"s_and_b32 s4, s{sJ}, 1", "s_add_u32 s7, s7, s4",
            f"s_mul_i32 s7, s7, {32*1792}", f"s_mul_i32 s4, s{sBR}, 896", "s_add_u32 s7, s7, s4",
            f"s_lshr_b32 s4, s{sJ}, 1", "s_lshl_b32 s4, s4, 7", "s_add_u32 s7, s7, s4",
            f"s_lshl_b32 s4, s{sW}, 5", "s_add_u32 s7, s7, s4",
            f"v_and_b32 v2, 31, v{vL}", "v_mul_u32_u24 v2, 1792, v2", f"v_lshrrev_b32 v3, 5, v{vL}",
            "v_lshl_add_u32 v2, v3, 4, v2"] + self.select_setup())

    @staticmethod
    def select_setup():
        L = [f"v_bfe_u32 v9, v{vL}, 2, 1", "v_xor_b32 v9, v9, v3", f"v_bfe_u32 v10, v{vL}, 4, 1",
             "v_or_b32 v9, v9, v10", "v_lshlrev_b32 v9, 2, v9", f"v_bfe_u32 v10, v{vL}, 3, 1",
             "v_lshl_add_u32 v9, v10, 1, v9", f"v_bfe_u32 v10, v{vL}, 1, 1", "v_add_u32 v9, v9, v10",
             f"v_and_b32 v10, 1, v{vL}", "v_lshlrev_b32 v10, 4, v10", "v_mov_b32 v11, 0x3f80",
             "v_lshlrev_b32 v10, v10, v11"]
        for k in range(4):
            L += [f"v_cmp_eq_u32 vcc, {k}, v9", f"v_cndmask_b32 v{vSEL+k}, 0, v10, vcc"]
        return L

    def handoff(self):
        p, g = self.p, self.tag
        p(f"v_cmp_eq_u32 vcc, 1, v{vRDY}")
        p("s_mov_b32 s5, 100000")
        p(f"s_cbranch_vccnz L_go{g}")
        p(f"L_ready{g}:")
        p(f"buffer_load_dwordx4 {vr(vRDY,4)}, v7, {srd(sDBG)}, s{sDO} offen sc0 sc1", hidden=True)
        p("s_sub_u32 s5, s5, 1")
        p("s_cmp_eq_u32 s5, 0")
        p("s_waitcnt vmcnt(0)", hidden=True)
        p(f"s_cbranch_scc1 L_go{g}")
        p(f"v_and_b32 v{vRDY}, v{vRDY}, v{vRDY+1}")
        p(f"v_and_b32 v{vRDY+2}, v{vRDY+2}, v{vRDY+3}")
        p(f"v_and_b32 v{vRDY}, v{vRDY}, v{vRDY+2}")
        p(f"v_cmp_eq_u32 vcc, 1, v{vRDY}")
        p(f"s_cbranch_vccz L_ready{g}")
        p(f"L_go{g}:")
        lanes = [3 << (2 * (2 * t + qi)) for t, qi in ((0, 0), (1, 0), (2, 0), (3, 0), (0, 1), (1, 1), (2, 1))]
        done = 0
        for n, upto in enumerate(self.o["signal"]):
            p(f"s_mov_b64 exec, {hex(sum(lanes[done:upto]))}")
            p(f"s_waitcnt vmcnt({2 * (7 - upto) + n})")
            p(f"buffer_atomic_add v5, v{vFL}, {srd(sWS)}, s3 offen sc1")
            done = upto
        assert done == 7
        p("s_mov_b64 exec, -1")

    def poll(self):
        p, g = self.p, self.tag
        p("s_mov_b32 s5, 100000")
        p("s_mov_b64 exec, 1")
        p(f"L_poll{g}:")
        p("v_mov_b32 v3, 0")
        p(f"buffer_atomic_add v3, v7, {srd(sWS)}, s{sINB} offen sc0 sc1", hidden=True)
        p("s_waitcnt vmcnt(0)")
        p("v_cmp_eq_u32 vcc, 16, v3")
        p(f"s_cbranch_vccnz L_polled{g}")
        p("s_sub_u32 s5, s5, 1")
        p("s_cmp_lg_u32 s5, 0")
        p(f"s_cbranch_scc1 L_poll{g}")
        p(f"L_polled{g}:")
        p("s_mov_b64 exec, -1")

    def reduce(self):
        p = self.p
        D, T = 64, 56
        for i in range(16):
            off = " offset:2048" if i % 2 else ""
            p(f"buffer_load_dwordx4 {vr(D+4*i,4)}, v{vLIN}, {srd(sWS)}, s6 offen{off} sc0 sc1")
            if i % 2 and i < 15:
                p("s_addk_i32 s6, 4096")
        for i in range(16):
            p(f"{MF} {vr(ACC,16)}, {vr(vSEL,4)}, {vr(D+4*i,4)}, {vr(ACC,16) if i else 0}")
        for j in range(4):
            p(f"v_cvt_pk_bf16_f32 v{T+j}, v{ACC+2*j}, v{ACC+2*j+1}")
        p(f"buffer_store_dwordx4 {vr(T,4)}, v2, {srd(sOUT)}, s7 offen")

    def dump_stamps(self):
        p = self.p
        if not self.o["stamps"]:
            return
        p("s_waitcnt vmcnt(0)")
        self.stamp("end")
        p("s_lshl_b32 s3, s2, 2")
        p(f"s_add_u32 s3, s3, s{sW}")
        p("s_lshl_b32 s3, s3, 6")
        p("v_mov_b32 v2, 0")
        p("s_mov_b64 exec, 1")
        for k in range(self.nstamp):
            p(f"v_mov_b32 v3, s{sST + k}")
            p(f"buffer_store_dword v3, v2, {srd(sWS)}, s3 offen offset:{4*k}")

    def body(self):
        p, o, sc, g = self.p, self.o, self.sc, self.tag
        self.prologue()
        p("; phase 1")
        pend = self.run_phase(sc["ph1"], self.store_setup(), 8,
                              before=lambda u: [lambda: p("s_barrier")] if u == "Q9" else [])
        assert not self.fillq
        qw = self.last_window(pend, self.all_dma(), lambda j, q: (vWR, (j * 2 + q) * 1024))
        self.stamp()
        p("; phase 2")
        cur = 160 - self.own
        self.bufs, self.buf = (cur, cur + 16), 0
        left = {t: 4 for t in range(4)}
        have = {0}

        def need_q(u):
            if u[0] == "W":
                return []
            i = int(u[1:]) % 4
            if i in have:
                return []
            L = []
            if len(have) == 1:
                L.append(lambda: p("s_barrier", after=qw))
            have.add(i)
            L += self.lines([f"ds_read_b128 {ar((i*8 + k)*4, 4)}, v{vQA+i-1} offset:{k*1024}" for k in range(8)])
            return L

        def tile_done(u):
            if u[0] == "W":
                return []
            t = int(u[1:]) // 4
            left[t] -= 1
            return self.softmax_tile(t) if left[t] == 0 else []
        pend = self.run_phase(sc["ph2"], (), o["fill2"], after=tile_done, before=need_q)
        take, rest = self.fillq[:o["fill2"]], self.fillq[o["fill2"]:]
        self.window(pend, self.all_dma(), [], take)
        self.stamp()
        last = [t for t in left if left[t] == 1]
        assert len(last) == 1
        pw = []
        L = rest + self.softmax_tile(last[0], True) + self.softmax_combine() + \
            self.publish_p(0, pw, True) + self.publish_p(1, pw, True)
        self.spread(L, [self.stage(u) for u in sc["mid2"]] + [self.one_more() for _ in range(o["more2"])])
        p("s_barrier", after=pw)
        self.stamp()
        p("; phase 3")
        self.bufs, self.buf = (64, 96), 0
        pw = []
        setup = ["v_mov_b32 v2, 0", f"buffer_load_dwordx4 {vr(vRDY,4)}, v2, {srd(sDBG)}, s{sDO} offen sc1",
                 f"s_lshl_b32 s3, s{sT2}, 10", f"v_add_u32 v{vWA}, s3, v{vWR}", f"v_xor_b32 v{vWB}, 0x400, v{vWA}"]
        fill = self.publish_p(2, pw, False) + self.publish_p(3, pw, False) + self.lines(setup)

        def p_ready(u):
            if u != "V8":
                return []
            L, self.fillq = self.fillq, []
            return L + [lambda: p("s_barrier", after=pw + self.side["V7"])]
        pend = self.run_phase(sc["ph3"], fill, o["fill3"], before=p_ready)
        self.stamp()
        ow = self.last_window(pend, [], lambda j, q: (vWB if q else vWA, j * 2048))
        for f in self.all_dma(o["lastla"]):
            f()
        self.stamp()
        p("; phase 4")
        self.out_proj(sc["ph4"], ow, self.tail_setup())
        self.stamp()
        self.handoff()
        self.stamp()
        if o["stamps"]:
            p(f"s_mov_b32 s{sST + self.nstamp}, s100")
        p(f"s_cmp_ge_u32 s{sJ}, 14")
        p(f"s_cbranch_scc1 L_fin{g}")
        self.poll()
        self.stamp()
        self.reduce()
        p(f"L_fin{g}:")
        self.dump_stamps()
        p("s_endpgm")
        return p.finalize()


DOC = """
;
"""
NSTAMP = 0
ORDERS = []


def build(**kw):
    global NSTAMP
    ORDERS.clear()
    ref = open(f"cdna_kernels/{NAME}.s.ref").read().splitlines() if kw.pop("header", True) else []
    head = [l for l in ref if l.startswith(";") and "@launch" not in l and "Override" not in l
            and "grid=ceil" not in l]
    o = dict(DEFAULT, **kw)
    k1 = NAME + "_kernel"
    common, body = None, ""
    for i, spec in enumerate(o["groups"]):
        kc = dict(kw)
        if not isinstance(spec, str):
            kc.update(spec[1])
            spec = spec[0]
        g = Gen(schedule(spec, o["nmid"], kc.get("tper", o["tper"])), str(i), **kc)
        pre, post = g.body().split("    " + SPLIT + "\n")
        assert common in (None, pre)
        common = pre
        body += ".p2align 6\n" + post
        NSTAMP = g.nstamp if o["stamps"] else 0
        ORDERS.append(g.order)
    head.append("; @launch grid=(256,1,1) block=(256,1,1) lds=163840")
    head += DOC.strip().splitlines()
    return "\n".join(head) + f"""
.amdgcn_target "amdgcn-amd-amdhsa--gfx950"
.text
.globl {k1}
.p2align 8
.type {k1},@function
{k1}:
{common}{body}L_codeend:
.section .rodata,"a"
.p2align 6
.amdhsa_kernel {k1}
  .amdhsa_next_free_vgpr 512
  .amdhsa_next_free_sgpr 102
  .amdhsa_accum_offset 256
  .amdhsa_group_segment_fixed_size 0
  .amdhsa_kernarg_size 104
  .amdhsa_user_sgpr_count 2
  .amdhsa_user_sgpr_kernarg_segment_ptr 1
  .amdhsa_system_sgpr_workgroup_id_x 1
.end_amdhsa_kernel
"""


if __name__ == "__main__":
    kw = {}
    out = sys.argv[1]
    for a in sys.argv[2:]:
        k, v = a.split("=", 1)
        try:
            kw[k] = eval(v)
        except (NameError, SyntaxError):
            kw[k] = v
    open(out, "w").write(build(**kw))
```
